```python
import torch

def _softmax(x, axis=-1):
    return torch.softmax(x, dim=axis)
def _gelu(x):
    return torch.nn.functional.gelu(x, approximate="tanh")
def _silu(x):
    return torch.nn.functional.silu(x)
def _sigmoid(x):
    return torch.sigmoid(x)
def _layernorm(x, axis=-1, eps=1e-5):
    m = x.mean(dim=axis, keepdim=True)
    v = x.var(dim=axis, keepdim=True, unbiased=False)
    return (x - m) / torch.sqrt(v + eps)
def _scatter_add(tgt, idx, src, axis=0):
    return tgt.clone().index_add_(axis, idx, src)
def _segment_sum(src, seg, n):
    out = torch.zeros((n,) + src.shape[1:], dtype=src.dtype)
    return out.index_add_(0, seg, src)
def _pad(x, pw):
    flat = tuple(v for pair in reversed(pw) for v in pair)
    return torch.nn.functional.pad(x, flat)

kernel_name = 'gated_mix__ssm_conv_s4__geglu_ffn__prompt'

def setup_inputs():

    _w = (lambda a: (lambda t: t.to(torch.bfloat16) if t.is_floating_point() else t)(torch.as_tensor(a)))
    def _A_setup():
        B, L, D, N = 1, 2048, 512, 128
        A_re = -(lambda _x: torch.exp(torch.as_tensor(_x)))((lambda *s: torch.randn(*s, dtype=torch.bfloat16) * 3.2)(D, N))
        A_im = torch.pi * (lambda *s: torch.randn(*s, dtype=torch.bfloat16) * 0.05)(D, N)
        B_re = (lambda *s: torch.randn(*s, dtype=torch.bfloat16) * 0.1)(D, N)
        B_im = (lambda *s: torch.randn(*s, dtype=torch.bfloat16) * 0.1)(D, N)
        C_re = (lambda *s: torch.randn(*s, dtype=torch.bfloat16) * 0.1)(D, N)
        C_im = (lambda *s: torch.randn(*s, dtype=torch.bfloat16) * 0.1)(D, N)
        log_dt = (lambda *s: torch.randn(*s, dtype=torch.bfloat16) * 0.05)(D) * 0.5 - 4.0
        Dskip = (lambda *s: torch.randn(*s, dtype=torch.bfloat16) * 0.05)(D)
        return {
            "u": _w((lambda *s: torch.randn(*s, dtype=torch.bfloat16) * 0.05)(B, L, D)),
            "A_re": _w(A_re),
            "A_im": _w(A_im),
            "B_re": _w(B_re),
            "B_im": _w(B_im),
            "C_re": _w(C_re),
            "C_im": _w(C_im),
            "log_dt": _w(log_dt),
            "Dskip": _w(Dskip),
        }
    _A_in = _A_setup()

    def _B_setup():
        B, S, D, F = 1, 2048, 512, 1792
        return {
            "x": _w((lambda *s: torch.randn(*s, dtype=torch.bfloat16) * 0.05)(B, S, D)),
            "w_gate": _w((lambda *s: torch.randn(*s, dtype=torch.bfloat16) * 0.05)(D, F)),
            "w_up": _w((lambda *s: torch.randn(*s, dtype=torch.bfloat16) * 0.05)(D, F)),
            "w_down": _w((lambda *s: torch.randn(*s, dtype=torch.bfloat16) * 0.05)(F, D)),
        }
    _B_in = _B_setup()

    return {
        "A_u": _A_in["u"],
        "A_A_re": _A_in["A_re"],
        "A_A_im": _A_in["A_im"],
        "A_B_re": _A_in["B_re"],
        "A_B_im": _A_in["B_im"],
        "A_C_re": _A_in["C_re"],
        "A_C_im": _A_in["C_im"],
        "A_log_dt": _A_in["log_dt"],
        "A_Dskip": _A_in["Dskip"],
        "B_x": _B_in["x"],
        "B_w_gate": _B_in["w_gate"],
        "B_w_up": _B_in["w_up"],
        "B_w_down": _B_in["w_down"],
        "gate_w": _w((lambda *s: torch.randn(*s, dtype=torch.bfloat16) * 0.05)(512) * 16.0),
    }

def reference(A_u, A_A_re, A_A_im, A_B_re, A_B_im, A_C_re, A_C_im, A_log_dt, A_Dskip, B_x, B_w_gate, B_w_up, B_w_down, gate_w):
    def _A_ref(u, A_re, A_im, B_re, B_im, C_re, C_im, log_dt, Dskip):
        Bsz, L, D = u.shape
        dt = torch.exp(log_dt)[:, None]
        A = A_re + 1j * A_im
        Bc = B_re + 1j * B_im
        Cc = C_re + 1j * C_im
        logdA = dt * A
        dB = dt * Bc
        l = (lambda x, dt: x.to(dt))(torch.arange(L), A_re.dtype)
        P = torch.exp(logdA[:, :, None] * l[None, None, :])
        K = torch.einsum("dn,dnl,dn->dl", Cc, P, dB).real
        L2 = 2 * L
        Kp = _pad(K, ((0, 0), (0, L)))
        up = (lambda x, *d: x.permute(*d))(u, 0, 2, 1)
        up = _pad(up, ((0, 0), (0, 0), (0, L)))
        Kf = (lambda x, axes=(-2,-1): torch.fft.rfft2(x.float(), dim=axes))(Kp[:, None, :], axes=(-2, -1))
        Uf = (lambda x, axes=(-2,-1): torch.fft.rfft2(x.float(), dim=axes))(up[:, :, None, :], axes=(-2, -1))
        Yf = Uf * Kf[None, :, :, :]
        y = (lambda x, s, axes=(-2,-1): torch.fft.irfft2(x, s=s, dim=axes).to(torch.bfloat16))(Yf, (1, L2), axes=(-2, -1))[:, :, 0, :L]
        y = (lambda x, *d: x.permute(*d))(y, 0, 2, 1) + u * Dskip[None, None, :]
        return y

    def _B_ref(x, w_gate, w_up, w_down):
        return (_gelu(x @ w_gate) * (x @ w_up)) @ w_down

    x = A_u
    g = _sigmoid((x * gate_w).sum(-1, keepdims=True))
    a = _A_ref(x, A_A_re, A_A_im, A_B_re, A_B_im, A_C_re, A_C_im, A_log_dt, A_Dskip)
    b = _B_ref(x, B_w_gate, B_w_up, B_w_down)
    return g * a + (1 - g) * b
```

```python
import sys, struct, math

OPTS = dict(a.split("=") for a in sys.argv[2:])
STAMP = int(OPTS.get("stamp", 0))

WS_H, WS_WD, WS_UT, WS_KI = 0x0, 0x800000, 0xA00000, 0xC00000
WS_G, WS_GA, WS_FLAG, WS_STAMP = 0x1000000, 0x1100000, 0x1300000, 0x1400000
WS_BYTES = 0x10000000

L = []
def A(s):
    for line in s.strip("\n").split("\n"):
        L.append(line if line.rstrip().endswith(":") or line.lstrip().startswith(".") else "    " + line.strip())

def fbits(x):
    return "0x%08x" % struct.unpack("<I", struct.pack("<f", x))[0]

def vr(b, n):
    return f"v[{b}:{b+n-1}]"

def srd(base, size):
    A(f"s_mov_b32 s{base+2}, {size:#x}\ns_mov_b32 s{base+3}, 0x00020000")

def stamp(idx):
    if STAMP:
        A(f"s_memrealtime s[{80+2*idx}:{81+2*idx}]")

def stamp_flush(kern, nst, wsreg):
    if not STAMP:
        return
    A(f"""
    s_waitcnt vmcnt(0) lgkmcnt(0)
    s_memrealtime s[{80+2*nst}:{81+2*nst}]
    s_waitcnt lgkmcnt(0)
    s_mov_b64 exec, -1
    v_lshrrev_b32 v1, 6, v0
    s_lshl_b32 s3, s2, 2
    v_add_u32 v1, s3, v1
    v_lshlrev_b32 v1, 5, v1
    v_add_u32 v1, {WS_STAMP + kern*512*4*32}, v1
    """)
    for i in range(8):
        A(f"v_mov_b32 v{4+i}, s{80+2*min(i, nst)}")
    A(f"""
    v_and_b32 v2, 63, v0
    v_cmp_eq_u32 vcc, 0, v2
    s_and_saveexec_b64 s[4:5], vcc
    buffer_store_dwordx4 v[4:7], v1, s[{wsreg}:{wsreg+3}], 0 offen
    buffer_store_dwordx4 v[8:11], v1, s[{wsreg}:{wsreg+3}], 0 offen offset:16
    """)

HEADER = """; gated mix of an S4 long convolution and a GeGLU FFN, two launches.
; @launch kernel=k1_kernel grid=(512,1,1) block=(256,1,1) lds=81920
; @launch kernel=k2_kernel grid=(512,1,1) block=(256,1,1) lds=65536
"""

def gemm1():
    XB = 49152
    sW, sXoff, sWoff, sM0W, sM0X, sRd, sIt, sT = 24, 25, 26, 27, 28, 29, 30, 31
    sTB, sFB = 32, 33
    vXo = [2, 3, 4, 5]; vWo = [6, 7]; vWb, vWr = 8, 9; vXr = [10, 11, 12, 13]
    vT = 14
    FR = [16, 40]
    ACC = 128
    A(f"""
    s_load_dwordx2 s[8:9], s[0:1], 0
    s_load_dwordx2 s[12:13], s[0:1], 80
    s_load_dwordx2 s[16:17], s[0:1], 88
    s_load_dwordx2 s[20:21], s[0:1], 128
    v_lshrrev_b32 v{vT}, 6, v0
    v_and_b32 v1, 63, v0
    s_and_b32 s3, s2, 7
    s_lshr_b32 s4, s2, 3
    v_readfirstlane_b32 s{sW}, v{vT}
    s_lshr_b32 s{sTB}, s3, 1
    s_lshl_b32 s{sTB}, s{sTB}, 2
    s_and_b32 s5, s4, 3
    s_add_u32 s{sTB}, s{sTB}, s5
    s_and_b32 s{sFB}, s3, 1
    s_mul_i32 s{sFB}, s{sFB}, 7
    s_lshr_b32 s5, s4, 2
    s_add_u32 s{sFB}, s{sFB}, s5
    s_lshl_b32 s{sXoff}, s{sTB}, 17
    s_lshl_b32 s5, s{sW}, 15
    s_add_u32 s{sXoff}, s{sXoff}, s5
    s_mul_i32 s{sWoff}, s{sW}, {8*3584}
    s_lshl_b32 s5, s{sFB}, 8
    s_add_u32 s{sWoff}, s{sWoff}, s5
    s_lshl_b32 s{sM0W}, s{sW}, 12
    s_add_u32 s{sM0X}, s{sM0W}, {XB}
    v_lshrrev_b32 v{vT}, 4, v1
    v_and_b32 v{vT+1}, 7, v1
    v_xor_b32 v{vT+1}, v{vT+1}, v{vT}
    v_lshrrev_b32 v{vXo[0]}, 3, v1
    v_lshlrev_b32 v{vXo[0]}, 10, v{vXo[0]}
    v_lshl_add_u32 v{vXo[0]}, v{vT+1}, 4, v{vXo[0]}
    v_xor_b32 v{vXo[1]}, 64, v{vXo[0]}
    v_add_u32 v{vXo[2]}, {2*7168}, v{vXo[0]}
    v_add_u32 v{vXo[3]}, {3*7168}, v{vXo[1]}
    v_add_u32 v{vXo[1]}, 7168, v{vXo[1]}
    v_lshlrev_b32 v{vT+1}, 2, v{vT}
    v_and_b32 v{vWo[0]}, 15, v1
    v_xor_b32 v{vWo[0]}, v{vWo[0]}, v{vT+1}
    v_lshlrev_b32 v{vWo[0]}, 4, v{vWo[0]}
    v_mul_u32_u24 v{vT}, 3584, v{vT}
    v_add_u32 v{vWo[0]}, v{vWo[0]}, v{vT}
    v_add_u32 v{vWo[1]}, {4*3584-1024}, v{vWo[0]}
    """)
    srd(8, 2048*512*2); srd(12, 512*1792*2); srd(16, 512*1792*2 + 2048); srd(20, WS_BYTES)
    A("""
    s_waitcnt lgkmcnt(0)
    s_sub_u32 s16, s16, 2048
    s_subb_u32 s17, s17, 0
    """)

    def dma_x(m0expr_lines):
        out = list(m0expr_lines)
        for i in range(4):
            out.append(f"buffer_load_dwordx4 v{vXo[i]}, s[8:11], s{sXoff} offen offset:{1024*i} lds")
        return out
    def dma_w(m0expr_lines):
        out = list(m0expr_lines)
        out.append(f"buffer_load_dwordx4 v{vWo[0]}, s[12:15], s{sWoff} offen lds")
        out.append(f"buffer_load_dwordx4 v{vWo[1]}, s[12:15], s{sWoff} offen offset:1024 lds")
        out.append(f"buffer_load_dwordx4 v{vWo[0]}, s[16:19], s{sWoff} offen offset:2048 lds")
        out.append(f"buffer_load_dwordx4 v{vWo[1]}, s[16:19], s{sWoff} offen offset:3072 lds")
        return out
    WSTEP = 32*3584
    A("\n".join(dma_x([f"s_mov_b32 m0, s{sM0X}", "s_nop 0"])))
    A("\n".join(dma_w([f"s_mov_b32 m0, s{sM0W}", f"s_add_u32 s{sXoff}, s{sXoff}, 128"])))
    A("\n".join(dma_w([f"s_add_u32 m0, s{sM0W}, 16384", f"s_add_u32 s{sWoff}, s{sWoff}, {WSTEP}"])))
    A("\n".join(dma_x([f"s_add_u32 m0, s{sM0X}, 16384", f"s_add_u32 s{sWoff}, s{sWoff}, {WSTEP}"])))
    A("\n".join(dma_w([f"s_add_u32 m0, s{sM0W}, 32768", f"s_add_u32 s{sXoff}, s{sXoff}, 128"])))
    stamp(1)
    A(f"""
    s_add_u32 s{sWoff}, s{sWoff}, {WSTEP}
    v_lshrrev_b32 v{vT}, 2, v1
    v_and_b32 v{vT}, 3, v{vT}
    v_xor_b32 v{vT+1}, s{sW}, v{vT}
    v_lshlrev_b32 v{vWb}, 8, v{vT}
    v_lshl_add_u32 v{vWb}, v{vT+1}, 6, v{vWb}
    v_lshrrev_b32 v{vT}, 5, v1
    v_lshl_add_u32 v{vWb}, v{vT}, 12, v{vWb}
    v_and_b32 v{vT+1}, 16, v1
    v_lshl_add_u32 v{vWb}, v{vT+1}, 1, v{vWb}
    v_and_b32 v{vT+1}, 1, v1
    v_lshl_add_u32 v{vWb}, v{vT+1}, 4, v{vWb}
    v_and_b32 v{vT+1}, 2, v1
    v_lshl_add_u32 v{vWb}, v{vT+1}, 2, v{vWb}
    v_mov_b32 v{vWr}, v{vWb}
    v_lshrrev_b32 v{vT+1}, 1, v1
    v_and_b32 v{vT+1}, 7, v{vT+1}
    v_xor_b32 v{vT+1}, v{vT+1}, v{vT}
    v_and_b32 v{vXr[0]}, 31, v1
    v_lshlrev_b32 v{vXr[0]}, 7, v{vXr[0]}
    v_lshl_add_u32 v{vXr[0]}, v{vT+1}, 4, v{vXr[0]}
    v_add_u32 v{vXr[0]}, {XB}, v{vXr[0]}
    v_xor_b32 v{vXr[1]}, 32, v{vXr[0]}
    v_xor_b32 v{vXr[2]}, 64, v{vXr[0]}
    v_xor_b32 v{vXr[3]}, 0x60, v{vXr[0]}
    s_mov_b32 s{sRd}, 0
    s_mov_b32 s{sIt}, 0
    """)
    for i in range(64):
        A(f"v_mov_b64 {vr(ACC+2*i, 2)}, 0")

    def reads(fs, h, s4):
        f = FR[fs]
        r = []
        r.append(f"ds_read_b64_tr_b16 {vr(f+16,2)}, v{vWr} offset:{h*8192}")
        r.append(f"ds_read_b64_tr_b16 {vr(f+18,2)}, v{vWr} offset:{h*8192+1024}")
        r.append(f"ds_read_b128 {vr(f,4)}, v{vXr[s4]}")
        r.append(f"ds_read_b64_tr_b16 {vr(f+20,2)}, v{vWr} offset:{h*8192+2048}")
        r.append(f"ds_read_b64_tr_b16 {vr(f+22,2)}, v{vWr} offset:{h*8192+3072}")
        for tt in range(1, 4):
            r.append(f"ds_read_b128 {vr(f+4*tt,4)}, v{vXr[s4]} offset:{tt*4096}")
        return r
    def mfmas(fs):
        f = FR[fs]
        m = []
        for tt in range(4):
            m.append(f"v_mfma_f32_32x32x16_bf16 {vr(ACC+16*tt,16)}, {vr(f+16,4)}, {vr(f+4*tt,4)}, {vr(ACC+16*tt,16)}")
            m.append(f"v_mfma_f32_32x32x16_bf16 {vr(ACC+64+16*tt,16)}, {vr(f+20,4)}, {vr(f+4*tt,4)}, {vr(ACC+64+16*tt,16)}")
        return m
    def interleave(ms, fill, per):
        fill = list(fill)
        for m in ms:
            A(m)
            for _ in range(per):
                if fill: A(fill.pop(0))
        for x in fill: A(x)

    A("s_waitcnt vmcnt(12)\ns_barrier")
    stamp(2)
    A("\n".join(reads(0, 0, 0)))
    A("L_g1_loop:")
    for par in range(2):
        A("s_waitcnt lgkmcnt(0)")
        interleave(mfmas(0), reads(1, 1, 2*par+1), 2)
        A(f"s_waitcnt vmcnt({8 if par == 0 else 4}) lgkmcnt(0)\ns_barrier")
        fill = [f"s_add_u32 m0, s{sM0W}, s{sRd}",
                f"s_add_u32 s{sRd}, s{sRd}, 16384",
                f"s_cmp_eq_u32 s{sRd}, 49152",
                f"s_cselect_b32 s{sRd}, 0, s{sRd}",
                f"v_add_u32 v{vWr}, s{sRd}, v{vWb}"]
        if par == 1:
            fill += [f"v_xor_b32 v{vXr[i]}, 0x1c000, v{vXr[i]}" for i in range(4)]
        fill += reads(0, 0, 2 if par == 0 else 0)
        fill += dma_w([])
        fill += [f"s_add_u32 s{sWoff}, s{sWoff}, {WSTEP}"]
        if par == 1:
            fill += [f"s_mov_b32 m0, s{sM0X}",
                     f"s_cmp_ge_u32 s{sIt}, 6",
                     f"s_cselect_b32 s{sXoff}, 0x40000000, s{sXoff}"]
            fill += dma_x([])
            fill += [f"s_xor_b32 s{sM0X}, s{sM0X}, 0x1c000",
                     f"s_add_u32 s{sXoff}, s{sXoff}, 128",
                     f"s_add_u32 s{sIt}, s{sIt}, 1",
                     f"s_cmp_lt_u32 s{sIt}, 8"]
        interleave(mfmas(1), fill, 4 if par == 1 else 3)
    A("s_cbranch_scc1 L_g1_loop")
    stamp(3)
    C1 = -2.0 * math.log2(math.e) * math.sqrt(2.0/math.pi)
    C2 = C1 * 0.044715
    A(f"""
    s_mov_b32 s34, {fbits(C2)}
    s_mov_b32 s35, {fbits(C2)}
    v_mov_b32 v2, {fbits(C1)}
    v_mov_b32 v3, {fbits(C1)}
    v_lshlrev_b32 v4, 4, v1
    s_lshl_b32 s3, s{sTB}, 2
    s_mul_i32 s3, s3, 112
    s_lshl_b32 s4, s{sFB}, 3
    s_add_u32 s3, s3, s4
    s_lshl_b32 s4, s{sW}, 1
    s_add_u32 s3, s3, s4
    s_lshl_b32 s3, s3, 10
    s_waitcnt lgkmcnt(0)
    """)
    for tt in range(4):
        G = ACC + 16*tt; U = ACC + 64 + 16*tt
        O = 16 + 8*(tt & 1)
        T = 32
        for p in range(8): A(f"v_pk_mul_f32 {vr(T+2*p,2)}, {vr(G+2*p,2)}, {vr(G+2*p,2)}")
        for p in range(8): A(f"v_pk_fma_f32 {vr(T+2*p,2)}, {vr(T+2*p,2)}, s[34:35], v[2:3]")
        for p in range(8): A(f"v_pk_mul_f32 {vr(T+2*p,2)}, {vr(T+2*p,2)}, {vr(G+2*p,2)}")
        for p in range(16): A(f"v_exp_f32 v{T+p}, v{T+p}")
        for p in range(8): A(f"v_pk_mul_f32 {vr(G+2*p,2)}, {vr(G+2*p,2)}, {vr(U+2*p,2)}")
        for p in range(8): A(f"v_pk_add_f32 {vr(T+2*p,2)}, {vr(T+2*p,2)}, 1.0 op_sel_hi:[1,0]")
        for p in range(16): A(f"v_rcp_f32 v{T+p}, v{T+p}")
        A("s_nop 0")
        for p in range(8): A(f"v_pk_mul_f32 {vr(G+2*p,2)}, {vr(G+2*p,2)}, {vr(T+2*p,2)}")
        for p in range(8): A(f"v_cvt_pk_bf16_f32 v{O+p}, v{G+2*p}, v{G+2*p+1}")
        A(f"buffer_store_dwordx4 {vr(O,4)}, v4, s[20:23], s3 offen sc1")
        A(f"buffer_store_dwordx4 {vr(O+4,4)}, v4, s[20:23], s3 offen offset:1024 sc1")
        if tt < 3: A(f"s_add_u32 s3, s3, {112*1024}")
    stamp(4)
    stamp_flush(0, 5, 20)
    A("s_endpgm")

def cmul(d, a, b):
    A(f"v_pk_mul_f32 {vr(d,2)}, {vr(a,2)}, {vr(b,2)} op_sel_hi:[0,1]")
    A(f"v_pk_fma_f32 {vr(d,2)}, {vr(a,2)}, {vr(b,2)}, {vr(d,2)} op_sel:[1,1,0] op_sel_hi:[1,0,1] neg_lo:[0,1,0]")

def side():
    PITCH = 528
    TBL = [0, 57*PITCH]
    KD = 2*57*PITCH
    UTL = KD + 3072
    WDL = UTL + 8192
    assert WDL + 8192 <= 81920 and UTL % 16 == 0
    sW, sId = 40, 41
    L2E = math.log2(math.e)
    L2E_hi = struct.unpack("<f", struct.pack("<f", L2E))[0]
    L2E_lo = L2E - L2E_hi
    A(f"""
    s_load_dwordx16 s[16:31], s[0:1], 8
    s_load_dwordx2 s[8:9], s[0:1], 0
    s_load_dwordx2 s[12:13], s[0:1], 96
    s_load_dwordx2 s[32:33], s[0:1], 104
    s_load_dwordx2 s[36:37], s[0:1], 128
    s_sub_u32 s{sId}, s2, 256
    v_lshrrev_b32 v2, 6, v0
    v_and_b32 v1, 63, v0
    s_nop 0
    v_readfirstlane_b32 s{sW}, v2
    """)
    srd(8, 2048*512*2); srd(12, 1792*512*2); srd(36, WS_BYTES)
    A(f"""
    s_lshl_b32 s3, s{sId}, 8
    v_add_u32 v3, s3, v0
    v_lshlrev_b32 v3, 1, v3
    v_lshrrev_b32 v4, 7, v3
    v_and_b32 v4, 0xfffffffe, v4
    s_waitcnt lgkmcnt(0)
    global_load_ushort v10, v4, s[28:29]
    global_load_ushort v11, v3, s[16:17]
    global_load_ushort v12, v3, s[18:19]
    global_load_ushort v13, v3, s[20:21]
    global_load_ushort v14, v3, s[22:23]
    global_load_ushort v15, v3, s[24:25]
    global_load_ushort v16, v3, s[26:27]
    """)
    A(f"""
    s_lshr_b32 s3, s{sId}, 3
    s_lshl_b32 s3, s3, 16
    s_and_b32 s4, s{sId}, 7
    s_lshl_b32 s4, s4, 7
    s_add_u32 s3, s3, s4
    s_lshl_b32 s4, s{sW}, 14
    s_add_u32 s3, s3, s4
    v_lshrrev_b32 v5, 3, v1
    v_lshlrev_b32 v5, 10, v5
    v_and_b32 v6, 7, v1
    v_lshl_add_u32 v5, v6, 4, v5
    v_add_u32 v6, 7168, v5
    s_lshl_b32 s4, s{sW}, 11
    s_add_u32 m0, s4, {UTL}
    s_nop 0
    buffer_load_dwordx4 v5, s[8:11], s3 offen lds
    buffer_load_dwordx4 v6, s[8:11], s3 offen offset:1024 lds
    """)
    A(f"""
    s_lshr_b32 s3, s{sId}, 1
    s_lshl_b32 s3, s3, 14
    s_and_b32 s5, s{sId}, 1
    s_lshl_b32 s5, s5, 9
    s_add_u32 s3, s3, s5
    s_lshl_b32 s5, s{sW}, 12
    s_add_u32 s3, s3, s5
    v_lshrrev_b32 v5, 5, v1
    v_lshlrev_b32 v5, 10, v5
    v_and_b32 v6, 31, v1
    v_lshl_add_u32 v5, v6, 4, v5
    v_add_u32 v6, 1024, v5
    s_add_u32 m0, s4, {WDL}
    s_nop 0
    buffer_load_dwordx4 v5, s[12:15], s3 offen lds
    buffer_load_dwordx4 v6, s[12:15], s3 offen offset:1024 lds
    """)
    A(f"""
    s_lshl_b32 s3, s{sId}, 13
    s_add_u32 s3, s3, s4
    v_lshlrev_b32 v5, 4, v1
    buffer_load_dwordx4 v[100:103], v5, s[8:11], s3 offen
    buffer_load_dwordx4 v[104:107], v5, s[8:11], s3 offen offset:1024
    global_load_dwordx4 v[108:111], v5, s[32:33]
    """)
    A(f"""
    s_cmp_lg_u32 s{sId}, 0
    s_cbranch_scc1 L_side_noflag
    v_lshlrev_b32 v6, 2, v0
    v_add_u32 v6, {WS_FLAG}, v6
    v_mov_b32 v7, 0
    buffer_store_dword v7, v6, s[36:39], 0 offen sc1
    s_waitcnt vmcnt(0)
L_side_noflag:
    """)
    A(f"""
    s_waitcnt vmcnt(7)
    v_lshlrev_b32 v10, 16, v10
    v_lshlrev_b32 v11, 16, v11
    v_lshlrev_b32 v12, 16, v12
    v_lshlrev_b32 v13, 16, v13
    v_lshlrev_b32 v14, 16, v14
    v_lshlrev_b32 v15, 16, v15
    v_lshlrev_b32 v16, 16, v16
    s_mov_b32 s3, {fbits(L2E_hi)}
    s_mov_b32 s5, {fbits(L2E_lo)}
    v_mul_f32 v17, s3, v10
    v_fma_f32 v18, v10, s3, -v17
    v_fma_f32 v18, v10, s5, v18
    v_exp_f32 v17, v17
    v_mul_f32 v18, {fbits(math.log(2.0))}, v18
    v_fma_f32 v17, v17, v18, v17
    v_cvt_pk_bf16_f32 v17, v17, v17
    v_and_b32 v17, 0xffff0000, v17
    v_mul_f32 v11, v17, v11
    v_mul_f32 v12, v17, v12
    v_mul_f32 v18, v17, v13
    v_mul_f32 v19, v17, v14
    v_mov_b32 v14, v15
    v_mov_b32 v15, v16
    v_mul_f32 v11, s3, v11
    v_mul_f32 v12, 0.15915494, v12
    """)
    Q = 20
    cmul(20, 14, 18)
    E1, E8, E128 = 24, 26, 28
    for (e, s) in ((E1, 1.0), (E8, 8.0), (E128, 128.0)):
        A(f"""
        v_mul_f32 v30, {fbits(s)}, v11
        v_mul_f32 v31, {fbits(s)}, v12
        v_exp_f32 v30, v30
        v_fract_f32 v31, v31
        v_cos_f32 v{e}, v31
        v_sin_f32 v{e+1}, v31
        s_nop 0
        v_mul_f32 v{e}, v30, v{e}
        v_mul_f32 v{e+1}, v30, v{e+1}
        """)
    A(f"""
    v_and_b32 v8, 127, v0
    v_lshlrev_b32 v8, 2, v8
    v_lshrrev_b32 v9, 7, v0
    v_mul_u32_u24 v9, {57*PITCH}, v9
    v_add_u32 v8, v8, v9
    """)
    tmpi = [0]
    def put(row, r, neg=False):
        t = 96 + (tmpi[0] & 3); tmpi[0] += 1
        A(f"v_cvt_pk_bf16_f32 v{t}, v{r}, {'-' if neg else ''}v{r+1}")
        A(f"ds_write_b32 v8, v{t} offset:{row*PITCH}")
    cur, nxt = 20, 22
    put(0, cur, True)
    for lo in range(1, 16):
        cmul(nxt, cur, E8); cur, nxt = nxt, cur
        put(lo, cur, True)
    PR = 16
    EP = lambda p: 32 + 2*p
    A(f"v_mov_b32 v{EP(0)}, 1.0\nv_mov_b32 v{EP(0)+1}, 0\nv_mov_b32 v{EP(1)}, v{E1}\nv_mov_b32 v{EP(1)+1}, v{E1+1}")
    for p in range(2, 8):
        cmul(EP(p), EP(p-1), E1)
    for p in range(8):
        put(PR + p, EP(p))
    cur, nxt = E128, 48
    pp = [0]
    def prod(row, a, b):
        d = 52 + 2*(pp[0] & 1); pp[0] += 1
        cmul(d, a, b); put(row, d)
    for h in range(1, 17):
        if h > 1:
            cmul(nxt, cur, E128)
            cur, nxt = nxt, (50 if nxt == 48 else 48)
        if h == 1:
            put(PR + 8, cur)
            for p in range(1, 8): prod(PR + 8 + p, cur, EP(p))
        elif h < 4:
            put(PR + 16 + 4*(h-2), cur)
            for p in range(1, 4): prod(PR + 16 + 4*(h-2) + p, cur, EP(2*p))
        elif h < 8:
            put(PR + 24 + 2*(h-4), cur)
            prod(PR + 24 + 2*(h-4) + 1, cur, EP(4))
        else:
            put(PR + 32 + (h-8), cur)
    A("s_waitcnt vmcnt(0)")
    for i in range(4):
        A(f"v_lshlrev_b32 v{112+2*i}, 16, v{108+i}\nv_and_b32 v{113+2*i}, 0xffff0000, v{108+i}")
    for t in range(2):
        X = 100 + 4*t; S = 60 + t
        for i in range(4):
            A(f"v_lshlrev_b32 v{64+2*i}, 16, v{X+i}\nv_and_b32 v{65+2*i}, 0xffff0000, v{X+i}")
        for i in range(4):
            A(f"v_pk_mul_f32 {vr(64+2*i,2)}, {vr(64+2*i,2)}, {vr(112+2*i,2)}")
        for i in range(4):
            A(f"v_cvt_pk_bf16_f32 v{72+i}, v{64+2*i}, v{65+2*i}")
        for i in range(4):
            A(f"v_lshlrev_b32 v{64+2*i}, 16, v{72+i}\nv_and_b32 v{65+2*i}, 0xffff0000, v{72+i}")
        A(f"""
        v_pk_add_f32 v[64:65], v[64:65], v[66:67]
        v_pk_add_f32 v[68:69], v[68:69], v[70:71]
        v_pk_add_f32 v[64:65], v[64:65], v[68:69]
        v_add_f32 v{S}, v64, v65
        """)
    for mode in ("quad_perm:[1,0,3,2]", "quad_perm:[2,3,0,1]", "row_half_mirror", "row_mirror"):
        A("s_nop 1")
        A(f"v_add_f32_dpp v60, v60, v60 {mode} row_mask:0xf bank_mask:0xf")
        A(f"v_add_f32_dpp v61, v61, v61 {mode} row_mask:0xf bank_mask:0xf")
    A(f"""
    s_nop 1
    v_readlane_b32 s44, v60, 0
    v_readlane_b32 s45, v60, 16
    v_readlane_b32 s46, v60, 32
    v_readlane_b32 s47, v60, 48
    v_readlane_b32 s48, v61, 0
    v_readlane_b32 s49, v61, 16
    v_readlane_b32 s50, v61, 32
    v_readlane_b32 s51, v61, 48
    s_nop 1
    v_mov_b32 v60, s44
    v_mov_b32 v61, s48
    v_add_f32 v60, s45, v60
    v_add_f32 v61, s49, v61
    v_add_f32 v60, s46, v60
    v_add_f32 v61, s50, v61
    v_add_f32 v60, s47, v60
    v_add_f32 v61, s51, v61
    v_cvt_pk_bf16_f32 v62, v60, v61
    v_lshlrev_b32 v60, 16, v62
    v_and_b32 v61, 0xffff0000, v62
    v_mul_f32 v60, {fbits(-L2E)}, v60
    v_mul_f32 v61, {fbits(-L2E)}, v61
    v_exp_f32 v60, v60
    v_exp_f32 v61, v61
    s_nop 0
    v_add_f32 v60, 1.0, v60
    v_add_f32 v61, 1.0, v61
    v_rcp_f32 v60, v60
    v_rcp_f32 v61, v61
    s_nop 0
    v_cvt_pk_bf16_f32 v62, v60, v61
    v_lshlrev_b32 v60, 16, v62
    v_and_b32 v61, 0xffff0000, v62
    v_sub_f32 v62, 1.0, v60
    v_sub_f32 v63, 1.0, v61
    v_cvt_pk_bf16_f32 v60, v60, v62
    v_cvt_pk_bf16_f32 v61, v61, v63
    s_lshl_b32 s3, s{sId}, 5
    s_lshl_b32 s4, s{sW}, 3
    s_add_u32 s3, s3, s4
    s_add_u32 s3, s3, {WS_G}
    v_mov_b32 v62, 0
    v_cmp_eq_u32 vcc, 0, v1
    s_and_saveexec_b64 s[42:43], vcc
    buffer_store_dwordx2 v[60:61], v62, s[36:39], s3 offen sc1
    s_mov_b64 exec, s[42:43]
    s_waitcnt lgkmcnt(0)
    s_barrier
    """)
    A(f"""
    v_and_b32 v2, 15, v1
    v_lshrrev_b32 v3, 4, v1
    v_mul_u32_u24 v4, {PITCH}, v2
    v_lshl_add_u32 v4, v3, 4, v4
    v_add_u32 v4, v4, v9
    s_and_b32 s3, s{sW}, 1
    s_mul_i32 s3, s3, {16*PITCH}
    v_add_u32 v5, s3, v4
    """)
    for s in range(8):
        A(f"ds_read_b128 {vr(128+4*s,4)}, v4 offset:{64*s}")
        A(f"ds_read_b128 {vr(160+4*s,4)}, v5 offset:{16*PITCH+64*s}")
        A(f"ds_read_b128 {vr(192+4*s,4)}, v4 offset:{48*PITCH+64*s}")
    A(f"""
    v_lshrrev_b32 v6, 2, v1
    v_and_b32 v6, 3, v6
    v_lshl_add_u32 v6, v3, 3, v6
    v_lshlrev_b32 v6, 7, v6
    v_and_b32 v7, 3, v1
    v_lshl_add_u32 v6, v7, 3, v6
    s_lshl_b32 s4, s{sW}, 5
    s_add_u32 s4, s4, {UTL}
    v_add_u32 v6, s4, v6
    s_waitcnt lgkmcnt(0)
    ds_read_b64_tr_b16 v[64:65], v6
    ds_read_b64_tr_b16 v[66:67], v6 offset:512
    ds_read_b64_tr_b16 v[68:69], v6 offset:4096
    ds_read_b64_tr_b16 v[70:71], v6 offset:4608
    """)
    A(f"""
    v_lshrrev_b32 v6, 2, v1
    v_and_b32 v6, 3, v6
    v_lshrrev_b32 v7, 5, v1
    v_lshl_add_u32 v6, v7, 3, v6
    v_lshlrev_b32 v6, 9, v6
    v_and_b32 v7, 16, v1
    v_lshl_add_u32 v6, v7, 1, v6
    v_and_b32 v7, 1, v1
    v_lshl_add_u32 v6, v7, 4, v6
    v_and_b32 v7, 2, v1
    v_lshl_add_u32 v6, v7, 2, v6
    s_lshl_b32 s4, s{sW}, 7
    s_add_u32 s4, s4, {WDL}
    v_add_u32 v6, s4, v6
    ds_read_b64_tr_b16 v[72:73], v6
    ds_read_b64_tr_b16 v[74:75], v6 offset:2048
    ds_read_b64_tr_b16 v[76:77], v6 offset:64
    ds_read_b64_tr_b16 v[78:79], v6 offset:2112
    """)
    for s in range(8):
        c0 = "0" if s == 0 else "v[80:83]"
        c1 = "0" if s == 0 else "v[84:87]"
        A(f"v_mfma_f32_16x16x32_bf16 v[80:83], {vr(160+4*s,4)}, {vr(128+4*s,4)}, {c0}")
        A(f"v_mfma_f32_16x16x32_bf16 v[84:87], {vr(192+4*s,4)}, {vr(128+4*s,4)}, {c1}")
    A(f"""
    s_and_b32 s3, s{sId}, 7
    s_lshl_b32 s3, s3, 6
    s_lshl_b32 s4, s{sW}, 4
    s_add_u32 s3, s3, s4
    s_lshl_b32 s3, s3, 12
    s_lshr_b32 s4, s{sId}, 3
    s_lshl_b32 s4, s4, 7
    s_add_u32 s3, s3, s4
    s_add_u32 s3, s3, {WS_UT}
    v_lshlrev_b32 v6, 12, v2
    v_lshl_add_u32 v6, v3, 4, v6
    s_waitcnt lgkmcnt(0)
    buffer_store_dwordx4 v[64:67], v6, s[36:39], s3 offen sc1
    buffer_store_dwordx4 v[68:71], v6, s[36:39], s3 offen offset:64 sc1
    s_cmp_ge_u32 s{sId}, 224
    s_cbranch_scc1 L_side_nowd
    s_and_b32 s3, s{sId}, 1
    s_lshl_b32 s3, s3, 3
    s_lshl_b32 s4, s{sW}, 1
    s_add_u32 s3, s3, s4
    s_mul_i32 s3, s3, 112
    s_lshr_b32 s4, s{sId}, 1
    s_add_u32 s3, s3, s4
    s_lshl_b32 s3, s3, 10
    s_add_u32 s3, s3, {WS_WD}
    s_add_u32 s4, s3, {112*1024}
    v_lshlrev_b32 v6, 4, v1
    buffer_store_dwordx4 v[72:75], v6, s[36:39], s3 offen sc1
    buffer_store_dwordx4 v[76:79], v6, s[36:39], s4 offen sc1
L_side_nowd:
    """)
    A(f"""
    v_lshrrev_b32 v9, 7, v0
    v_mul_u32_u24 v9, 1536, v9
    v_add_u32 v9, {KD}, v9
    v_lshrrev_b32 v6, 1, v3
    v_and_b32 v7, 1, v3
    v_lshlrev_b32 v10, 7, v6
    v_lshl_add_u32 v10, v7, 2, v10
    v_lshl_add_u32 v10, v2, 3, v10
    v_lshlrev_b32 v11, 6, v3
    v_add_u32 v11, 256, v11
    v_lshl_add_u32 v12, v2, 2, v11
    v_lshl_add_u32 v13, v2, 1, v11
    v_cmp_gt_u32 vcc, 2, v3
    v_mov_b32 v14, 32
    s_nop 0
    v_cndmask_b32 v12, v13, v12, vcc
    v_cndmask_b32 v14, v14, 2, vcc
    s_and_b32 s3, s{sW}, 1
    s_cmp_eq_u32 s3, 0
    s_cselect_b64 vcc, -1, 0
    s_nop 0
    v_cndmask_b32 v12, v12, v10, vcc
    v_cndmask_b32 v14, v14, 2, vcc
    v_add_u32 v14, v12, v14
    v_lshl_add_u32 v12, v12, 1, v9
    v_lshl_add_u32 v14, v14, 1, v9
    v_lshl_add_u32 v15, v3, 6, v2
    v_lshl_add_u32 v15, v15, 1, v9
    v_cvt_pk_bf16_f32 v80, v80, v81
    v_cvt_pk_bf16_f32 v82, v82, v83
    v_cvt_pk_bf16_f32 v84, v84, v85
    v_cvt_pk_bf16_f32 v86, v86, v87
    ds_write_b32 v12, v80
    ds_write_b32 v14, v82
    ds_write_b16 v15, v84 offset:1024
    ds_write_b16_d16_hi v15, v84 offset:{1024+32}
    ds_write_b16 v15, v86 offset:{1024+64}
    ds_write_b16_d16_hi v15, v86 offset:{1024+96}
    """)
    CC = 2*(0x4300 - 128)
    A(f"""
    v_and_b32 v10, 127, v0
    v_lshlrev_b32 v11, 4, v10
    v_sub_u32 v11, 2047, v11
    v_cvt_f32_i32 v12, v11
    v_lshlrev_b32 v11, 1, v11
    v_add_u32 v11, {CC}, v11
    v_mov_b32 v13, {256 + CC}
    v_subrev_u32 v9, {CC}, v9
    """)
    for e in range(17):
        r = 20 + e
        A(f"""
        v_subrev_f32 v{r}, {fbits(float(e))}, v12
        v_cvt_pk_bf16_f32 v{r}, 0, v{r}
        v_lshrrev_b32 v{r}, 15, v{r}
        v_subrev_u32 v14, {2*e}, v11
        v_med3_i32 v{r}, v{r}, v14, v13
        v_add_u32 v{r}, v{r}, v9
        """)
    A("s_waitcnt lgkmcnt(0)\ns_barrier")
    for e in range(17):
        A(f"ds_read_u16 v{40+e}, v{20+e}")
        if e == 11: A("s_waitcnt lgkmcnt(6)")
    A(f"""
    v_cmp_ne_u32 vcc, 127, v10
    s_lshl_b32 s3, s{sId}, 14
    s_add_u32 s3, s3, {WS_KI}
    v_lshrrev_b32 v6, 7, v0
    v_lshlrev_b32 v6, 13, v6
    v_lshl_add_u32 v6, v10, 5, v6
    v_add_u32 v7, 4096, v6
    s_waitcnt lgkmcnt(0)
    v_cndmask_b32 v56, 0, v56, vcc
    """)
    for i in range(8):
        A(f"v_lshl_or_b32 v{64+i}, v{41+2*i}, 16, v{40+2*i}")
    for i in range(8):
        A(f"v_lshl_or_b32 v{72+i}, v{42+2*i}, 16, v{41+2*i}")
    A(f"""
    buffer_store_dwordx4 v[64:67], v6, s[36:39], s3 offen sc1
    buffer_store_dwordx4 v[68:71], v6, s[36:39], s3 offen offset:16 sc1
    buffer_store_dwordx4 v[72:75], v7, s[36:39], s3 offen sc1
    buffer_store_dwordx4 v[76:79], v7, s[36:39], s3 offen offset:16 sc1
    """)
    stamp_flush(0, 1, 36)
    A("s_endpgm")

def conv():
    CH = 12928
    UOFF = 8320
    RED = 2*CH
    assert RED % 16 == 0 and RED + 32768 <= 65536
    sW = 24
    A(f"""
    s_load_dwordx2 s[8:9], s[0:1], 128
    s_load_dwordx2 s[12:13], s[0:1], 64
    v_lshrrev_b32 v2, 6, v0
    v_and_b32 v1, 63, v0
    v_lshlrev_b32 v3, 4, v1
    v_readfirstlane_b32 s{sW}, v2
    """)
    srd(8, WS_BYTES)
    A(f"""
    s_lshr_b32 s25, s{sW}, 1
    s_and_b32 s26, s{sW}, 1
    s_mul_i32 s27, s25, {CH}
    s_lshl_b32 s3, s2, 14
    s_lshl_b32 s4, s{sW}, 12
    s_add_u32 s3, s3, s4
    s_add_u32 s3, s3, {WS_KI}
    s_mul_i32 s4, s26, 4160
    s_add_u32 m0, s27, s4
    s_lshl_b32 s5, s2, 13
    s_lshl_b32 s6, s{sW}, 11
    s_add_u32 s5, s5, s6
    s_add_u32 s5, s5, {WS_UT}
    s_waitcnt lgkmcnt(0)
    buffer_load_dwordx4 v3, s[8:11], s3 offen lds
    buffer_load_dwordx4 v3, s[8:11], s3 offen offset:1024 lds
    buffer_load_dwordx4 v3, s[8:11], s3 offen offset:2048 lds
    buffer_load_dwordx4 v3, s[8:11], s3 offen offset:3072 lds
    s_lshl_b32 s6, s26, 11
    s_add_u32 s6, s6, s27
    s_add_u32 m0, s6, {UOFF + 512}
    s_lshl_b32 s7, s2, 2
    buffer_load_dwordx4 v3, s[8:11], s5 offen lds
    buffer_load_dwordx4 v3, s[8:11], s5 offen offset:1024 lds
    s_load_dword s28, s[12:13], s7
    v_lshlrev_b32 v4, 5, v0
    v_add_u32 v4, {WS_G}, v4
    buffer_load_dwordx4 v[200:203], v4, s[8:11], 0 offen
    buffer_load_dwordx4 v[204:207], v4, s[8:11], 0 offen offset:16
    """)
    A(f"""
    v_mov_b32 v5, 0
    v_lshlrev_b32 v6, 2, v1
    s_lshl_b32 s6, s26, 8
    s_add_u32 s6, s6, s27
    s_add_u32 s6, s6, {UOFF}
    v_add_u32 v7, s6, v6
    ds_write_b32 v7, v5
    v_and_b32 v6, 60, v6
    s_add_u32 s6, s27, s4
    s_add_u32 s6, s6, 4096
    v_add_u32 v7, s6, v6
    ds_write_b32 v7, v5
    """)
    vA = [8, 9, 10, 11]; vB = 12
    A(f"""
    v_and_b32 v5, 15, v1
    v_lshrrev_b32 v6, 4, v1
    v_and_b32 v7, 1, v5
    v_xor_b32 v7, 1, v7
    v_mul_u32_u24 v7, 4160, v7
    v_and_b32 v13, 14, v5
    v_lshlrev_b32 v13, 1, v13
    v_sub_u32 v7, v7, v13
    v_lshl_add_u32 v7, v6, 4, v7
    s_lshl_b32 s6, s26, 8
    s_sub_u32 s7, s27, s6
    s_add_u32 s3, s7, {4060 - 512 - 192}
    v_add_u32 v{vA[0]}, s3, v7
    v_subrev_u32 v{vA[1]}, 1024, v{vA[0]}
    v_subrev_u32 v{vA[2]}, 2048, v{vA[0]}
    v_subrev_u32 v{vA[3]}, 3072, v{vA[0]}
    v_lshlrev_b32 v{vB}, 5, v5
    v_lshl_add_u32 v{vB}, v6, 4, v{vB}
    s_add_u32 s3, s7, {UOFF + 480 - 192}
    v_add_u32 v{vB}, s3, v{vB}
    s_waitcnt vmcnt(2) lgkmcnt(0)
    s_barrier
    """)
    stamp(1)
    FA = [16, 80]; FB = [48, 112]; ACC = 144
    def reads(rr):
        fs = rr & 1
        r = []
        for i in range(8):
            o = (512*(1 - (i & 1)) + 64*(3 - rr)) // 4
            r.append(f"ds_read_b128 {vr(FB[fs]+4*i,4)}, v{vB} offset:{512*i + 64*(3-rr)}")
            r.append(f"ds_read2_b32 {vr(FA[fs]+4*i,2)}, v{vA[i>>1]} offset0:{o} offset1:{o+1}")
            r.append(f"ds_read2_b32 {vr(FA[fs]+4*i+2,2)}, v{vA[i>>1]} offset0:{o+2} offset1:{o+3}")
        return r
    first = reads(0)
    for n, x in enumerate(first):
        A(x)
        if n == 11: A("s_waitcnt lgkmcnt(6)")
    for rr in range(4):
        fs = rr & 1
        A("s_waitcnt lgkmcnt(0)")
        fill = reads(rr+1) if rr < 3 else []
        ms = []
        for i in range(8):
            for t in range(i, 8):
                c = "0" if (rr == 0 and i == 0) else vr(ACC+4*t, 4)
                ms.append(f"v_mfma_f32_16x16x32_bf16 {vr(ACC+4*t,4)}, {vr(FA[fs]+4*i,4)}, {vr(FB[fs]+4*(t-i),4)}, {c}")
        for m in ms:
            A(m)
            if fill: A(fill.pop(0))
    stamp(2)
    A(f"""
    v_lshlrev_b32 v7, 6, v5
    v_lshl_add_u32 v7, v6, 4, v7
    s_lshl_b32 s3, s{sW}, 13
    s_add_u32 s3, s3, {RED}
    v_add_u32 v7, s3, v7
    s_nop 4
    """)
    for t in range(8):
        A(f"ds_write_b128 v7, {vr(ACC+4*t,4)} offset:{1024*t}")
    A(f"""
    v_lshlrev_b32 v7, 5, v0
    v_lshlrev_b32 v8, 4, v0
    s_waitcnt lgkmcnt(0)
    s_barrier
    """)
    for q in range(4):
        A(f"ds_read_b128 {vr(16+8*q,4)}, v7 offset:{RED + 8192*q}")
        A(f"ds_read_b128 {vr(20+8*q,4)}, v7 offset:{RED + 8192*q + 16}")
    A(f"""
    ds_read_b128 v[48:51], v8 offset:{UOFF + 512}
    ds_read_b128 v[52:55], v8 offset:{CH + UOFF + 512}
    s_lshl_b32 s30, s28, 16
    s_and_b32 s31, s28, 0xffff0000
    s_lshl_b32 s3, s2, 13
    s_add_u32 s3, s3, {WS_GA}
    s_waitcnt vmcnt(0) lgkmcnt(0)
    """)
    for i in range(4):
        A(f"v_pk_add_f32 {vr(16+2*i,2)}, {vr(16+2*i,2)}, {vr(24+2*i,2)}")
        A(f"v_pk_add_f32 {vr(32+2*i,2)}, {vr(32+2*i,2)}, {vr(40+2*i,2)}")
    for k in range(8):
        Y = 64 + 2*k; D = 80 + 2*k
        A(f"v_cvt_pk_bf16_f32 v{56+k}, v{16+k}, v{32+k}")
        if k & 1:
            A(f"v_and_b32 v{D}, 0xffff0000, v{48+k//2}\nv_and_b32 v{D+1}, 0xffff0000, v{52+k//2}")
        else:
            A(f"v_lshlrev_b32 v{D}, 16, v{48+k//2}\nv_lshlrev_b32 v{D+1}, 16, v{52+k//2}")
    for k in range(8):
        Y = 64 + 2*k; D = 80 + 2*k
        A(f"v_pk_mul_f32 {vr(D,2)}, {vr(D,2)}, s[30:31]")
        A(f"v_lshlrev_b32 v{Y}, 16, v{56+k}\nv_and_b32 v{Y+1}, 0xffff0000, v{56+k}")
    for k in range(8):
        D = 80 + 2*k
        A(f"v_cvt_pk_bf16_f32 v{56+k}, v{D}, v{D+1}")
    for k in range(8):
        D = 80 + 2*k
        A(f"v_lshlrev_b32 v{D}, 16, v{56+k}\nv_and_b32 v{D+1}, 0xffff0000, v{56+k}")
    for k in range(8):
        Y = 64 + 2*k; D = 80 + 2*k
        A(f"v_pk_add_f32 {vr(Y,2)}, {vr(Y,2)}, {vr(D,2)}")
    for k in range(8):
        Y = 64 + 2*k
        A(f"v_cvt_pk_bf16_f32 v{56+k}, v{Y}, v{Y+1}")
        A(f"v_lshlrev_b32 v{200+k}, 16, v{200+k}")
    for k in range(8):
        Y = 64 + 2*k
        A(f"v_lshlrev_b32 v{Y}, 16, v{56+k}\nv_and_b32 v{Y+1}, 0xffff0000, v{56+k}")
    for k in range(8):
        Y = 64 + 2*k
        A(f"v_mul_f32 v{Y}, v{200+k}, v{Y}\nv_mul_f32 v{Y+1}, v{200+k}, v{Y+1}")
    for k in range(8):
        Y = 64 + 2*k
        A(f"v_cvt_pk_bf16_f32 v{56+k}, v{Y}, v{Y+1}")
    A(f"""
    buffer_store_dwordx4 v[56:59], v7, s[8:11], s3 offen sc1
    buffer_store_dwordx4 v[60:63], v7, s[8:11], s3 offen offset:16 sc1
    s_waitcnt vmcnt(0)
    s_barrier
    s_lshl_b32 s3, s2, 2
    s_add_u32 s3, s3, {WS_FLAG}
    v_mov_b32 v5, 1
    v_mov_b32 v6, 0
    v_cmp_eq_u32 vcc, 0, v0
    s_and_saveexec_b64 s[4:5], vcc
    s_cbranch_execz L_conv_done
    buffer_store_dword v5, v6, s[8:11], s3 offen sc1
L_conv_done:
    """)
    stamp_flush(1, 3, 8)
    A("s_endpgm")

def gemm2():
    sW = 24
    sS = [28, 29, 30, 31]
    ND = 7
    RING = 16
    ACC = 128
    A(f"""
    s_load_dwordx2 s[8:9], s[0:1], 128
    s_load_dwordx2 s[12:13], s[0:1], 112
    v_lshrrev_b32 v2, 6, v0
    v_and_b32 v1, 63, v0
    v_lshlrev_b32 v3, 4, v1
    v_readfirstlane_b32 s{sW}, v2
    v_add_u32 v4, 4096, v3
    s_sub_u32 s3, s2, 256
    s_and_b32 s4, s3, 7
    s_lshr_b32 s5, s3, 3
    s_and_b32 s6, s5, 3
    s_lshl_b32 s4, s4, 2
    s_add_u32 s4, s4, s6
    s_lshr_b32 s5, s5, 2
    s_and_b32 s6, s{sW}, 1
    s_lshr_b32 s7, s{sW}, 1
    s_lshl_b32 s25, s4, 1
    s_add_u32 s25, s25, s6
    s_lshl_b32 s26, s5, 1
    s_add_u32 s26, s26, s7
    s_mul_i32 s27, s{sW}, {28*1024}
    s_mul_i32 s{sS[0]}, s25, {112*1024}
    s_xor_b32 s3, s25, 1
    s_mul_i32 s{sS[1]}, s3, {112*1024}
    s_mul_i32 s{sS[2]}, s26, {112*1024}
    s_xor_b32 s3, s26, 1
    s_mul_i32 s{sS[3]}, s3, {112*1024}
    s_add_u32 s{sS[0]}, s{sS[0]}, s27
    s_add_u32 s{sS[1]}, s{sS[1]}, s27
    s_add_u32 s27, s27, {WS_WD}
    s_add_u32 s{sS[2]}, s{sS[2]}, s27
    s_add_u32 s{sS[3]}, s{sS[3]}, s27
    """)
    srd(8, WS_BYTES); srd(12, 2048*512*2)
    A("s_waitcnt lgkmcnt(0)")
    def loads(kk):
        v = "v3" if kk < 4 else "v4"
        o = (kk & 3) * 1024
        return [f"buffer_load_dwordx4 {vr(RING+16*kk+4*st,4)}, {v}, s[8:11], s{sS[st]} offen offset:{o}" for st in (0, 2, 1, 3)]
    def adv():
        return [f"s_add_u32 s{s}, s{s}, {ND*1024}" for s in sS]
    def mf(kk):
        R = RING + 16*kk
        return [f"v_mfma_f32_32x32x16_bf16 {vr(ACC+16*(2*dd+tt),16)}, {vr(R+8+4*dd,4)}, {vr(R+4*tt,4)}, {vr(ACC+16*(2*dd+tt),16)}"
                for (dd, tt) in ((0,0),(0,1),(1,0),(1,1))]
    for kk in range(ND):
        A("\n".join(loads(kk)))
    stamp(1)
    A("\n".join(adv()))
    for i in range(32):
        A(f"v_mov_b64 {vr(ACC+2*i,2)}, 0")
    A("s_mov_b32 s32, 0")
    A("L_g2_loop:")
    for kk in range(ND):
        A(f"s_waitcnt vmcnt({4*(ND-1)})")
        A("\n".join(mf(kk)))
        A("\n".join(loads(kk)))
    A("\n".join(adv()))
    A("s_add_u32 s32, s32, 1\ns_cmp_lt_u32 s32, 3\ns_cbranch_scc1 L_g2_loop")
    A(f"""
    v_and_b32 v5, 15, v1
    v_lshlrev_b32 v5, 2, v5
    s_lshl_b32 s33, s26, 6
    s_add_u32 s33, s33, {WS_FLAG}
    buffer_load_dword v6, v5, s[8:11], s33 offen sc1
    v_and_b32 v7, 31, v1
    v_lshlrev_b32 v8, 2, v7
    s_lshl_b32 s3, s25, 7
    s_add_u32 s34, s3, {WS_G}
    buffer_load_dword v9, v8, s[8:11], s34 offen
    """)
    for kk in range(ND):
        A(f"s_waitcnt vmcnt({4*(ND-1-kk) + 2})")
        A("\n".join(mf(kk)))
    stamp(2)
    A(f"""
    v_lshrrev_b32 v10, 5, v1
    v_lshl_add_u32 v11, v10, 15, v8
    s_lshl_b32 s35, s26, 17
    s_add_u32 s35, s35, s3
    s_add_u32 s35, s35, {WS_GA}
    s_mov_b32 s36, 0x100000
    s_waitcnt vmcnt(1)
L_g2_poll:
    v_cmp_eq_u32 vcc, 0, v6
    s_cbranch_vccz L_g2_ready
    s_sub_u32 s36, s36, 1
    s_cbranch_scc1 L_g2_ready
    s_sleep 1
    buffer_load_dword v6, v5, s[8:11], s33 offen sc1
    s_waitcnt vmcnt(0)
    s_branch L_g2_poll
L_g2_ready:
    """)
    for m in range(8):
        A(f"buffer_load_dword v{16+m}, v11, s[8:11], s35 offen sc1")
        if m < 7: A(f"s_add_u32 s35, s35, {8192 if (m & 3) != 3 else 5*8192}")
    stamp(3)
    for x in range(1, 4):
        A(f"s_xor_b32 s3, s{sW}, {x}\ns_mul_i32 s3, s3, {3*4096}\nv_add_u32 v12, s3, v3")
        for i in range(4):
            A(f"ds_write_b128 v12, {vr(ACC+16*x+4*i,4)} offset:{(x-1)*4096 + 1024*i}")
    A(f"""
    s_mul_i32 s3, s{sW}, {3*4096}
    v_add_u32 v12, s3, v3
    s_waitcnt lgkmcnt(0)
    s_barrier
    """)
    for x in range(3):
        for i in range(4):
            A(f"ds_read_b128 {vr(32+16*x+4*i,4)}, v12 offset:{x*4096 + 1024*i}")
    A(f"""
    v_lshlrev_b32 v13, 10, v7
    v_lshl_add_u32 v13, v10, 4, v13
    s_lshl_b32 s3, s25, 15
    s_lshl_b32 s4, s26, 6
    s_add_u32 s3, s3, s4
    """)
    for x in range(3):
        A(f"s_waitcnt lgkmcnt({8 - 4*x})")
        for p in range(8):
            A(f"v_pk_add_f32 {vr(ACC+2*p,2)}, {vr(ACC+2*p,2)}, {vr(32+16*x+2*p,2)}")
    A("s_waitcnt vmcnt(0)\nv_and_b32 v9, 0xffff0000, v9")
    for p in range(8):
        A(f"v_cvt_pk_bf16_f32 v{24+p}, v{ACC+2*p}, v{ACC+2*p+1}")
    for p in range(8):
        A(f"v_lshlrev_b32 v{32+2*p}, 16, v{24+p}\nv_and_b32 v{33+2*p}, 0xffff0000, v{24+p}")
    for p in range(16):
        A(f"v_mul_f32 v{32+p}, v9, v{32+p}")
    for p in range(8):
        A(f"v_cvt_pk_bf16_f32 v{24+p}, v{32+2*p}, v{33+2*p}")
    for p in range(8):
        A(f"v_lshlrev_b32 v{32+2*p}, 16, v{24+p}\nv_and_b32 v{33+2*p}, 0xffff0000, v{24+p}")
        A(f"v_lshlrev_b32 v{48+2*p}, 16, v{16+p}\nv_and_b32 v{49+2*p}, 0xffff0000, v{16+p}")
    for p in range(8):
        A(f"v_pk_add_f32 {vr(32+2*p,2)}, {vr(32+2*p,2)}, {vr(48+2*p,2)}")
    for p in range(8):
        A(f"v_cvt_pk_bf16_f32 v{24+p}, v{32+2*p}, v{33+2*p}")
    A(f"""
    buffer_store_dwordx4 v[24:27], v13, s[12:15], s3 offen
    buffer_store_dwordx4 v[28:31], v13, s[12:15], s3 offen offset:32
    """)
    stamp(4)
    stamp_flush(1, 5, 8)
    A("s_endpgm")

def kernel_head(name):
    A(f".globl {name}\n.p2align 12\n.type {name},@function\n{name}:")
    stamp(0)

def descriptor(name, vgpr):
    A(f""".section .rodata,"a"
.p2align 6
.amdhsa_kernel {name}
  .amdhsa_next_free_vgpr {vgpr}
  .amdhsa_next_free_sgpr 102
  .amdhsa_accum_offset {vgpr}
  .amdhsa_group_segment_fixed_size 0
  .amdhsa_kernarg_size 136
  .amdhsa_user_sgpr_count 2
  .amdhsa_user_sgpr_kernarg_segment_ptr 1
  .amdhsa_system_sgpr_workgroup_id_x 1
.end_amdhsa_kernel""")

def main():
    A('.amdgcn_target "amdgcn-amd-amdhsa--gfx950"\n.text')
    kernel_head("k1_kernel")
    A("s_cmp_ge_u32 s2, 224\ns_cbranch_scc1 L_k1_other")
    gemm1()
    A("""L_k1_other:
    s_cmp_lt_u32 s2, 256
    s_cbranch_scc1 L_k1_exit
    s_cmp_ge_u32 s2, 512
    s_cbranch_scc1 L_k1_exit""")
    side()
    A("L_k1_exit:\n    s_endpgm")
    kernel_head("k2_kernel")
    A("s_cmp_lt_u32 s2, 256\ns_cbranch_scc1 L_k2_conv\ns_cmp_ge_u32 s2, 512\ns_cbranch_scc1 L_k2_exit")
    gemm2()
    A("L_k2_conv:")
    conv()
    A("L_k2_exit:\n    s_endpgm")
    descriptor("k1_kernel", 256)
    descriptor("k2_kernel", 256)
    open(sys.argv[1], "w").write(HEADER + "\n".join(L) + "\n")

main()
```

```python
import sys, struct, math

OPTS = dict(a.split("=") for a in sys.argv[2:])
def opt(name, dflt): return int(OPTS.get(name, dflt))
STAMP = opt("stamp", 0); SS = opt("ss", 0)
NOTOUCH = opt("notouch", 1); HT = opt("ht", 0); CT = opt("ct", 1); WDT = opt("wdt", 0); MGT = opt("mgt", 0); PGT = opt("pgt", 1); MROWS = opt("mrows", 3)
ROT = opt("rot", 1); HD = opt("hd", 8); MPF = opt("mpf", 1); MIDB = 1; PUBI = opt("pubi", 2)
SPIN = opt("spin", 0x40000); CPRIO = opt("cprio", 1)
TOUCH = (not NOTOUCH) or WDT
KNAME = "gated_mix__ssm_conv_s4__geglu_ffn__prompt_kernel"

WS_H, WS_UT, WS_GA = 0x0, 0x700000, 0x900000
WS_G, WS_FLAG, WS_FLAG2, WS_STAMP = 0xB00000, 0xB08000, 0xB0A000, 0x1400000
WS_BYTES = 0x10000000
OOB = 0x40000000

XB = 65536
TB = 98304
PITCH = 528
KD = TB + 2*57*PITCH
CH = 12928
UOFF = 8320
RED = TB + 2*CH
CNT = KD + 3072
assert CNT + 4 <= 163840 and RED + 32768 <= KD and RED % 16 == 0
UP = 1056
L2E = math.log2(math.e)
WSTEP = 32*3584

L = []
def A(s):
    for line in s.strip("\n").split("\n"):
        if not line.strip(): continue
        L.append(line.strip() if line.rstrip().endswith(":") or line.lstrip().startswith(".") else "    " + line.strip())
def fbits(x): return "0x%08x" % struct.unpack("<I", struct.pack("<f", x))[0]
def vr(b, n): return f"v[{b}:{b+n-1}]"
def srd(base, size): A(f"s_mov_b32 s{base+2}, {size:#x}\ns_mov_b32 s{base+3}, 0x00020000")

NST = 9
def stamp(idx):
    if STAMP: A(f"s_memrealtime s[{80+2*idx}:{81+2*idx}]")
def stamp_flush():
    if not STAMP: return
    A(f"""
    s_waitcnt vmcnt(0) lgkmcnt(0)
    s_memrealtime s[{80+2*NST}:{81+2*NST}]
    s_waitcnt lgkmcnt(0)
    s_mov_b64 exec, -1
    v_lshrrev_b32 v1, 6, v0
    s_lshl_b32 s3, s2, 3
    v_add_u32 v1, s3, v1
    v_lshlrev_b32 v1, 6, v1
    v_add_u32 v1, {WS_STAMP}, v1
    """)
    for i in range(12): A(f"v_mov_b32 v{4+i}, s{80+2*min(i, NST)}")
    A(f"""
    v_and_b32 v2, 63, v0
    v_cmp_eq_u32 vcc, 0, v2
    s_and_saveexec_b64 s[4:5], vcc
    buffer_store_dwordx4 v[4:7], v1, s[20:23], 0 offen
    buffer_store_dwordx4 v[8:11], v1, s[20:23], 0 offen offset:16
    buffer_store_dwordx4 v[12:15], v1, s[20:23], 0 offen offset:32
    """)

HEADER = f"""; gated mix of an S4 long convolution and a GeGLU FFN, one launch, one workgroup per CU.
; @launch grid=(256,1,1) block=(512,1,1) lds=163840
"""

sW, sXoff, sWoff, sM0W, sM0X, sIt, sWst, sXst = 24, 25, 26, 27, 28, 29, 30, 31
sTB, sFB, sWN, sWM, sI, sJ, sMov, sTo, sSpin = 32, 33, 36, 37, 38, 39, 40, 41, 42
sHst, sDsk, sHfl, sChk, sTo2, sRole, sXlim, sWlim = 43, 48, 49, 54, 55, 100, 101, 35
sTok, sD, sH0, sH1, sLds, sFl, sWd = 50, 51, 52, 53, 64, 65, 66
sCu, sCga, sCfl = 50, 51, 52
vXo = [240, 241]; vWo = 242; vWr = 243; vXr = [244, 245, 246, 247]; vDo = 248; vTo = 249
vPoll, vZero, vJunk, vTo2 = 250, 251, 252, 253
FR = [192, 208]; ACC1 = 128
vU, vG = 224, 232
XA = 48
cKf0, cKf1, cKd0, cKd1, cKd2, cUw, cZ0, cZ1, cImg = 66, 67, 68, 69, 70, 71, 72, 73, 74
cA = [75, 76, 77, 78]; cB, cRw, cRr, cUr, cS0, cS1, cLu0, cLu1, cLg0, cLg1, cT, cCnt, cOne = range(79, 92)
gD = [8, 9, 10, 11]; gX = [12, 13]; gFl, gL16, gHt = 5, 6, 7

def dma_x(): return [f"buffer_load_dwordx4 v{vXo[i]}, s[8:11], s{sXoff} offen offset:{1024*i} lds" for i in range(2)]
def dma_w(): return [f"buffer_load_dwordx4 v{vWo}, s[12:15], s{sWoff} offen lds",
                     f"buffer_load_dwordx4 v{vWo}, s[16:19], s{sWoff} offen offset:1024 lds"]
def ring_x(slot):
    A(f"s_add_u32 m0, s{sM0X}, {slot*16384}\ns_nop 0"); A("\n".join(dma_x())); A(f"s_add_u32 s{sXoff}, s{sXoff}, s{sXst}")
def ring_w(slot):
    A(f"s_add_u32 m0, s{sM0W}, {slot*16384}\ns_nop 0"); A("\n".join(dma_w())); A(f"s_add_u32 s{sWoff}, s{sWoff}, s{sWst}")
def wrap_x(): return [f"s_cmp_ge_u32 s{sXoff}, s{sXlim}", "s_cselect_b32 s34, 1024, 0", f"s_sub_u32 s{sXoff}, s{sXoff}, s34"]
def wrap_w(): return [f"s_cmp_ge_u32 s{sWoff}, s{sWlim}", f"s_cselect_b32 s34, {16*WSTEP}, 0", f"s_sub_u32 s{sWoff}, s{sWoff}, s34"]
def touch():
    A(f"buffer_load_dword v{vJunk}, v{vTo}, s[44:47], s{sTo} offen\ns_add_u32 s{sTo}, s{sTo}, 458752")

def switch_to_wd():
    A(f"""
    s_mov_b32 s8, s56
    s_mov_b32 s9, s57
    s_mov_b32 s10, {1792*1024}
    s_mov_b32 s12, s56
    s_mov_b32 s13, s57
    s_mov_b32 s14, {1792*1024}
    s_add_u32 s16, s56, 7168
    s_addc_u32 s17, s57, 0
    s_mov_b32 s18, {1792*1024 - 7168}
    s_lshr_b32 s3, s{sW}, 1
    s_mul_i32 s3, s3, 28
    s_and_b32 s4, s{sW}, 1
    s_add_u32 s3, s3, s4
    s_lshl_b32 s3, s3, 14
    s_lshl_b32 s4, s{sJ}, 7
    s_add_u32 s{sWoff}, s3, s4
    s_add_u32 s{sXoff}, s{sWoff}, {4*32768}
    s_mov_b32 s{sXlim}, -1
    s_mov_b32 s{sWlim}, -1
    s_mov_b32 s{sWst}, 32768
    s_mov_b32 s{sXst}, 32768
    v_mov_b32 v{vWo}, v{vDo}
    v_mov_b32 v{vXo[0]}, v{vDo}
    v_add_u32 v{vXo[1]}, 7168, v{vDo}
    """)

def cmul(d, a, b):
    A(f"v_pk_mul_f32 {vr(d,2)}, {vr(a,2)}, {vr(b,2)} op_sel_hi:[0,1]")
    A(f"v_pk_fma_f32 {vr(d,2)}, {vr(a,2)}, {vr(b,2)}, {vr(d,2)} op_sel:[1,1,0] op_sel_hi:[1,0,1] neg_lo:[0,1,0]")

def g1_setup():
    A(f"""
    v_lshrrev_b32 v16, 2, v1
    v_and_b32 v16, 3, v16
    v_xor_b32 v17, s{sWN}, v16
    v_lshlrev_b32 v{vWr}, 8, v16
    v_lshl_add_u32 v{vWr}, v17, 6, v{vWr}
    v_lshrrev_b32 v16, 5, v1
    v_lshl_add_u32 v{vWr}, v16, 12, v{vWr}
    v_and_b32 v17, 16, v1
    v_lshlrev_b32 v18, 1, v17
    v_and_b32 v17, 1, v1
    v_lshl_add_u32 v18, v17, 4, v18
    v_and_b32 v17, 2, v1
    v_lshl_add_u32 v18, v17, 2, v18
    v_add_u32 v{vWr}, v{vWr}, v18
    v_mov_b64 v[20:21], 0
    v_mov_b64 v[22:23], 0
    v_lshrrev_b32 v17, 1, v1
    v_and_b32 v17, 7, v17
    v_xor_b32 v17, v17, v16
    """)
    for i in range(4):
        A(f"v_mfma_f32_32x32x16_bf16 {vr(ACC1+16*i,16)}, v[20:23], v[20:23], 0")
    A(f"""
    v_and_b32 v{vXr[0]}, 31, v1
    v_lshlrev_b32 v{vXr[0]}, 7, v{vXr[0]}
    v_lshl_add_u32 v{vXr[0]}, v17, 4, v{vXr[0]}
    s_lshl_b32 s5, s{sWM}, 13
    s_add_u32 s5, s5, {XB}
    v_add_u32 v{vXr[0]}, s5, v{vXr[0]}
    v_xor_b32 v{vXr[1]}, 32, v{vXr[0]}
    v_xor_b32 v{vXr[2]}, 64, v{vXr[0]}
    v_xor_b32 v{vXr[3]}, 0x60, v{vXr[0]}
    s_lshl_b32 s3, s{sTB}, 1
    s_add_u32 s3, s3, s{sWM}
    s_mul_i32 s{sHst}, s3, 224
    s_lshl_b32 s5, s{sFB}, 2
    s_add_u32 s5, s5, s{sWN}
    s_lshl_b32 s4, s5, 1
    s_add_u32 s{sHst}, s{sHst}, s4
    s_lshl_b32 s{sHst}, s{sHst}, 10
    s_mul_i32 s6, s5, 4682
    s_lshr_b32 s6, s6, 16
    s_mul_i32 s4, s6, 14
    s_sub_u32 s4, s5, s4
    s_lshl_b32 s3, s3, 2
    s_add_u32 s3, s3, s6
    s_lshl_b32 s3, s3, 4
    s_add_u32 s3, s3, s4
    s_lshl_b32 s3, s3, 2
    s_add_u32 s{sHfl}, s3, {WS_FLAG}
    s_mov_b32 s68, s56
    s_mov_b32 s69, s57
    s_mov_b32 s70, {1792*1024}
    s_mov_b32 s71, 0x00020000
    s_lshr_b32 s3, s2, 3
    s_lshl_b32 s3, s3, 3
    s_add_u32 s3, s3, s{sW}
    s_lshl_b32 s{sTo2}, s3, 13
    """)
    if WDT == 1:
        A(f"v_and_b32 v{vTo2}, 31, v1\nv_lshlrev_b32 v{vTo2}, 7, v{vTo2}")
    else:
        A(f"v_lshlrev_b32 v{vTo2}, 6, v1")
    if WDT == 0: A(f"s_mov_b32 s{sTo2}, {OOB}")
    if WDT == 3:
        A(f"s_lshl_b32 s3, s2, 3\ns_add_u32 s3, s3, s{sW}\ns_lshl_b32 s{sTo2}, s3, 10\nv_and_b32 v{vTo2}, 7, v1\nv_lshlrev_b32 v{vTo2}, 6, v{vTo2}")

def conv_setup():
    CB = 0x4300 - 128
    A(f"""
    s_lshr_b32 s6, s{sWN}, 1
    s_and_b32 s7, s{sWN}, 1
    s_mul_i32 s5, s6, {CH}
    s_add_u32 s5, s5, {TB}
    v_and_b32 v16, 15, v1
    v_lshrrev_b32 v17, 4, v1
    v_mul_u32_u24 v{cKf0}, {PITCH}, v16
    v_lshl_add_u32 v{cKf0}, v17, 4, v{cKf0}
    s_mul_i32 s4, s6, {57*PITCH}
    s_add_u32 s4, s4, {TB}
    v_add_u32 v{cKf0}, s4, v{cKf0}
    s_mul_i32 s4, s7, {16*PITCH}
    v_add_u32 v{cKf1}, s4, v{cKf0}
    s_mul_i32 s3, s6, 1536
    s_add_u32 s3, s3, {KD}
    v_lshrrev_b32 v18, 1, v17
    v_and_b32 v19, 1, v17
    v_lshlrev_b32 v24, 7, v18
    v_lshl_add_u32 v24, v19, 2, v24
    v_lshl_add_u32 v24, v16, 3, v24
    v_lshlrev_b32 v25, 6, v17
    v_add_u32 v25, 256, v25
    v_lshl_add_u32 v26, v16, 2, v25
    v_lshl_add_u32 v27, v16, 1, v25
    v_cmp_gt_u32 vcc, 2, v17
    v_mov_b32 v28, 32
    v_and_b32 v{cT}, 127, v0
    v_cndmask_b32 v26, v27, v26, vcc
    v_cndmask_b32 v28, v28, 2, vcc
    s_cmp_eq_u32 s7, 0
    s_cselect_b64 vcc, -1, 0
    v_lshlrev_b32 v29, 3, v{cT}
    v_cndmask_b32 v26, v26, v24, vcc
    v_cndmask_b32 v28, v28, 2, vcc
    v_add_u32 v28, v26, v28
    v_lshl_add_u32 v{cKd0}, v26, 1, s3
    v_lshl_add_u32 v{cKd1}, v28, 1, s3
    v_lshl_add_u32 v25, v17, 6, v16
    v_lshl_add_u32 v{cKd2}, v25, 1, s3
    v_sub_u32 v29, 2047, v29
    v_cvt_f32_i32 v30, v29
    v_add_u32 v29, {CB}, v29
    v_mov_b32 v31, {128 + CB}
    s_sub_u32 s3, s3, {2*CB}
    """)
    for hh in range(2):
        for e in range(9):
            r = XA + 9*hh + e; d = 1024*hh + e
            A(f"v_subrev_f32 v{r}, {fbits(float(d))}, v30\nv_cvt_pk_bf16_f32 v{r}, v{r}, 0")
            if hh: A(f"v_subrev_u32 v24, {d}, v29\nv_med3_i32 v{r}, v{r}, v24, v31")
            A(f"v_lshl_add_u32 v{r}, v{r}, 1, s3")
    A(f"""
    v_and_b32 v24, 255, v0
    v_lshlrev_b32 v{cS0}, 4, v24
    v_add_u32 v{cS1}, 4096, v{cS0}
    v_add_u32 v{cLg0}, {WS_G}, v{cS0}
    v_add_u32 v{cLg1}, {WS_G}, v{cS1}
    v_add_u32 v{cRr}, {RED}, v{cS0}
    v_lshrrev_b32 v{cUr}, 1, v{cS0}
    v_add_u32 v{cUr}, {TB + UOFF + 512}, v{cUr}
    v_lshrrev_b32 v25, 3, v24
    v_lshlrev_b32 v{cLu0}, 10, v25
    v_and_b32 v26, 7, v24
    v_lshl_add_u32 v{cLu0}, v26, 4, v{cLu0}
    v_add_u32 v{cLu1}, 32768, v{cLu0}
    v_lshlrev_b32 v{cUw}, 6, v25
    v_and_b32 v26, 3, v24
    v_lshl_add_u32 v{cUw}, v26, 4, v{cUw}
    v_bfe_u32 v26, v24, 2, 1
    v_mul_u32_u24 v26, {CH}, v26
    v_add_u32 v{cUw}, v{cUw}, v26
    v_add_u32 v{cUw}, {TB + UOFF + 512}, v{cUw}
    v_lshl_add_u32 v{cZ0}, v{cT}, 2, s5
    v_and_b32 v{cZ1}, 60, v{cZ0}
    s_mul_i32 s3, s7, 4160
    s_add_u32 s3, s3, s5
    v_add_u32 v{cZ1}, s3, v{cZ1}
    v_lshl_add_u32 v{cImg}, v{cT}, 4, s5
    v_mov_b32 v{cCnt}, {CNT}
    v_mov_b32 v{cOne}, 1
    v_and_b32 v24, 1, v16
    v_xor_b32 v24, 1, v24
    v_mul_u32_u24 v24, 4160, v24
    v_and_b32 v25, 14, v16
    v_lshlrev_b32 v25, 1, v25
    v_sub_u32 v24, v24, v25
    v_lshl_add_u32 v24, v17, 4, v24
    s_lshl_b32 s4, s7, 8
    s_sub_u32 s4, s5, s4
    s_add_u32 s3, s4, {4060 - 512 - 192}
    v_add_u32 v{cA[0]}, s3, v24
    v_subrev_u32 v{cA[1]}, 1024, v{cA[0]}
    v_subrev_u32 v{cA[2]}, 2048, v{cA[0]}
    v_subrev_u32 v{cA[3]}, 3072, v{cA[0]}
    v_lshlrev_b32 v{cB}, 5, v16
    v_lshl_add_u32 v{cB}, v17, 4, v{cB}
    s_add_u32 s3, s4, {UOFF + 480 - 192}
    v_add_u32 v{cB}, s3, v{cB}
    v_lshlrev_b32 v{cRw}, 6, v16
    v_lshl_add_u32 v{cRw}, v17, 4, v{cRw}
    s_lshl_b32 s3, s{sWN}, 13
    s_add_u32 s3, s3, {RED}
    v_add_u32 v{cRw}, s3, v{cRw}
    s_lshr_b32 s{sCu}, s2, 3
    s_lshl_b32 s{sCu}, s{sCu}, 16
    s_and_b32 s3, s2, 7
    s_lshl_b32 s3, s3, 7
    s_add_u32 s{sCu}, s{sCu}, s3
    s_add_u32 s{sCu}, s{sCu}, {WS_UT}
    s_lshl_b32 s{sCga}, s2, 13
    s_add_u32 s{sCga}, s{sCga}, {WS_GA}
    s_lshl_b32 s3, s2, 2
    s_load_dword s{sDsk}, s[78:79], s3
    s_add_u32 s3, s3, s{sWN}
    s_lshl_b32 s3, s3, 2
    s_add_u32 s{sCfl}, s3, {WS_FLAG2}
    """)

def g2_setup():
    A(f"""
    s_and_b32 s6, s{sW}, 1
    s_lshr_b32 s7, s{sW}, 1
    s_lshl_b32 s{sTok}, s{sI}, 1
    s_add_u32 s{sTok}, s{sTok}, s6
    s_lshl_b32 s{sD}, s{sJ}, 1
    s_add_u32 s{sD}, s{sD}, s7
    v_lshrrev_b32 v16, 2, v1
    v_and_b32 v16, 3, v16
    v_lshrrev_b32 v17, 5, v1
    v_lshl_add_u32 v19, v17, 3, v16
    v_lshl_add_u32 v{gD[0]}, v19, 7, v18
    v_lshrrev_b32 v16, 1, v16
    v_xor_b32 v16, s7, v16
    v_lshl_add_u32 v{gD[0]}, v16, 6, v{gD[0]}
    s_lshl_b32 s{sLds}, s{sW}, 12
    v_add_u32 v{gD[0]}, s{sLds}, v{gD[0]}
    v_xor_b32 v{gD[1]}, 64, v{gD[0]}
    v_add_u32 v{gD[2]}, 0x10000, v{gD[0]}
    v_add_u32 v{gD[3]}, 0x10000, v{gD[1]}
    v_mov_b32 v{gX[0]}, v{vDo}
    v_add_u32 v{gX[1]}, 7168, v{vDo}
    v_min_u32 v{gFl}, 13, v1
    v_lshlrev_b32 v{gFl}, 2, v{gFl}
    s_lshl_b32 s{sFl}, s{sI}, 2
    s_add_u32 s{sFl}, s{sFl}, s{sW}
    s_lshl_b32 s{sFl}, s{sFl}, 6
    s_add_u32 s{sFl}, s{sFl}, {WS_FLAG}
    v_lshlrev_b32 v{gL16}, 4, v1
    s_mul_i32 s3, s{sW}, {28*1024}
    s_mul_i32 s{sH0}, s{sTok}, {112*1024}
    s_xor_b32 s4, s{sTok}, 1
    s_mul_i32 s{sH1}, s4, {112*1024}
    s_add_u32 s{sH0}, s{sH0}, s3
    s_add_u32 s{sH1}, s{sH1}, s3
    s_mul_i32 s{sWd}, s{sW}, {28*16384}
    s_lshl_b32 s4, s{sJ}, 7
    s_add_u32 s{sWd}, s{sWd}, s4
    s_add_u32 s{sWd}, s{sWd}, {12*16384}
    v_and_b32 v16, 31, v1
    v_min_u32 v16, 27, v16
    v_lshlrev_b32 v16, 7, v16
    v_mul_u32_u24 v17, {112*1024}, v17
    v_add_u32 v16, v16, v17
    s_min_u32 s3, s{sH0}, s{sH1}
    s_mul_i32 s4, s{sJ}, 3584
    s_add_u32 s3, s3, s4
    v_add_u32 v{gHt}, s3, v16
    """)

def prologue():
    A(f"""
    s_load_dwordx16 s[64:79], s[0:1], 8
    s_load_dwordx2 s[8:9], s[0:1], 0
    s_load_dwordx2 s[12:13], s[0:1], 80
    s_load_dwordx2 s[16:17], s[0:1], 88
    s_load_dwordx8 s[56:63], s[0:1], 96
    s_load_dwordx2 s[20:21], s[0:1], 128
    v_lshrrev_b32 v2, 6, v0
    v_and_b32 v1, 63, v0
    s_lshl_b32 s3, s2, 8
    v_readfirstlane_b32 s{sW}, v2
    v_add_u32 v3, s3, v0
    v_lshlrev_b32 v3, 1, v3
    v_lshrrev_b32 v4, 7, v3
    v_and_b32 v4, 0xfffffffe, v4
    s_and_b32 s{sWN}, s{sW}, 3
    s_lshr_b32 s{sWM}, s{sW}, 2
    s_and_b32 s7, s{sW}, 1
    s_lshl_b32 s7, s7, 3
    s_add_u32 s7, s7, 80
    s_load_dwordx2 s[44:45], s[0:1], s7
    s_and_b32 s3, s2, 7
    s_lshr_b32 s4, s2, 3
    s_lshr_b32 s{sTB}, s3, 1
    s_lshl_b32 s{sTB}, s{sTB}, 2
    s_and_b32 s5, s4, 3
    s_add_u32 s{sTB}, s{sTB}, s5
    s_lshl_b32 s{sI}, s3, 2
    s_add_u32 s{sI}, s{sI}, s5
    s_and_b32 s{sFB}, s3, 1
    s_mul_i32 s{sFB}, s{sFB}, 7
    s_lshr_b32 s{sJ}, s4, 2
    s_add_u32 s{sFB}, s{sFB}, s{sJ}
    s_lshl_b32 s{sXoff}, s{sTB}, 17
    s_lshl_b32 s5, s{sW}, 14
    s_add_u32 s{sXoff}, s{sXoff}, s5
    s_mul_i32 s{sWoff}, s{sW}, {4*3584}
    s_lshl_b32 s5, s{sFB}, 8
    s_add_u32 s{sWoff}, s{sWoff}, s5
    s_lshl_b32 s{sM0W}, s{sW}, 11
    s_add_u32 s{sM0X}, s{sM0W}, {XB}
    s_add_u32 s101, s{sXoff}, 1024
    s_add_u32 s35, s{sWoff}, {16*WSTEP}
    s_and_b32 s5, s4, 3
    s_lshl_b32 s5, s5, 1
    s_add_u32 s5, s5, s{sJ}
    s_and_b32 s5, s5, {7 if ROT else 0}
    s_lshl_b32 s6, s5, 7
    s_add_u32 s{sXoff}, s{sXoff}, s6
    s_mul_i32 s6, s5, {2*WSTEP}
    s_add_u32 s{sWoff}, s{sWoff}, s6
    v_lshrrev_b32 v16, 4, v1
    v_and_b32 v17, 7, v1
    v_xor_b32 v18, v17, v16
    v_lshrrev_b32 v19, 3, v1
    v_lshlrev_b32 v19, 10, v19
    v_lshl_add_u32 v{vXo[0]}, v18, 4, v19
    v_xor_b32 v{vXo[1]}, 64, v{vXo[0]}
    v_add_u32 v{vXo[1]}, 7168, v{vXo[1]}
    v_lshlrev_b32 v{vTo}, 6, v17
    v_and_b32 v18, 1, v16
    v_lshlrev_b32 v18, 2, v18
    v_xor_b32 v18, v18, v17
    v_lshl_add_u32 v{vDo}, v18, 4, v19
    v_lshlrev_b32 v17, 2, v16
    v_and_b32 v{vWo}, 15, v1
    v_xor_b32 v{vWo}, v{vWo}, v17
    v_lshlrev_b32 v{vWo}, 4, v{vWo}
    v_mul_u32_u24 v16, 3584, v16
    v_add_u32 v{vWo}, v{vWo}, v16
    v_mov_b32 v{vZero}, 0
    s_lshl_b32 s{sTo}, s2, 2
    s_lshr_b32 s5, s{sW}, 1
    s_add_u32 s{sTo}, s{sTo}, s5
    s_lshl_b32 s{sTo}, s{sTo}, 9
    s_add_u32 s{sTo}, s{sTo}, {OOB if NOTOUCH else 458752}
    s_mov_b32 s{sChk}, 0
    s_mov_b32 s{sWst}, {WSTEP}
    s_mov_b32 s{sXst}, 128
    s_mov_b32 s{sIt}, 0
    s_mov_b32 s{sSpin}, {SPIN}
    """)
    srd(8, 2048*512*2); srd(12, 512*1792*2); srd(16, 512*1792*2 + 1024); srd(20, WS_BYTES); srd(44, 512*1792*2)
    A(f"""
    s_waitcnt lgkmcnt(0)
    s_sub_u32 s16, s16, 1024
    s_subb_u32 s17, s17, 0
    s_cmp_lt_u32 s{sW}, 4
    s_cbranch_scc1 L_tables
    s_cmp_lt_u32 s2, 224
    s_cbranch_scc1 L_loader
    s_sub_u32 s3, s2, 224
    s_lshl_b32 s3, s3, 16
    s_lshl_b32 s4, s{sWN}, 14
    s_add_u32 s3, s3, s4
    s_mul_i32 s4, s{sWN}, {16*UP}
    v_lshlrev_b32 v16, 4, v1
    s_add_u32 s5, s3, 16384
L_mv_ld:
    s_mov_b32 m0, s4
    s_add_u32 s4, s4, {UP}
    buffer_load_dwordx4 v16, s[8:11], s3 offen lds
    s_add_u32 s3, s3, 1024
    s_cmp_lt_u32 s3, s5
    s_cbranch_scc1 L_mv_ld
    s_branch L_loader
L_tables:
    """)
    for i, p in enumerate((76, 64, 66, 68, 70, 72, 74)):
        A(f"global_load_ushort v{110+i}, v{4 if i == 0 else 3}, s[{p}:{p+1}]")
    A(f"""
    s_mov_b32 s{sRole}, 0
    s_add_u32 s{sXoff}, s{sXoff}, 256
    s_add_u32 s{sWoff}, s{sWoff}, {4*WSTEP}
    """)
    A("\n".join(wrap_x() + wrap_w()))
    if TOUCH: touch()
    if PGT:
        A(f"""
        s_lshl_b32 s3, s2, 2
        s_add_u32 s3, s3, s{sW}
        s_mul_i32 s3, s3, 1792
        v_min_u32 v16, 13, v1
        v_lshlrev_b32 v16, 7, v16
        v_add_u32 v16, s3, v16
        global_load_dword v{vJunk}, v16, s[56:57]
        """)
    g1_setup()
    g2_setup()
    tables()
    stamp(2)
    A("s_cmp_ge_u32 s2, 224\ns_cbranch_scc1 L_mover")
    A("L_g1_start:")

def loader():
    def both_x(slot):
        for part in (1, 0):
            A(f"s_add_u32 m0, s{sM0X}, {(slot*16384 - part*8192) & 0xffffffff}\ns_sub_u32 s3, s{sXoff}, {part*65536}")
            for i in range(2): A(f"buffer_load_dwordx4 v{vXo[i]}, s[8:11], s3 offen offset:{1024*i} lds")
        A(f"s_add_u32 s{sXoff}, s{sXoff}, 128"); A("\n".join(wrap_x()))
    def both_w(slot):
        for part in (1, 0):
            A(f"s_add_u32 m0, s{sM0W}, {(slot*16384 - part*8192) & 0xffffffff}\ns_sub_u32 s3, s{sWoff}, {part*16*3584}")
            A(f"buffer_load_dwordx4 v{vWo}, s[12:15], s3 offen lds")
            A(f"buffer_load_dwordx4 v{vWo}, s[16:19], s3 offen offset:1024 lds")
        A(f"s_add_u32 s{sWoff}, s{sWoff}, {WSTEP}")
        if slot & 1: A("\n".join(wrap_w()))
    A("L_loader:")
    A(f"s_mov_b32 s{sRole}, 1\ns_cmp_ge_u32 s2, 224\ns_cbranch_scc1 L_mover_ld")
    both_x(0); both_w(0); both_w(1)
    A("L_ld_back:")
    g1_setup()
    conv_setup()
    A("s_cmp_ge_u32 s2, 224\ns_cbranch_scc1 L_mover")
    both_x(1); both_w(2); both_w(3)
    if TOUCH: touch()
    stamp(1)
    A("s_branch L_g1_start")

def tables():
    L2E_hi = struct.unpack("<f", struct.pack("<f", L2E))[0]
    L2E_lo = L2E - L2E_hi
    AD = 108
    A(f"""
    v_and_b32 v{AD}, 127, v0
    v_lshlrev_b32 v{AD}, 2, v{AD}
    v_lshrrev_b32 v16, 7, v0
    v_mul_u32_u24 v16, {57*PITCH}, v16
    v_add_u32 v{AD}, v{AD}, v16
    v_add_u32 v{AD}, {TB}, v{AD}
    v_mov_b32 v16, {CNT}
    ds_write_b32 v16, v{vZero}
    v_mov_b32 v96, 0x3f80
    ds_write_b32 v{AD}, v96 offset:{16*PITCH}
    s_mov_b32 s3, {fbits(L2E_hi)}
    s_mov_b32 s5, {fbits(L2E_lo)}
    s_waitcnt vmcnt({4 + bool(TOUCH) + PGT})
    """)
    stamp(1)
    A(f"""
    v_lshlrev_b32 v110, 16, v110
    v_lshlrev_b32 v111, 16, v111
    v_lshlrev_b32 v112, 16, v112
    v_mul_f32 v17, s3, v110
    v_fma_f32 v18, v110, s3, -v17
    v_fma_f32 v18, v110, s5, v18
    v_exp_f32 v17, v17
    v_mul_f32 v18, {fbits(math.log(2.0))}, v18
    v_fma_f32 v17, v17, v18, v17
    v_cvt_pk_bf16_f32 v17, 0, v17
    v_mul_f32 v111, v17, v111
    v_mul_f32 v112, v17, v112
    v_mul_f32 v111, s3, v111
    v_mul_f32 v112, 0.15915494, v112
    """)
    E1, E8, E128 = 34, 26, 28
    sc = ((E1, 1.0, 60), (E8, 8.0, 62), (E128, 128.0, 64))
    for e, sv, t in sc:
        if sv == 1.0: A(f"v_exp_f32 v{t}, v111\nv_fract_f32 v{t+1}, v112")
        else: A(f"v_mul_f32 v{t}, {fbits(sv)}, v111\nv_mul_f32 v{t+1}, {fbits(sv)}, v112\nv_exp_f32 v{t}, v{t}\nv_fract_f32 v{t+1}, v{t+1}")
    for e, sv, t in sc:
        A(f"v_cos_f32 v{e}, v{t+1}\nv_sin_f32 v{e+1}, v{t+1}")
    A(f"""
    s_waitcnt vmcnt({bool(TOUCH) + PGT})
    v_lshlrev_b32 v18, 16, v113
    v_lshlrev_b32 v19, 16, v114
    v_lshlrev_b32 v24, 16, v115
    v_lshlrev_b32 v25, 16, v116
    v_mul_f32 v18, v17, v18
    v_mul_f32 v19, v17, v19
    """)
    for e, sv, t in sc:
        A(f"v_pk_mul_f32 {vr(e,2)}, {vr(e,2)}, {vr(t,2)} op_sel_hi:[1,0]")
    tmpi = [0]
    def put(row, r, neg=False):
        t = 96 + (tmpi[0] & 7); tmpi[0] += 1
        A(f"v_cvt_pk_bf16_f32 v{t}, v{r}, {'-' if neg else ''}v{r+1}")
        A(f"ds_write_b32 v{AD}, v{t} offset:{row*PITCH}")
    PR = 16
    EP = lambda p: 32 + 2*p
    cmul(20, 24, 18)
    put(PR + 1, E1); put(PR + 8, E128); put(0, 20, True)
    q = [20, 22]
    jobs_q = list(range(1, 16))
    pp = [0]
    def prod(row, a, b):
        d = 52 + 2*(pp[0] & 3); pp[0] += 1
        cmul(d, a, b); put(row, d)
    def do_q():
        i = jobs_q.pop(0); cmul(q[1], q[0], E8); q.reverse(); put(i, q[0], True)
    for p in range(2, 8):
        cmul(EP(p), EP(p-1), E1); do_q(); put(PR + p, EP(p))
    for p in range(1, 8):
        prod(PR + 8 + p, E128, EP(p))
        if p % 3 == 0: do_q()
    cur = E128; nx = 48
    for h in range(2, 17):
        cmul(nx, cur, E128); cur, nx = nx, (50 if nx == 48 else 48)
        if h >= 8 and jobs_q: do_q()
        if h < 4:
            put(PR + 16 + 4*(h-2), cur)
            for p in range(1, 4): prod(PR + 16 + 4*(h-2) + p, cur, EP(2*p))
        elif h < 8:
            put(PR + 24 + 2*(h-4), cur)
            prod(PR + 24 + 2*(h-4) + 1, cur, EP(4))
        else:
            put(PR + 32 + (h-8), cur)
    while jobs_q: do_q()

def poll_movers(lb):
    A(f"""
{lb}:
    v_cmp_gt_u32 vcc, 32, v{vPoll}
    s_cbranch_vccz {lb}_ok
    s_sub_u32 s{sSpin}, s{sSpin}, 1
    s_cbranch_scc1 {lb}_ok
    s_sleep 8
    global_load_dword v{vPoll}, v{vZero}, s[62:63] sc1
    s_waitcnt vmcnt(0)
    s_branch {lb}
{lb}_ok:
    """)

def gemm1():
    def reads(fs, slot, h, xs, s4):
        f = FR[fs]; o = slot*16384 + h*8192
        return [f"ds_read_b64_tr_b16 {vr(f+8,2)}, v{vWr} offset:{o}",
                f"ds_read_b64_tr_b16 {vr(f+10,2)}, v{vWr} offset:{o+2048}",
                f"ds_read_b128 {vr(f,4)}, v{vXr[s4]} offset:{xs*16384}",
                f"ds_read_b64_tr_b16 {vr(f+12,2)}, v{vWr} offset:{o+1024}",
                f"ds_read_b64_tr_b16 {vr(f+14,2)}, v{vWr} offset:{o+3072}",
                f"ds_read_b128 {vr(f+4,4)}, v{vXr[s4]} offset:{xs*16384+4096}"]
    def mfmas(fs):
        f = FR[fs]; m = []
        for tt in range(2):
            m.append(f"v_mfma_f32_32x32x16_bf16 {vr(ACC1+16*tt,16)}, {vr(f+8,4)}, {vr(f+4*tt,4)}, {vr(ACC1+16*tt,16)}")
            m.append(f"v_mfma_f32_32x32x16_bf16 {vr(ACC1+32+16*tt,16)}, {vr(f+12,4)}, {vr(f+4*tt,4)}, {vr(ACC1+32+16*tt,16)}")
        return m
    def weave(ms, groups):
        for i, m in enumerate(ms):
            A(m)
            for x in groups[i]: A(x)
    A(f"s_waitcnt vmcnt({17 if TOUCH else 16}) lgkmcnt(0)\ns_barrier")
    stamp(3)
    A("\n".join(reads(0, 0, 0, 0, 0)))
    A("L_g1_loop:")
    for p in range(4):
        par = p & 1
        if p == 3:
            A(f"s_cmp_eq_u32 s{sChk}, 0\ns_cbranch_scc0 L_g1_chk\nL_g1_chk_back:")
        A("s_waitcnt lgkmcnt(0)")
        r = reads(1, p, 1, p >> 1, 2*par+1)
        ex = []
        if p == 0: ex = [f"buffer_load_dword v{vJunk}, v{vTo}, s[44:47], s{sTo} offen", f"s_add_u32 s{sTo}, s{sTo}, 458752"]
        if p == 2: ex = [f"buffer_load_dword v{vJunk}, v{vTo2}, s[68:71], s{sTo2} offen", f"s_add_u32 s{sTo2}, s{sTo2}, {512 if WDT == 3 else 4096}"]
        if not TOUCH: ex = []
        weave(mfmas(0), [r[0:3], r[3:6], ex, []])
        A(f"s_waitcnt vmcnt({(8 if par == 0 else 5) if TOUCH else (6 if par == 0 else 4)}) lgkmcnt(0)\ns_barrier")
        pn = (p + 1) & 3
        r = reads(0, pn, 0, pn >> 1, 2*(pn & 1))
        w = dma_w()
        if par == 0:
            g = [r[0:3], r[3:6] + [f"s_add_u32 m0, s{sM0W}, {p*16384}"], [w[0]], [w[1], f"s_add_u32 s{sWoff}, s{sWoff}, s{sWst}"]]
        else:
            x = dma_x()
            g = [r[0:3] + [f"s_add_u32 m0, s{sM0X}, {(p>>1)*16384}"], r[3:6] + [x[0]],
                 [x[1], f"s_add_u32 m0, s{sM0W}, {p*16384}", f"s_add_u32 s{sXoff}, s{sXoff}, s{sXst}"] + wrap_x(),
                 [w[0], w[1], f"s_add_u32 s{sWoff}, s{sWoff}, s{sWst}"] + wrap_w()]
        weave(mfmas(1), g)
    A(f"""
    s_add_u32 s{sIt}, s{sIt}, 1
    s_cmp_eq_u32 s{sIt}, 4
    s_cbranch_scc1 L_g1_done
    s_cmp_eq_u32 s{sIt}, 3
    s_cbranch_scc1 L_g1_switch
    """)
    if WDT: A(f"s_cmp_eq_u32 s{sIt}, 2\ns_cselect_b32 s{sTo2}, {OOB}, s{sTo2}")
    A(f"""
    s_cmp_eq_u32 s{sRole}, 0
    s_cbranch_scc1 L_g1_loop
    s_cmp_eq_u32 s{sIt}, 2
    s_cbranch_scc1 L_g1_k2
    """)
    k_reads()
    A("s_branch L_g1_loop\nL_g1_k2:")
    k_mfma()
    A("s_branch L_g1_loop\nL_g1_switch:")
    switch_to_wd()
    A(f"""
    s_cmp_eq_u32 s{sRole}, 0
    s_cbranch_scc1 L_g1_loop
    s_mov_b32 s{sChk}, 1
    """)
    k_gather()
    A(f"""
    s_cmp_eq_u32 s{sW}, 4
    s_cbranch_scc0 L_g1_loop
    global_load_dword v{vPoll}, v{vZero}, s[62:63] sc1
    s_branch L_g1_loop
L_g1_chk:
    """)
    k_pack()
    A(f"s_cmp_eq_u32 s{sW}, 4\ns_cbranch_scc0 L_g1_chk_back")
    poll_movers("L_pm1")
    A("s_branch L_g1_chk_back\nL_g1_done:")

def conv_loads():
    A(f"""
    s_cmp_eq_u32 s{sRole}, 0
    s_cbranch_scc1 L_cl_skip
    buffer_load_dwordx4 {vr(vU,4)}, v{cLu0}, s[20:23], s{sCu} offen sc1
    buffer_load_dwordx4 {vr(vU+4,4)}, v{cLu1}, s[20:23], s{sCu} offen sc1
    buffer_load_dwordx4 {vr(vG,4)}, v{cLg0}, s[20:23], 0 offen sc1
    buffer_load_dwordx4 {vr(vG+4,4)}, v{cLg1}, s[20:23], 0 offen sc1
L_cl_skip:
    """)

def publish_h():
    A(f"""
    v_mov_b32 v14, 1
    v_mov_b32 v15, 0
    s_mov_b64 exec, 1
    """)
    if SS == 2: stamp(1)
    A("s_waitcnt vmcnt(0)")
    if SS == 2: stamp(2)
    A(f"buffer_store_dword v14, v15, s[20:23], s{sHfl} offen sc1\ns_mov_b64 exec, -1")

def epilogue1():
    C1 = -2.0 * L2E * math.sqrt(2.0/math.pi)
    C2 = C1 * 0.044715
    A(f"""
    s_mov_b32 s34, {fbits(C2)}
    s_mov_b32 s35, {fbits(C2)}
    v_mov_b32 v2, {fbits(C1)}
    v_mov_b32 v3, {fbits(C1)}
    v_lshlrev_b32 v4, 4, v1
    s_nop 1
    """)
    for tt in range(2):
        G = ACC1 + 16*tt; U = ACC1 + 32 + 16*tt
        O = 16 + 8*tt; T = 32
        for p in range(8): A(f"v_pk_mul_f32 {vr(T+2*p,2)}, {vr(G+2*p,2)}, {vr(G+2*p,2)}")
        for p in range(8): A(f"v_pk_fma_f32 {vr(T+2*p,2)}, {vr(T+2*p,2)}, s[34:35], v[2:3]")
        for p in range(8): A(f"v_pk_mul_f32 {vr(T+2*p,2)}, {vr(T+2*p,2)}, {vr(G+2*p,2)}")
        for p in range(16): A(f"v_exp_f32 v{T+p}, v{T+p}")
        for p in range(8): A(f"v_pk_mul_f32 {vr(G+2*p,2)}, {vr(G+2*p,2)}, {vr(U+2*p,2)}")
        for p in range(8): A(f"v_pk_add_f32 {vr(T+2*p,2)}, {vr(T+2*p,2)}, 1.0 op_sel_hi:[1,0]")
        for p in range(16): A(f"v_rcp_f32 v{T+p}, v{T+p}")
        A("s_nop 0")
        for p in range(8): A(f"v_pk_mul_f32 {vr(G+2*p,2)}, {vr(G+2*p,2)}, {vr(T+2*p,2)}")
        for p in range(8): A(f"v_cvt_pk_bf16_f32 v{O+p}, v{G+2*p}, v{G+2*p+1}")
        A(f"buffer_store_dwordx4 {vr(O,4)}, v4, s[20:23], s{sHst} offen sc1")
        A(f"buffer_store_dwordx4 {vr(O+4,4)}, v4, s[20:23], s{sHst} offen offset:1024 sc1")
        if tt == 0:
            A(f"s_add_u32 s{sHst}, s{sHst}, {112*1024}")
            A("s_waitcnt vmcnt(2)")
            u_stage("L_epi_nou")
            A("s_waitcnt lgkmcnt(0)\ns_barrier")

def mover():
    A("L_mover_ld:")
    if CT:
        A(f"""
        s_getpc_b64 s[4:5]
L_pc:
        s_sub_u32 s4, s4, L_pc - {KNAME}
        s_subb_u32 s5, s5, 0
        v_and_b32 v16, 255, v0
        v_lshlrev_b32 v16, 7, v16
        v_min_u32 v16, L_exit - {KNAME}, v16
        global_load_dword v{vJunk}, v16, s[4:5]
        """)
    A(f"""
    s_sub_u32 s3, s2, 224
    s_lshl_b32 s6, s3, 10
    v_lshlrev_b32 v16, 4, v1
    s_add_u32 s3, s6, {WS_FLAG}
    s_cmp_lt_u32 s2, {224 + 12}
    s_cselect_b32 s3, s3, {OOB}
    s_cmp_eq_u32 s{sW}, 4
    s_cselect_b32 s3, s3, {OOB}
    v_mov_b64 v[236:237], 0
    v_mov_b64 v[238:239], 0
    buffer_store_dwordx4 v[236:239], v16, s[20:23], s3 offen sc1
    s_branch L_ld_back
L_mover:
    s_sub_u32 s{sMov}, s2, 224
    s_mov_b32 s{sHfl}, {OOB}
    v_and_b32 v2, 15, v1
    v_lshrrev_b32 v3, 4, v1
    v_lshlrev_b32 v16, 4, v3
    s_nop 7
    """)
    if MGT:
        A(f"""
        s_lshl_b32 s3, s{sMov}, 3
        s_add_u32 s3, s3, s{sW}
        s_mul_i32 s3, s3, 7168
        v_min_u32 v17, 55, v1
        v_lshlrev_b32 v17, 7, v17
        buffer_load_dword v{vJunk}, v17, s[68:71], s3 offen
        """)
    for i in range(16):
        A(f"global_load_dwordx4 {vr(128+4*i,4)}, v16, s[58:59] offset:{64*i}")
    A(f"""
    v_lshrrev_b32 v17, 2, v1
    v_and_b32 v17, 3, v17
    v_lshl_add_u32 v17, v3, 3, v17
    v_mul_u32_u24 v17, {UP}, v17
    v_and_b32 v18, 3, v1
    v_lshl_add_u32 v17, v18, 3, v17
    s_lshl_b32 s4, s{sW}, 7
    v_add_u32 v17, s4, v17
    s_lshl_b32 s3, s{sW}, 18
    s_lshl_b32 s4, s{sMov}, 11
    s_add_u32 s3, s3, s4
    s_add_u32 s3, s3, {WS_UT}
    v_lshlrev_b32 v18, 6, v2
    v_lshl_add_u32 v18, v3, 4, v18
    s_waitcnt vmcnt({17 if MGT else 16}) lgkmcnt(0)
    s_barrier
    """)
    stamp(3)
    for q in range(4):
        b = 96 + 8*q
        A(f"""
        ds_read_b64_tr_b16 {vr(b,2)}, v17 offset:{32*q}
        ds_read_b64_tr_b16 {vr(b+2,2)}, v17 offset:{32*q + 4*UP}
        ds_read_b64_tr_b16 {vr(b+4,2)}, v17 offset:{32*q + 32*UP}
        ds_read_b64_tr_b16 {vr(b+6,2)}, v17 offset:{32*q + 36*UP}
        """)
    for q in range(4):
        b = 96 + 8*q
        A(f"""
        s_waitcnt lgkmcnt({12 - 4*q if not STAMP else 0})
        buffer_store_dwordx4 {vr(b,4)}, v18, s[20:23], s3 offen sc1
        buffer_store_dwordx4 {vr(b+4,4)}, v18, s[20:23], s3 offen offset:1024 sc1
        s_add_u32 s3, s3, 65536
        """)
    A(f"""
    s_cmp_eq_u32 s{sRole}, 0
    s_cbranch_scc0 L_mv_nogate
    s_mul_i32 s4, s{sW}, {16*UP}
    v_mul_u32_u24 v17, {UP}, v2
    v_add_u32 v17, v17, v16
    v_add_u32 v17, s4, v17
    """)
    for i in range(16):
        A(f"ds_read_b128 {vr(32+4*i,4)}, v17 offset:{64*i}")
    A("s_waitcnt vmcnt(8) lgkmcnt(0)")
    for i in range(16):
        c = "0" if i < 2 else vr(24+4*(i&1), 4)
        A(f"v_mfma_f32_16x16x32_bf16 {vr(24+4*(i&1),4)}, {vr(32+4*i,4)}, {vr(128+4*i,4)}, {c}")
    A(f"""
    s_lshl_b32 s3, s{sMov}, 2
    s_add_u32 s3, s3, s{sW}
    s_lshl_b32 s3, s3, 6
    s_add_u32 s3, s3, {WS_G}
    s_nop 5
    """)
    for r in range(4): A(f"v_add_f32 v{24+r}, v{24+r}, v{28+r}")
    for r in range(4): A(f"v_cvt_pk_bf16_f32 v{24+r}, 0, v{24+r}")
    for r in range(4): A(f"v_mul_f32 v{24+r}, {fbits(-L2E)}, v{24+r}")
    for r in range(4): A(f"v_exp_f32 v{24+r}, v{24+r}")
    A("s_nop 0")
    for r in range(4): A(f"v_add_f32 v{24+r}, 1.0, v{24+r}")
    for r in range(4): A(f"v_rcp_f32 v{24+r}, v{24+r}")
    A("s_nop 0")
    for r in range(4): A(f"v_cvt_pk_bf16_f32 v{24+r}, 0, v{24+r}")
    for r in range(4): A(f"v_sub_f32 v{28+r}, 1.0, v{24+r}")
    for r in range(4): A(f"v_cvt_pk_bf16_f32 v{24+r}, v{24+r}, v{28+r}")
    A(f"""
    v_cmp_eq_u32 vcc, 0, v2
    s_and_saveexec_b64 s[4:5], vcc
    buffer_store_dwordx4 v[24:27], v16, s[20:23], s3 offen sc1
    s_mov_b64 exec, s[4:5]
    s_branch L_mv_k1
L_mv_nogate:
    """)
    k_reads(); A("s_waitcnt lgkmcnt(0)"); k_mfma()
    A(f"""
L_mv_k1:
    s_waitcnt vmcnt(0) lgkmcnt(0)
    s_barrier
    s_cmp_eq_u32 s{sW}, 4
    s_cbranch_scc0 L_mv_nosig
    v_mov_b32 v16, 1
    s_mov_b64 exec, 1
    global_atomic_add v{vZero}, v16, s[62:63] sc1
    s_mov_b64 exec, -1
L_mv_nosig:
    """)
    stamp(4)
    switch_to_wd()
    if MPF:
        A(f"""
        s_lshr_b32 s3, s{sMov}, 3
        s_mul_i32 s3, s3, {448*1024}
        s_lshl_b32 s4, s{sW}, 13
        s_add_u32 s3, s3, s4
        s_add_u32 s3, s3, {192*1024}
        v_lshlrev_b32 v2, 7, v1
        """)
        for i in range(MROWS):
            A(f"buffer_load_dword v{vJunk}, v2, s[68:71], s3 offen")
            A("s_add_u32 s3, s3, 65536")
    A(f"s_cmp_eq_u32 s{sRole}, 0\ns_cbranch_scc1 L_mv_k2")
    k_gather(); A("s_waitcnt lgkmcnt(0)"); k_pack()
    A("L_mv_k2:")
    for p in range(4): ring_w(p)
    for p in range(2): ring_x(p)
    A(f"""
    s_cmp_eq_u32 s{sW}, 4
    s_cbranch_scc0 L_pm2_ok
    global_load_dword v{vPoll}, v{vZero}, s[62:63] sc1
    s_waitcnt vmcnt(0)
    """)
    poll_movers("L_pm2")
    A("s_waitcnt vmcnt(0) lgkmcnt(0)\ns_barrier\ns_branch L_join")
    A("L_mv_epi:\ns_waitcnt vmcnt(0)")
    u_stage("L_mv_nou")
    A("s_waitcnt lgkmcnt(0)\ns_barrier\ns_branch L_epi_done")

def lds_sync(label, target):
    A(f"""
    s_mov_b64 exec, 1
    s_waitcnt lgkmcnt(0)
    ds_add_u32 v{cCnt}, v{cOne}
{label}:
    ds_read_b32 v2, v{cCnt}
    s_waitcnt lgkmcnt(0)
    v_cmp_gt_u32 vcc, {target}, v2
    s_cbranch_vccz {label}_go
    s_sub_u32 s{sSpin}, s{sSpin}, 1
    s_cbranch_scc0 {label}
{label}_go:
    s_mov_b64 exec, -1
    """)

KF = [4*i for i in range(1, 12)] + [92 + 4*i for i in range(9)] + [224 + 4*i for i in range(4)]
def k_reads():
    for s in range(8):
        A(f"ds_read_b128 {vr(KF[3*s],4)}, v{cKf0} offset:{64*s}")
        A(f"ds_read_b128 {vr(KF[3*s+1],4)}, v{cKf1} offset:{16*PITCH+64*s}")
        A(f"ds_read_b128 {vr(KF[3*s+2],4)}, v{cKf0} offset:{48*PITCH+64*s}")
def k_mfma():
    a0, a1 = FR[1], FR[1] + 4
    for s in range(8):
        c0 = "0" if s == 0 else vr(a0, 4); c1 = "0" if s == 0 else vr(a1, 4)
        A(f"v_mfma_f32_16x16x32_bf16 {vr(a0,4)}, {vr(KF[3*s+1],4)}, {vr(KF[3*s],4)}, {c0}")
        A(f"v_mfma_f32_16x16x32_bf16 {vr(a1,4)}, {vr(KF[3*s+2],4)}, {vr(KF[3*s],4)}, {c1}")
    A(f"""
    s_nop 6
    v_cvt_pk_bf16_f32 v4, v{a0}, v{a0+1}
    v_cvt_pk_bf16_f32 v5, v{a0+2}, v{a0+3}
    v_cvt_pk_bf16_f32 v6, v{a1}, v{a1+1}
    v_cvt_pk_bf16_f32 v7, v{a1+2}, v{a1+3}
    ds_write_b32 v{cKd0}, v4
    ds_write_b32 v{cKd1}, v5
    ds_write_b16 v{cKd2}, v6 offset:1024
    ds_write_b16_d16_hi v{cKd2}, v6 offset:{1024+32}
    ds_write_b16 v{cKd2}, v7 offset:{1024+64}
    ds_write_b16_d16_hi v{cKd2}, v7 offset:{1024+96}
    """)
def k_gather():
    for e in range(18): A(f"ds_read_u16 v{16+e}, v{XA+e}")
def k_pack():
    A(f"""
    v_cmp_ne_u32 vcc, 127, v{cT}
    ds_write_b32 v{cZ0}, v{vZero} offset:{UOFF}
    ds_write_b32 v{cZ1}, v{vZero} offset:4096
    v_cndmask_b32 v33, 0, v33, vcc
    """)
    for hh in range(2):
        for i in range(4):
            b = 16 + 9*hh + 2*i
            A(f"v_lshl_or_b32 v{96+4*hh+i}, v{b+1}, 16, v{b}")
            A(f"v_lshl_or_b32 v{104+4*hh+i}, v{b+2}, 16, v{b+1}")
    A(f"""
    ds_write_b128 v{cImg}, v[96:99]
    ds_write_b128 v{cImg}, v[100:103] offset:2048
    ds_write_b128 v{cImg}, v[104:107] offset:4160
    ds_write_b128 v{cImg}, v[108:111] offset:6208
    """)
def u_stage(lb):
    A(f"""
    s_cmp_eq_u32 s{sRole}, 0
    s_cbranch_scc1 {lb}
    ds_write_b128 v{cUw}, {vr(vU,4)}
    ds_write_b128 v{cUw}, {vr(vU+4,4)} offset:2048
{lb}:
    """)

def conv():
    if CPRIO: A("s_setprio 2")
    stamp(6)
    FA = [96, 160]; FB = [128, 192]; ACC = 16
    def reads(rr):
        fs = rr & 1; r = []
        for i in range(8):
            o = (512*(1 - (i & 1)) + 64*(3 - rr)) // 4
            r.append(f"ds_read_b128 {vr(FB[fs]+4*i,4)}, v{cB} offset:{512*i + 64*(3-rr)}")
            r.append(f"ds_read2_b32 {vr(FA[fs]+4*i,2)}, v{cA[i>>1]} offset0:{o} offset1:{o+1}")
            r.append(f"ds_read2_b32 {vr(FA[fs]+4*i+2,2)}, v{cA[i>>1]} offset0:{o+2} offset1:{o+3}")
        return r
    for x in reads(0): A(x)
    U = 128; D = 136; Y = 96; P = 160
    for rr in range(4):
        fs = rr & 1
        A("s_waitcnt lgkmcnt(0)")
        if rr < 3: fill = reads(rr+1)
        else:
            fill = [f"ds_read_b64 {vr(U,2)}, v{cUr}", f"ds_read_b64 {vr(U+2,2)}, v{cUr} offset:2048",
                    f"ds_read_b64 {vr(U+4,2)}, v{cUr} offset:{CH}", f"ds_read_b64 {vr(U+6,2)}, v{cUr} offset:{CH+2048}"]
        for i in range(8):
            for t in range(i, 8):
                c = "0" if (rr == 0 and i == 0) else vr(ACC+4*t, 4)
                A(f"v_mfma_f32_16x16x32_bf16 {vr(ACC+4*t,4)}, {vr(FA[fs]+4*i,4)}, {vr(FB[fs]+4*(t-i),4)}, {c}")
                if fill: A(fill.pop(0))
            if rr == 0 and i == PUBI:
                publish_h(); A("s_barrier")
            if rr == 3 and 2 <= i:
                A(f"ds_write_b128 v{cRw}, {vr(ACC+4*(i-2),4)} offset:{1024*(i-2)}") if i <= 4 else None
    stamp(7)
    A("s_waitcnt lgkmcnt(3)" if not STAMP else "s_waitcnt lgkmcnt(0)")
    ud = []
    for k in range(8):
        d = D + 2*k
        if k & 1: ud += [f"v_and_b32 v{d}, 0xffff0000, v{U+k//2}", f"v_and_b32 v{d+1}, 0xffff0000, v{U+4+k//2}"]
        else: ud += [f"v_lshlrev_b32 v{d}, 16, v{U+k//2}", f"v_lshlrev_b32 v{d+1}, 16, v{U+4+k//2}"]
    for x in ud[:8]: A(x)
    for t in range(3, 8):
        A(f"ds_write_b128 v{cRw}, {vr(ACC+4*t,4)} offset:{1024*t}")
    for x in ud[8:]: A(x)
    for k in range(8): A(f"v_lshlrev_b32 v{vG+k}, 16, v{vG+k}")
    A(f"s_lshl_b32 s30, s{sDsk}, 16\ns_and_b32 s31, s{sDsk}, 0xffff0000")
    lds_sync("L_cv_s2", 4)
    for q in range(4):
        A(f"ds_read_b128 {vr(P+8*q,4)}, v{cRr} offset:{8192*q}")
        A(f"ds_read_b128 {vr(P+4+8*q,4)}, v{cRr} offset:{8192*q + 4096}")
    for k in range(8):
        d = D + 2*k
        A(f"v_mul_f32 v{d}, s30, v{d}\nv_mul_f32 v{d+1}, s31, v{d+1}")
    A("s_waitcnt lgkmcnt(4)")
    for k in range(8): A(f"v_add_f32 v{D+2*k}, v{D+2*k}, v{P+k}")
    for k in range(8): A(f"v_add_f32 v{D+2*k}, v{D+2*k}, v{P+8+k}")
    A("s_waitcnt lgkmcnt(0)")
    for k in range(8): A(f"v_add_f32 v{D+2*k+1}, v{D+2*k+1}, v{P+16+k}")
    for k in range(8): A(f"v_add_f32 v{D+2*k+1}, v{D+2*k+1}, v{P+24+k}")
    for k in range(8):
        A(f"v_mul_f32 v{D+2*k}, v{vG+k}, v{D+2*k}\nv_mul_f32 v{D+2*k+1}, v{vG+k}, v{D+2*k+1}")
    for k in range(8):
        A(f"v_cvt_pk_bf16_f32 v{Y+k}, v{D+2*k}, v{D+2*k+1}")
    A(f"""
    buffer_store_dwordx4 {vr(Y,4)}, v{cS0}, s[20:23], s{sCga} offen sc1
    buffer_store_dwordx4 {vr(Y+4,4)}, v{cS1}, s[20:23], s{sCga} offen sc1
    s_mov_b64 exec, 1
    """)
    stamp(8)
    A(f"""
    s_waitcnt vmcnt(0)
    buffer_store_dword v{cOne}, v{vZero}, s[20:23], s{sCfl} offen sc1
    """)
    stamp_flush()
    A("s_endpgm")

class Cnt:
    def __init__(self, name, cap): self.ops = []; self.name = name; self.cap = cap
    def issue(self, tag, text): A(text); self.ops.append(tag)
    def wait(self, tags):
        idx = [i for i, t in enumerate(self.ops) if t in tags]
        if not idx: return
        n = min(len(self.ops) - 1 - max(idx), self.cap)
        A(f"s_waitcnt {self.name}({n})")
        self.ops = self.ops[len(self.ops)-n:] if n else []

def gemm2():
    ACC = 192; STG = 96; HR = 16
    sH = [sH0, sH1]
    def wd_reads(kap, d0, d1):
        o = 16384*(kap >> 1) + 2048*(kap & 1)
        hi = 2 if o >= 65536 else 0
        o -= 65536 if hi else 0
        return [f"ds_read_b64_tr_b16 {vr((d0, d1)[dd]+2*ih,2)}, v{gD[hi+dd]} offset:{o + 512*ih}" for dd in range(2) for ih in range(2)]
    for kap in range(12):
        for x in wd_reads(kap, STG + 8*kap, STG + 8*kap + 4): A(x)
        if kap == (11 if MIDB else 5): publish_h()
    A("s_waitcnt lgkmcnt(0)")
    if MIDB: A("s_barrier")
    A("s_setprio 1")
    if SS == 2: stamp(3)
    vm = Cnt("vmcnt", 63); lg = Cnt("lgkmcnt", 0 if (STAMP and SS == 1) else 15)
    def wd_dma(k, kap):
        A(f"s_add_u32 m0, s{sLds}, {16384*(kap >> 1) + 2048*(kap & 1)}\ns_nop 0")
        vm.issue(("w", k), f"buffer_load_dwordx4 v{gX[0]}, s[8:11], s{sWd} offen lds")
        vm.issue(("w", k), f"buffer_load_dwordx4 v{gX[1]}, s[8:11], s{sWd} offen offset:1024 lds")
        A(f"s_add_u32 s{sWd}, s{sWd}, 16384")
    for k in range(12, 24): wd_dma(k, k - 12)
    if SS == 2: A("s_waitcnt vmcnt(0)"); stamp(4)
    A(f"""
L_g2_hpoll:
    buffer_load_dword v2, v{gFl}, s[20:23], s{sFl} offen sc1
    s_waitcnt vmcnt(0)
    v_cmp_eq_u32 vcc, 0, v2
    s_cbranch_vccz L_g2_hready
    s_sub_u32 s{sSpin}, s{sSpin}, 1
    s_cbranch_scc0 L_g2_hpoll
L_g2_hready:
    """)
    vm.ops = []
    stamp(6)
    if STAMP: A("s_waitcnt lgkmcnt(0)")
    free = [HR + 4*i for i in range(20)]
    hreg = {}; wreg = {k: (STG + 8*k, STG + 8*k + 4) for k in range(12)}
    nxt = [0]; wnx = [12]; rd = {}
    def h_issue(kc):
        while free and nxt[0] < 56 and (nxt[0] >> 1) < kc + HD:
            k, tt = nxt[0] >> 1, nxt[0] & 1
            r = free.pop(0); hreg[(k, tt)] = r
            vm.issue(("h", k), f"buffer_load_dwordx4 {vr(r,4)}, v{gL16}, s[20:23], s{sH[tt]} offen offset:{(k & 3)*1024} sc1")
            if (k & 3) == 3: A(f"s_add_u32 s{sH[tt]}, s{sH[tt]}, 4096")
            nxt[0] += 1
    if HT: vm.issue("t", f"buffer_load_dword v2, v{gHt}, s[20:23], 0 offen sc1")
    h_issue(0)
    GA = None
    for k in range(28):
        pre = []
        vm.wait({("h", k)})
        if SS == 1 and k in (0, 8, 12, 18): stamp({0: 1, 8: 2, 12: 3, 18: 4}[k])
        if k - 2 in rd:
            kp = rd[k - 2]
            lg.wait({("w", kp)})
            if kp < 16: wd_dma(kp + 12, kp - 12)
        lg.wait({("w", k)})
        if k >= 1 and wnx[0] < 28 and len(free) >= 4 and (wnx[0] < 24 or wnx[0] <= k + 4):
            kn = wnx[0]; wnx[0] += 1; rd[k] = kn
            vm.wait({("w", kn)})
            wreg[kn] = (free.pop(), free.pop())
            pre = [(("w", kn), x) for x in wd_reads((kn - 12) % 12, *wreg[kn])]
        for (dd, tt) in ((0,0),(0,1),(1,0),(1,1)):
            c = "0" if k == 0 else vr(ACC+16*(2*dd+tt), 16)
            A(f"v_mfma_f32_32x32x16_bf16 {vr(ACC+16*(2*dd+tt),16)}, {vr(wreg[k][dd],4)}, {vr(hreg[(k,tt)],4)}, {c}")
            if pre: lg.issue(*pre.pop(0))
        free += [hreg[(k,0)], hreg[(k,1)], wreg[k][0], wreg[k][1]]
        h_issue(k + 1)
        if k == 18:
            A(f"""
            v_and_b32 v{gFl}, 15, v1
            v_lshlrev_b32 v{gFl}, 4, v{gFl}
            s_lshl_b32 s{sFl}, s{sD}, 8
            s_lshr_b32 s3, s{sTok}, 3
            s_and_b32 s3, s3, 3
            s_lshl_b32 s3, s3, 2
            s_add_u32 s{sFl}, s{sFl}, s3
            s_add_u32 s{sFl}, s{sFl}, {WS_FLAG2}
            """)
        if k == 19:
            A(f"""
            v_and_b32 v{gHt}, 31, v1
            v_lshlrev_b32 v14, 2, v{gHt}
            s_lshl_b32 s3, s{sTok}, 7
            s_add_u32 s4, s3, {WS_G}
            """)
            vm.issue("g", f"buffer_load_dword v4, v14, s[20:23], s4 offen sc1")
            A(f"""
            v_lshrrev_b32 v15, 5, v1
            v_lshl_add_u32 v12, v15, 15, v14
            s_lshl_b32 s{sWd}, s{sD}, 17
            s_add_u32 s{sWd}, s{sWd}, s3
            s_add_u32 s{sWd}, s{sWd}, {WS_GA}
            """)
        if k == 20:
            vm.issue("f", f"buffer_load_dword v2, v{gFl}, s[20:23], s{sFl} offen sc1")
        if k == 24:
            stamp(7)
            if STAMP: A("s_waitcnt lgkmcnt(0)")
            A(f"""
            s_waitcnt vmcnt(0)
L_g2_poll:
            v_cmp_eq_u32 vcc, 0, v2
            s_cbranch_vccz L_g2_ready
            s_sub_u32 s{sSpin}, s{sSpin}, 1
            s_cbranch_scc1 L_g2_ready
            buffer_load_dword v2, v{gFl}, s[20:23], s{sFl} offen sc1
            s_waitcnt vmcnt(0)
            s_branch L_g2_poll
L_g2_ready:
            """)
            vm.ops = []
            fr = sorted(free)
            GA = next(r for r in fr if r + 4 in fr and r >= 96)
            free.remove(GA); free.remove(GA + 4)
            for m in range(8):
                A(f"buffer_load_dword v{GA+m}, v12, s[20:23], s{sWd} offen sc1")
                if m < 7: A(f"s_add_u32 s{sWd}, s{sWd}, {8192 if (m & 3) != 3 else 5*8192}")
    assert wnx[0] == 28
    stamp(8)
    A(f"""
    v_add_u32 v13, s{sLds}, v{gL16}
    s_mov_b32 s12, s60
    s_mov_b32 s13, s61
    s_mov_b32 s14, 0x200000
    v_xor_b32 v8, 0x1000, v13
    v_xor_b32 v9, 0x2000, v13
    v_xor_b32 v10, 0x3000, v13
    v_lshlrev_b32 v11, 10, v{gHt}
    v_lshl_add_u32 v11, v15, 4, v11
    s_lshl_b32 s3, s{sTok}, 15
    s_lshl_b32 s4, s{sD}, 6
    s_add_u32 s3, s3, s4
    v_and_b32 v4, 0xffff0000, v4
    """)
    for x in range(1, 4):
        for i in range(4):
            A(f"ds_write_b128 v13, {vr(ACC+16*x+4*i,4)} offset:{(x-1)*16384 + 1024*i}")
    A("s_waitcnt vmcnt(0)")
    for p in range(8):
        A(f"v_lshlrev_b32 v{80+2*p}, 16, v{GA+p}\nv_and_b32 v{81+2*p}, 0xffff0000, v{GA+p}")
    A("s_waitcnt lgkmcnt(0)\ns_barrier")
    for x in range(3):
        for i in range(4):
            A(f"ds_read_b128 {vr(32+16*x+4*i,4)}, v{8+x} offset:{x*16384 + 1024*i}")
    for x in range(3):
        A(f"s_waitcnt lgkmcnt({8 - 4*x})")
        for p in range(8):
            A(f"v_pk_add_f32 {vr(ACC+2*p,2)}, {vr(ACC+2*p,2)}, {vr(32+16*x+2*p,2)}")
    for p in range(8):
        A(f"v_pk_fma_f32 {vr(32+2*p,2)}, {vr(ACC+2*p,2)}, v[4:5], {vr(80+2*p,2)} op_sel_hi:[1,0,1]")
    for p in range(8):
        A(f"v_cvt_pk_bf16_f32 v{24+p}, v{32+2*p}, v{33+2*p}")
    A(f"""
    buffer_store_dwordx4 v[24:27], v11, s[12:15], s3 offen
    buffer_store_dwordx4 v[28:31], v11, s[12:15], s3 offen offset:32
    """)
    stamp_flush()
    A("s_endpgm")

def main():
    A('.amdgcn_target "amdgcn-amd-amdhsa--gfx950"\n.text')
    A(f".globl {KNAME}\n.p2align 12\n.type {KNAME},@function\n{KNAME}:")
    if STAMP:
        for i in range(NST): A(f"s_mov_b32 s{80+2*i}, 0")
    stamp(0)
    A("s_cmp_ge_u32 s2, 256\ns_cbranch_scc1 L_exit")
    prologue()
    gemm1()
    stamp(4)
    A("L_join:")
    conv_loads()
    A("s_cmp_ge_u32 s2, 224\ns_cbranch_scc1 L_mv_epi")
    epilogue1()
    if MIDB: A("L_epi_done:")
    else: A(f"""
    s_waitcnt vmcnt(4)
L_epi_done:
    s_waitcnt lgkmcnt(0)
    s_barrier
    """)
    stamp(5)
    A(f"s_cmp_eq_u32 s{sRole}, 0\ns_cbranch_scc0 L_conv")
    gemm2()
    A("L_conv:")
    conv()
    loader()
    mover()
    A("L_exit:\n    s_endpgm")
    A(f""".section .rodata,"a"
.p2align 6
.amdhsa_kernel {KNAME}
  .amdhsa_next_free_vgpr 256
  .amdhsa_next_free_sgpr 102
  .amdhsa_accum_offset 256
  .amdhsa_group_segment_fixed_size 0
  .amdhsa_kernarg_size 136
  .amdhsa_user_sgpr_count 2
  .amdhsa_user_sgpr_kernarg_segment_ptr 1
  .amdhsa_system_sgpr_workgroup_id_x 1
.end_amdhsa_kernel""")
    open(sys.argv[1], "w").write(HEADER + "\n".join(L) + "\n")

main()
```

```python
import sys, struct, math

OPTS = dict(a.split("=") for a in sys.argv[2:])
def opt(name, dflt): return int(OPTS.get(name, dflt))
STAMP = opt("stamp", 0); SS = opt("ss", 0)
T2 = opt("t2", 1); CT = opt("ct", 1); HD = opt("hd", 5); MROWS = opt("mrows", 2); HIL = opt("hil", 1); WLA = opt("wla", 8); E1 = opt("e1", 0); NSL = opt("nsl", 4); TPOS = opt("tpos", 50); MG2 = opt("mg2", 0); LW = opt("lw", 0); PUBN = opt("pubn", 12); TLB = opt("tlb", 0); CST = opt("cst", 0); RS = opt("rs", 5); AW = opt("aw", 0); GWL = 64*1056; PS = opt("ps", 14); PF1 = opt("pf1", 1); PRE = opt("pre", 1); HDMAX = opt("hdmax", 8); AGT = opt("agt", 1); BLT = opt("blt", 0); BLS = opt("bls", 6); PPRIO = opt("pprio", 0); MGT = opt("mgt", 0)
SPIN = opt("spin", 0x40000); STUBS = opt("stubs", 1); NOFILL = opt("nofill", 0); PKT = opt("pkt", 1)
APRIO = opt("aprio", 1); BPRIO = opt("bprio", 0); EPRIO = opt("eprio", 2); B2W = opt("b2w", 4); KDYN = opt("kdyn", 6); B2A = opt("b2a", 1); HT = opt("ht", 0); W3E = opt("w3e", 0); MT = opt("mt", 2)
KNAME = "gated_mix__ssm_conv_s4__geglu_ffn__prompt_kernel"

WS_H, WS_UT, WS_GA = 0x0, 0x700000, 0x900000
WS_G, WS_FLAG, WS_STAMP = 0xB00000, 0xB08000, 0x1400000
WS_FLAG2 = WS_FLAG + 1792*128
WS_FLAG3 = WS_FLAG + 2816*128
WS_BYTES = 0x10000000
OOB = 0x40000000

XB = 65536
TB = 98304
PITCH = 528
KD = TB + 2*57*PITCH
CH = 12928
UOFF = 8320
RED = TB + 2*CH
CNT = KD + 3072
assert CNT + 8 <= 163840 and RED + 32768 <= KD and RED % 16 == 0
UP = 1056
L2E = math.log2(math.e)
WSTEP = 32*3584

L = []
def lines(s): return [x.strip() for x in s.strip("\n").split("\n") if x.strip()]
def A(s):
    if isinstance(s, (list, tuple)): s = "\n".join(s)
    for line in lines(s):
        L.append(line if line.endswith(":") or line.startswith(".") else "    " + line)
def fbits(x): return "0x%08x" % struct.unpack("<I", struct.pack("<f", x))[0]
def vr(b, n): return f"v[{b}:{b+n-1}]"
def srd(base, size): A(f"s_mov_b32 s{base+2}, {size:#x}\ns_mov_b32 s{base+3}, 0x00020000")

NST = 9
def stamp(idx, ss=0):
    if STAMP and (ss == SS or (ss == 0 and not (SS in (3, 4, 5) and idx in (1, 2, 6, 7, 8)) and not (SS == 1 and idx in (1, 2, 3, 4)) and not (SS == 2 and idx in (1, 2, 3)))):
        A(f"s_memrealtime s[{80+2*idx}:{81+2*idx}]\ns_waitcnt lgkmcnt(0)")
def stamp_flush():
    if not STAMP: return
    A(f"""
    s_waitcnt vmcnt(0) lgkmcnt(0)
    s_memrealtime s[{80+2*NST}:{81+2*NST}]
    s_waitcnt lgkmcnt(0)
    s_mov_b64 exec, -1
    v_lshrrev_b32 v1, 6, v0
    s_lshl_b32 s3, s2, 3
    v_add_u32 v1, s3, v1
    v_lshlrev_b32 v1, 6, v1
    v_add_u32 v1, {WS_STAMP}, v1
    """)
    for i in range(12): A(f"v_mov_b32 v{4+i}, s{80+2*min(i, NST)}")
    A(f"""
    v_and_b32 v2, 63, v0
    v_cmp_eq_u32 vcc, 0, v2
    s_and_saveexec_b64 s[4:5], vcc
    buffer_store_dwordx4 v[4:7], v1, s[20:23], 0 offen
    buffer_store_dwordx4 v[8:11], v1, s[20:23], 0 offen offset:16
    buffer_store_dwordx4 v[12:15], v1, s[20:23], 0 offen offset:32
    """)

HEADER = f"""; gated mix of an S4 long convolution and a GeGLU FFN, one launch, one workgroup per CU.
;   woven into it: the SSM kernel K of two channels (factor tables, K = P Q by MFMA, expansion)
; @launch grid=(256,1,1) block=(512,1,1) lds=163840
"""

PADS = {}
PLAN = {}
def pad(name, inline=True):
    if not STUBS or name not in PLAN: return
    r, w = PLAN[name]
    if inline: A(f"s_branch L_skip_{name}")
    A(f"L_pad_{name}:\ns_branch L_warm_ret{r}")
    if inline: A(f"L_skip_{name}:")
    PADS[name] = PLAN[name]
def warm(r):
    if not STUBS: return
    tgt = {w: n for n, (rr, w) in PLAN.items() if rr == r}
    for w in range(8):
        if w in tgt: A(f"s_cmp_eq_u32 s{sW}, {w}\ns_cbranch_scc1 L_pad_{tgt[w]}")
    A(f"L_warm_ret{r}:")

sW, sXoff, sWoff, sM0W, sM0X, sB1 = 24, 25, 26, 27, 28, 29
sTB, sFB, sWN, sWM, sI, sJ, sMov, sSpin = 32, 33, 36, 37, 38, 39, 40, 42
sHst, sDsk, sHfl, sRole = 43, 48, 49, 100
sTok, sD, sH0, sH1, sLds, sFl, sWd = 50, 51, 52, 53, 64, 65, 66
sCu, sCga, sCfl = 50, 51, 52
sK1, sK2 = 54, 55
sT, sIt, sHfl2, sTch = 41, 30, 31, 29
vTch, vJunk = 253, 254
vXo = [240, 241]; vWo = 242; vDo = [248, 249]
vWr = 75; vXr = [76, 77, 78, 79]
vPoll, vZero, cMv, vTab = 250, 251, 252, 93
FR = [80, 104]; ACC1 = 128
vU, vG = 224, 232
PAR = 120
XA = 48
cKf0, cKf1, cKd0, cKd1, cKd2, cUw, cZ0, cZ1, cImg = 66, 67, 68, 69, 70, 71, 72, 73, 74
cA = [75, 76, 77, 78]; cB, cRw, cRr, cUr, cS0, cS1, cLu0, cLu1, cLg0, cLg1, cT, cCnt, cOne = range(79, 92)
gD = [8, 9, 10, 11]; gX = [12, 13]; gFl, gL16, gT = 5, 6, 7

class Cnt:
    def __init__(self, name, cap): self.ops = []; self.name = name; self.cap = cap
    def note(self, tag): self.ops.append(tag)
    def issue(self, tag, text): A(text); self.ops.append(tag)
    def need(self, tags):
        idx = [i for i, t in enumerate(self.ops) if t in tags]
        if not idx: return None
        n = min(len(self.ops) - 1 - max(idx), self.cap)
        self.ops = self.ops[len(self.ops)-n:] if n else []
        return n
    def wait(self, tags):
        n = self.need(tags)
        if n is not None: A(f"s_waitcnt {self.name}({n})")

def u32(x): return x & 0xffffffff
def x_dma(c):
    o = []
    for part in (1, 0):
        o += [f"s_add_u32 m0, s{sM0X}, {u32((c&1)*16384 - part*8192)}", f"s_add_u32 s{sT}, s{sXoff}, {u32(c*128 - part*65536)}",
              f"buffer_load_dwordx4 v{vXo[0]}, s[8:11], s{sT} offen lds",
              f"buffer_load_dwordx4 v{vXo[1]}, s[8:11], s{sT} offen offset:1024 lds"]
    return o
def w_dma(s):
    o = []
    for part in (1, 0):
        o += [f"s_add_u32 m0, s{sM0W}, {u32((s&3)*16384 - part*8192)}", f"s_add_u32 s{sT}, s{sWoff}, {u32(s*WSTEP - part*16*3584)}",
              f"buffer_load_dwordx4 v{vWo}, s[12:15], s{sT} offen lds",
              f"buffer_load_dwordx4 v{vWo}, s[16:19], s{sT} offen offset:1024 lds"]
    return o
def piece_off(kap): return 16384*(kap >> 1) + 2048*(kap & 1) + (RED - 98304 if kap >= 12 else 0)
def d_piece(kap, k):
    return [f"s_add_u32 m0, s{sLds}, {piece_off(kap)}", f"s_add_u32 s{sT}, s{sWd}, {k*16384}",
            f"buffer_load_dwordx4 v{vDo[0]}, s[68:71], s{sT} offen lds",
            f"buffer_load_dwordx4 v{vDo[1]}, s[68:71], s{sT} offen offset:1024 lds"]
def d_dma(sig): return d_piece(2*sig, 2*sig) + d_piece(2*sig + 1, 2*sig + 1)

def common_setup():
    A(f"""
    v_lshrrev_b32 v16, 4, v1
    v_and_b32 v16, 1, v16
    v_lshlrev_b32 v16, 2, v16
    v_and_b32 v17, 7, v1
    v_xor_b32 v16, v16, v17
    v_lshrrev_b32 v17, 3, v1
    v_lshlrev_b32 v17, 10, v17
    v_lshl_add_u32 v{vDo[0]}, v16, 4, v17
    v_add_u32 v{vDo[1]}, 7168, v{vDo[0]}
    s_mov_b32 s68, s56
    s_mov_b32 s69, s57
    s_mov_b32 s70, {1792*1024}
    s_mov_b32 s71, 0x00020000
    s_lshl_b32 s{sLds}, s{sWN}, 12
    s_mul_i32 s{sWd}, s{sWN}, {28*16384}
    s_lshl_b32 s4, s{sJ}, 7
    s_add_u32 s{sWd}, s{sWd}, s4
    s_mov_b32 s{sSpin}, {SPIN}
    """)

def g1_setup():
    A(f"""
    v_lshrrev_b32 v16, 2, v1
    v_and_b32 v16, 3, v16
    v_xor_b32 v17, s{sWN}, v16
    v_lshlrev_b32 v{vWr}, 8, v16
    v_lshl_add_u32 v{vWr}, v17, 6, v{vWr}
    v_lshrrev_b32 v16, 5, v1
    v_lshl_add_u32 v{vWr}, v16, 12, v{vWr}
    v_and_b32 v17, 16, v1
    v_lshlrev_b32 v18, 1, v17
    v_and_b32 v17, 1, v1
    v_lshl_add_u32 v18, v17, 4, v18
    v_and_b32 v17, 2, v1
    v_lshl_add_u32 v18, v17, 2, v18
    v_add_u32 v{vWr}, v{vWr}, v18
    v_lshrrev_b32 v17, 1, v1
    v_and_b32 v17, 7, v17
    v_xor_b32 v17, v17, v16
    v_and_b32 v{vXr[0]}, 31, v1
    v_lshlrev_b32 v{vXr[0]}, 7, v{vXr[0]}
    v_lshl_add_u32 v{vXr[0]}, v17, 4, v{vXr[0]}
    v_add_u32 v{vXr[0]}, {XB}, v{vXr[0]}
    v_xor_b32 v{vXr[1]}, 32, v{vXr[0]}
    v_xor_b32 v{vXr[2]}, 64, v{vXr[0]}
    v_xor_b32 v{vXr[3]}, 0x60, v{vXr[0]}
    s_mul_i32 s{sHst}, s{sTB}, 448
    s_lshl_b32 s5, s{sFB}, 2
    s_add_u32 s5, s5, s{sWN}
    s_lshl_b32 s4, s5, 1
    s_add_u32 s{sHst}, s{sHst}, s4
    s_lshl_b32 s{sHst}, s{sHst}, 10
    s_mul_i32 s3, s{sTB}, 112
    s_add_u32 s3, s3, s5
    s_lshl_b32 s3, s3, 7
    s_add_u32 s{sHfl}, s3, {WS_FLAG}
    s_mov_b32 s34, {fbits(-2.0 * L2E * math.sqrt(2.0/math.pi) * 0.044715)}
    s_mov_b32 s35, s34
    s_mov_b32 s{sIt}, 0
    """)

def k_setup():
    CB = 0x4300 - 128
    A(f"""
    v_and_b32 v{cT}, 127, v0
    s_lshr_b32 s6, s{sWN}, 1
    s_and_b32 s7, s{sWN}, 1
    s_mul_i32 s4, s6, {57*PITCH}
    s_add_u32 s4, s4, {TB}
    s_mul_i32 s5, s6, {CH}
    s_add_u32 s5, s5, {TB}
    v_and_b32 v16, 15, v1
    v_lshrrev_b32 v17, 4, v1
    v_mul_u32_u24 v{cKf0}, {PITCH}, v16
    v_lshl_add_u32 v{cKf0}, v17, 4, v{cKf0}
    v_add_u32 v{cKf0}, s4, v{cKf0}
    s_mul_i32 s4, s7, {16*PITCH}
    v_add_u32 v{cKf1}, s4, v{cKf0}
    s_mul_i32 s3, s6, 1536
    s_add_u32 s3, s3, {KD}
    v_lshrrev_b32 v18, 1, v17
    v_and_b32 v19, 1, v17
    v_lshlrev_b32 v24, 7, v18
    v_lshl_add_u32 v24, v19, 2, v24
    v_lshl_add_u32 v24, v16, 3, v24
    v_lshlrev_b32 v25, 6, v17
    v_add_u32 v25, 256, v25
    v_lshl_add_u32 v26, v16, 2, v25
    v_lshl_add_u32 v27, v16, 1, v25
    v_cmp_gt_u32 vcc, 2, v17
    v_mov_b32 v28, 32
    v_lshlrev_b32 v29, 3, v{cT}
    v_cndmask_b32 v26, v27, v26, vcc
    v_cndmask_b32 v28, v28, 2, vcc
    s_cmp_eq_u32 s7, 0
    s_cselect_b64 vcc, -1, 0
    v_sub_u32 v29, 2047, v29
    v_cndmask_b32 v26, v26, v24, vcc
    v_cndmask_b32 v28, v28, 2, vcc
    v_add_u32 v28, v26, v28
    v_lshl_add_u32 v{cKd0}, v26, 1, s3
    v_lshl_add_u32 v{cKd1}, v28, 1, s3
    v_lshl_add_u32 v25, v17, 6, v16
    v_lshl_add_u32 v{cKd2}, v25, 1, s3
    v_cvt_f32_i32 v30, v29
    v_add_u32 v29, {CB}, v29
    v_mov_b32 v31, {128 + CB}
    s_sub_u32 s3, s3, {2*CB}
    """)
    for hh in range(2):
        for e in range(9):
            r = XA + 9*hh + e; d = 1024*hh + e
            A(f"v_subrev_f32 v{r}, {fbits(float(d))}, v30\nv_cvt_pk_bf16_f32 v{r}, v{r}, 0")
            if hh: A(f"v_subrev_u32 v24, {d}, v29\nv_med3_i32 v{r}, v{r}, v24, v31")
            A(f"v_lshl_add_u32 v{r}, v{r}, 1, s3")
    A(f"""
    v_lshl_add_u32 v{cZ0}, v{cT}, 2, s5
    v_and_b32 v{cZ1}, 60, v{cZ0}
    s_mul_i32 s3, s7, 4160
    s_add_u32 s3, s3, s5
    v_add_u32 v{cZ1}, s3, v{cZ1}
    v_lshl_add_u32 v{cImg}, v{cT}, 4, s5
    s_and_b32 s3, s2, 31
    s_lshl_b32 s3, s3, 7
    s_add_u32 s3, s3, {WS_FLAG3}
    v_mov_b32 v{cMv}, s3
    """)

def conv_setup():
    A(f"""
    s_lshr_b32 s6, s{sWN}, 1
    s_and_b32 s7, s{sWN}, 1
    s_mul_i32 s5, s6, {CH}
    s_add_u32 s5, s5, {TB}
    v_and_b32 v16, 15, v1
    v_lshrrev_b32 v17, 4, v1
    v_and_b32 v24, 255, v0
    v_lshlrev_b32 v{cS0}, 4, v24
    v_add_u32 v{cS1}, 4096, v{cS0}
    v_add_u32 v{cLg0}, {WS_G}, v{cS0}
    v_add_u32 v{cLg1}, {WS_G}, v{cS1}
    v_add_u32 v{cRr}, {RED}, v{cS0}
    v_lshrrev_b32 v{cUr}, 1, v{cS0}
    v_add_u32 v{cUr}, {TB + UOFF + 512}, v{cUr}
    v_lshrrev_b32 v25, 3, v24
    v_lshlrev_b32 v{cLu0}, 10, v25
    v_and_b32 v26, 7, v24
    v_lshl_add_u32 v{cLu0}, v26, 4, v{cLu0}
    v_add_u32 v{cLu1}, 32768, v{cLu0}
    v_lshlrev_b32 v{cUw}, 6, v25
    v_and_b32 v26, 3, v24
    v_lshl_add_u32 v{cUw}, v26, 4, v{cUw}
    v_bfe_u32 v26, v24, 2, 1
    v_mul_u32_u24 v26, {CH}, v26
    v_add_u32 v{cUw}, v{cUw}, v26
    v_add_u32 v{cUw}, {TB + UOFF + 512}, v{cUw}
    v_and_b32 v24, 1, v16
    v_xor_b32 v24, 1, v24
    v_mul_u32_u24 v24, 4160, v24
    v_and_b32 v25, 14, v16
    v_lshlrev_b32 v25, 1, v25
    v_sub_u32 v24, v24, v25
    v_lshl_add_u32 v24, v17, 4, v24
    s_lshl_b32 s4, s7, 8
    s_sub_u32 s4, s5, s4
    s_add_u32 s3, s4, {4060 - 512 - 192}
    v_add_u32 v{cA[0]}, s3, v24
    v_subrev_u32 v{cA[1]}, 1024, v{cA[0]}
    v_subrev_u32 v{cA[2]}, 2048, v{cA[0]}
    v_subrev_u32 v{cA[3]}, 3072, v{cA[0]}
    v_lshlrev_b32 v{cB}, 5, v16
    v_lshl_add_u32 v{cB}, v17, 4, v{cB}
    s_add_u32 s3, s4, {UOFF + 480 - 192}
    v_add_u32 v{cB}, s3, v{cB}
    v_lshlrev_b32 v{cRw}, 6, v16
    v_lshl_add_u32 v{cRw}, v17, 4, v{cRw}
    s_lshl_b32 s3, s{sWN}, 13
    s_add_u32 s3, s3, {RED}
    v_add_u32 v{cRw}, s3, v{cRw}
    s_lshr_b32 s{sCu}, s2, 3
    s_lshl_b32 s{sCu}, s{sCu}, 16
    s_and_b32 s3, s2, 7
    s_lshl_b32 s3, s3, 7
    s_add_u32 s{sCu}, s{sCu}, s3
    s_add_u32 s{sCu}, s{sCu}, {WS_UT}
    s_lshl_b32 s{sCga}, s2, 13
    s_add_u32 s{sCga}, s{sCga}, {WS_GA}
    s_lshl_b32 s3, s2, 2
    s_load_dword s{sDsk}, s[78:79], s3
    s_add_u32 s3, s3, s{sWN}
    s_lshl_b32 s3, s3, 7
    s_add_u32 s{sCfl}, s3, {WS_FLAG2}

    """)

def g2_setup():
    A(f"""
    s_and_b32 s6, s{sW}, 1
    s_lshr_b32 s7, s{sW}, 1
    s_lshl_b32 s{sTok}, s{sI}, 1
    s_add_u32 s{sTok}, s{sTok}, s6
    s_lshl_b32 s{sD}, s{sJ}, 1
    s_add_u32 s{sD}, s{sD}, s7
    v_lshrrev_b32 v16, 2, v1
    v_and_b32 v16, 3, v16
    v_lshrrev_b32 v17, 5, v1
    v_lshl_add_u32 v19, v17, 3, v16
    v_lshl_add_u32 v{gD[0]}, v19, 7, v18
    v_lshrrev_b32 v16, 1, v16
    v_xor_b32 v16, s7, v16
    v_lshl_add_u32 v{gD[0]}, v16, 6, v{gD[0]}
    v_add_u32 v{gD[0]}, s{sLds}, v{gD[0]}
    v_xor_b32 v{gD[1]}, 64, v{gD[0]}
    v_add_u32 v{gD[2]}, 0x10000, v{gD[0]}
    v_add_u32 v{gD[3]}, 0x10000, v{gD[1]}
    v_min_u32 v{gFl}, 13, v1
    v_lshlrev_b32 v{gFl}, 7, v{gFl}
    s_lshl_b32 s{sFl}, s{sI}, 2
    s_add_u32 s{sFl}, s{sFl}, s{sW}
    s_mul_i32 s{sFl}, s{sFl}, {14*128}
    s_add_u32 s{sFl}, s{sFl}, {WS_FLAG}
    v_lshlrev_b32 v{gL16}, 4, v1
    s_mul_i32 s3, s{sW}, {28*1024}
    s_mul_i32 s{sH0}, s{sTok}, {112*1024}
    s_xor_b32 s4, s{sTok}, 1
    s_mul_i32 s{sH1}, s4, {112*1024}
    s_add_u32 s{sH0}, s{sH0}, s3
    s_add_u32 s{sH1}, s{sH1}, s3
    """)

def prologue():
    A(f"""
    s_load_dwordx16 s[64:79], s[0:1], 8
    s_load_dwordx2 s[8:9], s[0:1], 0
    s_load_dwordx4 s[12:15], s[0:1], 80
    s_load_dwordx8 s[56:63], s[0:1], 96
    s_load_dwordx2 s[20:21], s[0:1], 128
    v_lshrrev_b32 v2, 6, v0
    v_and_b32 v1, 63, v0
    v_mov_b32 v{vZero}, 0
    v_mov_b32 v{cCnt}, {CNT}
    v_mov_b32 v{cOne}, 1
    ds_write_b32 v{cCnt}, v{vZero}
    v_and_b32 v3, 255, v0
    v_readfirstlane_b32 s{sW}, v2
    s_lshl_b32 s3, s2, 8
    v_add_u32 v3, s3, v3
    v_lshlrev_b32 v3, 1, v3
    v_lshrrev_b32 v4, 7, v3
    v_and_b32 v4, 0xfffffffe, v4
    """)
    if STUBS: A(f"s_cmp_lt_u32 s2, 224\ns_cbranch_scc1 L_warm0\ns_cmp_eq_u32 s{sW}, 4\ns_cbranch_scc1 L_pad_mv\nL_warm0:")
    warm(0)
    A(f"""
    s_and_b32 s{sWN}, s{sW}, 3
    s_lshr_b32 s{sWM}, s{sW}, 2
    s_and_b32 s3, s2, 7
    s_lshr_b32 s4, s2, 3
    s_lshr_b32 s{sTB}, s3, 1
    s_lshl_b32 s{sTB}, s{sTB}, 2
    s_and_b32 s5, s4, 3
    s_add_u32 s{sTB}, s{sTB}, s5
    s_lshl_b32 s{sI}, s3, 2
    s_add_u32 s{sI}, s{sI}, s5
    s_and_b32 s{sFB}, s3, 1
    s_mul_i32 s{sFB}, s{sFB}, 7
    s_lshr_b32 s{sJ}, s4, 2
    s_add_u32 s{sFB}, s{sFB}, s{sJ}
    s_lshl_b32 s{sXoff}, s{sTB}, 17
    s_lshl_b32 s5, s{sW}, 14
    s_add_u32 s{sXoff}, s{sXoff}, s5
    s_mul_i32 s{sWoff}, s{sW}, {4*3584}
    s_lshl_b32 s5, s{sFB}, 8
    s_add_u32 s{sWoff}, s{sWoff}, s5
    s_lshl_b32 s{sM0W}, s{sW}, 11
    s_add_u32 s{sM0X}, s{sM0W}, {XB}
    v_lshrrev_b32 v16, 4, v1
    v_and_b32 v17, 7, v1
    v_xor_b32 v18, v17, v16
    v_lshrrev_b32 v19, 3, v1
    v_lshlrev_b32 v19, 10, v19
    v_lshl_add_u32 v{vXo[0]}, v18, 4, v19
    v_xor_b32 v{vXo[1]}, 64, v{vXo[0]}
    v_add_u32 v{vXo[1]}, 7168, v{vXo[1]}
    v_lshlrev_b32 v17, 2, v16
    v_and_b32 v{vWo}, 15, v1
    v_xor_b32 v{vWo}, v{vWo}, v17
    v_lshlrev_b32 v{vWo}, 4, v{vWo}
    v_mul_u32_u24 v16, 3584, v16
    v_add_u32 v{vWo}, v{vWo}, v16
    s_mov_b32 s10, 0x200000
    s_mov_b32 s11, 0x00020000
    s_mov_b32 s18, {512*1792*2 + 1024}
    s_mov_b32 s19, 0x00020000
    s_mov_b32 s22, {WS_BYTES}
    s_mov_b32 s23, 0x00020000
    s_waitcnt lgkmcnt(0)
    s_sub_u32 s16, s14, 1024
    s_subb_u32 s17, s15, 0
    s_mov_b32 s14, {512*1792*2}
    s_mov_b32 s15, 0x00020000
    s_cmp_ge_u32 s{sW}, 4
    s_cbranch_scc1 L_role_b
    """)
    params()

def params():
    for i, p in enumerate((76, 64, 66, 68, 70, 72, 74)):
        A(f"global_load_ushort v{PAR+i}, v{4 if i == 0 else 3}, s[{p}:{p+1}]")

def touches():
    A(f"""
    s_cmp_ge_u32 s2, 224
    s_cbranch_scc1 L_t2_done
    s_cmp_eq_u32 s{sW}, 0
    s_cbranch_scc0 L_t2_w
    v_min_u32 v112, 59, v1
    v_mul_u32_u24 v113, 43, v112
    v_lshrrev_b32 v113, 8, v113
    v_mul_u32_u24 v114, 6, v113
    v_sub_u32 v112, v112, v114
    v_lshlrev_b32 v112, 7, v112
    v_lshl_add_u32 v112, v113, 10, v112
    s_mul_i32 s3, s2, 10240
    s_add_u32 s3, s3, 256
    buffer_load_dword v74, v112, s[8:11], s3 offen
    s_branch L_t2_done
L_t2_w:
    v_min_u32 v112, 55, v1
    v_lshlrev_b32 v112, 7, v112
    s_mul_i32 s3, s2, 7168
    s_add_u32 s3, s3, {2*WSTEP}
    s_cmp_eq_u32 s{sW}, 1
    s_cbranch_scc0 L_t2_u
    buffer_load_dword v74, v112, s[12:15], s3 offen
    s_branch L_t2_done
L_t2_u:
    s_cmp_eq_u32 s{sW}, 2
    s_cbranch_scc0 L_t2_done
    buffer_load_dword v74, v112, s[16:19], s3 offen offset:1024
L_t2_done:
    """)
    if TLB:
        A(f"""
        s_cmp_eq_u32 s{sW}, 3
        s_cbranch_scc0 L_tlb_done
        v_mul_u32_u24 v112, {TLB*1024}, v1
        v_min_u32 v112, 0xC00000, v112
        buffer_load_dword v74, v112, s[20:23], 0 offen sc1
        v_lshlrev_b32 v112, 15, v1
        global_load_dword v74, v112, s[60:61] sc1
L_tlb_done:
        """)
    A("""
    """)

def tab_common(R):
    a, th, dt, t0 = R["a"], R["th"], R["dt"], R["t0"]
    return lines(f"""
    v_lshlrev_b32 v{PAR}, 16, v{PAR}
    v_lshlrev_b32 v{a}, 16, v{PAR+1}
    v_lshlrev_b32 v{th}, 16, v{PAR+2}
    v_mul_f32 v{dt}, s{sK1}, v{PAR}
    v_fma_f32 v{t0}, v{PAR}, s{sK1}, -v{dt}
    v_fma_f32 v{t0}, v{PAR}, s{sK2}, v{t0}
    v_exp_f32 v{dt}, v{dt}
    v_mul_f32 v{t0}, {fbits(math.log(2.0))}, v{t0}
    v_fmac_f32 v{dt}, v{dt}, v{t0}
    v_cvt_pk_bf16_f32 v{dt}, 0, v{dt}
    v_mul_f32 v{a}, v{dt}, v{a}
    v_mul_f32 v{th}, v{dt}, v{th}
    v_mul_f32 v{a}, s{sK1}, v{a}
    v_mul_f32 v{th}, 0.15915494, v{th}
    """)
def cexp(R, e, s, t):
    a, th = R["a"], R["th"]
    o = []
    if s == 1.0: o += [f"v_exp_f32 v{t}, v{a}", f"v_fract_f32 v{t+1}, v{th}"]
    else: o += [f"v_mul_f32 v{t}, {fbits(s)}, v{a}", f"v_mul_f32 v{t+1}, {fbits(s)}, v{th}", f"v_exp_f32 v{t}, v{t}", f"v_fract_f32 v{t+1}, v{t+1}"]
    o += [f"v_cos_f32 v{e}, v{t+1}", f"v_sin_f32 v{e+1}, v{t+1}", f"v_mul_f32 v{e}, v{t}, v{e}", f"v_mul_f32 v{e+1}, v{t}, v{e+1}"]
    return o
def neg(e): return [] if PKT else [f"v_sub_f32 v{e+2}, 0, v{e+1}"]
def cmul(d, a, b):
    if PKT:
        return [f"v_pk_mul_f32 {vr(d,2)}, {vr(a,2)}, {vr(b,2)} op_sel_hi:[0,1]",
                f"v_pk_fma_f32 {vr(d,2)}, {vr(a,2)}, {vr(b,2)}, {vr(d,2)} op_sel:[1,1,0] op_sel_hi:[1,0,1] neg_lo:[0,1,0]"]
    return [f"v_mul_f32 v{d}, v{a}, v{b}", f"v_mul_f32 v{d+1}, v{a}, v{b+1}",
            f"v_fmac_f32 v{d}, v{a+1}, v{b+2}", f"v_fmac_f32 v{d+1}, v{a+1}, v{b}"]
class Putter:
    def __init__(self, base): self.base = base; self.i = 0
    def __call__(self, row, r, ng=False):
        t = self.base + (self.i & 3); self.i += 1
        return [f"v_cvt_pk_bf16_f32 v{t}, v{r}, {'-' if ng else ''}v{r+1}", f"ds_write_b32 v{vTab}, v{t} offset:{row*PITCH}"]
PR = 16
def tables():
    R = dict(a=16, th=17, dt=18, t0=19); put = Putter(108)
    E8, E128, DB, C = 24, 28, 32, 36
    EP = lambda p: 44 + 4*p
    E1 = EP(1)
    o = tab_common(R)
    o += cexp(R, E1, 1.0, 40) + neg(E1) + cexp(R, E128, 128.0, 42) + neg(E128)
    o += ["v_mov_b32 v108, 0x3f80", f"ds_write_b32 v{vTab}, v108 offset:{PR*PITCH}"]; put.i = 1
    o += put(PR + 1, E1) + put(PR + 8, E128)
    o += cexp(R, E8, 8.0, 40) + neg(E8)
    o += lines(f"""
    v_lshlrev_b32 v{DB}, 16, v{PAR+3}
    v_lshlrev_b32 v{DB+1}, 16, v{PAR+4}
    v_lshlrev_b32 v{C}, 16, v{PAR+5}
    v_lshlrev_b32 v{C+1}, 16, v{PAR+6}
    v_mul_f32 v{DB}, v18, v{DB}
    v_mul_f32 v{DB+1}, v18, v{DB+1}
    """) + neg(DB)
    q = [20, 22]; jq = list(range(1, 16)); pp = [0]
    o += cmul(q[0], C, DB) + put(0, q[0], True)
    def do_q():
        i = jq.pop(0); r = cmul(q[1], q[0], E8); q.reverse(); return r + put(i, q[0], True)
    def prod(row, a, b):
        d = 96 + 2*(pp[0] & 3); pp[0] += 1
        return cmul(d, a, b) + put(row, d)
    o += prod(PR + 9, E1, E128)
    for p in range(2, 8):
        o += cmul(EP(p), EP(p-1), E1) + do_q() + put(PR + p, EP(p))
        if p % 2 == 0: o += neg(EP(p))
        o += prod(PR + 8 + p, EP(p), E128)
    cur = E128; nx = 104
    for h in range(2, 17):
        o += cmul(nx, cur, E128); cur, nx = nx, (106 if nx == 104 else 104)
        if h >= 8 and jq: o += do_q()
        if h < 4:
            o += put(PR + 16 + 4*(h-2), cur)
            for p in range(1, 4): o += prod(PR + 16 + 4*(h-2) + p, cur, EP(2*p))
        elif h < 8:
            o += put(PR + 24 + 2*(h-4), cur) + prod(PR + 24 + 2*(h-4) + 1, cur, EP(4))
        else: o += put(PR + 32 + (h-8), cur)
    assert not jq
    return o
KF = [96 + 4*i for i in range(24)]
KA = 192
def k_reads():
    o = []
    for s in range(8):
        o += [f"ds_read_b128 {vr(KF[3*s],4)}, v{cKf0} offset:{64*s}",
              f"ds_read_b128 {vr(KF[3*s+1],4)}, v{cKf1} offset:{16*PITCH+64*s}",
              f"ds_read_b128 {vr(KF[3*s+2],4)}, v{cKf0} offset:{48*PITCH+64*s}"]
    return o
def k_mfma():
    o = []
    for s in range(8):
        o += [f"v_mfma_f32_16x16x32_bf16 {vr(KA,4)}, {vr(KF[3*s+1],4)}, {vr(KF[3*s],4)}, {'0' if s == 0 else vr(KA,4)}",
              f"v_mfma_f32_16x16x32_bf16 {vr(KA+4,4)}, {vr(KF[3*s+2],4)}, {vr(KF[3*s],4)}, {'0' if s == 0 else vr(KA+4,4)}"]
    return o + ["s_nop 7"]
def k_write():
    return lines(f"""
    v_cvt_pk_bf16_f32 v34, v{KA}, v{KA+1}
    v_cvt_pk_bf16_f32 v35, v{KA+2}, v{KA+3}
    v_cvt_pk_bf16_f32 v36, v{KA+4}, v{KA+5}
    v_cvt_pk_bf16_f32 v37, v{KA+6}, v{KA+7}
    ds_write_b32 v{cKd0}, v34
    ds_write_b32 v{cKd1}, v35
    ds_write_b16 v{cKd2}, v36 offset:1024
    ds_write_b16_d16_hi v{cKd2}, v36 offset:{1024+32}
    ds_write_b16 v{cKd2}, v37 offset:{1024+64}
    ds_write_b16_d16_hi v{cKd2}, v37 offset:{1024+96}
    """)
def k_gather(): return [f"ds_read_u16 v{16+e}, v{XA+e}" for e in range(18)]
def k_pack():
    o = [f"v_cmp_ne_u32 vcc, 127, v{cT}", f"ds_write_b32 v{cZ0}, v{vZero} offset:{UOFF}",
         f"ds_write_b32 v{cZ1}, v{vZero} offset:4096", "v_cndmask_b32 v33, 0, v33, vcc"]
    for hh in range(2):
        for i in range(4):
            b = 16 + 9*hh + 2*i
            o += [f"v_lshl_or_b32 v{96+4*hh+i}, v{b+1}, 16, v{b}", f"v_lshl_or_b32 v{104+4*hh+i}, v{b+2}, 16, v{b+1}"]
    o += [f"ds_write_b128 v{cImg}, v[96:99]", f"ds_write_b128 v{cImg}, v[100:103] offset:2048",
          f"ds_write_b128 v{cImg}, v[104:107] offset:4160", f"ds_write_b128 v{cImg}, v[108:111] offset:6208"]
    return o

LD_INIT = f"global_load_dword v{vPoll}, v{vZero}, s[62:63] sc1"
LD_MV = f"buffer_load_dword v{vPoll}, v{cMv}, s[20:23], 0 offen sc1"
def poll(lb, target, ld):
    A(f"""
{lb}:
    v_cmp_gt_u32 vcc, {target}, v{vPoll}
    s_cbranch_vccz {lb}_ok
    s_sub_u32 s{sSpin}, s{sSpin}, 1
    s_cbranch_scc1 {lb}_ok
    s_sleep 8
    {ld}
    s_waitcnt vmcnt(0)
    s_branch {lb}
{lb}_ok:
    """)
def poll_movers(lb): poll(lb, 1, LD_MV)

def dbar():
    if STAMP and SS == 4:
        A("s_memtime s[74:75]\ns_waitcnt lgkmcnt(0)\ns_barrier\ns_memtime s[76:77]\ns_waitcnt lgkmcnt(0)\ns_sub_u32 s74, s76, s74\ns_add_u32 s92, s92, s74")
    else: A("s_barrier")
def dclk(first):
    if STAMP and SS == 4:
        if first: A("s_memtime s[72:73]\ns_waitcnt lgkmcnt(0)")
        else: A("s_memtime s[76:77]\ns_waitcnt lgkmcnt(0)\ns_sub_u32 s94, s76, s72")
def gemm1_a():
    def reads(j):
        f = FR[j & 1]; s = (j >> 1) & 3; o = s*16384 + (j & 1)*8192; xo = ((j >> 2) & 1)*16384
        r = [f"ds_read_b64_tr_b16 {vr(f+16,2)}, v{vWr} offset:{o}",
             f"ds_read_b64_tr_b16 {vr(f+18,2)}, v{vWr} offset:{o+2048}",
             f"ds_read_b128 {vr(f,4)}, v{vXr[j & 3]} offset:{xo}",
             f"ds_read_b64_tr_b16 {vr(f+20,2)}, v{vWr} offset:{o+1024}",
             f"ds_read_b64_tr_b16 {vr(f+22,2)}, v{vWr} offset:{o+3072}"]
        return r + [f"ds_read_b128 {vr(f+4*tt,4)}, v{vXr[j & 3]} offset:{xo+4096*tt}" for tt in range(1, 4)]
    pad("lp")
    A("s_barrier")
    stamp(3); dclk(1)
    A(reads(0))
    A("L_g1_loop:")
    for j in range(8):
        A(f"s_waitcnt vmcnt({4 + AGT if j == 3 else AGT}) lgkmcnt(0)" if AW and j in (3, 5) else "s_waitcnt lgkmcnt(0)")
        if j & 1: dbar()
        f = FR[j & 1]; r = reads(j + 1)
        n = 0
        for tt in range(4):
            for o, a in ((0, 16), (16, 20)):
                d = vr(ACC1+32*tt+o, 16)
                A(f"v_mfma_f32_32x32x16_bf16 {d}, {vr(f+a,4)}, {vr(f+4*tt,4)}, {d}")
                A(r[2*n:2*n+2]); n += 1
                if j == 7 and n == 6: A(f"s_add_u32 s{sIt}, s{sIt}, 1\ns_cmp_lt_u32 s{sIt}, 4")
    if STAMP and SS == 3:
        A("s_mov_b32 s92, s94\ns_mov_b32 s94, s96\ns_mov_b32 s96, s98\ns_memrealtime s[98:99]\ns_waitcnt lgkmcnt(0)")
    A("s_cbranch_scc1 L_g1_loop")
    dclk(0)

def capture(*fns):
    global L
    keep = L; L = []
    for f in fns: f()
    out = [x.strip() for x in L]; L = keep
    return out

def slices(lst, n):
    out = []; pos = 0
    for i in range(n):
        end = (i + 1)*len(lst)//n
        while 0 < end < len(lst) and lst[end-1].startswith("s_cmp"): end += 1
        out.append(lst[pos:end]); pos = end
    return out

def gemm1_b():
    vm = Cnt("vmcnt", 63)
    def dma(kind, idx):
        if kind == "W": d = w_dma(idx) if idx < 16 else d_dma(idx - 16)
        else: d = x_dma(idx) if idx < 8 else d_dma(idx - 8 + 4)
        A(d)
        for _ in range(4): vm.note((kind, idx))
    def barrier(tags, first=False):
        n = vm.need(tags)
        if STAMP and SS == 4 and not first:
            A("s_memtime s[74:75]\ns_waitcnt lgkmcnt(0)")
            if n is not None: A(f"s_waitcnt vmcnt({n})")
            A("s_memtime s[76:77]\ns_waitcnt lgkmcnt(0)\ns_sub_u32 s74, s76, s74\ns_add_u32 s96, s96, s74")
            dbar()
        else: A(f"s_waitcnt {'vmcnt(%d) ' % n if n is not None else ''}lgkmcnt(0)\ns_barrier")
    if BPRIO: A(f"s_setprio {BPRIO}")
    dma("X", 0); dma("W", 0)
    dma("W", 1); dma("X", 1)
    warm(1)
    common_setup()
    k_setup(); pad("rb1"); conv_setup()
    if not AW: dma("W", 2)
    work = []
    stamp(1)
    A("s_barrier\ns_setprio 1")
    A(k_reads()); pad("rb2")
    m = k_mfma()
    for i in range(8):
        A(f"s_waitcnt lgkmcnt({min(15, 21 - 3*i)})"); A(m[2*i:2*i+2])
    A(m[16:]); A(k_write())
    lds_sync("L_b_k", 4)
    A(k_gather()); A("s_waitcnt lgkmcnt(0)"); A(k_pack())
    stamp(2)
    A("s_setprio 0")
    barrier({("X", 0), ("W", 0)}, True)
    stamp(3); dclk(1)
    if not AW: dma("W", 3)
    def groups(kind, idx):
        if kind == "W": d = w_dma(idx) if idx < 16 else d_dma(idx - 16)
        else: d = x_dma(idx) if idx < 8 else d_dma(idx - 8 + 4)
        for _ in range(4): vm.note((kind, idx))
        return [d[0:3], d[3:4], d[4:7], d[7:8]]
    for s in range(16):
        barrier({("W", s + 1), ("X", (s + 1)//2)} if s < 15 else ({("W", 16), ("X", 8), ("W", 17)} if LW else set()))
        if s == 15 and PF1:
            vm.wait({"mv"})
            poll_movers("L_pm1")
            conv_loads()
        g = []
        if s & 1: g += groups("X", (s + 3)//2)
        g += groups("W", s + 4)
        w = work.pop(0) if work else []
        for gi, wi in zip(g, slices(w, len(g))): A(gi); A(wi)
        if s == 5:
            A(f"s_cmp_eq_u32 s{sW}, 4\ns_cbranch_scc0 L_noinit\n{LD_INIT}\nL_noinit:")
        if s == 10:
            A(f"s_cmp_eq_u32 s{sW}, 4\ns_cbranch_scc0 L_pi_ok")
            poll("L_pi", 128, LD_INIT)
        if s == PS:
            A(LD_MV); vm.note("mv")
        if BLT and BLS <= s < BLS + 2*BLT and (s - BLS) % 2 == 0:
            A(f"buffer_load_dword v{vJunk}, v{vTch}, s[68:71], s{sTch} offen\ns_add_u32 s{sTch}, s{sTch}, {-(-74//BLT)*128}"); vm.note("t")
        if s == 4: warm(3)
        if s == 6: pad("g1b")
        if s == 12: pad("kf")
        if s in (RS, RS + 2):
            i = (s - RS)
            A(d_piece(12 + i, 24 + i) + d_piece(13 + i, 25 + i))
            for _ in range(4): vm.note("r")
    dclk(0)
    if not PF1:
        vm.wait({"mv"})
        poll_movers("L_pm1")
        conv_loads()

def publish(sreg, n):
    A(f"""
    s_mov_b64 exec, 1
    s_waitcnt vmcnt({n})
    buffer_store_dword v14, v15, s[20:23], s{sreg} offen sc1
    s_mov_b64 exec, -1
    """)

def geglu(tt, fill=()):
    if STAMP and SS == 5: A("s_memtime s[72:73]\ns_waitcnt lgkmcnt(0)")
    geglu_(tt, fill)
    if STAMP and SS == 5: A(f"s_memtime s[74:75]\ns_waitcnt lgkmcnt(0)\ns_sub_u32 s{80 + 2*(1, 2, 6, 7)[tt]}, s74, s72")
def geglu_(tt, fill=()):
    fill = list(fill)
    G = ACC1 + 32*tt; U = G + 16
    O = 16 + 8*(tt & 1); T = 32
    o = []
    for p in range(8): o.append(f"v_pk_mul_f32 {vr(T+2*p,2)}, {vr(G+2*p,2)}, {vr(G+2*p,2)}")
    for p in range(8): o.append(f"v_pk_fma_f32 {vr(T+2*p,2)}, {vr(T+2*p,2)}, s[34:35], v[2:3]")
    for p in range(8): o.append(f"v_pk_mul_f32 {vr(T+2*p,2)}, {vr(T+2*p,2)}, {vr(G+2*p,2)}")
    for p in range(16): o.append(f"v_exp_f32 v{T+p}, v{T+p}")
    for p in range(8): o.append(f"v_pk_mul_f32 {vr(G+2*p,2)}, {vr(G+2*p,2)}, {vr(U+2*p,2)}")
    for p in range(8): o.append(f"v_pk_add_f32 {vr(T+2*p,2)}, {vr(T+2*p,2)}, 1.0 op_sel_hi:[1,0]")
    for p in range(16): o.append(f"v_rcp_f32 v{T+p}, v{T+p}")
    for p in range(8): o.append(f"v_pk_mul_f32 {vr(G+2*p,2)}, {vr(G+2*p,2)}, {vr(T+2*p,2)}")
    for p in range(8): o.append(f"v_cvt_pk_bf16_f32 v{O+p}, v{G+2*p}, v{G+2*p+1}")
    for x in o:
        A(x)
        if fill and ("exp" in x or "rcp" in x): A(fill.pop(0))
    A(fill)
    A(f"buffer_store_dwordx4 {vr(O,4)}, v4, s[20:23], s{sHst} offen sc1")
    A(f"buffer_store_dwordx4 {vr(O+4,4)}, v4, s[20:23], s{sHst} offen offset:1024 sc1")
def epi_head():
    C1 = -2.0 * L2E * math.sqrt(2.0/math.pi)
    A(f"v_mov_b32 v2, {fbits(C1)}\nv_mov_b32 v3, {fbits(C1)}\nv_lshlrev_b32 v4, 4, v1\nv_mov_b32 v14, 1\nv_mov_b32 v15, 0\ns_add_u32 s{sHfl2}, s{sHfl}, {56*128}\ns_waitcnt vmcnt(0) lgkmcnt(0)")

def conv_loads():
    A(f"""
    buffer_load_dwordx4 {vr(vU,4)}, v{cLu0}, s[20:23], s{sCu} offen sc1
    buffer_load_dwordx4 {vr(vU+4,4)}, v{cLu1}, s[20:23], s{sCu} offen sc1
    buffer_load_dwordx4 {vr(vG,4)}, v{cLg0}, s[20:23], 0 offen sc1
    buffer_load_dwordx4 {vr(vG+4,4)}, v{cLg1}, s[20:23], 0 offen sc1
    """)

G1 = [0, 1, 8, 9, 2, 3]; G2 = [4, 5, 6, 7, 10, 11]
STG = {k: 48 + 8*i for i, k in enumerate(G1 + G2)}
STG.update({24 + i: 144 + 8*i for i in range(4)})
def wd_reads(kap, d0, d1):
    o = piece_off(kap)
    base = gD[0:2] if o < 65536 else gD[2:4]
    if o >= 65536: o -= 65536
    if kap >= 12: base = [2, 3]; o = piece_off(kap) - RED
    return [f"ds_read_b64_tr_b16 {vr((d0, d1)[dd]+2*ih,2)}, v{base[dd]} offset:{o + 512*ih}" for dd in range(2) for ih in range(2)]
def red_reads():
    A(f"v_add_u32 v2, {RED}, v{gD[0]}\nv_add_u32 v3, {RED}, v{gD[1]}")
    for i in range(4): A(wd_reads(12 + i, STG[24 + i], STG[24 + i] + 4))
def stage_reads(ks): return sum((wd_reads(k, STG[k], STG[k] + 4) for k in ks), [])

def role_a():
    A(f"""
L_role_a:
    s_mov_b32 s{sRole}, 0
    s_setprio 1
    v_mov_b64 v[40:41], 0
    v_mov_b64 v[42:43], 0
    v_mov_b32 v116, v{vWo}
    v_and_b32 v{vTab}, 127, v0
    v_lshlrev_b32 v{vTab}, 2, v{vTab}
    s_lshr_b32 s6, s{sWN}, 1
    s_mul_i32 s4, s6, {57*PITCH}
    s_add_u32 s4, s4, {TB}
    v_add_u32 v{vTab}, s4, v{vTab}
    s_mov_b32 s{sK1}, {fbits(struct.unpack("<f", struct.pack("<f", L2E))[0])}
    s_mov_b32 s{sK2}, {fbits(L2E - struct.unpack("<f", struct.pack("<f", L2E))[0])}
    """)
    A([x.replace(f"v{vDo[0]}", f"v{gX[0]}").replace(f"v{vDo[1]}", f"v{gX[1]}") for x in capture(common_setup)])
    A("s_cmp_ge_u32 s2, 224\ns_cbranch_scc1 L_mv_a")
    for i in range(8):
        A(f"v_mfma_f32_32x32x16_bf16 {vr(ACC1+16*i,16)}, v[40:43], v[40:43], 0")
    A("s_waitcnt vmcnt(0)\nL_a_k2:")
    stamp(1)
    t = tables()
    tp = len(t)*TPOS//100
    for i, x in enumerate(t):
        if i == 60: pad("tb0")
        if i == 170: pad("tb1")
        if i == tp and T2: touches()
        A(x)
    if TPOS >= 100 and T2: touches()
    stamp(2)
    A("s_setprio 0\ns_cmp_ge_u32 s2, 224\ns_cbranch_scc1 L_a_su")
    A("s_waitcnt lgkmcnt(0)\ns_barrier")
    if AW:
        A(f"s_add_u32 s{sM0W}, s{sM0W}, 8192\ns_add_u32 s{sWoff}, s{sWoff}, {16*3584}")
        A([x.replace(f"v{vWo}", "v116") for x in w_dma(2) + w_dma(3)])
    if AGT:
        A(f"""
        s_lshl_b32 s3, s2, 2
        s_add_u32 s3, s3, s{sW}
        s_lshl_b32 s3, s3, 11
        v_and_b32 v16, 15, v1
        v_lshlrev_b32 v16, 7, v16
        buffer_load_dword v74, v16, s[68:71], s3 offen
        """)
    A("L_a_su:")
    pad("su")
    g1_setup(); g2_setup()
    A("s_cmp_ge_u32 s2, 224\ns_cbranch_scc1 L_mv_a2")
    warm(2)
    if APRIO: A(f"s_setprio {APRIO}")
    A("s_waitcnt lgkmcnt(0)")
    gemm1_a()
    stamp(4)
    epi_head()
    step = f"s_add_u32 s{sHst}, s{sHst}, {112*1024}"
    geglu(0); A(step); pad("ea0")
    geglu(1); A(step)
    geglu(2); A(step); pad("ea1")
    publish(sHfl, 2)
    geglu(3)
    stamp(5)
    red_reads()
    A("s_barrier")
    sr = stage_reads(G1 + G2)
    A(sr[:PUBN])
    publish(sHfl2, 0)
    stamp(1, 2)
    A(sr[PUBN:])
    A("L_a_join:")
    gemm2()

def role_b():
    A(f"L_role_b:\ns_mov_b32 s{sRole}, 1\ns_cmp_ge_u32 s2, 224\ns_cbranch_scc1 L_mv_head")
    gemm1_b()
    stamp(4)
    A("L_b_join:")
    A(f"s_waitcnt vmcnt({10 if PF1 else 2})\nds_write_b128 v{cUw}, {vr(vU,4)}\nds_write_b128 v{cUw}, {vr(vU+4,4)} offset:2048")
    A(f"s_waitcnt vmcnt({0 if PF1 else 2}) lgkmcnt(0)\ns_barrier")
    stamp(5)
    conv()

def mover_body():
    if STUBS: A("L_pad_mv:\ns_branch L_warm_ret0")
    A(f"""
L_mv_head:
    s_sub_u32 s6, s2, 224
    s_lshl_b32 s3, s6, 16
    s_lshl_b32 s4, s{sWN}, 14
    s_add_u32 s3, s3, s4
    s_mul_i32 s4, s{sWN}, {16*UP}
    v_lshlrev_b32 v16, 4, v1
    s_add_u32 s5, s3, 16384
L_mv_ld:
    s_mov_b32 m0, s4
    s_add_u32 s4, s4, {UP}
    buffer_load_dwordx4 v16, s[8:11], s3 offen lds
    s_add_u32 s3, s3, 1024
    s_cmp_lt_u32 s3, s5
    s_cbranch_scc1 L_mv_ld
    global_load_dwordx4 v[128:131], v16, s[58:59]
    v_add_u32 v132, {GWL}, v16
    """)
    common_setup(); conv_setup(); k_setup()
    A("s_waitcnt vmcnt(0)\nds_write_b128 v132, v[128:131]\ns_branch L_mv_common")
    A("L_mv_a:")
    A(f"""
    s_sub_u32 s6, s2, 224
    s_lshl_b32 s3, s6, 2
    s_add_u32 s3, s3, s{sW}
    s_mul_i32 s3, s3, 22
    v_add_u32 v16, s3, v1
    s_add_u32 s3, s6, 2816
    v_mov_b32 v17, s3
    v_cmp_gt_u32 vcc, 22, v1
    s_getpc_b64 s[4:5]
L_pc:
    s_sub_u32 s4, s4, L_pc - {KNAME}
    s_subb_u32 s5, s5, 0
    v_cndmask_b32 v16, v17, v16, vcc
    v_lshlrev_b32 v16, 7, v16
    v_add_u32 v16, {WS_FLAG}, v16
    buffer_store_dword v{vZero}, v16, s[20:23], 0 offen sc1
    v_lshlrev_b32 v16, 7, v0
    v_min_u32 v16, L_exit - {KNAME}, v16
    global_load_dword v74, v16, s[4:5]
    s_waitcnt vmcnt(2)
    s_branch L_a_k2
L_mv_a2:
    s_waitcnt vmcnt(0)
    s_mov_b64 exec, 1
    global_atomic_add v{vZero}, v{cOne}, s[62:63] sc1
    s_mov_b64 exec, -1
    """)
    A(f"""
L_mv_common:
    s_sub_u32 s{sMov}, s2, 224
    v_and_b32 v2, 15, v1
    v_lshrrev_b32 v3, 4, v1
    v_lshlrev_b32 v16, 4, v3
    v_lshrrev_b32 v17, 2, v1
    v_and_b32 v17, 3, v17
    v_lshl_add_u32 v17, v3, 3, v17
    v_mul_u32_u24 v17, {UP}, v17
    v_and_b32 v18, 3, v1
    v_lshl_add_u32 v17, v18, 3, v17
    s_lshl_b32 s4, s{sW}, 7
    v_add_u32 v17, s4, v17
    s_lshl_b32 s3, s{sW}, 18
    s_lshl_b32 s4, s{sMov}, 11
    s_add_u32 s3, s3, s4
    s_add_u32 s3, s3, {WS_UT}
    v_lshlrev_b32 v18, 6, v2
    v_lshl_add_u32 v18, v3, 4, v18
    s_lshr_b32 s7, s{sMov}, 3
    s_mul_i32 s7, s7, {448*1024}
    s_lshl_b32 s4, s{sW}, 13
    s_add_u32 s7, s7, s4
    s_add_u32 s7, s7, {192*1024}
    v_lshlrev_b32 v19, 7, v1
    s_waitcnt lgkmcnt(0)
    s_barrier
    """)
    stamp(3)
    if MG2:
        A(f"""
        s_lshl_b32 s4, s{sMov}, 3
        s_add_u32 s4, s4, s{sW}
        s_mul_i32 s4, s4, 7168
        v_min_u32 v4, {55*128}, v19
        buffer_load_dword v47, v4, s[68:71], s4 offen
        """)
    for q in range(4):
        b = 200 + 8*q
        A(f"""
        ds_read_b64_tr_b16 {vr(b,2)}, v17 offset:{32*q}
        ds_read_b64_tr_b16 {vr(b+2,2)}, v17 offset:{32*q + 4*UP}
        ds_read_b64_tr_b16 {vr(b+4,2)}, v17 offset:{32*q + 32*UP}
        ds_read_b64_tr_b16 {vr(b+6,2)}, v17 offset:{32*q + 36*UP}
        """)
    for q in range(4):
        b = 200 + 8*q
        A(f"""
        s_waitcnt lgkmcnt({12 - 4*q})
        buffer_store_dwordx4 {vr(b,4)}, v18, s[20:23], s3 offen sc1
        buffer_store_dwordx4 {vr(b+4,4)}, v18, s[20:23], s3 offen offset:1024 sc1
        s_add_u32 s3, s3, 65536
        """)
    A(f"""
    s_cmp_eq_u32 s{sRole}, 0
    s_cbranch_scc1 L_mv_nogate
    s_mul_i32 s4, s{sWN}, {16*UP}
    v_mul_u32_u24 v17, {UP}, v2
    v_add_u32 v17, v17, v16
    v_add_u32 v17, s4, v17
    """)
    GF = [32 + 4*i for i in range(3)] + [92 + 4*i for i in range(9)] + [192, 196, 232, 236]
    A(f"v_add_u32 v4, {GWL}, v16")
    for i in range(16):
        A(f"ds_read_b128 {vr(GF[i],4)}, v17 offset:{64*i}")
        A(f"ds_read_b128 {vr(128+4*i,4)}, v4 offset:{64*i}")
    A("s_waitcnt lgkmcnt(0)")
    for i in range(16):
        c = "0" if i < 2 else vr(24+4*(i&1), 4)
        A(f"v_mfma_f32_16x16x32_bf16 {vr(24+4*(i&1),4)}, {vr(GF[i],4)}, {vr(128+4*i,4)}, {c}")
    A(f"""
    s_lshl_b32 s3, s{sMov}, 2
    s_add_u32 s3, s3, s{sWN}
    s_lshl_b32 s3, s3, 6
    s_add_u32 s3, s3, {WS_G}
    s_nop 5
    """)
    for r in range(4): A(f"v_add_f32 v{24+r}, v{24+r}, v{28+r}")
    for r in range(4): A(f"v_cvt_pk_bf16_f32 v{24+r}, 0, v{24+r}")
    for r in range(4): A(f"v_mul_f32 v{24+r}, {fbits(-L2E)}, v{24+r}")
    for r in range(4): A(f"v_exp_f32 v{24+r}, v{24+r}")
    A("s_nop 0")
    for r in range(4): A(f"v_add_f32 v{24+r}, 1.0, v{24+r}")
    for r in range(4): A(f"v_rcp_f32 v{24+r}, v{24+r}")
    A("s_nop 0")
    for r in range(4): A(f"v_cvt_pk_bf16_f32 v{24+r}, 0, v{24+r}")
    for r in range(4): A(f"v_sub_f32 v{28+r}, 1.0, v{24+r}")
    for r in range(4): A(f"v_cvt_pk_bf16_f32 v{24+r}, v{24+r}, v{28+r}")
    A(f"""
    v_cmp_eq_u32 vcc, 0, v2
    s_and_saveexec_b64 s[4:5], vcc
    buffer_store_dwordx4 v[24:27], v16, s[20:23], s3 offen sc1
    s_mov_b64 exec, s[4:5]
    """)
    A(k_reads())
    A(f"""
L_mv_nogate:
    s_waitcnt vmcnt(0) lgkmcnt(0)
    s_barrier
    s_cmp_eq_u32 s{sRole}, 0
    s_cbranch_scc0 L_mv_b2
    """)
    stamp(4)
    if MGT:
        A(f"""
        s_and_b32 s3, s{sMov}, 7
        s_lshl_b32 s3, s3, 2
        s_add_u32 s3, s3, s{sW}
        s_mul_i32 s3, s3, 6144
        s_lshr_b32 s4, s{sMov}, 3
        s_mul_i32 s4, s4, {448*1024}
        s_add_u32 s3, s3, s4
        v_min_u32 v17, {47*128}, v19
        buffer_load_dword v47, v17, s[68:71], s3 offen
        """)
    A("s_barrier")
    A(f"s_and_b32 s4, s{sMov}, 3\ns_lshl_b32 s4, s4, 15")
    for i in range(2*MROWS):
        A(f"s_add_u32 s3, s7, s4\nbuffer_load_dword v47, v19, s[68:71], s3 offen\ns_add_u32 s4, s4, 32768\ns_cmp_ge_u32 s4, {2*MROWS*32768}\ns_cselect_b32 s4, 0, s4")
    A("s_barrier")
    red_reads(); A(stage_reads(G1 + G2))
    stamp(5)
    A(f"""
    s_branch L_a_join
L_mv_b2:
    s_cmp_eq_u32 s{sW}, 4
    s_cbranch_scc0 L_mv_nosig
    s_mov_b64 exec, 1
    global_atomic_add v40, v{vZero}, v{cOne}, s[62:63] offset:128 sc0 sc1
    s_mov_b64 exec, -1
    {LD_INIT}
    s_waitcnt vmcnt(0)
    v_readfirstlane_b32 s3, v40
    v_and_b32 v17, 31, v1
    v_lshlrev_b32 v17, 7, v17
    v_add_u32 v17, {WS_FLAG3}, v17
    s_cmp_eq_u32 s3, 31
    s_cbranch_scc0 L_pi2
    buffer_store_dword v{cOne}, v17, s[20:23], 0 offen sc1
    """)
    poll("L_pi2", 128, LD_INIT)
    A("L_mv_nosig:")
    stamp(4)
    for sig in range(6): A(d_dma(sig))
    for i in range(4): A(d_piece(12 + i, 24 + i))
    A(k_mfma()); A(k_write())
    A("s_waitcnt lgkmcnt(0)\ns_barrier")
    A(LD_MV)
    A(k_gather()); A("s_waitcnt lgkmcnt(0)"); A(k_pack())
    A(f"s_mov_b64 exec, 1\nds_add_u32 v{cCnt}, v{cOne}\ns_mov_b64 exec, -1\ns_waitcnt vmcnt(0)")
    poll_movers("L_pm2")
    conv_loads()
    A("s_waitcnt vmcnt(0)\ns_branch L_b_join")

def lds_sync(label, target):
    A(f"""
    s_mov_b64 exec, 1
    s_waitcnt lgkmcnt(0)
    ds_add_u32 v{cCnt}, v{cOne}
{label}:
    ds_read_b32 v2, v{cCnt}
    s_waitcnt lgkmcnt(0)
    v_cmp_gt_u32 vcc, {target}, v2
    s_cbranch_vccz {label}_go
    s_sub_u32 s{sSpin}, s{sSpin}, 1
    s_cbranch_scc0 {label}
{label}_go:
    s_mov_b64 exec, -1
    """)

def conv():
    FA = [96, 160]; FB = [128, 192]; ACC = 16
    def reads(rr):
        fs = rr & 1; ra = []; rb = []
        for i in range(8):
            o = (512*(1 - (i & 1)) + 64*(3 - rr)) // 4
            rb.append(f"ds_read_b128 {vr(FB[fs]+4*i,4)}, v{cB} offset:{512*i + 64*(3-rr)}")
            ra.append(f"ds_read2_b32 {vr(FA[fs]+4*i,2)}, v{cA[i>>1]} offset0:{o} offset1:{o+1}")
            ra.append(f"ds_read2_b32 {vr(FA[fs]+4*i+2,2)}, v{cA[i>>1]} offset0:{o+2} offset1:{o+3}")
        return ra, rb
    ra, rb = reads(0)
    b2 = []
    A(ra[0:2] + rb + ra[2:])
    A("s_barrier")
    A("s_setprio 2")
    stamp(6)
    cnt = 0
    pad("cv0")
    U = 128; D = 136; Y = 96; P = 160
    for rr in range(4):
        fs = rr & 1
        A("s_waitcnt lgkmcnt(14)" if rr == 0 else "s_waitcnt lgkmcnt(0)")
        if rr < 3:
            ra, rb = reads(rr+1); fill = rb + ra
        else:
            fill = [f"ds_read_b64 {vr(U,2)}, v{cUr}", f"ds_read_b64 {vr(U+2,2)}, v{cUr} offset:2048",
                    f"ds_read_b64 {vr(U+4,2)}, v{cUr} offset:{CH}", f"ds_read_b64 {vr(U+6,2)}, v{cUr} offset:{CH+2048}"]
        for i in range(8):
            if rr == 0 and i == 1: A("s_waitcnt lgkmcnt(0)")
            for t in range(i, 8):
                c = "0" if (rr == 0 and i == 0) else vr(ACC+4*t, 4)
                A(f"v_mfma_f32_16x16x32_bf16 {vr(ACC+4*t,4)}, {vr(FA[fs]+4*i,4)}, {vr(FB[fs]+4*(t-i),4)}, {c}")
                if fill and not (rr == 0 and i == 0): A(fill.pop(0))
                cnt += 1
                if b2 and cnt % B2W == 0: A(b2.pop(0))
            if rr == 3 and 2 <= i <= 4:
                A(f"ds_write_b128 v{cRw}, {vr(ACC+4*(i-2),4)} offset:{1024*(i-2)}")
        assert not fill
        if rr == 1: pad("cv1")
    assert not b2
    stamp(7)
    A("s_waitcnt vmcnt(0) lgkmcnt(3)")
    ud = []
    for k in range(8):
        d = D + 2*k
        if k & 1: ud += [f"v_and_b32 v{d}, 0xffff0000, v{U+k//2}", f"v_and_b32 v{d+1}, 0xffff0000, v{U+4+k//2}"]
        else: ud += [f"v_lshlrev_b32 v{d}, 16, v{U+k//2}", f"v_lshlrev_b32 v{d+1}, 16, v{U+4+k//2}"]
    A(ud[:8])
    for t in range(3, 8):
        A(f"ds_write_b128 v{cRw}, {vr(ACC+4*t,4)} offset:{1024*t}")
    A(ud[8:])
    for k in range(8): A(f"v_lshlrev_b32 v{vG+k}, 16, v{vG+k}")
    A(f"s_lshl_b32 s30, s{sDsk}, 16\ns_and_b32 s31, s{sDsk}, 0xffff0000")
    lds_sync("L_cv_s2", 8)
    for q in range(4):
        A(f"ds_read_b128 {vr(P+8*q,4)}, v{cRr} offset:{8192*q}")
        A(f"ds_read_b128 {vr(P+4+8*q,4)}, v{cRr} offset:{8192*q + 4096}")
    for k in range(8):
        d = D + 2*k
        A(f"v_mul_f32 v{d}, s30, v{d}\nv_mul_f32 v{d+1}, s31, v{d+1}")
    A("s_waitcnt lgkmcnt(4)")
    for k in range(8): A(f"v_add_f32 v{D+2*k}, v{D+2*k}, v{P+k}")
    for k in range(8): A(f"v_add_f32 v{D+2*k}, v{D+2*k}, v{P+8+k}")
    A("s_waitcnt lgkmcnt(0)")
    for k in range(8): A(f"v_add_f32 v{D+2*k+1}, v{D+2*k+1}, v{P+16+k}")
    for k in range(8): A(f"v_add_f32 v{D+2*k+1}, v{D+2*k+1}, v{P+24+k}")
    for k in range(8):
        A(f"v_mul_f32 v{D+2*k}, v{vG+k}, v{D+2*k}\nv_mul_f32 v{D+2*k+1}, v{vG+k}, v{D+2*k+1}")
    for k in range(8):
        A(f"v_cvt_pk_bf16_f32 v{Y+k}, v{D+2*k}, v{D+2*k+1}")
    A(f"""
    buffer_store_dwordx4 {vr(Y,4)}, v{cS0}, s[20:23], s{sCga} offen sc1
    buffer_store_dwordx4 {vr(Y+4,4)}, v{cS1}, s[20:23], s{sCga} offen sc1
    s_mov_b64 exec, 1
    """)
    stamp(8)
    A(f"""
    s_waitcnt vmcnt(0)
    buffer_store_dword v{cOne}, v{vZero}, s[20:23], s{sCfl} offen sc1
    """)
    stamp_flush()
    A("s_endpgm")

def gemm2():
    ACC = 192
    sH = [sH0, sH1]
    A("s_waitcnt lgkmcnt(0)\ns_barrier\ns_setprio 1")
    stamp(3, 2)
    vm = Cnt("vmcnt", 63); lg = Cnt("lgkmcnt", 15)
    def wd_dma(k, kap):
        A(f"s_add_u32 m0, s{sLds}, {16384*(kap >> 1) + 2048*(kap & 1)}\ns_add_u32 s3, s{sWd}, {k*16384}")
        vm.issue(("w", k), f"buffer_load_dwordx4 v{gX[0]}, s[68:71], s3 offen lds")
        vm.issue(("w", k), f"buffer_load_dwordx4 v{gX[1]}, s[68:71], s3 offen offset:1024 lds")
    ks = G1 + G2
    def refill(k): A([x.replace(f"v{vDo[0]}", f"v{gX[0]}").replace(f"v{vDo[1]}", f"v{gX[1]}") for x in d_piece(k, k + 12)])
    for k in ks: refill(k)
    pad("g20")
    A(f"""
L_g2_hpoll:
    buffer_load_dword v2, v{gFl}, s[20:23], s{sFl} offen sc1
L_g2_hchk:
    s_waitcnt vmcnt(0)
    v_cmp_eq_u32 vcc, 0, v2
    s_cbranch_vccz L_g2_hready
    s_sub_u32 s{sSpin}, s{sSpin}, 1
    s_cbranch_scc0 L_g2_hpoll
L_g2_hready:
    """)
    vm.ops = []
    stamp(6)
    free = [16 + 4*i for i in range(8)] + [176 + 4*i for i in range(4)]
    hreg = {}; wreg = {k: (STG[k], STG[k] + 4) for k in STG}
    nxt = [0]; wnx = [12]; rd = {}
    def h_issue(kc, n=99):
        while n > 0 and free and nxt[0] < 56 and (nxt[0] >> 1) < kc + min(HDMAX, HD + kc):
            n -= 1
            k, tt = nxt[0] >> 1, nxt[0] & 1
            r = free.pop(0); hreg[(k, tt)] = r
            vm.issue(("h", k), f"buffer_load_dwordx4 {vr(r,4)}, v{gL16}, s[20:23], s{sH[tt]} offen offset:{(k & 3)*1024} sc1")
            if (k & 3) == 3: A(f"s_add_u32 s{sH[tt]}, s{sH[tt]}, 4096")
            nxt[0] += 1
    if HT:
        A(f"""
        v_and_b32 v2, 31, v1
        v_min_u32 v2, {28 - HD - 1}, v2
        v_lshlrev_b32 v2, 10, v2
        v_lshrrev_b32 v3, 5, v1
        v_mul_u32_u24 v3, {112*1024}, v3
        v_add_u32 v2, v2, v3
        s_min_u32 s3, s{sH0}, s{sH1}
        s_lshl_b32 s4, s{sJ}, 7
        s_add_u32 s3, s3, s4
        s_add_u32 s{sT}, s3, {HD*1024}
        """)
    h_issue(0)
    if HT: vm.issue("t", f"buffer_load_dword v2, v2, s[20:23], s{sT} offen sc1")
    A(f"""
    v_and_b32 v{gFl}, 15, v1
    v_lshlrev_b32 v{gFl}, 9, v{gFl}
    s_lshl_b32 s{sFl}, s{sD}, 13
    s_lshr_b32 s4, s{sTok}, 3
    s_and_b32 s4, s4, 3
    s_lshl_b32 s4, s4, 7
    s_add_u32 s{sFl}, s{sFl}, s4
    s_add_u32 s{sFl}, s{sFl}, {WS_FLAG2}
    v_and_b32 v{gT}, 31, v1
    v_lshlrev_b32 v14, 2, v{gT}
    s_lshl_b32 s4, s{sTok}, 7
    s_add_u32 s5, s4, {WS_G}
    v_lshrrev_b32 v15, 5, v1
    v_lshl_add_u32 v3, v15, 15, v14
    s_lshl_b32 s6, s{sD}, 17
    s_add_u32 s6, s6, s4
    s_add_u32 s6, s6, {WS_GA}
    v_lshlrev_b32 v{gT}, 10, v{gT}
    v_lshl_add_u32 v{gT}, v15, 4, v{gT}
    s_lshl_b32 s7, s{sTok}, 15
    s_lshl_b32 s4, s{sD}, 6
    s_add_u32 s7, s7, s4
    s_mov_b32 s12, s60
    s_mov_b32 s13, s61
    s_mov_b32 s14, 0x200000
    v_add_u32 v15, s{sLds}, v{gL16}
    """)
    GA = None
    for k in range(28):
        pre = []
        vm.wait({("h", k)})
        if k in (0, 8, 12, 18): stamp({0: 1, 8: 2, 12: 3, 18: 4}[k], 1)
        lg.wait({("w", k)})
        if k >= WLA and wnx[0] < 24:
            kn = wnx[0]; wnx[0] += 1
            wreg[kn] = (free.pop(), free.pop())
            pre = [(("w", kn), x) for x in wd_reads(kn - 12, *wreg[kn])]
        lw = []
        for n, (dd, tt) in enumerate(((0,0),(0,1),(1,0),(1,1))):
            c = "0" if k == 0 else vr(ACC+16*(2*dd+tt), 16)
            A(f"v_mfma_f32_32x32x16_bf16 {vr(ACC+16*(2*dd+tt),16)}, {vr(wreg[k][dd],4)}, {vr(hreg[(k,tt)],4)}, {c}")
            if HIL and n in (0, 2): h_issue(k + 1, 1)
            if n in (1, 3) and lw:
                kl, t = lw.pop(0); vm.issue(("w", kl), t)
            if pre: lg.issue(*pre.pop(0))
        free += [hreg[(k,0)], hreg[(k,1)], wreg[k][0], wreg[k][1]]
        h_issue(k + 1)
        if k == 12: pad("g21")
        if k == 20: vm.issue("f", f"buffer_load_dword v2, v{gFl}, s[20:23], s{sFl} offen sc1")
        if k == 24:
            stamp(7)
            A(f"""
            s_waitcnt vmcnt(0)
L_g2_poll:
            v_cmp_eq_u32 vcc, 0, v2
            s_cbranch_vccz L_g2_ready
            s_sub_u32 s{sSpin}, s{sSpin}, 1
            s_cbranch_scc1 L_g2_ready
            buffer_load_dword v2, v{gFl}, s[20:23], s{sFl} offen sc1
            s_waitcnt vmcnt(0)
            s_branch L_g2_poll
            """)
            pad("g22", inline=False)
            A("L_g2_ready:")
            vm.ops = []
            fr = sorted(free)
            GA = next(r for r in fr if r + 4 in fr and r >= 96)
            free.remove(GA); free.remove(GA + 4)
            A("buffer_load_dword v4, v14, s[20:23], s5 offen sc1")
            for m in range(8):
                A(f"buffer_load_dword v{GA+m}, v3, s[20:23], s6 offen sc1")
                if m < 7: A(f"s_add_u32 s6, s6, {8192 if (m & 3) != 3 else 5*8192}")
    assert wnx[0] == 24
    stamp(8)
    A(f"""
    v_xor_b32 v8, 0x1000, v15
    v_xor_b32 v9, 0x2000, v15
    v_xor_b32 v10, 0x3000, v15
    s_nop 6
    """)
    for x in range(1, 4):
        for i in range(4):
            A(f"ds_write_b128 v15, {vr(ACC+16*x+4*i,4)} offset:{(x-1)*16384 + 1024*i}")
    A("s_waitcnt vmcnt(0)\nv_and_b32 v4, 0xffff0000, v4")
    for p in range(8):
        A(f"v_lshlrev_b32 v{80+2*p}, 16, v{GA+p}\nv_and_b32 v{81+2*p}, 0xffff0000, v{GA+p}")
    A("s_waitcnt lgkmcnt(0)\ns_barrier")
    for x in range(3):
        for i in range(4):
            A(f"ds_read_b128 {vr(32+16*x+4*i,4)}, v{8+x} offset:{x*16384 + 1024*i}")
    for x in range(3):
        A(f"s_waitcnt lgkmcnt({8 - 4*x})")
        for p in range(8):
            A(f"v_pk_add_f32 {vr(ACC+2*p,2)}, {vr(ACC+2*p,2)}, {vr(32+16*x+2*p,2)}")
    for p in range(8):
        A(f"v_pk_fma_f32 {vr(32+2*p,2)}, {vr(ACC+2*p,2)}, v[4:5], {vr(80+2*p,2)} op_sel_hi:[1,0,1]")
    for p in range(8):
        A(f"v_cvt_pk_bf16_f32 v{24+p}, v{32+2*p}, v{33+2*p}")
    A(f"""
    buffer_store_dwordx4 v[24:27], v{gT}, s[12:15], s7 offen
    buffer_store_dwordx4 v[28:31], v{gT}, s[12:15], s7 offen offset:32
    """)
    stamp_flush()
    A("s_endpgm")

def main():
    order = [[None]*4 + ["rb", "tb0", "tb1", "su"],
             [None]*4 + ["lp", "rb1", "rb2", "g1b"],
             ["ea0", "ea1", "g20", "g21"],
             [None]*4 + ["kf", "cv0", "cv1", "g22"]]
    for r, names in enumerate(order):
        for w, n in enumerate(names):
            if n: PLAN[n] = (r, w)
    A('.amdgcn_target "amdgcn-amd-amdhsa--gfx950"\n.text')
    A(f".globl {KNAME}\n.p2align 12\n.type {KNAME},@function\n{KNAME}:")
    if STAMP:
        for i in range(NST): A(f"s_mov_b32 s{80+2*i}, 0")
    stamp(0)
    A("s_cmp_ge_u32 s2, 256\ns_cbranch_scc1 L_exit")
    prologue()
    role_a()
    pad("rb", inline=False)
    role_b()
    mover_body()
    A("L_exit:\n    s_endpgm")
    assert not STUBS or set(PADS) == set(PLAN), set(PLAN) - set(PADS)
    A(f""".section .rodata,"a"
.p2align 6
.amdhsa_kernel {KNAME}
  .amdhsa_next_free_vgpr 256
  .amdhsa_next_free_sgpr 102
  .amdhsa_accum_offset 256
  .amdhsa_group_segment_fixed_size 0
  .amdhsa_kernarg_size 136
  .amdhsa_user_sgpr_count 2
  .amdhsa_user_sgpr_kernarg_segment_ptr 1
  .amdhsa_system_sgpr_workgroup_id_x 1
.end_amdhsa_kernel""")
    open(sys.argv[1], "w").write(HEADER + "\n".join(L) + "\n")

main()
```

```python
import sys, struct, math

OPTS = dict(a.split("=") for a in sys.argv[2:])
def opt(name, dflt): return int(OPTS.get(name, dflt))
STAMP = opt("stamp", 0); SS = opt("ss", 0)
T2 = opt("t2", 1); CT = opt("ct", 1); HD = opt("hd", 5); MROWS = opt("mrows", 2); HIL = opt("hil", 1); WLA = opt("wla", 8); E1 = opt("e1", 1); HDMAX = opt("hdmax", 8); AGT = opt("agt", 1); BLT = opt("blt", 0); BLS = opt("bls", 6); PPRIO = opt("pprio", 0); MGT = opt("mgt", 0)
SPIN = opt("spin", 0x40000); STUBS = opt("stubs", 1); NOFILL = opt("nofill", 0); PKT = opt("pkt", 1)
APRIO = opt("aprio", 1); BPRIO = opt("bprio", 0); EPRIO = opt("eprio", 2); B2W = opt("b2w", 4); KDYN = opt("kdyn", 6); B2A = opt("b2a", 1); HT = opt("ht", 0); W3E = opt("w3e", 0); MT = opt("mt", 2)
KNAME = "gated_mix__ssm_conv_s4__geglu_ffn__prompt_kernel"

WS_H, WS_UT, WS_GA = 0x0, 0x700000, 0x900000
WS_G, WS_FLAG, WS_STAMP = 0xB00000, 0xB08000, 0x1400000
WS_FLAG2 = WS_FLAG + 1792*128
WS_FLAG3 = WS_FLAG + 2816*128
WS_BYTES = 0x10000000
OOB = 0x40000000

XB = 65536
TB = 98304
PITCH = 528
KD = TB + 2*57*PITCH
CH = 12928
UOFF = 8320
RED = TB + 2*CH
CNT = KD + 3072
assert CNT + 8 <= 163840 and RED + 32768 <= KD and RED % 16 == 0
UP = 1056
L2E = math.log2(math.e)
WSTEP = 32*3584

L = []
def lines(s): return [x.strip() for x in s.strip("\n").split("\n") if x.strip()]
def A(s):
    if isinstance(s, (list, tuple)): s = "\n".join(s)
    for line in lines(s):
        L.append(line if line.endswith(":") or line.startswith(".") else "    " + line)
def fbits(x): return "0x%08x" % struct.unpack("<I", struct.pack("<f", x))[0]
def vr(b, n): return f"v[{b}:{b+n-1}]"
def srd(base, size): A(f"s_mov_b32 s{base+2}, {size:#x}\ns_mov_b32 s{base+3}, 0x00020000")

NST = 9
def stamp(idx, ss=0):
    if STAMP and (ss == SS or (ss == 0 and not (SS in (3, 4) and idx in (1, 2, 6, 7, 8)) and not (SS == 1 and idx in (1, 2, 3, 4)) and not (SS == 2 and idx in (1, 2, 3)))):
        A(f"s_memrealtime s[{80+2*idx}:{81+2*idx}]\ns_waitcnt lgkmcnt(0)")
def stamp_flush():
    if not STAMP: return
    A(f"""
    s_waitcnt vmcnt(0) lgkmcnt(0)
    s_memrealtime s[{80+2*NST}:{81+2*NST}]
    s_waitcnt lgkmcnt(0)
    s_mov_b64 exec, -1
    v_lshrrev_b32 v1, 6, v0
    s_lshl_b32 s3, s2, 3
    v_add_u32 v1, s3, v1
    v_lshlrev_b32 v1, 6, v1
    v_add_u32 v1, {WS_STAMP}, v1
    """)
    for i in range(12): A(f"v_mov_b32 v{4+i}, s{80+2*min(i, NST)}")
    A(f"""
    v_and_b32 v2, 63, v0
    v_cmp_eq_u32 vcc, 0, v2
    s_and_saveexec_b64 s[4:5], vcc
    buffer_store_dwordx4 v[4:7], v1, s[20:23], 0 offen
    buffer_store_dwordx4 v[8:11], v1, s[20:23], 0 offen offset:16
    buffer_store_dwordx4 v[12:15], v1, s[20:23], 0 offen offset:32
    """)

HEADER = f"""; gated mix of an S4 long convolution and a GeGLU FFN, one launch, one workgroup per CU.
;   woven into it: the SSM kernel K of two channels (factor tables, K = P Q by MFMA, expansion)
; @launch grid=(256,1,1) block=(512,1,1) lds=163840
"""

PADS = {}
PLAN = {}
def pad(name, inline=True):
    if not STUBS or name not in PLAN: return
    r, w = PLAN[name]
    if inline: A(f"s_branch L_skip_{name}")
    A(f"L_pad_{name}:\ns_branch L_warm_ret{r}")
    if inline: A(f"L_skip_{name}:")
    PADS[name] = PLAN[name]
def warm(r):
    if not STUBS: return
    tgt = {w: n for n, (rr, w) in PLAN.items() if rr == r}
    for w in range(8):
        if w in tgt: A(f"s_cmp_eq_u32 s{sW}, {w}\ns_cbranch_scc1 L_pad_{tgt[w]}")
    A(f"L_warm_ret{r}:")

sW, sXoff, sWoff, sM0W, sM0X, sB1 = 24, 25, 26, 27, 28, 29
sTB, sFB, sWN, sWM, sI, sJ, sMov, sSpin = 32, 33, 36, 37, 38, 39, 40, 42
sHst, sDsk, sHfl, sRole = 43, 48, 49, 100
sTok, sD, sH0, sH1, sLds, sFl, sWd = 50, 51, 52, 53, 64, 65, 66
sCu, sCga, sCfl = 50, 51, 52
sK1, sK2 = 54, 55
sT, sIt, sHfl2, sTch = 41, 30, 31, 29
vTch, vJunk = 253, 254
vXo = [240, 241]; vWo = 242; vDo = [248, 249]
vWr = 75; vXr = [76, 77, 78, 79]
vPoll, vZero, cMv, vTab = 250, 251, 252, 93
FR = [80, 104]; ACC1 = 128
vU, vG = 224, 232
PAR = 120
XA = 48
cKf0, cKf1, cKd0, cKd1, cKd2, cUw, cZ0, cZ1, cImg = 66, 67, 68, 69, 70, 71, 72, 73, 74
cA = [75, 76, 77, 78]; cB, cRw, cRr, cUr, cS0, cS1, cLu0, cLu1, cLg0, cLg1, cT, cCnt, cOne = range(79, 92)
gD = [8, 9, 10, 11]; gX = [12, 13]; gFl, gL16, gT = 5, 6, 7

class Cnt:
    def __init__(self, name, cap): self.ops = []; self.name = name; self.cap = cap
    def note(self, tag): self.ops.append(tag)
    def issue(self, tag, text): A(text); self.ops.append(tag)
    def need(self, tags):
        idx = [i for i, t in enumerate(self.ops) if t in tags]
        if not idx: return None
        n = min(len(self.ops) - 1 - max(idx), self.cap)
        self.ops = self.ops[len(self.ops)-n:] if n else []
        return n
    def wait(self, tags):
        n = self.need(tags)
        if n is not None: A(f"s_waitcnt {self.name}({n})")

def u32(x): return x & 0xffffffff
def x_dma(c):
    o = []
    for part in (1, 0):
        o += [f"s_add_u32 m0, s{sM0X}, {u32((c&1)*16384 - part*8192)}", f"s_add_u32 s{sT}, s{sXoff}, {u32(c*128 - part*65536)}",
              f"buffer_load_dwordx4 v{vXo[0]}, s[8:11], s{sT} offen lds",
              f"buffer_load_dwordx4 v{vXo[1]}, s[8:11], s{sT} offen offset:1024 lds"]
    return o
def w_dma(s):
    o = []
    for part in (1, 0):
        o += [f"s_add_u32 m0, s{sM0W}, {u32((s&3)*16384 - part*8192)}", f"s_add_u32 s{sT}, s{sWoff}, {u32(s*WSTEP - part*16*3584)}",
              f"buffer_load_dwordx4 v{vWo}, s[12:15], s{sT} offen lds",
              f"buffer_load_dwordx4 v{vWo}, s[16:19], s{sT} offen offset:1024 lds"]
    return o
def piece_off(kap): return 16384*(kap >> 1) + 2048*(kap & 1) + (RED - 98304 if kap >= 12 else 0)
def d_piece(kap, k):
    return [f"s_add_u32 m0, s{sLds}, {piece_off(kap)}", f"s_add_u32 s{sT}, s{sWd}, {k*16384}",
            f"buffer_load_dwordx4 v{vDo[0]}, s[68:71], s{sT} offen lds",
            f"buffer_load_dwordx4 v{vDo[1]}, s[68:71], s{sT} offen offset:1024 lds"]
def d_dma(sig): return d_piece(2*sig, 2*sig) + d_piece(2*sig + 1, 2*sig + 1)

def common_setup():
    A(f"""
    v_lshrrev_b32 v16, 4, v1
    v_and_b32 v16, 1, v16
    v_lshlrev_b32 v16, 2, v16
    v_and_b32 v17, 7, v1
    v_xor_b32 v16, v16, v17
    v_lshrrev_b32 v17, 3, v1
    v_lshlrev_b32 v17, 10, v17
    v_lshl_add_u32 v{vDo[0]}, v16, 4, v17
    v_add_u32 v{vDo[1]}, 7168, v{vDo[0]}
    s_mov_b32 s68, s56
    s_mov_b32 s69, s57
    s_mov_b32 s70, {1792*1024}
    s_mov_b32 s71, 0x00020000
    s_lshl_b32 s{sLds}, s{sWN}, 12
    s_mul_i32 s{sWd}, s{sWN}, {28*16384}
    s_lshl_b32 s4, s{sJ}, 7
    s_add_u32 s{sWd}, s{sWd}, s4
    s_mov_b32 s{sSpin}, {SPIN}
    """)

def g1_setup():
    A(f"""
    v_lshrrev_b32 v16, 2, v1
    v_and_b32 v16, 3, v16
    v_xor_b32 v17, s{sWN}, v16
    v_lshlrev_b32 v{vWr}, 8, v16
    v_lshl_add_u32 v{vWr}, v17, 6, v{vWr}
    v_lshrrev_b32 v16, 5, v1
    v_lshl_add_u32 v{vWr}, v16, 12, v{vWr}
    v_and_b32 v17, 16, v1
    v_lshlrev_b32 v18, 1, v17
    v_and_b32 v17, 1, v1
    v_lshl_add_u32 v18, v17, 4, v18
    v_and_b32 v17, 2, v1
    v_lshl_add_u32 v18, v17, 2, v18
    v_add_u32 v{vWr}, v{vWr}, v18
    v_lshrrev_b32 v17, 1, v1
    v_and_b32 v17, 7, v17
    v_xor_b32 v17, v17, v16
    v_and_b32 v{vXr[0]}, 31, v1
    v_lshlrev_b32 v{vXr[0]}, 7, v{vXr[0]}
    v_lshl_add_u32 v{vXr[0]}, v17, 4, v{vXr[0]}
    v_add_u32 v{vXr[0]}, {XB}, v{vXr[0]}
    v_xor_b32 v{vXr[1]}, 32, v{vXr[0]}
    v_xor_b32 v{vXr[2]}, 64, v{vXr[0]}
    v_xor_b32 v{vXr[3]}, 0x60, v{vXr[0]}
    v_mov_b32 v{gX[0]}, v{vDo[0]}
    v_mov_b32 v{gX[1]}, v{vDo[1]}
    s_mul_i32 s{sHst}, s{sTB}, 448
    s_lshl_b32 s5, s{sFB}, 2
    s_add_u32 s5, s5, s{sWN}
    s_lshl_b32 s4, s5, 1
    s_add_u32 s{sHst}, s{sHst}, s4
    s_lshl_b32 s{sHst}, s{sHst}, 10
    s_mul_i32 s3, s{sTB}, 112
    s_add_u32 s3, s3, s5
    s_lshl_b32 s3, s3, 7
    s_add_u32 s{sHfl}, s3, {WS_FLAG}
    s_mov_b32 s34, {fbits(-2.0 * L2E * math.sqrt(2.0/math.pi) * 0.044715)}
    s_mov_b32 s35, s34
    s_mov_b32 s{sIt}, 0
    """)

def k_setup():
    CB = 0x4300 - 128
    A(f"""
    v_and_b32 v{cT}, 127, v0
    s_lshr_b32 s6, s{sWN}, 1
    s_and_b32 s7, s{sWN}, 1
    s_mul_i32 s4, s6, {57*PITCH}
    s_add_u32 s4, s4, {TB}
    s_mul_i32 s5, s6, {CH}
    s_add_u32 s5, s5, {TB}
    v_and_b32 v16, 15, v1
    v_lshrrev_b32 v17, 4, v1
    v_mul_u32_u24 v{cKf0}, {PITCH}, v16
    v_lshl_add_u32 v{cKf0}, v17, 4, v{cKf0}
    v_add_u32 v{cKf0}, s4, v{cKf0}
    s_mul_i32 s4, s7, {16*PITCH}
    v_add_u32 v{cKf1}, s4, v{cKf0}
    s_mul_i32 s3, s6, 1536
    s_add_u32 s3, s3, {KD}
    v_lshrrev_b32 v18, 1, v17
    v_and_b32 v19, 1, v17
    v_lshlrev_b32 v24, 7, v18
    v_lshl_add_u32 v24, v19, 2, v24
    v_lshl_add_u32 v24, v16, 3, v24
    v_lshlrev_b32 v25, 6, v17
    v_add_u32 v25, 256, v25
    v_lshl_add_u32 v26, v16, 2, v25
    v_lshl_add_u32 v27, v16, 1, v25
    v_cmp_gt_u32 vcc, 2, v17
    v_mov_b32 v28, 32
    v_lshlrev_b32 v29, 3, v{cT}
    v_cndmask_b32 v26, v27, v26, vcc
    v_cndmask_b32 v28, v28, 2, vcc
    s_cmp_eq_u32 s7, 0
    s_cselect_b64 vcc, -1, 0
    v_sub_u32 v29, 2047, v29
    v_cndmask_b32 v26, v26, v24, vcc
    v_cndmask_b32 v28, v28, 2, vcc
    v_add_u32 v28, v26, v28
    v_lshl_add_u32 v{cKd0}, v26, 1, s3
    v_lshl_add_u32 v{cKd1}, v28, 1, s3
    v_lshl_add_u32 v25, v17, 6, v16
    v_lshl_add_u32 v{cKd2}, v25, 1, s3
    v_cvt_f32_i32 v30, v29
    v_add_u32 v29, {CB}, v29
    v_mov_b32 v31, {128 + CB}
    s_sub_u32 s3, s3, {2*CB}
    """)
    for hh in range(2):
        for e in range(9):
            r = XA + 9*hh + e; d = 1024*hh + e
            A(f"v_subrev_f32 v{r}, {fbits(float(d))}, v30\nv_cvt_pk_bf16_f32 v{r}, v{r}, 0")
            if hh: A(f"v_subrev_u32 v24, {d}, v29\nv_med3_i32 v{r}, v{r}, v24, v31")
            A(f"v_lshl_add_u32 v{r}, v{r}, 1, s3")
    A(f"""
    v_lshl_add_u32 v{cZ0}, v{cT}, 2, s5
    v_and_b32 v{cZ1}, 60, v{cZ0}
    s_mul_i32 s3, s7, 4160
    s_add_u32 s3, s3, s5
    v_add_u32 v{cZ1}, s3, v{cZ1}
    v_lshl_add_u32 v{cImg}, v{cT}, 4, s5
    """)

def conv_setup():
    A(f"""
    s_lshr_b32 s6, s{sWN}, 1
    s_and_b32 s7, s{sWN}, 1
    s_mul_i32 s5, s6, {CH}
    s_add_u32 s5, s5, {TB}
    v_and_b32 v16, 15, v1
    v_lshrrev_b32 v17, 4, v1
    v_and_b32 v24, 255, v0
    v_lshlrev_b32 v{cS0}, 4, v24
    v_add_u32 v{cS1}, 4096, v{cS0}
    v_add_u32 v{cLg0}, {WS_G}, v{cS0}
    v_add_u32 v{cLg1}, {WS_G}, v{cS1}
    v_add_u32 v{cRr}, {RED}, v{cS0}
    v_lshrrev_b32 v{cUr}, 1, v{cS0}
    v_add_u32 v{cUr}, {TB + UOFF + 512}, v{cUr}
    v_lshrrev_b32 v25, 3, v24
    v_lshlrev_b32 v{cLu0}, 10, v25
    v_and_b32 v26, 7, v24
    v_lshl_add_u32 v{cLu0}, v26, 4, v{cLu0}
    v_add_u32 v{cLu1}, 32768, v{cLu0}
    v_lshlrev_b32 v{cUw}, 6, v25
    v_and_b32 v26, 3, v24
    v_lshl_add_u32 v{cUw}, v26, 4, v{cUw}
    v_bfe_u32 v26, v24, 2, 1
    v_mul_u32_u24 v26, {CH}, v26
    v_add_u32 v{cUw}, v{cUw}, v26
    v_add_u32 v{cUw}, {TB + UOFF + 512}, v{cUw}
    v_and_b32 v24, 1, v16
    v_xor_b32 v24, 1, v24
    v_mul_u32_u24 v24, 4160, v24
    v_and_b32 v25, 14, v16
    v_lshlrev_b32 v25, 1, v25
    v_sub_u32 v24, v24, v25
    v_lshl_add_u32 v24, v17, 4, v24
    s_lshl_b32 s4, s7, 8
    s_sub_u32 s4, s5, s4
    s_add_u32 s3, s4, {4060 - 512 - 192}
    v_add_u32 v{cA[0]}, s3, v24
    v_subrev_u32 v{cA[1]}, 1024, v{cA[0]}
    v_subrev_u32 v{cA[2]}, 2048, v{cA[0]}
    v_subrev_u32 v{cA[3]}, 3072, v{cA[0]}
    v_lshlrev_b32 v{cB}, 5, v16
    v_lshl_add_u32 v{cB}, v17, 4, v{cB}
    s_add_u32 s3, s4, {UOFF + 480 - 192}
    v_add_u32 v{cB}, s3, v{cB}
    v_lshlrev_b32 v{cRw}, 6, v16
    v_lshl_add_u32 v{cRw}, v17, 4, v{cRw}
    s_lshl_b32 s3, s{sWN}, 13
    s_add_u32 s3, s3, {RED}
    v_add_u32 v{cRw}, s3, v{cRw}
    s_lshr_b32 s{sCu}, s2, 3
    s_lshl_b32 s{sCu}, s{sCu}, 16
    s_and_b32 s3, s2, 7
    s_lshl_b32 s3, s3, 7
    s_add_u32 s{sCu}, s{sCu}, s3
    s_add_u32 s{sCu}, s{sCu}, {WS_UT}
    s_lshl_b32 s{sCga}, s2, 13
    s_add_u32 s{sCga}, s{sCga}, {WS_GA}
    s_lshl_b32 s3, s2, 2
    s_load_dword s{sDsk}, s[78:79], s3
    s_add_u32 s3, s3, s{sWN}
    s_lshl_b32 s3, s3, 7
    s_add_u32 s{sCfl}, s3, {WS_FLAG2}
    v_and_b32 v{cMv}, 31, v1
    v_lshlrev_b32 v{cMv}, 7, v{cMv}
    v_add_u32 v{cMv}, {WS_FLAG3}, v{cMv}
    """)

def g2_setup():
    A(f"""
    s_and_b32 s6, s{sW}, 1
    s_lshr_b32 s7, s{sW}, 1
    s_lshl_b32 s{sTok}, s{sI}, 1
    s_add_u32 s{sTok}, s{sTok}, s6
    s_lshl_b32 s{sD}, s{sJ}, 1
    s_add_u32 s{sD}, s{sD}, s7
    v_lshrrev_b32 v16, 2, v1
    v_and_b32 v16, 3, v16
    v_lshrrev_b32 v17, 5, v1
    v_lshl_add_u32 v19, v17, 3, v16
    v_lshl_add_u32 v{gD[0]}, v19, 7, v18
    v_lshrrev_b32 v16, 1, v16
    v_xor_b32 v16, s7, v16
    v_lshl_add_u32 v{gD[0]}, v16, 6, v{gD[0]}
    v_add_u32 v{gD[0]}, s{sLds}, v{gD[0]}
    v_xor_b32 v{gD[1]}, 64, v{gD[0]}
    v_add_u32 v{gD[2]}, 0x10000, v{gD[0]}
    v_add_u32 v{gD[3]}, 0x10000, v{gD[1]}
    v_min_u32 v{gFl}, 13, v1
    v_lshlrev_b32 v{gFl}, 7, v{gFl}
    s_lshl_b32 s{sFl}, s{sI}, 2
    s_add_u32 s{sFl}, s{sFl}, s{sW}
    s_mul_i32 s{sFl}, s{sFl}, {14*128}
    s_add_u32 s{sFl}, s{sFl}, {WS_FLAG}
    v_lshlrev_b32 v{gL16}, 4, v1
    s_mul_i32 s3, s{sW}, {28*1024}
    s_mul_i32 s{sH0}, s{sTok}, {112*1024}
    s_xor_b32 s4, s{sTok}, 1
    s_mul_i32 s{sH1}, s4, {112*1024}
    s_add_u32 s{sH0}, s{sH0}, s3
    s_add_u32 s{sH1}, s{sH1}, s3
    """)

def prologue():
    A(f"""
    s_load_dwordx16 s[64:79], s[0:1], 8
    s_load_dwordx2 s[8:9], s[0:1], 0
    s_load_dwordx4 s[12:15], s[0:1], 80
    s_load_dwordx8 s[56:63], s[0:1], 96
    s_load_dwordx2 s[20:21], s[0:1], 128
    v_lshrrev_b32 v2, 6, v0
    v_and_b32 v1, 63, v0
    v_mov_b32 v{vZero}, 0
    v_mov_b32 v{cCnt}, {CNT}
    v_mov_b32 v{cOne}, 1
    ds_write_b32 v{cCnt}, v{vZero}
    ds_write_b32 v{cCnt}, v{vZero} offset:4
    v_and_b32 v3, 255, v0
    v_readfirstlane_b32 s{sW}, v2
    s_lshl_b32 s3, s2, 8
    v_add_u32 v3, s3, v3
    v_lshlrev_b32 v3, 1, v3
    v_lshrrev_b32 v4, 7, v3
    v_and_b32 v4, 0xfffffffe, v4
    """)
    if STUBS: A(f"s_cmp_lt_u32 s2, 224\ns_cbranch_scc1 L_warm0\ns_cmp_eq_u32 s{sW}, 4\ns_cbranch_scc1 L_pad_mv\nL_warm0:")
    warm(0)
    A(f"""
    s_and_b32 s{sWN}, s{sW}, 3
    s_lshr_b32 s{sWM}, s{sW}, 2
    s_and_b32 s3, s2, 7
    s_lshr_b32 s4, s2, 3
    s_lshr_b32 s{sTB}, s3, 1
    s_lshl_b32 s{sTB}, s{sTB}, 2
    s_and_b32 s5, s4, 3
    s_add_u32 s{sTB}, s{sTB}, s5
    s_lshl_b32 s{sI}, s3, 2
    s_add_u32 s{sI}, s{sI}, s5
    s_and_b32 s{sFB}, s3, 1
    s_mul_i32 s{sFB}, s{sFB}, 7
    s_lshr_b32 s{sJ}, s4, 2
    s_add_u32 s{sFB}, s{sFB}, s{sJ}
    s_lshl_b32 s{sXoff}, s{sTB}, 17
    s_lshl_b32 s5, s{sW}, 14
    s_add_u32 s{sXoff}, s{sXoff}, s5
    s_mul_i32 s{sWoff}, s{sW}, {4*3584}
    s_lshl_b32 s5, s{sFB}, 8
    s_add_u32 s{sWoff}, s{sWoff}, s5
    s_lshl_b32 s{sM0W}, s{sW}, 11
    s_add_u32 s{sM0X}, s{sM0W}, {XB}
    v_lshrrev_b32 v16, 4, v1
    v_and_b32 v17, 7, v1
    v_xor_b32 v18, v17, v16
    v_lshrrev_b32 v19, 3, v1
    v_lshlrev_b32 v19, 10, v19
    v_lshl_add_u32 v{vXo[0]}, v18, 4, v19
    v_xor_b32 v{vXo[1]}, 64, v{vXo[0]}
    v_add_u32 v{vXo[1]}, 7168, v{vXo[1]}
    v_lshlrev_b32 v17, 2, v16
    v_and_b32 v{vWo}, 15, v1
    v_xor_b32 v{vWo}, v{vWo}, v17
    v_lshlrev_b32 v{vWo}, 4, v{vWo}
    v_mul_u32_u24 v16, 3584, v16
    v_add_u32 v{vWo}, v{vWo}, v16
    s_mov_b32 s10, 0x200000
    s_mov_b32 s11, 0x00020000
    s_mov_b32 s18, {512*1792*2 + 1024}
    s_mov_b32 s19, 0x00020000
    s_mov_b32 s22, {WS_BYTES}
    s_mov_b32 s23, 0x00020000
    s_waitcnt lgkmcnt(0)
    s_sub_u32 s16, s14, 1024
    s_subb_u32 s17, s15, 0
    s_mov_b32 s14, {512*1792*2}
    s_mov_b32 s15, 0x00020000
    s_cmp_ge_u32 s{sW}, 4
    s_cbranch_scc1 L_role_b
    """)
    params()

def params():
    for i, p in enumerate((76, 64, 66, 68, 70, 72, 74)):
        A(f"global_load_ushort v{PAR+i}, v{4 if i == 0 else 3}, s[{p}:{p+1}]")

def touches():
    A(f"""
    s_cmp_eq_u32 s{sW}, 0
    s_cbranch_scc0 L_t2_w
    v_min_u32 v16, 59, v1
    v_mul_u32_u24 v17, 43, v16
    v_lshrrev_b32 v17, 8, v17
    v_mul_u32_u24 v19, 6, v17
    v_sub_u32 v16, v16, v19
    v_lshlrev_b32 v16, 7, v16
    v_lshl_add_u32 v16, v17, 10, v16
    s_mul_i32 s3, s2, 10240
    s_add_u32 s3, s3, 256
    buffer_load_dword v74, v16, s[8:11], s3 offen
    s_branch L_t2_done
L_t2_w:
    v_min_u32 v16, 55, v1
    v_lshlrev_b32 v16, 7, v16
    s_mul_i32 s3, s2, 7168
    s_add_u32 s3, s3, {2*WSTEP}
    s_cmp_eq_u32 s{sW}, 1
    s_cbranch_scc0 L_t2_u
    buffer_load_dword v74, v16, s[12:15], s3 offen
    s_branch L_t2_done
L_t2_u:
    s_cmp_eq_u32 s{sW}, 2
    s_cbranch_scc0 L_t2_done
    buffer_load_dword v74, v16, s[16:19], s3 offen offset:1024
L_t2_done:
    """)

def tab_common(R):
    a, th, dt, t0 = R["a"], R["th"], R["dt"], R["t0"]
    return lines(f"""
    v_lshlrev_b32 v{PAR}, 16, v{PAR}
    v_lshlrev_b32 v{a}, 16, v{PAR+1}
    v_lshlrev_b32 v{th}, 16, v{PAR+2}
    v_mul_f32 v{dt}, s{sK1}, v{PAR}
    v_fma_f32 v{t0}, v{PAR}, s{sK1}, -v{dt}
    v_fma_f32 v{t0}, v{PAR}, s{sK2}, v{t0}
    v_exp_f32 v{dt}, v{dt}
    v_mul_f32 v{t0}, {fbits(math.log(2.0))}, v{t0}
    v_fmac_f32 v{dt}, v{dt}, v{t0}
    v_cvt_pk_bf16_f32 v{dt}, 0, v{dt}
    v_mul_f32 v{a}, v{dt}, v{a}
    v_mul_f32 v{th}, v{dt}, v{th}
    v_mul_f32 v{a}, s{sK1}, v{a}
    v_mul_f32 v{th}, 0.15915494, v{th}
    """)
def cexp(R, e, s, t):
    a, th = R["a"], R["th"]
    o = []
    if s == 1.0: o += [f"v_exp_f32 v{t}, v{a}", f"v_fract_f32 v{t+1}, v{th}"]
    else: o += [f"v_mul_f32 v{t}, {fbits(s)}, v{a}", f"v_mul_f32 v{t+1}, {fbits(s)}, v{th}", f"v_exp_f32 v{t}, v{t}", f"v_fract_f32 v{t+1}, v{t+1}"]
    o += [f"v_cos_f32 v{e}, v{t+1}", f"v_sin_f32 v{e+1}, v{t+1}", f"v_mul_f32 v{e}, v{t}, v{e}", f"v_mul_f32 v{e+1}, v{t}, v{e+1}"]
    return o
def neg(e): return [] if PKT else [f"v_sub_f32 v{e+2}, 0, v{e+1}"]
def cmul(d, a, b):
    if PKT:
        return [f"v_pk_mul_f32 {vr(d,2)}, {vr(a,2)}, {vr(b,2)} op_sel_hi:[0,1]",
                f"v_pk_fma_f32 {vr(d,2)}, {vr(a,2)}, {vr(b,2)}, {vr(d,2)} op_sel:[1,1,0] op_sel_hi:[1,0,1] neg_lo:[0,1,0]"]
    return [f"v_mul_f32 v{d}, v{a}, v{b}", f"v_mul_f32 v{d+1}, v{a}, v{b+1}",
            f"v_fmac_f32 v{d}, v{a+1}, v{b+2}", f"v_fmac_f32 v{d+1}, v{a+1}, v{b}"]
class Putter:
    def __init__(self, base): self.base = base; self.i = 0
    def __call__(self, row, r, ng=False):
        t = self.base + (self.i & 3); self.i += 1
        return [f"v_cvt_pk_bf16_f32 v{t}, v{r}, {'-' if ng else ''}v{r+1}", f"ds_write_b32 v{vTab}, v{t} offset:{row*PITCH}"]
PR = 16
def tables():
    R = dict(a=16, th=17, dt=18, t0=19); put = Putter(108)
    E8, E128, DB, C = 24, 28, 32, 36
    EP = lambda p: 44 + 4*p
    E1 = EP(1)
    o = tab_common(R)
    o += cexp(R, E1, 1.0, 40) + neg(E1) + cexp(R, E128, 128.0, 42) + neg(E128)
    o += ["v_mov_b32 v108, 0x3f80", f"ds_write_b32 v{vTab}, v108 offset:{PR*PITCH}"]; put.i = 1
    o += put(PR + 1, E1) + put(PR + 8, E128)
    o += cexp(R, E8, 8.0, 40) + neg(E8)
    o += lines(f"""
    v_lshlrev_b32 v{DB}, 16, v{PAR+3}
    v_lshlrev_b32 v{DB+1}, 16, v{PAR+4}
    v_lshlrev_b32 v{C}, 16, v{PAR+5}
    v_lshlrev_b32 v{C+1}, 16, v{PAR+6}
    v_mul_f32 v{DB}, v18, v{DB}
    v_mul_f32 v{DB+1}, v18, v{DB+1}
    """) + neg(DB)
    q = [20, 22]; jq = list(range(1, 16)); pp = [0]
    o += cmul(q[0], C, DB) + put(0, q[0], True)
    def do_q():
        i = jq.pop(0); r = cmul(q[1], q[0], E8); q.reverse(); return r + put(i, q[0], True)
    def prod(row, a, b):
        d = 96 + 2*(pp[0] & 3); pp[0] += 1
        return cmul(d, a, b) + put(row, d)
    o += prod(PR + 9, E1, E128)
    for p in range(2, 8):
        o += cmul(EP(p), EP(p-1), E1) + do_q() + put(PR + p, EP(p))
        if p % 2 == 0: o += neg(EP(p))
        o += prod(PR + 8 + p, EP(p), E128)
    cur = E128; nx = 104
    for h in range(2, 17):
        o += cmul(nx, cur, E128); cur, nx = nx, (106 if nx == 104 else 104)
        if h >= 8 and jq: o += do_q()
        if h < 4:
            o += put(PR + 16 + 4*(h-2), cur)
            for p in range(1, 4): o += prod(PR + 16 + 4*(h-2) + p, cur, EP(2*p))
        elif h < 8:
            o += put(PR + 24 + 2*(h-4), cur) + prod(PR + 24 + 2*(h-4) + 1, cur, EP(4))
        else: o += put(PR + 32 + (h-8), cur)
    assert not jq
    return o
KF = [96 + 4*i for i in range(24)]
KA = 192
def k_reads():
    o = []
    for s in range(8):
        o += [f"ds_read_b128 {vr(KF[3*s],4)}, v{cKf0} offset:{64*s}",
              f"ds_read_b128 {vr(KF[3*s+1],4)}, v{cKf1} offset:{16*PITCH+64*s}",
              f"ds_read_b128 {vr(KF[3*s+2],4)}, v{cKf0} offset:{48*PITCH+64*s}"]
    return o
def k_mfma():
    o = []
    for s in range(8):
        o += [f"v_mfma_f32_16x16x32_bf16 {vr(KA,4)}, {vr(KF[3*s+1],4)}, {vr(KF[3*s],4)}, {'0' if s == 0 else vr(KA,4)}",
              f"v_mfma_f32_16x16x32_bf16 {vr(KA+4,4)}, {vr(KF[3*s+2],4)}, {vr(KF[3*s],4)}, {'0' if s == 0 else vr(KA+4,4)}"]
    return o + ["s_nop 7"]
def k_write():
    return lines(f"""
    v_cvt_pk_bf16_f32 v34, v{KA}, v{KA+1}
    v_cvt_pk_bf16_f32 v35, v{KA+2}, v{KA+3}
    v_cvt_pk_bf16_f32 v36, v{KA+4}, v{KA+5}
    v_cvt_pk_bf16_f32 v37, v{KA+6}, v{KA+7}
    ds_write_b32 v{cKd0}, v34
    ds_write_b32 v{cKd1}, v35
    ds_write_b16 v{cKd2}, v36 offset:1024
    ds_write_b16_d16_hi v{cKd2}, v36 offset:{1024+32}
    ds_write_b16 v{cKd2}, v37 offset:{1024+64}
    ds_write_b16_d16_hi v{cKd2}, v37 offset:{1024+96}
    """)
def k_gather(): return [f"ds_read_u16 v{16+e}, v{XA+e}" for e in range(18)]
def k_pack():
    o = [f"v_cmp_ne_u32 vcc, 127, v{cT}", f"ds_write_b32 v{cZ0}, v{vZero} offset:{UOFF}",
         f"ds_write_b32 v{cZ1}, v{vZero} offset:4096", "v_cndmask_b32 v33, 0, v33, vcc"]
    for hh in range(2):
        for i in range(4):
            b = 16 + 9*hh + 2*i
            o += [f"v_lshl_or_b32 v{96+4*hh+i}, v{b+1}, 16, v{b}", f"v_lshl_or_b32 v{104+4*hh+i}, v{b+2}, 16, v{b+1}"]
    o += [f"ds_write_b128 v{cImg}, v[96:99]", f"ds_write_b128 v{cImg}, v[100:103] offset:2048",
          f"ds_write_b128 v{cImg}, v[104:107] offset:4160", f"ds_write_b128 v{cImg}, v[108:111] offset:6208"]
    return o

LD_INIT = f"global_load_dword v{vPoll}, v{vZero}, s[62:63] sc1"
LD_MV = f"buffer_load_dword v{vPoll}, v{cMv}, s[20:23], 0 offen sc1"
def poll(lb, target, ld):
    A(f"""
{lb}:
    v_cmp_gt_u32 vcc, {target}, v{vPoll}
    s_cbranch_vccz {lb}_ok
    s_sub_u32 s{sSpin}, s{sSpin}, 1
    s_cbranch_scc1 {lb}_ok
    s_sleep 8
    {ld}
    s_waitcnt vmcnt(0)
    s_branch {lb}
{lb}_ok:
    """)
def poll_movers(lb): poll(lb, 1, LD_MV)

def dbar():
    if STAMP and SS == 4:
        A("s_memtime s[74:75]\ns_waitcnt lgkmcnt(0)\ns_barrier\ns_memtime s[76:77]\ns_waitcnt lgkmcnt(0)\ns_sub_u32 s74, s76, s74\ns_add_u32 s92, s92, s74")
    else: A("s_barrier")
def dclk(first):
    if STAMP and SS == 4:
        if first: A("s_memtime s[72:73]\ns_waitcnt lgkmcnt(0)")
        else: A("s_memtime s[76:77]\ns_waitcnt lgkmcnt(0)\ns_sub_u32 s94, s76, s72")
def gemm1_a():
    def reads(j):
        f = FR[j & 1]; s = (j >> 1) & 3; o = s*16384 + (j & 1)*8192; xo = ((j >> 2) & 1)*16384
        r = [f"ds_read_b64_tr_b16 {vr(f+16,2)}, v{vWr} offset:{o}",
             f"ds_read_b64_tr_b16 {vr(f+18,2)}, v{vWr} offset:{o+2048}",
             f"ds_read_b128 {vr(f,4)}, v{vXr[j & 3]} offset:{xo}",
             f"ds_read_b64_tr_b16 {vr(f+20,2)}, v{vWr} offset:{o+1024}",
             f"ds_read_b64_tr_b16 {vr(f+22,2)}, v{vWr} offset:{o+3072}"]
        return r + [f"ds_read_b128 {vr(f+4*tt,4)}, v{vXr[j & 3]} offset:{xo+4096*tt}" for tt in range(1, 4)]
    pad("lp")
    A("s_barrier")
    stamp(3); dclk(1)
    A(reads(0))
    A("L_g1_loop:")
    for j in range(8):
        A("s_waitcnt lgkmcnt(0)")
        if j & 1: dbar()
        f = FR[j & 1]; r = reads(j + 1)
        n = 0
        for tt in range(4):
            for o, a in ((0, 16), (16, 20)):
                d = vr(ACC1+32*tt+o, 16)
                A(f"v_mfma_f32_32x32x16_bf16 {d}, {vr(f+a,4)}, {vr(f+4*tt,4)}, {d}")
                A(r[2*n:2*n+2]); n += 1
                if j == 7 and n == 6: A(f"s_add_u32 s{sIt}, s{sIt}, 1\ns_cmp_lt_u32 s{sIt}, 4")
    if STAMP and SS == 3:
        A("s_mov_b32 s92, s94\ns_mov_b32 s94, s96\ns_mov_b32 s96, s98\ns_memrealtime s[98:99]\ns_waitcnt lgkmcnt(0)")
    A("s_cbranch_scc1 L_g1_loop")
    dclk(0)

def slices(lst, n):
    out = []; pos = 0
    for i in range(n):
        end = (i + 1)*len(lst)//n
        while 0 < end < len(lst) and lst[end-1].startswith("s_cmp"): end += 1
        out.append(lst[pos:end]); pos = end
    return out

def gemm1_b():
    vm = Cnt("vmcnt", 63)
    def dma(kind, idx):
        if kind == "W": d = w_dma(idx) if idx < 16 else d_dma(idx - 16)
        else: d = x_dma(idx) if idx < 8 else d_dma(idx - 8 + 4)
        A(d)
        for _ in range(4): vm.note((kind, idx))
    def barrier(tags, first=False):
        n = vm.need(tags)
        if STAMP and SS == 4 and not first:
            A("s_memtime s[74:75]\ns_waitcnt lgkmcnt(0)")
            if n is not None: A(f"s_waitcnt vmcnt({n})")
            A("s_memtime s[76:77]\ns_waitcnt lgkmcnt(0)\ns_sub_u32 s74, s76, s74\ns_add_u32 s96, s96, s74")
            dbar()
        else: A(f"s_waitcnt {'vmcnt(%d) ' % n if n is not None else ''}lgkmcnt(0)\ns_barrier")
    if BPRIO: A(f"s_setprio {BPRIO}")
    dma("X", 0); dma("W", 0)
    dma("W", 1); dma("X", 1)
    warm(1)
    common_setup(); conv_setup(); pad("rb1")
    k_setup(); pad("rb2")
    if BLT:
        A(f"""
        v_min_u32 v{vTch}, {-(-74//BLT) - 1}, v1
        v_lshlrev_b32 v{vTch}, 7, v{vTch}
        s_lshr_b32 s3, s2, 3
        s_mul_i32 s3, s3, {74*128}
        s_min_u32 s3, s3, {256*1024 - 74*128}
        s_mul_i32 s4, s{sWN}, {448*1024}
        s_add_u32 s3, s3, s4
        s_add_u32 s{sTch}, s3, {192*1024}
        """)
    dma("W", 2)
    if W3E: dma("W", 3)
    stamp(1)
    barrier({("X", 0), ("W", 0)}, True)
    stamp(3); dclk(1)
    if not W3E: dma("W", 3)
    def groups(kind, idx):
        if kind == "W": d = w_dma(idx) if idx < 16 else d_dma(idx - 16)
        else: d = x_dma(idx) if idx < 8 else d_dma(idx - 8 + 4)
        for _ in range(4): vm.note((kind, idx))
        return [d[0:3], d[3:4], d[4:7], d[7:8]]
    for s in range(16):
        barrier({("W", s + 1), ("X", (s + 1)//2)} if s < 15 else {("W", 16), ("X", 8), ("W", 17)})
        g = []
        if s & 1: g += groups("X", (s + 3)//2)
        g += groups("W", s + 4)
        for gi in g: A(gi)
        if s == 5:
            A(f"s_cmp_eq_u32 s{sW}, 4\ns_cbranch_scc0 L_noinit\n{LD_INIT}\nL_noinit:")
        if s == 10:
            A(f"s_cmp_eq_u32 s{sW}, 4\ns_cbranch_scc0 L_pi_ok")
            poll("L_pi", 128, LD_INIT)
        if s == 14:
            A(LD_MV)
        if BLT and BLS <= s < BLS + 2*BLT and (s - BLS) % 2 == 0:
            A(f"buffer_load_dword v{vJunk}, v{vTch}, s[68:71], s{sTch} offen\ns_add_u32 s{sTch}, s{sTch}, {-(-74//BLT)*128}"); vm.note("t")
        if s == 2: warm(3)
        if s == 6: pad("g1b")
        if s == 14: A(k_reads()); pad("kf")
    dclk(0)

def publish(sreg, n):
    A(f"""
    s_mov_b64 exec, 1
    s_waitcnt vmcnt({n})
    buffer_store_dword v14, v15, s[20:23], s{sreg} offen sc1
    s_mov_b64 exec, -1
    """)

def geglu(tt, fill=()):
    fill = list(fill)
    G = ACC1 + 32*tt; U = G + 16
    O = 16 + 8*(tt & 1); T = 32
    o = []
    for p in range(8): o.append(f"v_pk_mul_f32 {vr(T+2*p,2)}, {vr(G+2*p,2)}, {vr(G+2*p,2)}")
    for p in range(8): o.append(f"v_pk_fma_f32 {vr(T+2*p,2)}, {vr(T+2*p,2)}, s[34:35], v[2:3]")
    for p in range(8): o.append(f"v_pk_mul_f32 {vr(T+2*p,2)}, {vr(T+2*p,2)}, {vr(G+2*p,2)}")
    for p in range(16): o.append(f"v_exp_f32 v{T+p}, v{T+p}")
    for p in range(8): o.append(f"v_pk_mul_f32 {vr(G+2*p,2)}, {vr(G+2*p,2)}, {vr(U+2*p,2)}")
    for p in range(8): o.append(f"v_pk_add_f32 {vr(T+2*p,2)}, {vr(T+2*p,2)}, 1.0 op_sel_hi:[1,0]")
    for p in range(16): o.append(f"v_rcp_f32 v{T+p}, v{T+p}")
    for p in range(8): o.append(f"v_pk_mul_f32 {vr(G+2*p,2)}, {vr(G+2*p,2)}, {vr(T+2*p,2)}")
    for p in range(8): o.append(f"v_cvt_pk_bf16_f32 v{O+p}, v{G+2*p}, v{G+2*p+1}")
    for x in o:
        A(x)
        if fill and ("exp" in x or "rcp" in x): A(fill.pop(0))
    A(fill)
    A(f"buffer_store_dwordx4 {vr(O,4)}, v4, s[20:23], s{sHst} offen sc1")
    A(f"buffer_store_dwordx4 {vr(O+4,4)}, v4, s[20:23], s{sHst} offen offset:1024 sc1")
def epi_head():
    C1 = -2.0 * L2E * math.sqrt(2.0/math.pi)
    A(f"v_mov_b32 v2, {fbits(C1)}\nv_mov_b32 v3, {fbits(C1)}\nv_lshlrev_b32 v4, 4, v1\nv_mov_b32 v14, 1\nv_mov_b32 v15, 0\ns_add_u32 s{sHfl2}, s{sHfl}, {56*128}\ns_waitcnt vmcnt(0) lgkmcnt(0)")

def conv_loads():
    A(f"""
    buffer_load_dwordx4 {vr(vU,4)}, v{cLu0}, s[20:23], s{sCu} offen sc1
    buffer_load_dwordx4 {vr(vU+4,4)}, v{cLu1}, s[20:23], s{sCu} offen sc1
    buffer_load_dwordx4 {vr(vG,4)}, v{cLg0}, s[20:23], 0 offen sc1
    buffer_load_dwordx4 {vr(vG+4,4)}, v{cLg1}, s[20:23], 0 offen sc1
    """)

G1 = [0, 1, 8, 9, 2, 3]; G2 = [4, 5, 6, 7, 10, 11]
STG = {k: 48 + 8*i for i, k in enumerate(G1 + G2)}
STG.update({24 + i: 144 + 8*i for i in range(4)})
def wd_reads(kap, d0, d1):
    o = piece_off(kap)
    base = gD[0:2] if o < 65536 else gD[2:4]
    if o >= 65536: o -= 65536
    if kap >= 12: base = [14, 15]; o = piece_off(kap) - RED
    return [f"ds_read_b64_tr_b16 {vr((d0, d1)[dd]+2*ih,2)}, v{base[dd]} offset:{o + 512*ih}" for dd in range(2) for ih in range(2)]
def stage_reads(ks): return sum((wd_reads(k, STG[k], STG[k] + 4) for k in ks), [])

def role_a():
    A(f"L_role_a:\ns_mov_b32 s{sRole}, 0")
    common_setup(); g1_setup(); pad("su"); g2_setup()
    A(f"""
    v_mov_b64 v[40:41], 0
    v_mov_b64 v[42:43], 0
    v_and_b32 v{vTab}, 127, v0
    v_lshlrev_b32 v{vTab}, 2, v{vTab}
    s_lshr_b32 s6, s{sWN}, 1
    s_mul_i32 s4, s6, {57*PITCH}
    s_add_u32 s4, s4, {TB}
    v_add_u32 v{vTab}, s4, v{vTab}
    s_mov_b32 s{sK1}, {fbits(struct.unpack("<f", struct.pack("<f", L2E))[0])}
    s_mov_b32 s{sK2}, {fbits(L2E - struct.unpack("<f", struct.pack("<f", L2E))[0])}
    s_cmp_ge_u32 s2, 224
    s_cbranch_scc1 L_mv_a
    """)
    for i in range(8):
        A(f"v_mfma_f32_32x32x16_bf16 {vr(ACC1+16*i,16)}, v[40:43], v[40:43], 0")
    if T2: touches()
    A("L_a_k:")
    A("s_waitcnt vmcnt(1)\ns_cmp_lt_u32 s24, 3\ns_cbranch_scc1 L_a_k2\ns_waitcnt vmcnt(0)\nL_a_k2:" if T2 else "s_waitcnt vmcnt(0)")
    stamp(1)
    t = tables()
    A(t[:20]); pad("tb0"); A(t[20:len(t)//2]); pad("tb1"); A(t[len(t)//2:])
    stamp(2)
    A("s_cmp_ge_u32 s2, 224\ns_cbranch_scc1 L_mv_a2")
    if AGT:
        A(f"""
        s_lshl_b32 s3, s2, 2
        s_add_u32 s3, s3, s{sW}
        s_lshl_b32 s3, s3, 11
        v_and_b32 v16, 15, v1
        v_lshlrev_b32 v16, 7, v16
        buffer_load_dword v74, v16, s[68:71], s3 offen
        """)
    warm(2)
    if APRIO: A(f"s_setprio {APRIO}")
    A("s_waitcnt lgkmcnt(0)")
    gemm1_a()
    stamp(4)
    epi_head()
    step = f"s_add_u32 s{sHst}, s{sHst}, {112*1024}"
    geglu(0, stage_reads(G1)); A(step); pad("ea0")
    stamp(1, 2)
    A("s_waitcnt lgkmcnt(0)\ns_barrier")
    stamp(2, 2)
    geglu(1, stage_reads(G2)); A(step)
    geglu(2); A(step); pad("ea1")
    publish(sHfl, 2)
    geglu(3)
    stamp(5)
    publish(sHfl2, 0)
    A("L_a_join:")
    gemm2()

def role_b():
    A(f"L_role_b:\ns_mov_b32 s{sRole}, 1\ns_cmp_ge_u32 s2, 224\ns_cbranch_scc1 L_mv_head")
    gemm1_b()
    stamp(4)
    A(f"L_b_join:\ns_setprio {PPRIO}")
    for i in range(4): A(d_piece(12 + i, 24 + i))
    stamp(1, 2)
    A("s_waitcnt vmcnt(8)\ns_barrier")
    if E1:
        for k in G1: A(d_piece(k, k + 12))
    poll_movers("L_pm1")
    conv_loads()
    A(k_mfma()); A(k_write())
    lds_sync("L_b_s0", 4)
    stamp(2, 2)
    A(k_gather())
    A("s_waitcnt lgkmcnt(0)")
    A(k_pack())
    A("s_waitcnt vmcnt(2)")
    stamp(5)
    conv()

def mover_body():
    if STUBS: A("L_pad_mv:\ns_branch L_warm_ret0")
    A(f"""
L_mv_head:
    s_sub_u32 s6, s2, 224
    s_lshl_b32 s3, s6, 16
    s_lshl_b32 s4, s{sWN}, 14
    s_add_u32 s3, s3, s4
    s_mul_i32 s4, s{sWN}, {16*UP}
    v_lshlrev_b32 v16, 4, v1
    s_add_u32 s5, s3, 16384
L_mv_ld:
    s_mov_b32 m0, s4
    s_add_u32 s4, s4, {UP}
    buffer_load_dwordx4 v16, s[8:11], s3 offen lds
    s_add_u32 s3, s3, 1024
    s_cmp_lt_u32 s3, s5
    s_cbranch_scc1 L_mv_ld
    v_lshrrev_b32 v16, 4, v1
    v_lshlrev_b32 v16, 4, v16
    """)
    for i in range(16):
        A(f"global_load_dwordx4 {vr(128+4*i,4)}, v16, s[58:59] offset:{64*i}")
    common_setup(); conv_setup(); k_setup()
    A("s_waitcnt vmcnt(0)\ns_branch L_mv_common")
    A("L_mv_a:")
    A(f"""
    s_sub_u32 s6, s2, 224
    s_lshl_b32 s3, s6, 2
    s_add_u32 s3, s3, s{sW}
    s_mul_i32 s3, s3, 22
    v_add_u32 v16, s3, v1
    s_add_u32 s3, s6, 2816
    v_mov_b32 v17, s3
    v_cmp_gt_u32 vcc, 22, v1
    s_getpc_b64 s[4:5]
L_pc:
    s_sub_u32 s4, s4, L_pc - {KNAME}
    s_subb_u32 s5, s5, 0
    v_cndmask_b32 v16, v17, v16, vcc
    v_lshlrev_b32 v16, 7, v16
    v_add_u32 v16, {WS_FLAG}, v16
    buffer_store_dword v{vZero}, v16, s[20:23], 0 offen sc1
    v_lshlrev_b32 v16, 7, v0
    v_min_u32 v16, L_exit - {KNAME}, v16
    global_load_dword v74, v16, s[4:5]
    s_waitcnt vmcnt(2)
    s_branch L_a_k2
L_mv_a2:
    s_waitcnt vmcnt(0)
    s_mov_b64 exec, 1
    global_atomic_add v{vZero}, v{cOne}, s[62:63] sc1
    s_mov_b64 exec, -1
    """)
    A(f"""
L_mv_common:
    s_sub_u32 s{sMov}, s2, 224
    v_and_b32 v2, 15, v1
    v_lshrrev_b32 v3, 4, v1
    v_lshlrev_b32 v16, 4, v3
    v_lshrrev_b32 v17, 2, v1
    v_and_b32 v17, 3, v17
    v_lshl_add_u32 v17, v3, 3, v17
    v_mul_u32_u24 v17, {UP}, v17
    v_and_b32 v18, 3, v1
    v_lshl_add_u32 v17, v18, 3, v17
    s_lshl_b32 s4, s{sW}, 7
    v_add_u32 v17, s4, v17
    s_lshl_b32 s3, s{sW}, 18
    s_lshl_b32 s4, s{sMov}, 11
    s_add_u32 s3, s3, s4
    s_add_u32 s3, s3, {WS_UT}
    v_lshlrev_b32 v18, 6, v2
    v_lshl_add_u32 v18, v3, 4, v18
    s_lshr_b32 s7, s{sMov}, 3
    s_mul_i32 s7, s7, {448*1024}
    s_lshl_b32 s4, s{sW}, 13
    s_add_u32 s7, s7, s4
    s_add_u32 s7, s7, {192*1024}
    v_lshlrev_b32 v19, 7, v1
    s_waitcnt lgkmcnt(0)
    s_barrier
    """)
    stamp(3)
    for q in range(4):
        b = 200 + 8*q
        A(f"""
        ds_read_b64_tr_b16 {vr(b,2)}, v17 offset:{32*q}
        ds_read_b64_tr_b16 {vr(b+2,2)}, v17 offset:{32*q + 4*UP}
        ds_read_b64_tr_b16 {vr(b+4,2)}, v17 offset:{32*q + 32*UP}
        ds_read_b64_tr_b16 {vr(b+6,2)}, v17 offset:{32*q + 36*UP}
        """)
    for q in range(4):
        b = 200 + 8*q
        A(f"""
        s_waitcnt lgkmcnt({12 - 4*q})
        buffer_store_dwordx4 {vr(b,4)}, v18, s[20:23], s3 offen sc1
        buffer_store_dwordx4 {vr(b+4,4)}, v18, s[20:23], s3 offen offset:1024 sc1
        s_add_u32 s3, s3, 65536
        """)
    A(f"""
    s_cmp_eq_u32 s{sRole}, 0
    s_cbranch_scc1 L_mv_nogate
    s_mul_i32 s4, s{sWN}, {16*UP}
    v_mul_u32_u24 v17, {UP}, v2
    v_add_u32 v17, v17, v16
    v_add_u32 v17, s4, v17
    """)
    GF = [32 + 4*i for i in range(4)] + [92 + 4*i for i in range(9)] + [192, 196, 232]
    for i in range(16):
        A(f"ds_read_b128 {vr(GF[i],4)}, v17 offset:{64*i}")
    A("s_waitcnt lgkmcnt(0)")
    for i in range(16):
        c = "0" if i < 2 else vr(24+4*(i&1), 4)
        A(f"v_mfma_f32_16x16x32_bf16 {vr(24+4*(i&1),4)}, {vr(GF[i],4)}, {vr(128+4*i,4)}, {c}")
    A(f"""
    s_lshl_b32 s3, s{sMov}, 2
    s_add_u32 s3, s3, s{sWN}
    s_lshl_b32 s3, s3, 6
    s_add_u32 s3, s3, {WS_G}
    s_nop 5
    """)
    for r in range(4): A(f"v_add_f32 v{24+r}, v{24+r}, v{28+r}")
    for r in range(4): A(f"v_cvt_pk_bf16_f32 v{24+r}, 0, v{24+r}")
    for r in range(4): A(f"v_mul_f32 v{24+r}, {fbits(-L2E)}, v{24+r}")
    for r in range(4): A(f"v_exp_f32 v{24+r}, v{24+r}")
    A("s_nop 0")
    for r in range(4): A(f"v_add_f32 v{24+r}, 1.0, v{24+r}")
    for r in range(4): A(f"v_rcp_f32 v{24+r}, v{24+r}")
    A("s_nop 0")
    for r in range(4): A(f"v_cvt_pk_bf16_f32 v{24+r}, 0, v{24+r}")
    for r in range(4): A(f"v_sub_f32 v{28+r}, 1.0, v{24+r}")
    for r in range(4): A(f"v_cvt_pk_bf16_f32 v{24+r}, v{24+r}, v{28+r}")
    A(f"""
    v_cmp_eq_u32 vcc, 0, v2
    s_and_saveexec_b64 s[4:5], vcc
    buffer_store_dwordx4 v[24:27], v16, s[20:23], s3 offen sc1
    s_mov_b64 exec, s[4:5]
L_mv_nogate:
    s_waitcnt vmcnt(0)
    s_barrier
    s_cmp_eq_u32 s{sRole}, 0
    s_cbranch_scc0 L_mv_b2
    """)
    stamp(4)
    if MGT:
        A(f"""
        s_and_b32 s3, s{sMov}, 7
        s_lshl_b32 s3, s3, 2
        s_add_u32 s3, s3, s{sW}
        s_mul_i32 s3, s3, 6144
        s_lshr_b32 s4, s{sMov}, 3
        s_mul_i32 s4, s4, {448*1024}
        s_add_u32 s3, s3, s4
        v_min_u32 v17, {47*128}, v19
        buffer_load_dword v47, v17, s[68:71], s3 offen
        """)
    A("s_barrier")
    A(f"s_and_b32 s4, s{sMov}, 3\ns_lshl_b32 s4, s4, 15")
    for i in range(2*MROWS):
        A(f"s_add_u32 s3, s7, s4\nbuffer_load_dword v47, v19, s[68:71], s3 offen\ns_add_u32 s4, s4, 32768\ns_cmp_ge_u32 s4, {2*MROWS*32768}\ns_cselect_b32 s4, 0, s4")
    A("s_barrier")
    A(stage_reads(G1)); A("s_waitcnt lgkmcnt(0)\ns_barrier")
    A(stage_reads(G2))
    stamp(5)
    A(f"""
    s_branch L_a_join
L_mv_b2:
    s_cmp_eq_u32 s{sW}, 4
    s_cbranch_scc0 L_mv_nosig
    s_lshl_b32 s3, s{sMov}, 7
    s_add_u32 s3, s3, {WS_FLAG3}
    s_mov_b64 exec, 1
    buffer_store_dword v{cOne}, v{vZero}, s[20:23], s3 offen sc1
    s_mov_b64 exec, -1
L_mv_nosig:
    """)
    stamp(4)
    A(f"""
    s_cmp_eq_u32 s{sW}, 4
    s_cbranch_scc0 L_pi2_ok
    {LD_INIT}
    s_waitcnt vmcnt(0)
    """)
    poll("L_pi2", 128, LD_INIT)
    for sig in range(4): A(d_dma(sig))
    A("s_barrier")
    A(LD_MV)
    for sig in range(4, 6): A(d_dma(sig))
    A(k_reads())
    A("s_waitcnt vmcnt(0) lgkmcnt(0)\ns_barrier\ns_branch L_b_join")

def lds_sync(label, target):
    A(f"""
    s_mov_b64 exec, 1
    s_waitcnt lgkmcnt(0)
    ds_add_u32 v{cCnt}, v{cOne}
{label}:
    ds_read_b32 v2, v{cCnt}
    s_waitcnt lgkmcnt(0)
    v_cmp_gt_u32 vcc, {target}, v2
    s_cbranch_vccz {label}_go
    s_sub_u32 s{sSpin}, s{sSpin}, 1
    s_cbranch_scc0 {label}
{label}_go:
    s_mov_b64 exec, -1
    """)

def conv():
    FA = [96, 160]; FB = [128, 192]; ACC = 16
    def reads(rr):
        fs = rr & 1; ra = []; rb = []
        for i in range(8):
            o = (512*(1 - (i & 1)) + 64*(3 - rr)) // 4
            rb.append(f"ds_read_b128 {vr(FB[fs]+4*i,4)}, v{cB} offset:{512*i + 64*(3-rr)}")
            ra.append(f"ds_read2_b32 {vr(FA[fs]+4*i,2)}, v{cA[i>>1]} offset0:{o} offset1:{o+1}")
            ra.append(f"ds_read2_b32 {vr(FA[fs]+4*i+2,2)}, v{cA[i>>1]} offset0:{o+2} offset1:{o+3}")
        return ra, rb
    A(f"ds_write_b128 v{cUw}, {vr(vU,4)}\nds_write_b128 v{cUw}, {vr(vU+4,4)} offset:2048")
    ra, rb = reads(0)
    A("s_waitcnt lgkmcnt(0)\ns_barrier\ns_setprio 2")
    stamp(6)
    b2 = []
    for k in range(12, 24):
        p = d_piece(k - 12, k); b2 += [p[0:3], p[3:4]]
    if B2A: b2 = []
    else: A(b2.pop(0)); A(b2.pop(0))
    A(ra[0:2] + rb + ra[2:])
    cnt = 0
    pad("cv0")
    U = 128; D = 136; Y = 96; P = 160
    for rr in range(4):
        fs = rr & 1
        A("s_waitcnt lgkmcnt(14)" if rr == 0 else "s_waitcnt lgkmcnt(0)")
        if rr < 3:
            ra, rb = reads(rr+1); fill = rb + ra
        else:
            fill = [f"ds_read_b64 {vr(U,2)}, v{cUr}", f"ds_read_b64 {vr(U+2,2)}, v{cUr} offset:2048",
                    f"ds_read_b64 {vr(U+4,2)}, v{cUr} offset:{CH}", f"ds_read_b64 {vr(U+6,2)}, v{cUr} offset:{CH+2048}"]
        for i in range(8):
            if rr == 0 and i == 1: A("s_waitcnt lgkmcnt(0)")
            for t in range(i, 8):
                c = "0" if (rr == 0 and i == 0) else vr(ACC+4*t, 4)
                A(f"v_mfma_f32_16x16x32_bf16 {vr(ACC+4*t,4)}, {vr(FA[fs]+4*i,4)}, {vr(FB[fs]+4*(t-i),4)}, {c}")
                if fill and not (rr == 0 and i == 0): A(fill.pop(0))
                cnt += 1
                if b2 and cnt % B2W == 0: A(b2.pop(0))
            if rr == 3 and 2 <= i <= 4:
                A(f"ds_write_b128 v{cRw}, {vr(ACC+4*(i-2),4)} offset:{1024*(i-2)}")
        assert not fill
        if rr == 1: pad("cv1")
        if rr == 2:
            A(f"""
            s_mov_b64 exec, 1
L_cv_red:
            ds_read_b32 v2, v{cCnt} offset:4
            s_waitcnt lgkmcnt(0)
            v_cmp_gt_u32 vcc, 4, v2
            s_cbranch_vccz L_cv_red_ok
            s_sub_u32 s{sSpin}, s{sSpin}, 1
            s_cbranch_scc0 L_cv_red
L_cv_red_ok:
            s_mov_b64 exec, -1
            """)
    assert not b2
    stamp(7)
    A("s_waitcnt vmcnt(0) lgkmcnt(3)")
    ud = []
    for k in range(8):
        d = D + 2*k
        if k & 1: ud += [f"v_and_b32 v{d}, 0xffff0000, v{U+k//2}", f"v_and_b32 v{d+1}, 0xffff0000, v{U+4+k//2}"]
        else: ud += [f"v_lshlrev_b32 v{d}, 16, v{U+k//2}", f"v_lshlrev_b32 v{d+1}, 16, v{U+4+k//2}"]
    A(ud[:8])
    for t in range(3, 8):
        A(f"ds_write_b128 v{cRw}, {vr(ACC+4*t,4)} offset:{1024*t}")
    A(ud[8:])
    for k in range(8): A(f"v_lshlrev_b32 v{vG+k}, 16, v{vG+k}")
    A(f"s_lshl_b32 s30, s{sDsk}, 16\ns_and_b32 s31, s{sDsk}, 0xffff0000")
    lds_sync("L_cv_s2", 8)
    for q in range(4):
        A(f"ds_read_b128 {vr(P+8*q,4)}, v{cRr} offset:{8192*q}")
        A(f"ds_read_b128 {vr(P+4+8*q,4)}, v{cRr} offset:{8192*q + 4096}")
    for k in range(8):
        d = D + 2*k
        A(f"v_mul_f32 v{d}, s30, v{d}\nv_mul_f32 v{d+1}, s31, v{d+1}")
    A("s_waitcnt lgkmcnt(4)")
    for k in range(8): A(f"v_add_f32 v{D+2*k}, v{D+2*k}, v{P+k}")
    for k in range(8): A(f"v_add_f32 v{D+2*k}, v{D+2*k}, v{P+8+k}")
    A("s_waitcnt lgkmcnt(0)")
    for k in range(8): A(f"v_add_f32 v{D+2*k+1}, v{D+2*k+1}, v{P+16+k}")
    for k in range(8): A(f"v_add_f32 v{D+2*k+1}, v{D+2*k+1}, v{P+24+k}")
    for k in range(8):
        A(f"v_mul_f32 v{D+2*k}, v{vG+k}, v{D+2*k}\nv_mul_f32 v{D+2*k+1}, v{vG+k}, v{D+2*k+1}")
    for k in range(8):
        A(f"v_cvt_pk_bf16_f32 v{Y+k}, v{D+2*k}, v{D+2*k+1}")
    A(f"""
    buffer_store_dwordx4 {vr(Y,4)}, v{cS0}, s[20:23], s{sCga} offen sc1
    buffer_store_dwordx4 {vr(Y+4,4)}, v{cS1}, s[20:23], s{sCga} offen sc1
    s_mov_b64 exec, 1
    """)
    stamp(8)
    A(f"""
    s_waitcnt vmcnt(0)
    buffer_store_dword v{cOne}, v{vZero}, s[20:23], s{sCfl} offen sc1
    """)
    stamp_flush()
    A("s_endpgm")

def gemm2():
    ACC = 192
    sH = [sH0, sH1]
    A("s_waitcnt lgkmcnt(0)\ns_barrier\ns_setprio 1")
    stamp(3, 2)
    vm = Cnt("vmcnt", 63); lg = Cnt("lgkmcnt", 15)
    def wd_dma(k, kap):
        A(f"s_add_u32 m0, s{sLds}, {16384*(kap >> 1) + 2048*(kap & 1)}\ns_add_u32 s3, s{sWd}, {k*16384}")
        vm.issue(("w", k), f"buffer_load_dwordx4 v{gX[0]}, s[68:71], s3 offen lds")
        vm.issue(("w", k), f"buffer_load_dwordx4 v{gX[1]}, s[68:71], s3 offen offset:1024 lds")
    for k in (G2 if E1 else G1 + G2):
        A([x.replace(f"v{vDo[0]}", f"v{gX[0]}").replace(f"v{vDo[1]}", f"v{gX[1]}") for x in d_piece(k, k + 12)])
    A(f"buffer_load_dword v2, v{gFl}, s[20:23], s{sFl} offen sc1")
    A(f"v_add_u32 v14, {RED}, v{gD[0]}\nv_add_u32 v15, {RED}, v{gD[1]}")
    for i in range(4): A(wd_reads(12 + i, STG[24 + i], STG[24 + i] + 4))
    A(f"""
    v_mov_b32 v3, {CNT + 4}
    v_mov_b32 v4, 1
    s_mov_b64 exec, 1
    s_waitcnt lgkmcnt(0)
    ds_add_u32 v3, v4
    s_mov_b64 exec, -1
    s_branch L_g2_hchk
    """)
    pad("g20", inline=False)
    A(f"""
L_g2_hpoll:
    buffer_load_dword v2, v{gFl}, s[20:23], s{sFl} offen sc1
L_g2_hchk:
    s_waitcnt vmcnt(0)
    v_cmp_eq_u32 vcc, 0, v2
    s_cbranch_vccz L_g2_hready
    s_sub_u32 s{sSpin}, s{sSpin}, 1
    s_cbranch_scc0 L_g2_hpoll
L_g2_hready:
    """)
    vm.ops = []
    stamp(6)
    free = [16 + 4*i for i in range(8)] + [176 + 4*i for i in range(4)]
    hreg = {}; wreg = {k: (STG[k], STG[k] + 4) for k in STG}
    nxt = [0]; wnx = [12]; rd = {}
    def h_issue(kc, n=99):
        while n > 0 and free and nxt[0] < 56 and (nxt[0] >> 1) < kc + min(HDMAX, HD + kc):
            n -= 1
            k, tt = nxt[0] >> 1, nxt[0] & 1
            r = free.pop(0); hreg[(k, tt)] = r
            vm.issue(("h", k), f"buffer_load_dwordx4 {vr(r,4)}, v{gL16}, s[20:23], s{sH[tt]} offen offset:{(k & 3)*1024} sc1")
            if (k & 3) == 3: A(f"s_add_u32 s{sH[tt]}, s{sH[tt]}, 4096")
            nxt[0] += 1
    if HT:
        A(f"""
        v_and_b32 v2, 31, v1
        v_min_u32 v2, {28 - HD - 1}, v2
        v_lshlrev_b32 v2, 10, v2
        v_lshrrev_b32 v3, 5, v1
        v_mul_u32_u24 v3, {112*1024}, v3
        v_add_u32 v2, v2, v3
        s_min_u32 s3, s{sH0}, s{sH1}
        s_lshl_b32 s4, s{sJ}, 7
        s_add_u32 s3, s3, s4
        s_add_u32 s{sT}, s3, {HD*1024}
        """)
    h_issue(0)
    if HT: vm.issue("t", f"buffer_load_dword v2, v2, s[20:23], s{sT} offen sc1")
    A(f"""
    v_and_b32 v{gFl}, 15, v1
    v_lshlrev_b32 v{gFl}, 9, v{gFl}
    s_lshl_b32 s{sFl}, s{sD}, 13
    s_lshr_b32 s4, s{sTok}, 3
    s_and_b32 s4, s4, 3
    s_lshl_b32 s4, s4, 7
    s_add_u32 s{sFl}, s{sFl}, s4
    s_add_u32 s{sFl}, s{sFl}, {WS_FLAG2}
    v_and_b32 v{gT}, 31, v1
    v_lshlrev_b32 v14, 2, v{gT}
    s_lshl_b32 s4, s{sTok}, 7
    s_add_u32 s5, s4, {WS_G}
    v_lshrrev_b32 v15, 5, v1
    v_lshl_add_u32 v3, v15, 15, v14
    s_lshl_b32 s6, s{sD}, 17
    s_add_u32 s6, s6, s4
    s_add_u32 s6, s6, {WS_GA}
    v_lshlrev_b32 v{gT}, 10, v{gT}
    v_lshl_add_u32 v{gT}, v15, 4, v{gT}
    s_lshl_b32 s7, s{sTok}, 15
    s_lshl_b32 s4, s{sD}, 6
    s_add_u32 s7, s7, s4
    s_mov_b32 s12, s60
    s_mov_b32 s13, s61
    s_mov_b32 s14, 0x200000
    v_add_u32 v15, s{sLds}, v{gL16}
    """)
    GA = None
    for k in range(28):
        pre = []
        vm.wait({("h", k)})
        if k in (0, 8, 12, 18): stamp({0: 1, 8: 2, 12: 3, 18: 4}[k], 1)
        lg.wait({("w", k)})
        if k >= WLA and wnx[0] < 24:
            kn = wnx[0]; wnx[0] += 1
            wreg[kn] = (free.pop(), free.pop())
            pre = [(("w", kn), x) for x in wd_reads(kn - 12, *wreg[kn])]
        lw = []
        for n, (dd, tt) in enumerate(((0,0),(0,1),(1,0),(1,1))):
            c = "0" if k == 0 else vr(ACC+16*(2*dd+tt), 16)
            A(f"v_mfma_f32_32x32x16_bf16 {vr(ACC+16*(2*dd+tt),16)}, {vr(wreg[k][dd],4)}, {vr(hreg[(k,tt)],4)}, {c}")
            if HIL and n in (0, 2): h_issue(k + 1, 1)
            if n in (1, 3) and lw:
                kl, t = lw.pop(0); vm.issue(("w", kl), t)
            if pre: lg.issue(*pre.pop(0))
        free += [hreg[(k,0)], hreg[(k,1)], wreg[k][0], wreg[k][1]]
        h_issue(k + 1)
        if k == 12: pad("g21")
        if k == 20: vm.issue("f", f"buffer_load_dword v2, v{gFl}, s[20:23], s{sFl} offen sc1")
        if k == 24:
            stamp(7)
            A(f"""
            s_waitcnt vmcnt(0)
L_g2_poll:
            v_cmp_eq_u32 vcc, 0, v2
            s_cbranch_vccz L_g2_ready
            s_sub_u32 s{sSpin}, s{sSpin}, 1
            s_cbranch_scc1 L_g2_ready
            buffer_load_dword v2, v{gFl}, s[20:23], s{sFl} offen sc1
            s_waitcnt vmcnt(0)
            s_branch L_g2_poll
            """)
            pad("g22", inline=False)
            A("L_g2_ready:")
            vm.ops = []
            fr = sorted(free)
            GA = next(r for r in fr if r + 4 in fr and r >= 96)
            free.remove(GA); free.remove(GA + 4)
            A("buffer_load_dword v4, v14, s[20:23], s5 offen sc1")
            for m in range(8):
                A(f"buffer_load_dword v{GA+m}, v3, s[20:23], s6 offen sc1")
                if m < 7: A(f"s_add_u32 s6, s6, {8192 if (m & 3) != 3 else 5*8192}")
    assert wnx[0] == 24
    stamp(8)
    A(f"""
    v_xor_b32 v8, 0x1000, v15
    v_xor_b32 v9, 0x2000, v15
    v_xor_b32 v10, 0x3000, v15
    s_nop 6
    """)
    for x in range(1, 4):
        for i in range(4):
            A(f"ds_write_b128 v15, {vr(ACC+16*x+4*i,4)} offset:{(x-1)*16384 + 1024*i}")
    A("s_waitcnt vmcnt(0)\nv_and_b32 v4, 0xffff0000, v4")
    for p in range(8):
        A(f"v_lshlrev_b32 v{80+2*p}, 16, v{GA+p}\nv_and_b32 v{81+2*p}, 0xffff0000, v{GA+p}")
    A("s_waitcnt lgkmcnt(0)\ns_barrier")
    for x in range(3):
        for i in range(4):
            A(f"ds_read_b128 {vr(32+16*x+4*i,4)}, v{8+x} offset:{x*16384 + 1024*i}")
    for x in range(3):
        A(f"s_waitcnt lgkmcnt({8 - 4*x})")
        for p in range(8):
            A(f"v_pk_add_f32 {vr(ACC+2*p,2)}, {vr(ACC+2*p,2)}, {vr(32+16*x+2*p,2)}")
    for p in range(8):
        A(f"v_pk_fma_f32 {vr(32+2*p,2)}, {vr(ACC+2*p,2)}, v[4:5], {vr(80+2*p,2)} op_sel_hi:[1,0,1]")
    for p in range(8):
        A(f"v_cvt_pk_bf16_f32 v{24+p}, v{32+2*p}, v{33+2*p}")
    A(f"""
    buffer_store_dwordx4 v[24:27], v{gT}, s[12:15], s7 offen
    buffer_store_dwordx4 v[28:31], v{gT}, s[12:15], s7 offen offset:32
    """)
    stamp_flush()
    A("s_endpgm")

def main():
    order = [[None]*4 + ["rb", "su", "tb0", "tb1"],
             [None]*4 + ["lp", "rb1", "rb2", "g1b"],
             ["ea0", "ea1", "g20", "g21"],
             [None]*4 + ["kf", "cv0", "cv1", "g22"]]
    for r, names in enumerate(order):
        for w, n in enumerate(names):
            if n: PLAN[n] = (r, w)
    A('.amdgcn_target "amdgcn-amd-amdhsa--gfx950"\n.text')
    A(f".globl {KNAME}\n.p2align 12\n.type {KNAME},@function\n{KNAME}:")
    if STAMP:
        for i in range(NST): A(f"s_mov_b32 s{80+2*i}, 0")
    stamp(0)
    A("s_cmp_ge_u32 s2, 256\ns_cbranch_scc1 L_exit")
    prologue()
    role_a()
    pad("rb", inline=False)
    role_b()
    mover_body()
    A("L_exit:\n    s_endpgm")
    assert not STUBS or set(PADS) == set(PLAN), set(PLAN) - set(PADS)
    A(f""".section .rodata,"a"
.p2align 6
.amdhsa_kernel {KNAME}
  .amdhsa_next_free_vgpr 256
  .amdhsa_next_free_sgpr 102
  .amdhsa_accum_offset 256
  .amdhsa_group_segment_fixed_size 0
  .amdhsa_kernarg_size 136
  .amdhsa_user_sgpr_count 2
  .amdhsa_user_sgpr_kernarg_segment_ptr 1
  .amdhsa_system_sgpr_workgroup_id_x 1
.end_amdhsa_kernel""")
    open(sys.argv[1], "w").write(HEADER + "\n".join(L) + "\n")

main()
```

```python
import sys, struct, math

OPTS = dict(a.split("=") for a in sys.argv[2:])
def opt(name, dflt): return int(OPTS.get(name, dflt))
STAMP = opt("stamp", 0); SS = opt("ss", 0)
T2 = opt("t2", 1); CT = opt("ct", 1); HD = opt("hd", 5); MROWS = opt("mrows", 2); HIL = opt("hil", 1); WLA = opt("wla", 8); E1 = opt("e1", 0); NSL = opt("nsl", 4); TPOS = opt("tpos", 50); MG2 = opt("mg2", 0); LW = opt("lw", 0); PUBN = opt("pubn", 12); TLB = opt("tlb", 0); CST = opt("cst", 0); RS = opt("rs", 5); AW = opt("aw", 0); GWL = 64*1056; PS = opt("ps", 14); PF1 = opt("pf1", 1); SLP = opt("slp", 2); WSB = opt("wsb", 0); PRE_ST = opt("prest", 0); PRE = opt("pre", 1); HDMAX = opt("hdmax", 8); AGT = opt("agt", 1); BLT = opt("blt", 0); BLS = opt("bls", 6); PPRIO = opt("pprio", 0); MGT = opt("mgt", 0)
SPIN = opt("spin", 0x40000); STUBS = opt("stubs", 1); NOFILL = opt("nofill", 0); PKT = opt("pkt", 1)
APRIO = opt("aprio", 1); BPRIO = opt("bprio", 0); EPRIO = opt("eprio", 2); B2W = opt("b2w", 4); KDYN = opt("kdyn", 6); B2A = opt("b2a", 1); HT = opt("ht", 0); W3E = opt("w3e", 0); MT = opt("mt", 2)
KNAME = "gated_mix__ssm_conv_s4__geglu_ffn__prompt_kernel"

WS_H, WS_UT, WS_GA = 0x0, 0x700000, 0x900000
WS_G, WS_FLAG, WS_STAMP = 0xB00000, 0xB08000, 0x1400000
WS_FLAG2 = WS_FLAG + 1792*128
WS_FLAG3 = WS_FLAG + 2816*128
WS_BYTES = 0x10000000
OOB = 0x40000000

XB = 65536
TB = 98304
PITCH = 528
KD = TB + 2*57*PITCH
CH = 12928
UOFF = 8320
RED = TB + 2*CH
CNT = KD + 3072
assert CNT + 8 <= 163840 and RED + 32768 <= KD and RED % 16 == 0
UP = 1056
L2E = math.log2(math.e)
WSTEP = 32*3584

L = []
def lines(s): return [x.strip() for x in s.strip("\n").split("\n") if x.strip()]
def A(s):
    if isinstance(s, (list, tuple)): s = "\n".join(s)
    for line in lines(s):
        L.append(line if line.endswith(":") or line.startswith(".") else "    " + line)
def fbits(x): return "0x%08x" % struct.unpack("<I", struct.pack("<f", x))[0]
def vr(b, n): return f"v[{b}:{b+n-1}]"
def srd(base, size): A(f"s_mov_b32 s{base+2}, {size:#x}\ns_mov_b32 s{base+3}, 0x00020000")

NST = 9
def stamp(idx, ss=0):
    if STAMP and (ss == SS or (ss == 0 and not (SS in (3, 4, 5) and idx in (1, 2, 6, 7, 8)) and not (SS == 1 and idx in (1, 2, 3, 4)) and not (SS == 2 and idx in (1, 2, 3)))):
        A(f"s_memrealtime s[{80+2*idx}:{81+2*idx}]\ns_waitcnt lgkmcnt(0)")
def stamp_flush():
    if not STAMP: return
    A(f"""
    s_waitcnt vmcnt(0) lgkmcnt(0)
    s_memrealtime s[{80+2*NST}:{81+2*NST}]
    s_waitcnt lgkmcnt(0)
    s_mov_b64 exec, -1
    v_lshrrev_b32 v1, 6, v0
    s_lshl_b32 s3, s2, 3
    v_add_u32 v1, s3, v1
    v_lshlrev_b32 v1, 6, v1
    v_add_u32 v1, {0xC00000 if WSB else WS_STAMP}, v1
    """)
    for i in range(12): A(f"v_mov_b32 v{4+i}, s{80+2*min(i, NST)}")
    A(f"""
    v_and_b32 v2, 63, v0
    v_cmp_eq_u32 vcc, 0, v2
    s_and_saveexec_b64 s[4:5], vcc
    buffer_store_dwordx4 v[4:7], v1, s[20:23], 0 offen
    buffer_store_dwordx4 v[8:11], v1, s[20:23], 0 offen offset:16
    buffer_store_dwordx4 v[12:15], v1, s[20:23], 0 offen offset:32
    """)

HEADER = f"""; gated mix of an S4 long convolution and a GeGLU FFN, one launch, one workgroup per CU.
;   woven into it: the SSM kernel K of two channels (factor tables, K = P Q by MFMA, expansion)
; @launch grid=(256,1,1) block=(512,1,1) lds=163840
"""

PADS = {}
PLAN = {}
def pad(name, inline=True):
    if not STUBS or name not in PLAN: return
    r, w = PLAN[name]
    if inline: A(f"s_branch L_skip_{name}")
    A(f"L_pad_{name}:\ns_branch L_warm_ret{r}")
    if inline: A(f"L_skip_{name}:")
    PADS[name] = PLAN[name]
def warm(r):
    if not STUBS: return
    tgt = {w: n for n, (rr, w) in PLAN.items() if rr == r}
    for w in range(8):
        if w in tgt: A(f"s_cmp_eq_u32 s{sW}, {w}\ns_cbranch_scc1 L_pad_{tgt[w]}")
    A(f"L_warm_ret{r}:")

sW, sXoff, sWoff, sM0W, sM0X, sB1 = 24, 25, 26, 27, 28, 29
sTB, sFB, sWN, sWM, sI, sJ, sMov, sSpin = 32, 33, 36, 37, 38, 39, 40, 42
sHst, sDsk, sHfl, sRole = 43, 48, 49, 100
sTok, sD, sH0, sH1, sLds, sFl, sWd = 50, 51, 52, 53, 64, 65, 66
sCu, sCga, sCfl = 50, 51, 52
sK1, sK2 = 54, 55
sT, sIt, sHfl2, sTch = 41, 30, 31, 29
vTch, vJunk = 253, 254
vXo = [240, 241]; vWo = 242; vDo = [248, 249]
vWr = 75; vXr = [76, 77, 78, 79]
vPoll, vZero, cMv, vTab = 250, 251, 252, 93
FR = [80, 104]; ACC1 = 128
vU, vG = 224, 232
PAR = 120
XA = 48
cKf0, cKf1, cKd0, cKd1, cKd2, cUw, cZ0, cZ1, cImg = 66, 67, 68, 69, 70, 71, 72, 73, 74
cA = [75, 76, 77, 78]; cB, cRw, cRr, cUr, cS0, cS1, cLu0, cLu1, cLg0, cLg1, cT, cCnt, cOne = range(79, 92)
gD = [8, 9, 10, 11]; gX = [12, 13]; gFl, gL16, gT = 5, 6, 7

class Cnt:
    def __init__(self, name, cap): self.ops = []; self.name = name; self.cap = cap
    def note(self, tag): self.ops.append(tag)
    def issue(self, tag, text): A(text); self.ops.append(tag)
    def need(self, tags):
        idx = [i for i, t in enumerate(self.ops) if t in tags]
        if not idx: return None
        n = min(len(self.ops) - 1 - max(idx), self.cap)
        self.ops = self.ops[len(self.ops)-n:] if n else []
        return n
    def wait(self, tags):
        n = self.need(tags)
        if n is not None: A(f"s_waitcnt {self.name}({n})")

def u32(x): return x & 0xffffffff
def x_dma(c):
    o = []
    for part in (1, 0):
        o += [f"s_add_u32 m0, s{sM0X}, {u32((c&1)*16384 - part*8192)}", f"s_add_u32 s{sT}, s{sXoff}, {u32(c*128 - part*65536)}",
              f"buffer_load_dwordx4 v{vXo[0]}, s[8:11], s{sT} offen lds",
              f"buffer_load_dwordx4 v{vXo[1]}, s[8:11], s{sT} offen offset:1024 lds"]
    return o
def w_dma(s):
    o = []
    for part in (1, 0):
        o += [f"s_add_u32 m0, s{sM0W}, {u32((s&3)*16384 - part*8192)}", f"s_add_u32 s{sT}, s{sWoff}, {u32(s*WSTEP - part*16*3584)}",
              f"buffer_load_dwordx4 v{vWo}, s[12:15], s{sT} offen lds",
              f"buffer_load_dwordx4 v{vWo}, s[16:19], s{sT} offen offset:1024 lds"]
    return o
def piece_off(kap): return 16384*(kap >> 1) + 2048*(kap & 1) + (RED - 98304 if kap >= 12 else 0)
def d_piece(kap, k):
    return [f"s_add_u32 m0, s{sLds}, {piece_off(kap)}", f"s_add_u32 s{sT}, s{sWd}, {k*16384}",
            f"buffer_load_dwordx4 v{vDo[0]}, s[68:71], s{sT} offen lds",
            f"buffer_load_dwordx4 v{vDo[1]}, s[68:71], s{sT} offen offset:1024 lds"]
def d_dma(sig): return d_piece(2*sig, 2*sig) + d_piece(2*sig + 1, 2*sig + 1)

def common_setup():
    A(f"""
    v_lshrrev_b32 v16, 4, v1
    v_and_b32 v16, 1, v16
    v_lshlrev_b32 v16, 2, v16
    v_and_b32 v17, 7, v1
    v_xor_b32 v16, v16, v17
    v_lshrrev_b32 v17, 3, v1
    v_lshlrev_b32 v17, 10, v17
    v_lshl_add_u32 v{vDo[0]}, v16, 4, v17
    v_add_u32 v{vDo[1]}, 7168, v{vDo[0]}
    s_mov_b32 s68, s56
    s_mov_b32 s69, s57
    s_mov_b32 s70, {1792*1024}
    s_mov_b32 s71, 0x00020000
    s_lshl_b32 s{sLds}, s{sWN}, 12
    s_mul_i32 s{sWd}, s{sWN}, {28*16384}
    s_lshl_b32 s4, s{sJ}, 7
    s_add_u32 s{sWd}, s{sWd}, s4
    s_mov_b32 s{sSpin}, {SPIN}
    """)

def g1_setup():
    A(f"""
    v_lshrrev_b32 v16, 2, v1
    v_and_b32 v16, 3, v16
    v_xor_b32 v17, s{sWN}, v16
    v_lshlrev_b32 v{vWr}, 8, v16
    v_lshl_add_u32 v{vWr}, v17, 6, v{vWr}
    v_lshrrev_b32 v16, 5, v1
    v_lshl_add_u32 v{vWr}, v16, 12, v{vWr}
    v_and_b32 v17, 16, v1
    v_lshlrev_b32 v18, 1, v17
    v_and_b32 v17, 1, v1
    v_lshl_add_u32 v18, v17, 4, v18
    v_and_b32 v17, 2, v1
    v_lshl_add_u32 v18, v17, 2, v18
    v_add_u32 v{vWr}, v{vWr}, v18
    v_lshrrev_b32 v17, 1, v1
    v_and_b32 v17, 7, v17
    v_xor_b32 v17, v17, v16
    v_and_b32 v{vXr[0]}, 31, v1
    v_lshlrev_b32 v{vXr[0]}, 7, v{vXr[0]}
    v_lshl_add_u32 v{vXr[0]}, v17, 4, v{vXr[0]}
    v_add_u32 v{vXr[0]}, {XB}, v{vXr[0]}
    v_xor_b32 v{vXr[1]}, 32, v{vXr[0]}
    v_xor_b32 v{vXr[2]}, 64, v{vXr[0]}
    v_xor_b32 v{vXr[3]}, 0x60, v{vXr[0]}
    s_mul_i32 s{sHst}, s{sTB}, 448
    s_lshl_b32 s5, s{sFB}, 2
    s_add_u32 s5, s5, s{sWN}
    s_lshl_b32 s4, s5, 1
    s_add_u32 s{sHst}, s{sHst}, s4
    s_lshl_b32 s{sHst}, s{sHst}, 10
    s_mul_i32 s3, s{sTB}, 112
    s_add_u32 s3, s3, s5
    s_lshl_b32 s3, s3, 7
    s_add_u32 s{sHfl}, s3, {WS_FLAG}
    s_mov_b32 s34, {fbits(-2.0 * L2E * math.sqrt(2.0/math.pi) * 0.044715)}
    s_mov_b32 s35, s34
    s_mov_b32 s{sIt}, 0
    """)

def k_setup():
    CB = 0x4300 - 128
    A(f"""
    v_and_b32 v{cT}, 127, v0
    s_lshr_b32 s6, s{sWN}, 1
    s_and_b32 s7, s{sWN}, 1
    s_mul_i32 s4, s6, {57*PITCH}
    s_add_u32 s4, s4, {TB}
    s_mul_i32 s5, s6, {CH}
    s_add_u32 s5, s5, {TB}
    v_and_b32 v16, 15, v1
    v_lshrrev_b32 v17, 4, v1
    v_mul_u32_u24 v{cKf0}, {PITCH}, v16
    v_lshl_add_u32 v{cKf0}, v17, 4, v{cKf0}
    v_add_u32 v{cKf0}, s4, v{cKf0}
    s_mul_i32 s4, s7, {16*PITCH}
    v_add_u32 v{cKf1}, s4, v{cKf0}
    s_mul_i32 s3, s6, 1536
    s_add_u32 s3, s3, {KD}
    v_lshrrev_b32 v18, 1, v17
    v_and_b32 v19, 1, v17
    v_lshlrev_b32 v24, 7, v18
    v_lshl_add_u32 v24, v19, 2, v24
    v_lshl_add_u32 v24, v16, 3, v24
    v_lshlrev_b32 v25, 6, v17
    v_add_u32 v25, 256, v25
    v_lshl_add_u32 v26, v16, 2, v25
    v_lshl_add_u32 v27, v16, 1, v25
    v_cmp_gt_u32 vcc, 2, v17
    v_mov_b32 v28, 32
    v_lshlrev_b32 v29, 3, v{cT}
    v_cndmask_b32 v26, v27, v26, vcc
    v_cndmask_b32 v28, v28, 2, vcc
    s_cmp_eq_u32 s7, 0
    s_cselect_b64 vcc, -1, 0
    v_sub_u32 v29, 2047, v29
    v_cndmask_b32 v26, v26, v24, vcc
    v_cndmask_b32 v28, v28, 2, vcc
    v_add_u32 v28, v26, v28
    v_lshl_add_u32 v{cKd0}, v26, 1, s3
    v_lshl_add_u32 v{cKd1}, v28, 1, s3
    v_lshl_add_u32 v25, v17, 6, v16
    v_lshl_add_u32 v{cKd2}, v25, 1, s3
    v_cvt_f32_i32 v30, v29
    v_add_u32 v29, {CB}, v29
    v_mov_b32 v31, {128 + CB}
    s_sub_u32 s3, s3, {2*CB}
    """)
    for hh in range(2):
        for e in range(9):
            r = XA + 9*hh + e; d = 1024*hh + e
            A(f"v_subrev_f32 v{r}, {fbits(float(d))}, v30\nv_cvt_pk_bf16_f32 v{r}, v{r}, 0")
            if hh: A(f"v_subrev_u32 v24, {d}, v29\nv_med3_i32 v{r}, v{r}, v24, v31")
            A(f"v_lshl_add_u32 v{r}, v{r}, 1, s3")
    A(f"""
    v_lshl_add_u32 v{cZ0}, v{cT}, 2, s5
    v_and_b32 v{cZ1}, 60, v{cZ0}
    s_mul_i32 s3, s7, 4160
    s_add_u32 s3, s3, s5
    v_add_u32 v{cZ1}, s3, v{cZ1}
    v_lshl_add_u32 v{cImg}, v{cT}, 4, s5
    s_and_b32 s3, s2, 31
    s_lshl_b32 s3, s3, 7
    s_add_u32 s3, s3, {WS_FLAG3}
    v_mov_b32 v{cMv}, s3
    """)

def conv_setup():
    A(f"""
    s_lshr_b32 s6, s{sWN}, 1
    s_and_b32 s7, s{sWN}, 1
    s_mul_i32 s5, s6, {CH}
    s_add_u32 s5, s5, {TB}
    v_and_b32 v16, 15, v1
    v_lshrrev_b32 v17, 4, v1
    v_and_b32 v24, 255, v0
    v_lshlrev_b32 v{cS0}, 4, v24
    v_add_u32 v{cS1}, 4096, v{cS0}
    v_add_u32 v{cLg0}, {WS_G}, v{cS0}
    v_add_u32 v{cLg1}, {WS_G}, v{cS1}
    v_add_u32 v{cRr}, {RED}, v{cS0}
    v_lshrrev_b32 v{cUr}, 1, v{cS0}
    v_add_u32 v{cUr}, {TB + UOFF + 512}, v{cUr}
    v_lshrrev_b32 v25, 3, v24
    v_lshlrev_b32 v{cLu0}, 10, v25
    v_and_b32 v26, 7, v24
    v_lshl_add_u32 v{cLu0}, v26, 4, v{cLu0}
    v_add_u32 v{cLu1}, 32768, v{cLu0}
    v_lshlrev_b32 v{cUw}, 6, v25
    v_and_b32 v26, 3, v24
    v_lshl_add_u32 v{cUw}, v26, 4, v{cUw}
    v_bfe_u32 v26, v24, 2, 1
    v_mul_u32_u24 v26, {CH}, v26
    v_add_u32 v{cUw}, v{cUw}, v26
    v_add_u32 v{cUw}, {TB + UOFF + 512}, v{cUw}
    v_and_b32 v24, 1, v16
    v_xor_b32 v24, 1, v24
    v_mul_u32_u24 v24, 4160, v24
    v_and_b32 v25, 14, v16
    v_lshlrev_b32 v25, 1, v25
    v_sub_u32 v24, v24, v25
    v_lshl_add_u32 v24, v17, 4, v24
    s_lshl_b32 s4, s7, 8
    s_sub_u32 s4, s5, s4
    s_add_u32 s3, s4, {4060 - 512 - 192}
    v_add_u32 v{cA[0]}, s3, v24
    v_subrev_u32 v{cA[1]}, 1024, v{cA[0]}
    v_subrev_u32 v{cA[2]}, 2048, v{cA[0]}
    v_subrev_u32 v{cA[3]}, 3072, v{cA[0]}
    v_lshlrev_b32 v{cB}, 5, v16
    v_lshl_add_u32 v{cB}, v17, 4, v{cB}
    s_add_u32 s3, s4, {UOFF + 480 - 192}
    v_add_u32 v{cB}, s3, v{cB}
    v_lshlrev_b32 v{cRw}, 6, v16
    v_lshl_add_u32 v{cRw}, v17, 4, v{cRw}
    s_lshl_b32 s3, s{sWN}, 13
    s_add_u32 s3, s3, {RED}
    v_add_u32 v{cRw}, s3, v{cRw}
    s_lshr_b32 s{sCu}, s2, 3
    s_lshl_b32 s{sCu}, s{sCu}, 16
    s_and_b32 s3, s2, 7
    s_lshl_b32 s3, s3, 7
    s_add_u32 s{sCu}, s{sCu}, s3
    s_add_u32 s{sCu}, s{sCu}, {WS_UT}
    s_lshl_b32 s{sCga}, s2, 13
    s_add_u32 s{sCga}, s{sCga}, {WS_GA}
    s_lshl_b32 s3, s2, 2
    s_load_dword s{sDsk}, s[78:79], s3
    s_add_u32 s3, s3, s{sWN}
    s_lshl_b32 s3, s3, 7
    s_add_u32 s{sCfl}, s3, {WS_FLAG2}

    """)

def g2_setup():
    A(f"""
    s_and_b32 s6, s{sW}, 1
    s_lshr_b32 s7, s{sW}, 1
    s_lshl_b32 s{sTok}, s{sI}, 1
    s_add_u32 s{sTok}, s{sTok}, s6
    s_lshl_b32 s{sD}, s{sJ}, 1
    s_add_u32 s{sD}, s{sD}, s7
    v_lshrrev_b32 v16, 2, v1
    v_and_b32 v16, 3, v16
    v_lshrrev_b32 v17, 5, v1
    v_lshl_add_u32 v19, v17, 3, v16
    v_lshl_add_u32 v{gD[0]}, v19, 7, v18
    v_lshrrev_b32 v16, 1, v16
    v_xor_b32 v16, s7, v16
    v_lshl_add_u32 v{gD[0]}, v16, 6, v{gD[0]}
    v_add_u32 v{gD[0]}, s{sLds}, v{gD[0]}
    v_xor_b32 v{gD[1]}, 64, v{gD[0]}
    v_add_u32 v{gD[2]}, 0x10000, v{gD[0]}
    v_add_u32 v{gD[3]}, 0x10000, v{gD[1]}
    v_min_u32 v{gFl}, 13, v1
    v_lshlrev_b32 v{gFl}, 7, v{gFl}
    s_lshl_b32 s{sFl}, s{sI}, 2
    s_add_u32 s{sFl}, s{sFl}, s{sW}
    s_mul_i32 s{sFl}, s{sFl}, {14*128}
    s_add_u32 s{sFl}, s{sFl}, {WS_FLAG}
    v_lshlrev_b32 v{gL16}, 4, v1
    s_mul_i32 s3, s{sW}, {28*1024}
    s_mul_i32 s{sH0}, s{sTok}, {112*1024}
    s_xor_b32 s4, s{sTok}, 1
    s_mul_i32 s{sH1}, s4, {112*1024}
    s_add_u32 s{sH0}, s{sH0}, s3
    s_add_u32 s{sH1}, s{sH1}, s3
    """)

def prologue():
    A(f"""
    s_load_dwordx16 s[64:79], s[0:1], 8
    s_load_dwordx2 s[8:9], s[0:1], 0
    s_load_dwordx4 s[12:15], s[0:1], 80
    s_load_dwordx8 s[56:63], s[0:1], 96
    s_load_dwordx2 s[20:21], s[0:1], 128
    v_lshrrev_b32 v2, 6, v0
    v_and_b32 v1, 63, v0
    v_mov_b32 v{vZero}, 0
    v_mov_b32 v{cCnt}, {CNT}
    v_mov_b32 v{cOne}, 1
    ds_write_b32 v{cCnt}, v{vZero}
    v_and_b32 v3, 255, v0
    v_readfirstlane_b32 s{sW}, v2
    s_lshl_b32 s3, s2, 8
    v_add_u32 v3, s3, v3
    v_lshlrev_b32 v3, 1, v3
    v_lshrrev_b32 v4, 7, v3
    v_and_b32 v4, 0xfffffffe, v4
    """)
    if STUBS: A(f"s_cmp_lt_u32 s2, 224\ns_cbranch_scc1 L_warm0\ns_cmp_eq_u32 s{sW}, 4\ns_cbranch_scc1 L_pad_mv\nL_warm0:")
    warm(0)
    A(f"""
    s_and_b32 s{sWN}, s{sW}, 3
    s_lshr_b32 s{sWM}, s{sW}, 2
    s_and_b32 s3, s2, 7
    s_lshr_b32 s4, s2, 3
    s_lshr_b32 s{sTB}, s3, 1
    s_lshl_b32 s{sTB}, s{sTB}, 2
    s_and_b32 s5, s4, 3
    s_add_u32 s{sTB}, s{sTB}, s5
    s_lshl_b32 s{sI}, s3, 2
    s_add_u32 s{sI}, s{sI}, s5
    s_and_b32 s{sFB}, s3, 1
    s_mul_i32 s{sFB}, s{sFB}, 7
    s_lshr_b32 s{sJ}, s4, 2
    s_add_u32 s{sFB}, s{sFB}, s{sJ}
    s_lshl_b32 s{sXoff}, s{sTB}, 17
    s_lshl_b32 s5, s{sW}, 14
    s_add_u32 s{sXoff}, s{sXoff}, s5
    s_mul_i32 s{sWoff}, s{sW}, {4*3584}
    s_lshl_b32 s5, s{sFB}, 8
    s_add_u32 s{sWoff}, s{sWoff}, s5
    s_lshl_b32 s{sM0W}, s{sW}, 11
    s_add_u32 s{sM0X}, s{sM0W}, {XB}
    v_lshrrev_b32 v16, 4, v1
    v_and_b32 v17, 7, v1
    v_xor_b32 v18, v17, v16
    v_lshrrev_b32 v19, 3, v1
    v_lshlrev_b32 v19, 10, v19
    v_lshl_add_u32 v{vXo[0]}, v18, 4, v19
    v_xor_b32 v{vXo[1]}, 64, v{vXo[0]}
    v_add_u32 v{vXo[1]}, 7168, v{vXo[1]}
    v_lshlrev_b32 v17, 2, v16
    v_and_b32 v{vWo}, 15, v1
    v_xor_b32 v{vWo}, v{vWo}, v17
    v_lshlrev_b32 v{vWo}, 4, v{vWo}
    v_mul_u32_u24 v16, 3584, v16
    v_add_u32 v{vWo}, v{vWo}, v16
    s_mov_b32 s10, 0x200000
    s_mov_b32 s11, 0x00020000
    s_mov_b32 s18, {512*1792*2 + 1024}
    s_mov_b32 s19, 0x00020000
    s_mov_b32 s22, {WS_BYTES - (WSB << 20)}
    s_mov_b32 s23, 0x00020000
    s_waitcnt lgkmcnt(0)
    s_add_u32 s20, s20, {WSB << 20}
    s_addc_u32 s21, s21, 0
    s_sub_u32 s16, s14, 1024
    s_subb_u32 s17, s15, 0
    s_mov_b32 s14, {512*1792*2}
    s_mov_b32 s15, 0x00020000
    s_cmp_ge_u32 s{sW}, 4
    s_cbranch_scc1 L_role_b
    """)
    params()

def params():
    for i, p in enumerate((76, 64, 66, 68, 70, 72, 74)):
        A(f"global_load_ushort v{PAR+i}, v{4 if i == 0 else 3}, s[{p}:{p+1}]")

def touches():
    A(f"""
    s_cmp_ge_u32 s2, 224
    s_cbranch_scc1 L_t2_done
    s_cmp_eq_u32 s{sW}, 0
    s_cbranch_scc0 L_t2_w
    v_min_u32 v112, 59, v1
    v_mul_u32_u24 v113, 43, v112
    v_lshrrev_b32 v113, 8, v113
    v_mul_u32_u24 v114, 6, v113
    v_sub_u32 v112, v112, v114
    v_lshlrev_b32 v112, 7, v112
    v_lshl_add_u32 v112, v113, 10, v112
    s_mul_i32 s3, s2, 10240
    s_add_u32 s3, s3, 256
    buffer_load_dword v74, v112, s[8:11], s3 offen
    s_branch L_t2_done
L_t2_w:
    v_min_u32 v112, 55, v1
    v_lshlrev_b32 v112, 7, v112
    s_mul_i32 s3, s2, 7168
    s_add_u32 s3, s3, {2*WSTEP}
    s_cmp_eq_u32 s{sW}, 1
    s_cbranch_scc0 L_t2_u
    buffer_load_dword v74, v112, s[12:15], s3 offen
    s_branch L_t2_done
L_t2_u:
    s_cmp_eq_u32 s{sW}, 2
    s_cbranch_scc0 L_t2_done
    buffer_load_dword v74, v112, s[16:19], s3 offen offset:1024
L_t2_done:
    """)
    if TLB:
        A(f"""
        s_cmp_eq_u32 s{sW}, 3
        s_cbranch_scc0 L_tlb_done
        v_mul_u32_u24 v112, {TLB*1024}, v1
        v_min_u32 v112, 0xC00000, v112
        buffer_load_dword v74, v112, s[20:23], 0 offen sc1
        v_lshlrev_b32 v112, 15, v1
        global_load_dword v74, v112, s[60:61] sc1
L_tlb_done:
        """)
    A("""
    """)

def tab_common(R):
    a, th, dt, t0 = R["a"], R["th"], R["dt"], R["t0"]
    return lines(f"""
    v_lshlrev_b32 v{PAR}, 16, v{PAR}
    v_lshlrev_b32 v{a}, 16, v{PAR+1}
    v_lshlrev_b32 v{th}, 16, v{PAR+2}
    v_mul_f32 v{dt}, s{sK1}, v{PAR}
    v_fma_f32 v{t0}, v{PAR}, s{sK1}, -v{dt}
    v_fma_f32 v{t0}, v{PAR}, s{sK2}, v{t0}
    v_exp_f32 v{dt}, v{dt}
    v_mul_f32 v{t0}, {fbits(math.log(2.0))}, v{t0}
    v_fmac_f32 v{dt}, v{dt}, v{t0}
    v_cvt_pk_bf16_f32 v{dt}, 0, v{dt}
    v_mul_f32 v{a}, v{dt}, v{a}
    v_mul_f32 v{th}, v{dt}, v{th}
    v_mul_f32 v{a}, s{sK1}, v{a}
    v_mul_f32 v{th}, 0.15915494, v{th}
    """)
def cexp(R, e, s, t):
    a, th = R["a"], R["th"]
    o = []
    if s == 1.0: o += [f"v_exp_f32 v{t}, v{a}", f"v_fract_f32 v{t+1}, v{th}"]
    else: o += [f"v_mul_f32 v{t}, {fbits(s)}, v{a}", f"v_mul_f32 v{t+1}, {fbits(s)}, v{th}", f"v_exp_f32 v{t}, v{t}", f"v_fract_f32 v{t+1}, v{t+1}"]
    o += [f"v_cos_f32 v{e}, v{t+1}", f"v_sin_f32 v{e+1}, v{t+1}", f"v_mul_f32 v{e}, v{t}, v{e}", f"v_mul_f32 v{e+1}, v{t}, v{e+1}"]
    return o
def neg(e): return [] if PKT else [f"v_sub_f32 v{e+2}, 0, v{e+1}"]
def cmul(d, a, b):
    if PKT:
        return [f"v_pk_mul_f32 {vr(d,2)}, {vr(a,2)}, {vr(b,2)} op_sel_hi:[0,1]",
                f"v_pk_fma_f32 {vr(d,2)}, {vr(a,2)}, {vr(b,2)}, {vr(d,2)} op_sel:[1,1,0] op_sel_hi:[1,0,1] neg_lo:[0,1,0]"]
    return [f"v_mul_f32 v{d}, v{a}, v{b}", f"v_mul_f32 v{d+1}, v{a}, v{b+1}",
            f"v_fmac_f32 v{d}, v{a+1}, v{b+2}", f"v_fmac_f32 v{d+1}, v{a+1}, v{b}"]
class Putter:
    def __init__(self, base): self.base = base; self.i = 0
    def __call__(self, row, r, ng=False):
        t = self.base + (self.i & 3); self.i += 1
        return [f"v_cvt_pk_bf16_f32 v{t}, v{r}, {'-' if ng else ''}v{r+1}", f"ds_write_b32 v{vTab}, v{t} offset:{row*PITCH}"]
PR = 16
def tables():
    R = dict(a=16, th=17, dt=18, t0=19); put = Putter(108)
    E8, E128, DB, C = 24, 28, 32, 36
    EP = lambda p: 44 + 4*p
    E1 = EP(1)
    o = tab_common(R)
    o += cexp(R, E1, 1.0, 40) + neg(E1) + cexp(R, E128, 128.0, 42) + neg(E128)
    o += ["v_mov_b32 v108, 0x3f80", f"ds_write_b32 v{vTab}, v108 offset:{PR*PITCH}"]; put.i = 1
    o += put(PR + 1, E1) + put(PR + 8, E128)
    o += cexp(R, E8, 8.0, 40) + neg(E8)
    o += lines(f"""
    v_lshlrev_b32 v{DB}, 16, v{PAR+3}
    v_lshlrev_b32 v{DB+1}, 16, v{PAR+4}
    v_lshlrev_b32 v{C}, 16, v{PAR+5}
    v_lshlrev_b32 v{C+1}, 16, v{PAR+6}
    v_mul_f32 v{DB}, v18, v{DB}
    v_mul_f32 v{DB+1}, v18, v{DB+1}
    """) + neg(DB)
    q = [20, 22]; jq = list(range(1, 16)); pp = [0]
    o += cmul(q[0], C, DB) + put(0, q[0], True)
    def do_q():
        i = jq.pop(0); r = cmul(q[1], q[0], E8); q.reverse(); return r + put(i, q[0], True)
    def prod(row, a, b):
        d = 96 + 2*(pp[0] & 3); pp[0] += 1
        return cmul(d, a, b) + put(row, d)
    o += prod(PR + 9, E1, E128)
    for p in range(2, 8):
        o += cmul(EP(p), EP(p-1), E1) + do_q() + put(PR + p, EP(p))
        if p % 2 == 0: o += neg(EP(p))
        o += prod(PR + 8 + p, EP(p), E128)
    cur = E128; nx = 104
    for h in range(2, 17):
        o += cmul(nx, cur, E128); cur, nx = nx, (106 if nx == 104 else 104)
        if h >= 8 and jq: o += do_q()
        if h < 4:
            o += put(PR + 16 + 4*(h-2), cur)
            for p in range(1, 4): o += prod(PR + 16 + 4*(h-2) + p, cur, EP(2*p))
        elif h < 8:
            o += put(PR + 24 + 2*(h-4), cur) + prod(PR + 24 + 2*(h-4) + 1, cur, EP(4))
        else: o += put(PR + 32 + (h-8), cur)
    assert not jq
    return o
KF = [96 + 4*i for i in range(24)]
KA = 192
def k_reads():
    o = []
    for s in range(8):
        o += [f"ds_read_b128 {vr(KF[3*s],4)}, v{cKf0} offset:{64*s}",
              f"ds_read_b128 {vr(KF[3*s+1],4)}, v{cKf1} offset:{16*PITCH+64*s}",
              f"ds_read_b128 {vr(KF[3*s+2],4)}, v{cKf0} offset:{48*PITCH+64*s}"]
    return o
def k_mfma():
    o = []
    for s in range(8):
        o += [f"v_mfma_f32_16x16x32_bf16 {vr(KA,4)}, {vr(KF[3*s+1],4)}, {vr(KF[3*s],4)}, {'0' if s == 0 else vr(KA,4)}",
              f"v_mfma_f32_16x16x32_bf16 {vr(KA+4,4)}, {vr(KF[3*s+2],4)}, {vr(KF[3*s],4)}, {'0' if s == 0 else vr(KA+4,4)}"]
    return o + ["s_nop 7"]
def k_write():
    return lines(f"""
    v_cvt_pk_bf16_f32 v34, v{KA}, v{KA+1}
    v_cvt_pk_bf16_f32 v35, v{KA+2}, v{KA+3}
    v_cvt_pk_bf16_f32 v36, v{KA+4}, v{KA+5}
    v_cvt_pk_bf16_f32 v37, v{KA+6}, v{KA+7}
    ds_write_b32 v{cKd0}, v34
    ds_write_b32 v{cKd1}, v35
    ds_write_b16 v{cKd2}, v36 offset:1024
    ds_write_b16_d16_hi v{cKd2}, v36 offset:{1024+32}
    ds_write_b16 v{cKd2}, v37 offset:{1024+64}
    ds_write_b16_d16_hi v{cKd2}, v37 offset:{1024+96}
    """)
def k_gather(): return [f"ds_read_u16 v{16+e}, v{XA+e}" for e in range(18)]
def k_pack():
    o = [f"v_cmp_ne_u32 vcc, 127, v{cT}", f"ds_write_b32 v{cZ0}, v{vZero} offset:{UOFF}",
         f"ds_write_b32 v{cZ1}, v{vZero} offset:4096", "v_cndmask_b32 v33, 0, v33, vcc"]
    for hh in range(2):
        for i in range(4):
            b = 16 + 9*hh + 2*i
            o += [f"v_lshl_or_b32 v{96+4*hh+i}, v{b+1}, 16, v{b}", f"v_lshl_or_b32 v{104+4*hh+i}, v{b+2}, 16, v{b+1}"]
    o += [f"ds_write_b128 v{cImg}, v[96:99]", f"ds_write_b128 v{cImg}, v[100:103] offset:2048",
          f"ds_write_b128 v{cImg}, v[104:107] offset:4160", f"ds_write_b128 v{cImg}, v[108:111] offset:6208"]
    return o

LD_INIT = f"global_load_dword v{vPoll}, v{vZero}, s[62:63] sc1"
LD_MV = f"buffer_load_dword v{vPoll}, v{cMv}, s[20:23], 0 offen sc1"
def poll(lb, target, ld):
    A(f"""
{lb}:
    v_cmp_gt_u32 vcc, {target}, v{vPoll}
    s_cbranch_vccz {lb}_ok
    s_sub_u32 s{sSpin}, s{sSpin}, 1
    s_cbranch_scc1 {lb}_ok
    s_sleep 8
    {ld}
    s_waitcnt vmcnt(0)
    s_branch {lb}
{lb}_ok:
    """)
def poll_movers(lb): poll(lb, 1, LD_MV)

def dbar():
    if STAMP and SS == 4:
        A("s_memtime s[74:75]\ns_waitcnt lgkmcnt(0)\ns_barrier\ns_memtime s[76:77]\ns_waitcnt lgkmcnt(0)\ns_sub_u32 s74, s76, s74\ns_add_u32 s92, s92, s74")
    else: A("s_barrier")
def dclk(first):
    if STAMP and SS == 4:
        if first: A("s_memtime s[72:73]\ns_waitcnt lgkmcnt(0)")
        else: A("s_memtime s[76:77]\ns_waitcnt lgkmcnt(0)\ns_sub_u32 s94, s76, s72")
def gemm1_a():
    def reads(j):
        f = FR[j & 1]; s = (j >> 1) & 3; o = s*16384 + (j & 1)*8192; xo = ((j >> 2) & 1)*16384
        r = [f"ds_read_b64_tr_b16 {vr(f+16,2)}, v{vWr} offset:{o}",
             f"ds_read_b64_tr_b16 {vr(f+18,2)}, v{vWr} offset:{o+2048}",
             f"ds_read_b128 {vr(f,4)}, v{vXr[j & 3]} offset:{xo}",
             f"ds_read_b64_tr_b16 {vr(f+20,2)}, v{vWr} offset:{o+1024}",
             f"ds_read_b64_tr_b16 {vr(f+22,2)}, v{vWr} offset:{o+3072}"]
        return r + [f"ds_read_b128 {vr(f+4*tt,4)}, v{vXr[j & 3]} offset:{xo+4096*tt}" for tt in range(1, 4)]
    pad("lp")
    A("s_barrier")
    stamp(3); dclk(1)
    A(reads(0))
    A("L_g1_loop:")
    for j in range(8):
        A(f"s_waitcnt vmcnt({4 + AGT if j == 3 else AGT}) lgkmcnt(0)" if AW and j in (3, 5) else "s_waitcnt lgkmcnt(0)")
        if j & 1: dbar()
        f = FR[j & 1]; r = reads(j + 1)
        n = 0
        for tt in range(4):
            for o, a in ((0, 16), (16, 20)):
                d = vr(ACC1+32*tt+o, 16)
                A(f"v_mfma_f32_32x32x16_bf16 {d}, {vr(f+a,4)}, {vr(f+4*tt,4)}, {d}")
                A(r[2*n:2*n+2]); n += 1
                if j == 7 and n == 6: A(f"s_add_u32 s{sIt}, s{sIt}, 1\ns_cmp_lt_u32 s{sIt}, 4")
    if STAMP and SS == 3:
        A("s_mov_b32 s92, s94\ns_mov_b32 s94, s96\ns_mov_b32 s96, s98\ns_memrealtime s[98:99]\ns_waitcnt lgkmcnt(0)")
    A("s_cbranch_scc1 L_g1_loop")
    dclk(0)

def capture(*fns):
    global L
    keep = L; L = []
    for f in fns: f()
    out = [x.strip() for x in L]; L = keep
    return out

def slices(lst, n):
    out = []; pos = 0
    for i in range(n):
        end = (i + 1)*len(lst)//n
        while 0 < end < len(lst) and lst[end-1].startswith("s_cmp"): end += 1
        out.append(lst[pos:end]); pos = end
    return out

def gemm1_b():
    vm = Cnt("vmcnt", 63)
    def dma(kind, idx):
        if kind == "W": d = w_dma(idx) if idx < 16 else d_dma(idx - 16)
        else: d = x_dma(idx) if idx < 8 else d_dma(idx - 8 + 4)
        A(d)
        for _ in range(4): vm.note((kind, idx))
    def barrier(tags, first=False):
        n = vm.need(tags)
        if STAMP and SS == 4 and not first:
            A("s_memtime s[74:75]\ns_waitcnt lgkmcnt(0)")
            if n is not None: A(f"s_waitcnt vmcnt({n})")
            A("s_memtime s[76:77]\ns_waitcnt lgkmcnt(0)\ns_sub_u32 s74, s76, s74\ns_add_u32 s96, s96, s74")
            dbar()
        else: A(f"s_waitcnt {'vmcnt(%d) ' % n if n is not None else ''}lgkmcnt(0)\ns_barrier")
    if BPRIO: A(f"s_setprio {BPRIO}")
    dma("X", 0); dma("W", 0)
    dma("W", 1); dma("X", 1)
    warm(1)
    common_setup()
    k_setup(); pad("rb1"); conv_setup()
    if not AW: dma("W", 2)
    work = []
    stamp(1)
    A("s_barrier\ns_setprio 1")
    A(k_reads()); pad("rb2")
    m = k_mfma()
    for i in range(8):
        A(f"s_waitcnt lgkmcnt({min(15, 21 - 3*i)})"); A(m[2*i:2*i+2])
    A(m[16:]); A(k_write())
    lds_sync("L_b_k", 4)
    A(k_gather()); A("s_waitcnt lgkmcnt(0)"); A(k_pack())
    stamp(2)
    A("s_setprio 0")
    barrier({("X", 0), ("W", 0)}, True)
    stamp(3); dclk(1)
    if not AW: dma("W", 3)
    def groups(kind, idx):
        if kind == "W": d = w_dma(idx) if idx < 16 else d_dma(idx - 16)
        else: d = x_dma(idx) if idx < 8 else d_dma(idx - 8 + 4)
        for _ in range(4): vm.note((kind, idx))
        return [d[0:3], d[3:4], d[4:7], d[7:8]]
    for s in range(16):
        barrier({("W", s + 1), ("X", (s + 1)//2)} if s < 15 else ({("W", 16), ("X", 8), ("W", 17)} if LW else set()))
        if s == 15 and PF1:
            vm.wait({"mv"})
            poll_movers("L_pm1")
            conv_loads()
        g = []
        if s & 1: g += groups("X", (s + 3)//2)
        g += groups("W", s + 4)
        w = work.pop(0) if work else []
        for gi, wi in zip(g, slices(w, len(g))): A(gi); A(wi)
        if s == 5:
            A(f"s_cmp_eq_u32 s{sW}, 4\ns_cbranch_scc0 L_noinit\n{LD_INIT}\nL_noinit:")
        if s == 10:
            A(f"s_cmp_eq_u32 s{sW}, 4\ns_cbranch_scc0 L_pi_ok")
            poll("L_pi", 128, LD_INIT)
        if s == PS:
            A(LD_MV); vm.note("mv")
        if BLT and BLS <= s < BLS + 2*BLT and (s - BLS) % 2 == 0:
            A(f"buffer_load_dword v{vJunk}, v{vTch}, s[68:71], s{sTch} offen\ns_add_u32 s{sTch}, s{sTch}, {-(-74//BLT)*128}"); vm.note("t")
        if s == 4: warm(3)
        if s == 6: pad("g1b")
        if s == 12: pad("kf")
        if s in (RS, RS + 2):
            i = (s - RS)
            A(d_piece(12 + i, 24 + i) + d_piece(13 + i, 25 + i))
            for _ in range(4): vm.note("r")
    dclk(0)
    if not PF1:
        vm.wait({"mv"})
        poll_movers("L_pm1")
        conv_loads()

def publish(sreg, n):
    A(f"""
    s_mov_b64 exec, 1
    s_waitcnt vmcnt({n})
    buffer_store_dword v14, v15, s[20:23], s{sreg} offen sc1
    s_mov_b64 exec, -1
    """)

def geglu(tt, fill=()):
    if STAMP and SS == 5: A("s_memtime s[72:73]\ns_waitcnt lgkmcnt(0)")
    geglu_(tt, fill)
    if STAMP and SS == 5: A(f"s_memtime s[74:75]\ns_waitcnt lgkmcnt(0)\ns_sub_u32 s{80 + 2*(1, 2, 6, 7)[tt]}, s74, s72")
def geglu_(tt, fill=()):
    fill = list(fill)
    G = ACC1 + 32*tt; U = G + 16
    O = 16 + 8*(tt & 1); T = 32
    o = []
    for p in range(8): o.append(f"v_pk_mul_f32 {vr(T+2*p,2)}, {vr(G+2*p,2)}, {vr(G+2*p,2)}")
    for p in range(8): o.append(f"v_pk_fma_f32 {vr(T+2*p,2)}, {vr(T+2*p,2)}, s[34:35], v[2:3]")
    for p in range(8): o.append(f"v_pk_mul_f32 {vr(T+2*p,2)}, {vr(T+2*p,2)}, {vr(G+2*p,2)}")
    for p in range(16): o.append(f"v_exp_f32 v{T+p}, v{T+p}")
    for p in range(8): o.append(f"v_pk_mul_f32 {vr(G+2*p,2)}, {vr(G+2*p,2)}, {vr(U+2*p,2)}")
    for p in range(8): o.append(f"v_pk_add_f32 {vr(T+2*p,2)}, {vr(T+2*p,2)}, 1.0 op_sel_hi:[1,0]")
    for p in range(16): o.append(f"v_rcp_f32 v{T+p}, v{T+p}")
    for p in range(8): o.append(f"v_pk_mul_f32 {vr(G+2*p,2)}, {vr(G+2*p,2)}, {vr(T+2*p,2)}")
    for p in range(8): o.append(f"v_cvt_pk_bf16_f32 v{O+p}, v{G+2*p}, v{G+2*p+1}")
    for x in o:
        A(x)
        if fill and ("exp" in x or "rcp" in x): A(fill.pop(0))
    A(fill)
    A(f"buffer_store_dwordx4 {vr(O,4)}, v4, s[20:23], s{sHst} offen sc1")
    A(f"buffer_store_dwordx4 {vr(O+4,4)}, v4, s[20:23], s{sHst} offen offset:1024 sc1")
def epi_head():
    C1 = -2.0 * L2E * math.sqrt(2.0/math.pi)
    A(f"v_mov_b32 v2, {fbits(C1)}\nv_mov_b32 v3, {fbits(C1)}\nv_lshlrev_b32 v4, 4, v1\nv_mov_b32 v14, 1\nv_mov_b32 v15, 0\ns_add_u32 s{sHfl2}, s{sHfl}, {56*128}\ns_waitcnt vmcnt(0) lgkmcnt(0)")

def conv_loads():
    A(f"""
    buffer_load_dwordx4 {vr(vU,4)}, v{cLu0}, s[20:23], s{sCu} offen sc1
    buffer_load_dwordx4 {vr(vU+4,4)}, v{cLu1}, s[20:23], s{sCu} offen sc1
    buffer_load_dwordx4 {vr(vG,4)}, v{cLg0}, s[20:23], 0 offen sc1
    buffer_load_dwordx4 {vr(vG+4,4)}, v{cLg1}, s[20:23], 0 offen sc1
    """)

G1 = [0, 1, 8, 9, 2, 3]; G2 = [4, 5, 6, 7, 10, 11]
STG = {k: 48 + 8*i for i, k in enumerate(G1 + G2)}
STG.update({24 + i: 144 + 8*i for i in range(4)})
def wd_reads(kap, d0, d1):
    o = piece_off(kap)
    base = gD[0:2] if o < 65536 else gD[2:4]
    if o >= 65536: o -= 65536
    if kap >= 12: base = [2, 3]; o = piece_off(kap) - RED
    return [f"ds_read_b64_tr_b16 {vr((d0, d1)[dd]+2*ih,2)}, v{base[dd]} offset:{o + 512*ih}" for dd in range(2) for ih in range(2)]
def red_reads():
    A(f"v_add_u32 v2, {RED}, v{gD[0]}\nv_add_u32 v3, {RED}, v{gD[1]}")
    for i in range(4): A(wd_reads(12 + i, STG[24 + i], STG[24 + i] + 4))
def stage_reads(ks): return sum((wd_reads(k, STG[k], STG[k] + 4) for k in ks), [])

def role_a():
    A(f"""
L_role_a:
    s_mov_b32 s{sRole}, 0
    s_setprio 1
    v_mov_b64 v[40:41], 0
    v_mov_b64 v[42:43], 0
    v_mov_b32 v116, v{vWo}
    v_and_b32 v{vTab}, 127, v0
    v_lshlrev_b32 v{vTab}, 2, v{vTab}
    s_lshr_b32 s6, s{sWN}, 1
    s_mul_i32 s4, s6, {57*PITCH}
    s_add_u32 s4, s4, {TB}
    v_add_u32 v{vTab}, s4, v{vTab}
    s_mov_b32 s{sK1}, {fbits(struct.unpack("<f", struct.pack("<f", L2E))[0])}
    s_mov_b32 s{sK2}, {fbits(L2E - struct.unpack("<f", struct.pack("<f", L2E))[0])}
    """)
    A([x.replace(f"v{vDo[0]}", f"v{gX[0]}").replace(f"v{vDo[1]}", f"v{gX[1]}") for x in capture(common_setup)])
    A("s_cmp_ge_u32 s2, 224\ns_cbranch_scc1 L_mv_a")
    for i in range(8):
        A(f"v_mfma_f32_32x32x16_bf16 {vr(ACC1+16*i,16)}, v[40:43], v[40:43], 0")
    A("s_waitcnt vmcnt(0)\nL_a_k2:")
    stamp(1)
    t = tables()
    tp = len(t)*TPOS//100
    for i, x in enumerate(t):
        if i == 60: pad("tb0")
        if i == 170: pad("tb1")
        if i == tp and T2: touches()
        A(x)
    if TPOS >= 100 and T2: touches()
    stamp(2)
    A("s_setprio 0\ns_cmp_ge_u32 s2, 224\ns_cbranch_scc1 L_a_su")
    A("s_waitcnt lgkmcnt(0)\ns_barrier")
    if AW:
        A(f"s_add_u32 s{sM0W}, s{sM0W}, 8192\ns_add_u32 s{sWoff}, s{sWoff}, {16*3584}")
        A([x.replace(f"v{vWo}", "v116") for x in w_dma(2) + w_dma(3)])
    if AGT:
        A(f"""
        s_lshl_b32 s3, s2, 2
        s_add_u32 s3, s3, s{sW}
        s_lshl_b32 s3, s3, 11
        v_and_b32 v16, 15, v1
        v_lshlrev_b32 v16, 7, v16
        buffer_load_dword v74, v16, s[68:71], s3 offen
        """)
    A("L_a_su:")
    pad("su")
    g1_setup(); g2_setup()
    A("s_cmp_ge_u32 s2, 224\ns_cbranch_scc1 L_mv_a2")
    if PRE_ST:
        A(f"s_mov_b32 s3, s{sHst}")
        for t in range(4):
            A(f"buffer_store_dwordx4 v[16:19], v{gL16}, s[20:23], s3 offen sc1\nbuffer_store_dwordx4 v[16:19], v{gL16}, s[20:23], s3 offen offset:1024 sc1\ns_add_u32 s3, s3, {112*1024}")
    warm(2)
    if APRIO: A(f"s_setprio {APRIO}")
    A("s_waitcnt lgkmcnt(0)")
    gemm1_a()
    stamp(4)
    epi_head()
    step = f"s_add_u32 s{sHst}, s{sHst}, {112*1024}"
    geglu(0); A(step); pad("ea0")
    geglu(1); A(step)
    geglu(2); A(step); pad("ea1")
    publish(sHfl, 2)
    geglu(3)
    stamp(5)
    red_reads()
    A("s_barrier")
    sr = stage_reads(G1 + G2)
    A(sr[:PUBN])
    publish(sHfl2, 0)
    stamp(1, 2)
    A(sr[PUBN:])
    A("L_a_join:")
    gemm2()

def role_b():
    A(f"L_role_b:\ns_mov_b32 s{sRole}, 1\ns_cmp_ge_u32 s2, 224\ns_cbranch_scc1 L_mv_head")
    gemm1_b()
    stamp(4)
    A("L_b_join:")
    A(f"s_waitcnt vmcnt({10 if PF1 else 2})\nds_write_b128 v{cUw}, {vr(vU,4)}\nds_write_b128 v{cUw}, {vr(vU+4,4)} offset:2048")
    A(f"s_waitcnt vmcnt({0 if PF1 else 2}) lgkmcnt(0)\ns_barrier")
    stamp(5)
    conv()

def mover_body():
    if STUBS: A("L_pad_mv:\ns_branch L_warm_ret0")
    A(f"""
L_mv_head:
    s_sub_u32 s6, s2, 224
    s_lshl_b32 s3, s6, 16
    s_lshl_b32 s4, s{sWN}, 14
    s_add_u32 s3, s3, s4
    s_mul_i32 s4, s{sWN}, {16*UP}
    v_lshlrev_b32 v16, 4, v1
    s_add_u32 s5, s3, 16384
L_mv_ld:
    s_mov_b32 m0, s4
    s_add_u32 s4, s4, {UP}
    buffer_load_dwordx4 v16, s[8:11], s3 offen lds
    s_add_u32 s3, s3, 1024
    s_cmp_lt_u32 s3, s5
    s_cbranch_scc1 L_mv_ld
    global_load_dwordx4 v[128:131], v16, s[58:59]
    v_add_u32 v132, {GWL}, v16
    """)
    common_setup(); conv_setup(); k_setup()
    A("s_waitcnt vmcnt(0)\nds_write_b128 v132, v[128:131]\ns_branch L_mv_common")
    A("L_mv_a:")
    A(f"""
    s_sub_u32 s6, s2, 224
    s_lshl_b32 s3, s6, 2
    s_add_u32 s3, s3, s{sW}
    s_mul_i32 s3, s3, 22
    v_add_u32 v16, s3, v1
    s_add_u32 s3, s6, 2816
    v_mov_b32 v17, s3
    v_cmp_gt_u32 vcc, 22, v1
    s_getpc_b64 s[4:5]
L_pc:
    s_sub_u32 s4, s4, L_pc - {KNAME}
    s_subb_u32 s5, s5, 0
    v_cndmask_b32 v16, v17, v16, vcc
    v_lshlrev_b32 v16, 7, v16
    v_add_u32 v16, {WS_FLAG}, v16
    buffer_store_dword v{vZero}, v16, s[20:23], 0 offen sc1
    v_lshlrev_b32 v16, 7, v0
    v_min_u32 v16, L_exit - {KNAME}, v16
    global_load_dword v74, v16, s[4:5]
    s_waitcnt vmcnt(2)
    s_branch L_a_k2
L_mv_a2:
    s_waitcnt vmcnt(0)
    s_mov_b64 exec, 1
    global_atomic_add v{vZero}, v{cOne}, s[62:63] sc1
    s_mov_b64 exec, -1
    """)
    A(f"""
L_mv_common:
    s_sub_u32 s{sMov}, s2, 224
    v_and_b32 v2, 15, v1
    v_lshrrev_b32 v3, 4, v1
    v_lshlrev_b32 v16, 4, v3
    v_lshrrev_b32 v17, 2, v1
    v_and_b32 v17, 3, v17
    v_lshl_add_u32 v17, v3, 3, v17
    v_mul_u32_u24 v17, {UP}, v17
    v_and_b32 v18, 3, v1
    v_lshl_add_u32 v17, v18, 3, v17
    s_lshl_b32 s4, s{sW}, 7
    v_add_u32 v17, s4, v17
    s_lshl_b32 s3, s{sW}, 18
    s_lshl_b32 s4, s{sMov}, 11
    s_add_u32 s3, s3, s4
    s_add_u32 s3, s3, {WS_UT}
    v_lshlrev_b32 v18, 6, v2
    v_lshl_add_u32 v18, v3, 4, v18
    s_lshr_b32 s7, s{sMov}, 3
    s_mul_i32 s7, s7, {448*1024}
    s_lshl_b32 s4, s{sW}, 13
    s_add_u32 s7, s7, s4
    s_add_u32 s7, s7, {192*1024}
    v_lshlrev_b32 v19, 7, v1
    s_waitcnt lgkmcnt(0)
    s_barrier
    """)
    stamp(3)
    if MG2:
        A(f"""
        s_lshl_b32 s4, s{sMov}, 3
        s_add_u32 s4, s4, s{sW}
        s_mul_i32 s4, s4, 7168
        v_min_u32 v4, {55*128}, v19
        buffer_load_dword v47, v4, s[68:71], s4 offen
        """)
    for q in range(4):
        b = 200 + 8*q
        A(f"""
        ds_read_b64_tr_b16 {vr(b,2)}, v17 offset:{32*q}
        ds_read_b64_tr_b16 {vr(b+2,2)}, v17 offset:{32*q + 4*UP}
        ds_read_b64_tr_b16 {vr(b+4,2)}, v17 offset:{32*q + 32*UP}
        ds_read_b64_tr_b16 {vr(b+6,2)}, v17 offset:{32*q + 36*UP}
        """)
    for q in range(4):
        b = 200 + 8*q
        A(f"""
        s_waitcnt lgkmcnt({12 - 4*q})
        buffer_store_dwordx4 {vr(b,4)}, v18, s[20:23], s3 offen sc1
        buffer_store_dwordx4 {vr(b+4,4)}, v18, s[20:23], s3 offen offset:1024 sc1
        s_add_u32 s3, s3, 65536
        """)
    A(f"""
    s_cmp_eq_u32 s{sRole}, 0
    s_cbranch_scc1 L_mv_nogate
    s_mul_i32 s4, s{sWN}, {16*UP}
    v_mul_u32_u24 v17, {UP}, v2
    v_add_u32 v17, v17, v16
    v_add_u32 v17, s4, v17
    """)
    GF = [32 + 4*i for i in range(3)] + [92 + 4*i for i in range(9)] + [192, 196, 232, 236]
    A(f"v_add_u32 v4, {GWL}, v16")
    for i in range(16):
        A(f"ds_read_b128 {vr(GF[i],4)}, v17 offset:{64*i}")
        A(f"ds_read_b128 {vr(128+4*i,4)}, v4 offset:{64*i}")
    A("s_waitcnt lgkmcnt(0)")
    for i in range(16):
        c = "0" if i < 2 else vr(24+4*(i&1), 4)
        A(f"v_mfma_f32_16x16x32_bf16 {vr(24+4*(i&1),4)}, {vr(GF[i],4)}, {vr(128+4*i,4)}, {c}")
    A(f"""
    s_lshl_b32 s3, s{sMov}, 2
    s_add_u32 s3, s3, s{sWN}
    s_lshl_b32 s3, s3, 6
    s_add_u32 s3, s3, {WS_G}
    s_nop 5
    """)
    for r in range(4): A(f"v_add_f32 v{24+r}, v{24+r}, v{28+r}")
    for r in range(4): A(f"v_cvt_pk_bf16_f32 v{24+r}, 0, v{24+r}")
    for r in range(4): A(f"v_mul_f32 v{24+r}, {fbits(-L2E)}, v{24+r}")
    for r in range(4): A(f"v_exp_f32 v{24+r}, v{24+r}")
    A("s_nop 0")
    for r in range(4): A(f"v_add_f32 v{24+r}, 1.0, v{24+r}")
    for r in range(4): A(f"v_rcp_f32 v{24+r}, v{24+r}")
    A("s_nop 0")
    for r in range(4): A(f"v_cvt_pk_bf16_f32 v{24+r}, 0, v{24+r}")
    for r in range(4): A(f"v_sub_f32 v{28+r}, 1.0, v{24+r}")
    for r in range(4): A(f"v_cvt_pk_bf16_f32 v{24+r}, v{24+r}, v{28+r}")
    A(f"""
    v_cmp_eq_u32 vcc, 0, v2
    s_and_saveexec_b64 s[4:5], vcc
    buffer_store_dwordx4 v[24:27], v16, s[20:23], s3 offen sc1
    s_mov_b64 exec, s[4:5]
    """)
    A(k_reads())
    A(f"""
L_mv_nogate:
    s_waitcnt vmcnt(0) lgkmcnt(0)
    s_barrier
    s_cmp_eq_u32 s{sRole}, 0
    s_cbranch_scc0 L_mv_b2
    """)
    stamp(4)
    if MGT:
        A(f"""
        s_and_b32 s3, s{sMov}, 7
        s_lshl_b32 s3, s3, 2
        s_add_u32 s3, s3, s{sW}
        s_mul_i32 s3, s3, 6144
        s_lshr_b32 s4, s{sMov}, 3
        s_mul_i32 s4, s4, {448*1024}
        s_add_u32 s3, s3, s4
        v_min_u32 v17, {47*128}, v19
        buffer_load_dword v47, v17, s[68:71], s3 offen
        """)
    A("s_barrier")
    A(f"s_and_b32 s4, s{sMov}, 3\ns_lshl_b32 s4, s4, 15")
    for i in range(2*MROWS):
        A(f"s_add_u32 s3, s7, s4\nbuffer_load_dword v47, v19, s[68:71], s3 offen\ns_add_u32 s4, s4, 32768\ns_cmp_ge_u32 s4, {2*MROWS*32768}\ns_cselect_b32 s4, 0, s4")
    A("s_barrier")
    red_reads(); A(stage_reads(G1 + G2))
    stamp(5)
    A(f"""
    s_branch L_a_join
L_mv_b2:
    s_cmp_eq_u32 s{sW}, 4
    s_cbranch_scc0 L_mv_nosig
    s_mov_b64 exec, 1
    global_atomic_add v40, v{vZero}, v{cOne}, s[62:63] offset:128 sc0 sc1
    s_mov_b64 exec, -1
    {LD_INIT}
    s_waitcnt vmcnt(0)
    v_readfirstlane_b32 s3, v40
    v_and_b32 v17, 31, v1
    v_lshlrev_b32 v17, 7, v17
    v_add_u32 v17, {WS_FLAG3}, v17
    s_and_b32 s3, s3, 31
    s_cmp_eq_u32 s3, 31
    s_cbranch_scc0 L_pi2
    buffer_store_dword v{cOne}, v17, s[20:23], 0 offen sc1
    """)
    poll("L_pi2", 128, LD_INIT)
    A("L_mv_nosig:")
    stamp(4)
    for sig in range(6): A(d_dma(sig))
    for i in range(4): A(d_piece(12 + i, 24 + i))
    A(k_mfma()); A(k_write())
    A("s_waitcnt lgkmcnt(0)\ns_barrier")
    A(LD_MV)
    A(k_gather()); A("s_waitcnt lgkmcnt(0)"); A(k_pack())
    A(f"s_mov_b64 exec, 1\nds_add_u32 v{cCnt}, v{cOne}\ns_mov_b64 exec, -1\ns_waitcnt vmcnt(0)")
    poll_movers("L_pm2")
    conv_loads()
    A("s_waitcnt vmcnt(0)\ns_branch L_b_join")

def lds_sync(label, target):
    A(f"""
    s_mov_b64 exec, 1
    s_waitcnt lgkmcnt(0)
    ds_add_u32 v{cCnt}, v{cOne}
{label}:
    ds_read_b32 v2, v{cCnt}
    s_waitcnt lgkmcnt(0)
    v_cmp_gt_u32 vcc, {target}, v2
    s_cbranch_vccz {label}_go
    s_sub_u32 s{sSpin}, s{sSpin}, 1
    s_cbranch_scc0 {label}
{label}_go:
    s_mov_b64 exec, -1
    """)

def conv():
    FA = [96, 160]; FB = [128, 192]; ACC = 16
    def reads(rr):
        fs = rr & 1; ra = []; rb = []
        for i in range(8):
            o = (512*(1 - (i & 1)) + 64*(3 - rr)) // 4
            rb.append(f"ds_read_b128 {vr(FB[fs]+4*i,4)}, v{cB} offset:{512*i + 64*(3-rr)}")
            ra.append(f"ds_read2_b32 {vr(FA[fs]+4*i,2)}, v{cA[i>>1]} offset0:{o} offset1:{o+1}")
            ra.append(f"ds_read2_b32 {vr(FA[fs]+4*i+2,2)}, v{cA[i>>1]} offset0:{o+2} offset1:{o+3}")
        return ra, rb
    ra, rb = reads(0)
    b2 = []
    A(ra[0:2] + rb + ra[2:])
    A("s_barrier")
    A("s_setprio 2")
    stamp(6)
    cnt = 0
    pad("cv0")
    U = 128; D = 136; Y = 96; P = 160
    for rr in range(4):
        fs = rr & 1
        A("s_waitcnt lgkmcnt(14)" if rr == 0 else "s_waitcnt lgkmcnt(0)")
        if rr < 3:
            ra, rb = reads(rr+1); fill = rb + ra
        else:
            fill = [f"ds_read_b64 {vr(U,2)}, v{cUr}", f"ds_read_b64 {vr(U+2,2)}, v{cUr} offset:2048",
                    f"ds_read_b64 {vr(U+4,2)}, v{cUr} offset:{CH}", f"ds_read_b64 {vr(U+6,2)}, v{cUr} offset:{CH+2048}"]
        for i in range(8):
            if rr == 0 and i == 1: A("s_waitcnt lgkmcnt(0)")
            for t in range(i, 8):
                c = "0" if (rr == 0 and i == 0) else vr(ACC+4*t, 4)
                A(f"v_mfma_f32_16x16x32_bf16 {vr(ACC+4*t,4)}, {vr(FA[fs]+4*i,4)}, {vr(FB[fs]+4*(t-i),4)}, {c}")
                if fill and not (rr == 0 and i == 0): A(fill.pop(0))
                cnt += 1
                if b2 and cnt % B2W == 0: A(b2.pop(0))
            if rr == 3 and 2 <= i <= 4:
                A(f"ds_write_b128 v{cRw}, {vr(ACC+4*(i-2),4)} offset:{1024*(i-2)}")
        assert not fill
        if rr == 1: pad("cv1")
    assert not b2
    stamp(7)
    A("s_waitcnt vmcnt(0) lgkmcnt(3)")
    ud = []
    for k in range(8):
        d = D + 2*k
        if k & 1: ud += [f"v_and_b32 v{d}, 0xffff0000, v{U+k//2}", f"v_and_b32 v{d+1}, 0xffff0000, v{U+4+k//2}"]
        else: ud += [f"v_lshlrev_b32 v{d}, 16, v{U+k//2}", f"v_lshlrev_b32 v{d+1}, 16, v{U+4+k//2}"]
    A(ud[:8])
    for t in range(3, 8):
        A(f"ds_write_b128 v{cRw}, {vr(ACC+4*t,4)} offset:{1024*t}")
    A(ud[8:])
    for k in range(8): A(f"v_lshlrev_b32 v{vG+k}, 16, v{vG+k}")
    A(f"s_lshl_b32 s30, s{sDsk}, 16\ns_and_b32 s31, s{sDsk}, 0xffff0000")
    lds_sync("L_cv_s2", 8)
    for q in range(4):
        A(f"ds_read_b128 {vr(P+8*q,4)}, v{cRr} offset:{8192*q}")
        A(f"ds_read_b128 {vr(P+4+8*q,4)}, v{cRr} offset:{8192*q + 4096}")
    for k in range(8):
        d = D + 2*k
        A(f"v_mul_f32 v{d}, s30, v{d}\nv_mul_f32 v{d+1}, s31, v{d+1}")
    A("s_waitcnt lgkmcnt(4)")
    for k in range(8): A(f"v_add_f32 v{D+2*k}, v{D+2*k}, v{P+k}")
    for k in range(8): A(f"v_add_f32 v{D+2*k}, v{D+2*k}, v{P+8+k}")
    A("s_waitcnt lgkmcnt(0)")
    for k in range(8): A(f"v_add_f32 v{D+2*k+1}, v{D+2*k+1}, v{P+16+k}")
    for k in range(8): A(f"v_add_f32 v{D+2*k+1}, v{D+2*k+1}, v{P+24+k}")
    for k in range(8):
        A(f"v_mul_f32 v{D+2*k}, v{vG+k}, v{D+2*k}\nv_mul_f32 v{D+2*k+1}, v{vG+k}, v{D+2*k+1}")
    for k in range(8):
        A(f"v_cvt_pk_bf16_f32 v{Y+k}, v{D+2*k}, v{D+2*k+1}")
    A(f"""
    buffer_store_dwordx4 {vr(Y,4)}, v{cS0}, s[20:23], s{sCga} offen sc1
    buffer_store_dwordx4 {vr(Y+4,4)}, v{cS1}, s[20:23], s{sCga} offen sc1
    s_mov_b64 exec, 1
    """)
    stamp(8)
    A(f"""
    s_waitcnt vmcnt(0)
    buffer_store_dword v{cOne}, v{vZero}, s[20:23], s{sCfl} offen sc1
    """)
    stamp_flush()
    A("s_endpgm")

def gemm2():
    ACC = 192
    sH = [sH0, sH1]
    A("s_waitcnt lgkmcnt(0)\ns_barrier\ns_setprio 1")
    stamp(3, 2)
    vm = Cnt("vmcnt", 63); lg = Cnt("lgkmcnt", 15)
    def wd_dma(k, kap):
        A(f"s_add_u32 m0, s{sLds}, {16384*(kap >> 1) + 2048*(kap & 1)}\ns_add_u32 s3, s{sWd}, {k*16384}")
        vm.issue(("w", k), f"buffer_load_dwordx4 v{gX[0]}, s[68:71], s3 offen lds")
        vm.issue(("w", k), f"buffer_load_dwordx4 v{gX[1]}, s[68:71], s3 offen offset:1024 lds")
    ks = G1 + G2
    def refill(k): A([x.replace(f"v{vDo[0]}", f"v{gX[0]}").replace(f"v{vDo[1]}", f"v{gX[1]}") for x in d_piece(k, k + 12)])
    for k in ks: refill(k)
    pad("g20")
    A(f"""
s_mov_b64 exec, 0x3fff
L_g2_hpoll:
    buffer_load_dword v2, v{gFl}, s[20:23], s{sFl} offen sc1
    s_waitcnt vmcnt(0)
    v_cmp_eq_u32 vcc, 0, v2
    s_cbranch_vccz L_g2_hready
    s_mov_b64 exec, vcc
    s_sleep {SLP}
    s_sub_u32 s{sSpin}, s{sSpin}, 1
    s_cbranch_scc0 L_g2_hpoll
L_g2_hready:
    s_mov_b64 exec, -1
    """)
    vm.ops = []
    stamp(6)
    free = [16 + 4*i for i in range(8)] + [176 + 4*i for i in range(4)]
    hreg = {}; wreg = {k: (STG[k], STG[k] + 4) for k in STG}
    nxt = [0]; wnx = [12]; rd = {}
    def h_issue(kc, n=99):
        while n > 0 and free and nxt[0] < 56 and (nxt[0] >> 1) < kc + min(HDMAX, HD + kc):
            n -= 1
            k, tt = nxt[0] >> 1, nxt[0] & 1
            r = free.pop(0); hreg[(k, tt)] = r
            vm.issue(("h", k), f"buffer_load_dwordx4 {vr(r,4)}, v{gL16}, s[20:23], s{sH[tt]} offen offset:{(k & 3)*1024} sc1")
            if (k & 3) == 3: A(f"s_add_u32 s{sH[tt]}, s{sH[tt]}, 4096")
            nxt[0] += 1
    if HT:
        A(f"""
        v_and_b32 v2, 31, v1
        v_min_u32 v2, {28 - HD - 1}, v2
        v_lshlrev_b32 v2, 10, v2
        v_lshrrev_b32 v3, 5, v1
        v_mul_u32_u24 v3, {112*1024}, v3
        v_add_u32 v2, v2, v3
        s_min_u32 s3, s{sH0}, s{sH1}
        s_lshl_b32 s4, s{sJ}, 7
        s_add_u32 s3, s3, s4
        s_add_u32 s{sT}, s3, {HD*1024}
        """)
    h_issue(0)
    if HT: vm.issue("t", f"buffer_load_dword v2, v2, s[20:23], s{sT} offen sc1")
    A(f"""
    v_and_b32 v{gFl}, 15, v1
    v_lshlrev_b32 v{gFl}, 9, v{gFl}
    s_lshl_b32 s{sFl}, s{sD}, 13
    s_lshr_b32 s4, s{sTok}, 3
    s_and_b32 s4, s4, 3
    s_lshl_b32 s4, s4, 7
    s_add_u32 s{sFl}, s{sFl}, s4
    s_add_u32 s{sFl}, s{sFl}, {WS_FLAG2}
    v_and_b32 v{gT}, 31, v1
    v_lshlrev_b32 v14, 2, v{gT}
    s_lshl_b32 s4, s{sTok}, 7
    s_add_u32 s5, s4, {WS_G}
    v_lshrrev_b32 v15, 5, v1
    v_lshl_add_u32 v3, v15, 15, v14
    s_lshl_b32 s6, s{sD}, 17
    s_add_u32 s6, s6, s4
    s_add_u32 s6, s6, {WS_GA}
    v_lshlrev_b32 v{gT}, 10, v{gT}
    v_lshl_add_u32 v{gT}, v15, 4, v{gT}
    s_lshl_b32 s7, s{sTok}, 15
    s_lshl_b32 s4, s{sD}, 6
    s_add_u32 s7, s7, s4
    s_mov_b32 s12, s60
    s_mov_b32 s13, s61
    s_mov_b32 s14, 0x200000
    v_add_u32 v15, s{sLds}, v{gL16}
    """)
    GA = None
    for k in range(28):
        pre = []
        vm.wait({("h", k)})
        if k in (0, 8, 12, 18): stamp({0: 1, 8: 2, 12: 3, 18: 4}[k], 1)
        lg.wait({("w", k)})
        if k >= WLA and wnx[0] < 24:
            kn = wnx[0]; wnx[0] += 1
            wreg[kn] = (free.pop(), free.pop())
            pre = [(("w", kn), x) for x in wd_reads(kn - 12, *wreg[kn])]
        lw = []
        for n, (dd, tt) in enumerate(((0,0),(0,1),(1,0),(1,1))):
            c = "0" if k == 0 else vr(ACC+16*(2*dd+tt), 16)
            A(f"v_mfma_f32_32x32x16_bf16 {vr(ACC+16*(2*dd+tt),16)}, {vr(wreg[k][dd],4)}, {vr(hreg[(k,tt)],4)}, {c}")
            if HIL and n in (0, 2): h_issue(k + 1, 1)
            if n in (1, 3) and lw:
                kl, t = lw.pop(0); vm.issue(("w", kl), t)
            if pre: lg.issue(*pre.pop(0))
        free += [hreg[(k,0)], hreg[(k,1)], wreg[k][0], wreg[k][1]]
        h_issue(k + 1)
        if k == 12: pad("g21")
        if k == 20: vm.issue("f", f"buffer_load_dword v2, v{gFl}, s[20:23], s{sFl} offen sc1")
        if k == 24:
            stamp(7)
            A(f"""
            s_waitcnt vmcnt(0)
L_g2_poll:
            v_cmp_eq_u32 vcc, 0, v2
            s_cbranch_vccz L_g2_ready
            s_sub_u32 s{sSpin}, s{sSpin}, 1
            s_cbranch_scc1 L_g2_ready
            s_mov_b64 exec, vcc
            s_sleep {SLP}
            buffer_load_dword v2, v{gFl}, s[20:23], s{sFl} offen sc1
            s_waitcnt vmcnt(0)
            s_branch L_g2_poll
            """)
            pad("g22", inline=False)
            A("L_g2_ready:\ns_mov_b64 exec, -1")
            vm.ops = []
            fr = sorted(free)
            GA = next(r for r in fr if r + 4 in fr and r >= 96)
            free.remove(GA); free.remove(GA + 4)
            A("buffer_load_dword v4, v14, s[20:23], s5 offen sc1")
            for m in range(8):
                A(f"buffer_load_dword v{GA+m}, v3, s[20:23], s6 offen sc1")
                if m < 7: A(f"s_add_u32 s6, s6, {8192 if (m & 3) != 3 else 5*8192}")
    assert wnx[0] == 24
    stamp(8)
    A(f"""
    v_xor_b32 v8, 0x1000, v15
    v_xor_b32 v9, 0x2000, v15
    v_xor_b32 v10, 0x3000, v15
    s_nop 6
    """)
    for x in range(1, 4):
        for i in range(4):
            A(f"ds_write_b128 v15, {vr(ACC+16*x+4*i,4)} offset:{(x-1)*16384 + 1024*i}")
    A("s_waitcnt vmcnt(0)\nv_and_b32 v4, 0xffff0000, v4")
    for p in range(8):
        A(f"v_lshlrev_b32 v{80+2*p}, 16, v{GA+p}\nv_and_b32 v{81+2*p}, 0xffff0000, v{GA+p}")
    A("s_waitcnt lgkmcnt(0)\ns_barrier")
    for x in range(3):
        for i in range(4):
            A(f"ds_read_b128 {vr(32+16*x+4*i,4)}, v{8+x} offset:{x*16384 + 1024*i}")
    for x in range(3):
        A(f"s_waitcnt lgkmcnt({8 - 4*x})")
        for p in range(8):
            A(f"v_pk_add_f32 {vr(ACC+2*p,2)}, {vr(ACC+2*p,2)}, {vr(32+16*x+2*p,2)}")
    for p in range(8):
        A(f"v_pk_fma_f32 {vr(32+2*p,2)}, {vr(ACC+2*p,2)}, v[4:5], {vr(80+2*p,2)} op_sel_hi:[1,0,1]")
    for p in range(8):
        A(f"v_cvt_pk_bf16_f32 v{24+p}, v{32+2*p}, v{33+2*p}")
    A(f"""
    buffer_store_dwordx4 v[24:27], v{gT}, s[12:15], s7 offen
    buffer_store_dwordx4 v[28:31], v{gT}, s[12:15], s7 offen offset:32
    """)
    stamp_flush()
    A("s_endpgm")

def main():
    order = [[None]*4 + ["rb", "tb0", "tb1", "su"],
             [None]*4 + ["lp", "rb1", "rb2", "g1b"],
             ["ea0", "ea1", "g20", "g21"],
             [None]*4 + ["kf", "cv0", "cv1", "g22"]]
    for r, names in enumerate(order):
        for w, n in enumerate(names):
            if n: PLAN[n] = (r, w)
    A('.amdgcn_target "amdgcn-amd-amdhsa--gfx950"\n.text')
    A(f".globl {KNAME}\n.p2align 12\n.type {KNAME},@function\n{KNAME}:")
    if STAMP:
        for i in range(NST): A(f"s_mov_b32 s{80+2*i}, 0")
    stamp(0)
    A("s_cmp_ge_u32 s2, 256\ns_cbranch_scc1 L_exit")
    prologue()
    role_a()
    pad("rb", inline=False)
    role_b()
    mover_body()
    A("L_exit:\n    s_endpgm")
    assert not STUBS or set(PADS) == set(PLAN), set(PLAN) - set(PADS)
    A(f""".section .rodata,"a"
.p2align 6
.amdhsa_kernel {KNAME}
  .amdhsa_next_free_vgpr 256
  .amdhsa_next_free_sgpr 102
  .amdhsa_accum_offset 256
  .amdhsa_group_segment_fixed_size 0
  .amdhsa_kernarg_size 136
  .amdhsa_user_sgpr_count 2
  .amdhsa_user_sgpr_kernarg_segment_ptr 1
  .amdhsa_system_sgpr_workgroup_id_x 1
.end_amdhsa_kernel""")
    open(sys.argv[1], "w").write(HEADER + "\n".join(L) + "\n")

main()
```

```python
import sys, struct, math

OPTS = dict(a.split("=") for a in sys.argv[2:])
def opt(name, dflt): return int(OPTS.get(name, dflt))
STAMP = opt("stamp", 0); SS = opt("ss", 0)
T2 = opt("t2", 1); CT = opt("ct", 1); HD = opt("hd", 5); MROWS = opt("mrows", 2); HIL = opt("hil", 1); WLA = opt("wla", 8); E1 = opt("e1", 0); NSL = opt("nsl", 4); TPOS = opt("tpos", 50); MG2 = opt("mg2", 0); LW = opt("lw", 0); PUBN = opt("pubn", 12); TLB = opt("tlb", 0); CST = opt("cst", 0); RS = opt("rs", 5); AW = opt("aw", 0); GWL = 64*1056; PS = opt("ps", 14); PF1 = opt("pf1", 1); SLP = opt("slp", 2); WSB = opt("wsb", 0); ENC = opt("enc", -1); ENCWG = opt("encwg", 100); ENCW = opt("encw", 0); PRE_ST = opt("prest", 0); PRE = opt("pre", 1); HDMAX = opt("hdmax", 8); AGT = opt("agt", 1); BLT = opt("blt", 0); BLS = opt("bls", 6); PPRIO = opt("pprio", 0); MGT = opt("mgt", 0)
SPIN = opt("spin", 0x40000); STUBS = opt("stubs", 1); NOFILL = opt("nofill", 0); PKT = opt("pkt", 1)
APRIO = opt("aprio", 1); BPRIO = opt("bprio", 0); EPRIO = opt("eprio", 2); B2W = opt("b2w", 4); KDYN = opt("kdyn", 6); B2A = opt("b2a", 1); HT = opt("ht", 0); W3E = opt("w3e", 0); MT = opt("mt", 2)
KNAME = "gated_mix__ssm_conv_s4__geglu_ffn__prompt_kernel"

WS_H, WS_UT, WS_GA = 0x0, 0x700000, 0x900000
WS_G, WS_FLAG, WS_STAMP = 0xB00000, 0xB08000, 0x1400000
WS_FLAG2 = WS_FLAG + 1792*128
WS_FLAG3 = WS_FLAG + 2816*128
WS_BYTES = 0x10000000
OOB = 0x40000000

XB = 65536
TB = 98304
PITCH = 528
KD = TB + 2*57*PITCH
CH = 12928
UOFF = 8320
RED = TB + 2*CH
CNT = KD + 3072
assert CNT + 8 <= 163840 and RED + 32768 <= KD and RED % 16 == 0
UP = 1056
L2E = math.log2(math.e)
WSTEP = 32*3584

L = []
def lines(s): return [x.strip() for x in s.strip("\n").split("\n") if x.strip()]
def A(s):
    if isinstance(s, (list, tuple)): s = "\n".join(s)
    for line in lines(s):
        L.append(line if line.endswith(":") or line.startswith(".") else "    " + line)
def fbits(x): return "0x%08x" % struct.unpack("<I", struct.pack("<f", x))[0]
def vr(b, n): return f"v[{b}:{b+n-1}]"
def srd(base, size): A(f"s_mov_b32 s{base+2}, {size:#x}\ns_mov_b32 s{base+3}, 0x00020000")

NST = 9
def stamp(idx, ss=0):
    if ENC >= 0:
        if ss == 0 and idx in (0, ENC): A(f"s_memrealtime s[{80+2*idx}:{81+2*idx}]\ns_waitcnt lgkmcnt(0)")
        return
    if STAMP and (ss == SS or (ss == 0 and not (SS in (3, 4, 5) and idx in (1, 2, 6, 7, 8)) and not (SS == 1 and idx in (1, 2, 3, 4)) and not (SS == 2 and idx in (1, 2, 3)))):
        A(f"s_memrealtime s[{80+2*idx}:{81+2*idx}]\ns_waitcnt lgkmcnt(0)")
ENCN = [0]
def stamp_flush():
    if ENC >= 0:
        ENCN[0] += 1; n = ENCN[0]
        A(f"""
        s_cmp_eq_u32 s2, {ENCWG}
        s_cbranch_scc0 L_enc_end{n}
        s_cmp_eq_u32 s{sW}, {ENCW}
        s_cbranch_scc0 L_enc_end{n}
        s_waitcnt vmcnt(0) lgkmcnt(0)
        s_memrealtime s[98:99]
        s_waitcnt lgkmcnt(0)
        s_sub_u32 s3, s{80+2*ENC}, s80
        s_and_b32 s3, s3, 0xfff
        s_lshl_b32 s3, s3, 3
        s_add_u32 s3, s3, s98
L_enc_spin{n}:
        s_memrealtime s[4:5]
        s_waitcnt lgkmcnt(0)
        s_sub_u32 s6, s4, s3
        s_cmp_lt_i32 s6, 0
        s_cbranch_scc1 L_enc_spin{n}
L_enc_end{n}:
        """)
        return
    if not STAMP: return
    A(f"""
    s_waitcnt vmcnt(0) lgkmcnt(0)
    s_memrealtime s[{80+2*NST}:{81+2*NST}]
    s_waitcnt lgkmcnt(0)
    s_mov_b64 exec, -1
    v_lshrrev_b32 v1, 6, v0
    s_lshl_b32 s3, s2, 3
    v_add_u32 v1, s3, v1
    v_lshlrev_b32 v1, 6, v1
    v_add_u32 v1, {0xC00000 if WSB else WS_STAMP}, v1
    """)
    for i in range(12): A(f"v_mov_b32 v{4+i}, s{80+2*min(i, NST)}")
    A(f"""
    v_and_b32 v2, 63, v0
    v_cmp_eq_u32 vcc, 0, v2
    s_and_saveexec_b64 s[4:5], vcc
    buffer_store_dwordx4 v[4:7], v1, s[20:23], 0 offen
    buffer_store_dwordx4 v[8:11], v1, s[20:23], 0 offen offset:16
    buffer_store_dwordx4 v[12:15], v1, s[20:23], 0 offen offset:32
    """)

HEADER = f"""; gated mix of an S4 long convolution and a GeGLU FFN, one launch, one workgroup per CU.
;   woven into it: the SSM kernel K of two channels (factor tables, K = P Q by MFMA, expansion)
; @launch grid=(256,1,1) block=(512,1,1) lds=163840
"""

PADS = {}
PLAN = {}
def pad(name, inline=True):
    if not STUBS or name not in PLAN: return
    r, w = PLAN[name]
    if inline: A(f"s_branch L_skip_{name}")
    A(f"L_pad_{name}:\ns_branch L_warm_ret{r}")
    if inline: A(f"L_skip_{name}:")
    PADS[name] = PLAN[name]
def warm(r):
    if not STUBS: return
    tgt = {w: n for n, (rr, w) in PLAN.items() if rr == r}
    for w in range(8):
        if w in tgt: A(f"s_cmp_eq_u32 s{sW}, {w}\ns_cbranch_scc1 L_pad_{tgt[w]}")
    A(f"L_warm_ret{r}:")

sW, sXoff, sWoff, sM0W, sM0X, sB1 = 24, 25, 26, 27, 28, 29
sTB, sFB, sWN, sWM, sI, sJ, sMov, sSpin = 32, 33, 36, 37, 38, 39, 40, 42
sHst, sDsk, sHfl, sRole = 43, 48, 49, 100
sTok, sD, sH0, sH1, sLds, sFl, sWd = 50, 51, 52, 53, 64, 65, 66
sCu, sCga, sCfl = 50, 51, 52
sK1, sK2 = 54, 55
sT, sIt, sHfl2, sTch = 41, 30, 31, 29
vTch, vJunk = 253, 254
vXo = [240, 241]; vWo = 242; vDo = [248, 249]
vWr = 75; vXr = [76, 77, 78, 79]
vPoll, vZero, cMv, vTab = 250, 251, 252, 93
FR = [80, 104]; ACC1 = 128
vU, vG = 224, 232
PAR = 120
XA = 48
cKf0, cKf1, cKd0, cKd1, cKd2, cUw, cZ0, cZ1, cImg = 66, 67, 68, 69, 70, 71, 72, 73, 74
cA = [75, 76, 77, 78]; cB, cRw, cRr, cUr, cS0, cS1, cLu0, cLu1, cLg0, cLg1, cT, cCnt, cOne = range(79, 92)
gD = [8, 9, 10, 11]; gX = [12, 13]; gFl, gL16, gT = 5, 6, 7

class Cnt:
    def __init__(self, name, cap): self.ops = []; self.name = name; self.cap = cap
    def note(self, tag): self.ops.append(tag)
    def issue(self, tag, text): A(text); self.ops.append(tag)
    def need(self, tags):
        idx = [i for i, t in enumerate(self.ops) if t in tags]
        if not idx: return None
        n = min(len(self.ops) - 1 - max(idx), self.cap)
        self.ops = self.ops[len(self.ops)-n:] if n else []
        return n
    def wait(self, tags):
        n = self.need(tags)
        if n is not None: A(f"s_waitcnt {self.name}({n})")

def u32(x): return x & 0xffffffff
def x_dma(c):
    o = []
    for part in (1, 0):
        o += [f"s_add_u32 m0, s{sM0X}, {u32((c&1)*16384 - part*8192)}", f"s_add_u32 s{sT}, s{sXoff}, {u32(c*128 - part*65536)}",
              f"buffer_load_dwordx4 v{vXo[0]}, s[8:11], s{sT} offen lds",
              f"buffer_load_dwordx4 v{vXo[1]}, s[8:11], s{sT} offen offset:1024 lds"]
    return o
def w_dma(s):
    o = []
    for part in (1, 0):
        o += [f"s_add_u32 m0, s{sM0W}, {u32((s&3)*16384 - part*8192)}", f"s_add_u32 s{sT}, s{sWoff}, {u32(s*WSTEP - part*16*3584)}",
              f"buffer_load_dwordx4 v{vWo}, s[12:15], s{sT} offen lds",
              f"buffer_load_dwordx4 v{vWo}, s[16:19], s{sT} offen offset:1024 lds"]
    return o
def piece_off(kap): return 16384*(kap >> 1) + 2048*(kap & 1) + (RED - 98304 if kap >= 12 else 0)
def d_piece(kap, k):
    return [f"s_add_u32 m0, s{sLds}, {piece_off(kap)}", f"s_add_u32 s{sT}, s{sWd}, {k*16384}",
            f"buffer_load_dwordx4 v{vDo[0]}, s[68:71], s{sT} offen lds",
            f"buffer_load_dwordx4 v{vDo[1]}, s[68:71], s{sT} offen offset:1024 lds"]
def d_dma(sig): return d_piece(2*sig, 2*sig) + d_piece(2*sig + 1, 2*sig + 1)

def common_setup():
    A(f"""
    v_lshrrev_b32 v16, 4, v1
    v_and_b32 v16, 1, v16
    v_lshlrev_b32 v16, 2, v16
    v_and_b32 v17, 7, v1
    v_xor_b32 v16, v16, v17
    v_lshrrev_b32 v17, 3, v1
    v_lshlrev_b32 v17, 10, v17
    v_lshl_add_u32 v{vDo[0]}, v16, 4, v17
    v_add_u32 v{vDo[1]}, 7168, v{vDo[0]}
    s_mov_b32 s68, s56
    s_mov_b32 s69, s57
    s_mov_b32 s70, {1792*1024}
    s_mov_b32 s71, 0x00020000
    s_lshl_b32 s{sLds}, s{sWN}, 12
    s_mul_i32 s{sWd}, s{sWN}, {28*16384}
    s_lshl_b32 s4, s{sJ}, 7
    s_add_u32 s{sWd}, s{sWd}, s4
    s_mov_b32 s{sSpin}, {SPIN}
    """)

def g1_setup():
    A(f"""
    v_lshrrev_b32 v16, 2, v1
    v_and_b32 v16, 3, v16
    v_xor_b32 v17, s{sWN}, v16
    v_lshlrev_b32 v{vWr}, 8, v16
    v_lshl_add_u32 v{vWr}, v17, 6, v{vWr}
    v_lshrrev_b32 v16, 5, v1
    v_lshl_add_u32 v{vWr}, v16, 12, v{vWr}
    v_and_b32 v17, 16, v1
    v_lshlrev_b32 v18, 1, v17
    v_and_b32 v17, 1, v1
    v_lshl_add_u32 v18, v17, 4, v18
    v_and_b32 v17, 2, v1
    v_lshl_add_u32 v18, v17, 2, v18
    v_add_u32 v{vWr}, v{vWr}, v18
    v_lshrrev_b32 v17, 1, v1
    v_and_b32 v17, 7, v17
    v_xor_b32 v17, v17, v16
    v_and_b32 v{vXr[0]}, 31, v1
    v_lshlrev_b32 v{vXr[0]}, 7, v{vXr[0]}
    v_lshl_add_u32 v{vXr[0]}, v17, 4, v{vXr[0]}
    v_add_u32 v{vXr[0]}, {XB}, v{vXr[0]}
    v_xor_b32 v{vXr[1]}, 32, v{vXr[0]}
    v_xor_b32 v{vXr[2]}, 64, v{vXr[0]}
    v_xor_b32 v{vXr[3]}, 0x60, v{vXr[0]}
    s_mul_i32 s{sHst}, s{sTB}, 448
    s_lshl_b32 s5, s{sFB}, 2
    s_add_u32 s5, s5, s{sWN}
    s_lshl_b32 s4, s5, 1
    s_add_u32 s{sHst}, s{sHst}, s4
    s_lshl_b32 s{sHst}, s{sHst}, 10
    s_mul_i32 s3, s{sTB}, 112
    s_add_u32 s3, s3, s5
    s_lshl_b32 s3, s3, 7
    s_add_u32 s{sHfl}, s3, {WS_FLAG}
    s_mov_b32 s34, {fbits(-2.0 * L2E * math.sqrt(2.0/math.pi) * 0.044715)}
    s_mov_b32 s35, s34
    s_mov_b32 s{sIt}, 0
    """)

def k_setup():
    CB = 0x4300 - 128
    A(f"""
    v_and_b32 v{cT}, 127, v0
    s_lshr_b32 s6, s{sWN}, 1
    s_and_b32 s7, s{sWN}, 1
    s_mul_i32 s4, s6, {57*PITCH}
    s_add_u32 s4, s4, {TB}
    s_mul_i32 s5, s6, {CH}
    s_add_u32 s5, s5, {TB}
    v_and_b32 v16, 15, v1
    v_lshrrev_b32 v17, 4, v1
    v_mul_u32_u24 v{cKf0}, {PITCH}, v16
    v_lshl_add_u32 v{cKf0}, v17, 4, v{cKf0}
    v_add_u32 v{cKf0}, s4, v{cKf0}
    s_mul_i32 s4, s7, {16*PITCH}
    v_add_u32 v{cKf1}, s4, v{cKf0}
    s_mul_i32 s3, s6, 1536
    s_add_u32 s3, s3, {KD}
    v_lshrrev_b32 v18, 1, v17
    v_and_b32 v19, 1, v17
    v_lshlrev_b32 v24, 7, v18
    v_lshl_add_u32 v24, v19, 2, v24
    v_lshl_add_u32 v24, v16, 3, v24
    v_lshlrev_b32 v25, 6, v17
    v_add_u32 v25, 256, v25
    v_lshl_add_u32 v26, v16, 2, v25
    v_lshl_add_u32 v27, v16, 1, v25
    v_cmp_gt_u32 vcc, 2, v17
    v_mov_b32 v28, 32
    v_lshlrev_b32 v29, 3, v{cT}
    v_cndmask_b32 v26, v27, v26, vcc
    v_cndmask_b32 v28, v28, 2, vcc
    s_cmp_eq_u32 s7, 0
    s_cselect_b64 vcc, -1, 0
    v_sub_u32 v29, 2047, v29
    v_cndmask_b32 v26, v26, v24, vcc
    v_cndmask_b32 v28, v28, 2, vcc
    v_add_u32 v28, v26, v28
    v_lshl_add_u32 v{cKd0}, v26, 1, s3
    v_lshl_add_u32 v{cKd1}, v28, 1, s3
    v_lshl_add_u32 v25, v17, 6, v16
    v_lshl_add_u32 v{cKd2}, v25, 1, s3
    v_cvt_f32_i32 v30, v29
    v_add_u32 v29, {CB}, v29
    v_mov_b32 v31, {128 + CB}
    s_sub_u32 s3, s3, {2*CB}
    """)
    for hh in range(2):
        for e in range(9):
            r = XA + 9*hh + e; d = 1024*hh + e
            A(f"v_subrev_f32 v{r}, {fbits(float(d))}, v30\nv_cvt_pk_bf16_f32 v{r}, v{r}, 0")
            if hh: A(f"v_subrev_u32 v24, {d}, v29\nv_med3_i32 v{r}, v{r}, v24, v31")
            A(f"v_lshl_add_u32 v{r}, v{r}, 1, s3")
    A(f"""
    v_lshl_add_u32 v{cZ0}, v{cT}, 2, s5
    v_and_b32 v{cZ1}, 60, v{cZ0}
    s_mul_i32 s3, s7, 4160
    s_add_u32 s3, s3, s5
    v_add_u32 v{cZ1}, s3, v{cZ1}
    v_lshl_add_u32 v{cImg}, v{cT}, 4, s5
    s_and_b32 s3, s2, 31
    s_lshl_b32 s3, s3, 7
    s_add_u32 s3, s3, {WS_FLAG3}
    v_mov_b32 v{cMv}, s3
    """)

def conv_setup():
    A(f"""
    s_lshr_b32 s6, s{sWN}, 1
    s_and_b32 s7, s{sWN}, 1
    s_mul_i32 s5, s6, {CH}
    s_add_u32 s5, s5, {TB}
    v_and_b32 v16, 15, v1
    v_lshrrev_b32 v17, 4, v1
    v_and_b32 v24, 255, v0
    v_lshlrev_b32 v{cS0}, 4, v24
    v_add_u32 v{cS1}, 4096, v{cS0}
    v_add_u32 v{cLg0}, {WS_G}, v{cS0}
    v_add_u32 v{cLg1}, {WS_G}, v{cS1}
    v_add_u32 v{cRr}, {RED}, v{cS0}
    v_lshrrev_b32 v{cUr}, 1, v{cS0}
    v_add_u32 v{cUr}, {TB + UOFF + 512}, v{cUr}
    v_lshrrev_b32 v25, 3, v24
    v_lshlrev_b32 v{cLu0}, 10, v25
    v_and_b32 v26, 7, v24
    v_lshl_add_u32 v{cLu0}, v26, 4, v{cLu0}
    v_add_u32 v{cLu1}, 32768, v{cLu0}
    v_lshlrev_b32 v{cUw}, 6, v25
    v_and_b32 v26, 3, v24
    v_lshl_add_u32 v{cUw}, v26, 4, v{cUw}
    v_bfe_u32 v26, v24, 2, 1
    v_mul_u32_u24 v26, {CH}, v26
    v_add_u32 v{cUw}, v{cUw}, v26
    v_add_u32 v{cUw}, {TB + UOFF + 512}, v{cUw}
    v_and_b32 v24, 1, v16
    v_xor_b32 v24, 1, v24
    v_mul_u32_u24 v24, 4160, v24
    v_and_b32 v25, 14, v16
    v_lshlrev_b32 v25, 1, v25
    v_sub_u32 v24, v24, v25
    v_lshl_add_u32 v24, v17, 4, v24
    s_lshl_b32 s4, s7, 8
    s_sub_u32 s4, s5, s4
    s_add_u32 s3, s4, {4060 - 512 - 192}
    v_add_u32 v{cA[0]}, s3, v24
    v_subrev_u32 v{cA[1]}, 1024, v{cA[0]}
    v_subrev_u32 v{cA[2]}, 2048, v{cA[0]}
    v_subrev_u32 v{cA[3]}, 3072, v{cA[0]}
    v_lshlrev_b32 v{cB}, 5, v16
    v_lshl_add_u32 v{cB}, v17, 4, v{cB}
    s_add_u32 s3, s4, {UOFF + 480 - 192}
    v_add_u32 v{cB}, s3, v{cB}
    v_lshlrev_b32 v{cRw}, 6, v16
    v_lshl_add_u32 v{cRw}, v17, 4, v{cRw}
    s_lshl_b32 s3, s{sWN}, 13
    s_add_u32 s3, s3, {RED}
    v_add_u32 v{cRw}, s3, v{cRw}
    s_lshr_b32 s{sCu}, s2, 3
    s_lshl_b32 s{sCu}, s{sCu}, 16
    s_and_b32 s3, s2, 7
    s_lshl_b32 s3, s3, 7
    s_add_u32 s{sCu}, s{sCu}, s3
    s_add_u32 s{sCu}, s{sCu}, {WS_UT}
    s_lshl_b32 s{sCga}, s2, 13
    s_add_u32 s{sCga}, s{sCga}, {WS_GA}
    s_lshl_b32 s3, s2, 2
    s_load_dword s{sDsk}, s[78:79], s3
    s_add_u32 s3, s3, s{sWN}
    s_lshl_b32 s3, s3, 7
    s_add_u32 s{sCfl}, s3, {WS_FLAG2}

    """)

def g2_setup():
    A(f"""
    s_and_b32 s6, s{sW}, 1
    s_lshr_b32 s7, s{sW}, 1
    s_lshl_b32 s{sTok}, s{sI}, 1
    s_add_u32 s{sTok}, s{sTok}, s6
    s_lshl_b32 s{sD}, s{sJ}, 1
    s_add_u32 s{sD}, s{sD}, s7
    v_lshrrev_b32 v16, 2, v1
    v_and_b32 v16, 3, v16
    v_lshrrev_b32 v17, 5, v1
    v_lshl_add_u32 v19, v17, 3, v16
    v_lshl_add_u32 v{gD[0]}, v19, 7, v18
    v_lshrrev_b32 v16, 1, v16
    v_xor_b32 v16, s7, v16
    v_lshl_add_u32 v{gD[0]}, v16, 6, v{gD[0]}
    v_add_u32 v{gD[0]}, s{sLds}, v{gD[0]}
    v_xor_b32 v{gD[1]}, 64, v{gD[0]}
    v_add_u32 v{gD[2]}, 0x10000, v{gD[0]}
    v_add_u32 v{gD[3]}, 0x10000, v{gD[1]}
    v_min_u32 v{gFl}, 13, v1
    v_lshlrev_b32 v{gFl}, 7, v{gFl}
    s_lshl_b32 s{sFl}, s{sI}, 2
    s_add_u32 s{sFl}, s{sFl}, s{sW}
    s_mul_i32 s{sFl}, s{sFl}, {14*128}
    s_add_u32 s{sFl}, s{sFl}, {WS_FLAG}
    v_lshlrev_b32 v{gL16}, 4, v1
    s_mul_i32 s3, s{sW}, {28*1024}
    s_mul_i32 s{sH0}, s{sTok}, {112*1024}
    s_xor_b32 s4, s{sTok}, 1
    s_mul_i32 s{sH1}, s4, {112*1024}
    s_add_u32 s{sH0}, s{sH0}, s3
    s_add_u32 s{sH1}, s{sH1}, s3
    """)

def prologue():
    A(f"""
    s_load_dwordx16 s[64:79], s[0:1], 8
    s_load_dwordx2 s[8:9], s[0:1], 0
    s_load_dwordx4 s[12:15], s[0:1], 80
    s_load_dwordx8 s[56:63], s[0:1], 96
    s_load_dwordx2 s[20:21], s[0:1], 128
    v_lshrrev_b32 v2, 6, v0
    v_and_b32 v1, 63, v0
    v_mov_b32 v{vZero}, 0
    v_mov_b32 v{cCnt}, {CNT}
    v_mov_b32 v{cOne}, 1
    ds_write_b32 v{cCnt}, v{vZero}
    v_and_b32 v3, 255, v0
    v_readfirstlane_b32 s{sW}, v2
    s_lshl_b32 s3, s2, 8
    v_add_u32 v3, s3, v3
    v_lshlrev_b32 v3, 1, v3
    v_lshrrev_b32 v4, 7, v3
    v_and_b32 v4, 0xfffffffe, v4
    """)
    if STUBS: A(f"s_cmp_lt_u32 s2, 224\ns_cbranch_scc1 L_warm0\ns_cmp_eq_u32 s{sW}, 4\ns_cbranch_scc1 L_pad_mv\nL_warm0:")
    warm(0)
    A(f"""
    s_and_b32 s{sWN}, s{sW}, 3
    s_lshr_b32 s{sWM}, s{sW}, 2
    s_and_b32 s3, s2, 7
    s_lshr_b32 s4, s2, 3
    s_lshr_b32 s{sTB}, s3, 1
    s_lshl_b32 s{sTB}, s{sTB}, 2
    s_and_b32 s5, s4, 3
    s_add_u32 s{sTB}, s{sTB}, s5
    s_lshl_b32 s{sI}, s3, 2
    s_add_u32 s{sI}, s{sI}, s5
    s_and_b32 s{sFB}, s3, 1
    s_mul_i32 s{sFB}, s{sFB}, 7
    s_lshr_b32 s{sJ}, s4, 2
    s_add_u32 s{sFB}, s{sFB}, s{sJ}
    s_lshl_b32 s{sXoff}, s{sTB}, 17
    s_lshl_b32 s5, s{sW}, 14
    s_add_u32 s{sXoff}, s{sXoff}, s5
    s_mul_i32 s{sWoff}, s{sW}, {4*3584}
    s_lshl_b32 s5, s{sFB}, 8
    s_add_u32 s{sWoff}, s{sWoff}, s5
    s_lshl_b32 s{sM0W}, s{sW}, 11
    s_add_u32 s{sM0X}, s{sM0W}, {XB}
    v_lshrrev_b32 v16, 4, v1
    v_and_b32 v17, 7, v1
    v_xor_b32 v18, v17, v16
    v_lshrrev_b32 v19, 3, v1
    v_lshlrev_b32 v19, 10, v19
    v_lshl_add_u32 v{vXo[0]}, v18, 4, v19
    v_xor_b32 v{vXo[1]}, 64, v{vXo[0]}
    v_add_u32 v{vXo[1]}, 7168, v{vXo[1]}
    v_lshlrev_b32 v17, 2, v16
    v_and_b32 v{vWo}, 15, v1
    v_xor_b32 v{vWo}, v{vWo}, v17
    v_lshlrev_b32 v{vWo}, 4, v{vWo}
    v_mul_u32_u24 v16, 3584, v16
    v_add_u32 v{vWo}, v{vWo}, v16
    s_mov_b32 s10, 0x200000
    s_mov_b32 s11, 0x00020000
    s_mov_b32 s18, {512*1792*2 + 1024}
    s_mov_b32 s19, 0x00020000
    s_mov_b32 s22, {WS_BYTES - (WSB << 20)}
    s_mov_b32 s23, 0x00020000
    s_waitcnt lgkmcnt(0)
    s_add_u32 s20, s20, {WSB << 20}
    s_addc_u32 s21, s21, 0
    s_sub_u32 s16, s14, 1024
    s_subb_u32 s17, s15, 0
    s_mov_b32 s14, {512*1792*2}
    s_mov_b32 s15, 0x00020000
    s_cmp_ge_u32 s{sW}, 4
    s_cbranch_scc1 L_role_b
    """)
    params()

def params():
    for i, p in enumerate((76, 64, 66, 68, 70, 72, 74)):
        A(f"global_load_ushort v{PAR+i}, v{4 if i == 0 else 3}, s[{p}:{p+1}]")

def touches():
    A(f"""
    s_cmp_ge_u32 s2, 224
    s_cbranch_scc1 L_t2_done
    s_cmp_eq_u32 s{sW}, 0
    s_cbranch_scc0 L_t2_w
    v_min_u32 v112, 59, v1
    v_mul_u32_u24 v113, 43, v112
    v_lshrrev_b32 v113, 8, v113
    v_mul_u32_u24 v114, 6, v113
    v_sub_u32 v112, v112, v114
    v_lshlrev_b32 v112, 7, v112
    v_lshl_add_u32 v112, v113, 10, v112
    s_mul_i32 s3, s2, 10240
    s_add_u32 s3, s3, 256
    buffer_load_dword v74, v112, s[8:11], s3 offen
    s_branch L_t2_done
L_t2_w:
    v_min_u32 v112, 55, v1
    v_lshlrev_b32 v112, 7, v112
    s_mul_i32 s3, s2, 7168
    s_add_u32 s3, s3, {2*WSTEP}
    s_cmp_eq_u32 s{sW}, 1
    s_cbranch_scc0 L_t2_u
    buffer_load_dword v74, v112, s[12:15], s3 offen
    s_branch L_t2_done
L_t2_u:
    s_cmp_eq_u32 s{sW}, 2
    s_cbranch_scc0 L_t2_done
    buffer_load_dword v74, v112, s[16:19], s3 offen offset:1024
L_t2_done:
    """)
    if TLB:
        A(f"""
        s_cmp_eq_u32 s{sW}, 3
        s_cbranch_scc0 L_tlb_done
        v_mul_u32_u24 v112, {TLB*1024}, v1
        v_min_u32 v112, 0xC00000, v112
        buffer_load_dword v74, v112, s[20:23], 0 offen sc1
        v_lshlrev_b32 v112, 15, v1
        global_load_dword v74, v112, s[60:61] sc1
L_tlb_done:
        """)
    A("""
    """)

def tab_common(R):
    a, th, dt, t0 = R["a"], R["th"], R["dt"], R["t0"]
    return lines(f"""
    v_lshlrev_b32 v{PAR}, 16, v{PAR}
    v_lshlrev_b32 v{a}, 16, v{PAR+1}
    v_lshlrev_b32 v{th}, 16, v{PAR+2}
    v_mul_f32 v{dt}, s{sK1}, v{PAR}
    v_fma_f32 v{t0}, v{PAR}, s{sK1}, -v{dt}
    v_fma_f32 v{t0}, v{PAR}, s{sK2}, v{t0}
    v_exp_f32 v{dt}, v{dt}
    v_mul_f32 v{t0}, {fbits(math.log(2.0))}, v{t0}
    v_fmac_f32 v{dt}, v{dt}, v{t0}
    v_cvt_pk_bf16_f32 v{dt}, 0, v{dt}
    v_mul_f32 v{a}, v{dt}, v{a}
    v_mul_f32 v{th}, v{dt}, v{th}
    v_mul_f32 v{a}, s{sK1}, v{a}
    v_mul_f32 v{th}, 0.15915494, v{th}
    """)
def cexp(R, e, s, t):
    a, th = R["a"], R["th"]
    o = []
    if s == 1.0: o += [f"v_exp_f32 v{t}, v{a}", f"v_fract_f32 v{t+1}, v{th}"]
    else: o += [f"v_mul_f32 v{t}, {fbits(s)}, v{a}", f"v_mul_f32 v{t+1}, {fbits(s)}, v{th}", f"v_exp_f32 v{t}, v{t}", f"v_fract_f32 v{t+1}, v{t+1}"]
    o += [f"v_cos_f32 v{e}, v{t+1}", f"v_sin_f32 v{e+1}, v{t+1}", f"v_mul_f32 v{e}, v{t}, v{e}", f"v_mul_f32 v{e+1}, v{t}, v{e+1}"]
    return o
def neg(e): return [] if PKT else [f"v_sub_f32 v{e+2}, 0, v{e+1}"]
def cmul(d, a, b):
    if PKT:
        return [f"v_pk_mul_f32 {vr(d,2)}, {vr(a,2)}, {vr(b,2)} op_sel_hi:[0,1]",
                f"v_pk_fma_f32 {vr(d,2)}, {vr(a,2)}, {vr(b,2)}, {vr(d,2)} op_sel:[1,1,0] op_sel_hi:[1,0,1] neg_lo:[0,1,0]"]
    return [f"v_mul_f32 v{d}, v{a}, v{b}", f"v_mul_f32 v{d+1}, v{a}, v{b+1}",
            f"v_fmac_f32 v{d}, v{a+1}, v{b+2}", f"v_fmac_f32 v{d+1}, v{a+1}, v{b}"]
class Putter:
    def __init__(self, base): self.base = base; self.i = 0
    def __call__(self, row, r, ng=False):
        t = self.base + (self.i & 3); self.i += 1
        return [f"v_cvt_pk_bf16_f32 v{t}, v{r}, {'-' if ng else ''}v{r+1}", f"ds_write_b32 v{vTab}, v{t} offset:{row*PITCH}"]
PR = 16
def tables():
    R = dict(a=16, th=17, dt=18, t0=19); put = Putter(108)
    E8, E128, DB, C = 24, 28, 32, 36
    EP = lambda p: 44 + 4*p
    E1 = EP(1)
    o = tab_common(R)
    o += cexp(R, E1, 1.0, 40) + neg(E1) + cexp(R, E128, 128.0, 42) + neg(E128)
    o += ["v_mov_b32 v108, 0x3f80", f"ds_write_b32 v{vTab}, v108 offset:{PR*PITCH}"]; put.i = 1
    o += put(PR + 1, E1) + put(PR + 8, E128)
    o += cexp(R, E8, 8.0, 40) + neg(E8)
    o += lines(f"""
    v_lshlrev_b32 v{DB}, 16, v{PAR+3}
    v_lshlrev_b32 v{DB+1}, 16, v{PAR+4}
    v_lshlrev_b32 v{C}, 16, v{PAR+5}
    v_lshlrev_b32 v{C+1}, 16, v{PAR+6}
    v_mul_f32 v{DB}, v18, v{DB}
    v_mul_f32 v{DB+1}, v18, v{DB+1}
    """) + neg(DB)
    q = [20, 22]; jq = list(range(1, 16)); pp = [0]
    o += cmul(q[0], C, DB) + put(0, q[0], True)
    def do_q():
        i = jq.pop(0); r = cmul(q[1], q[0], E8); q.reverse(); return r + put(i, q[0], True)
    def prod(row, a, b):
        d = 96 + 2*(pp[0] & 3); pp[0] += 1
        return cmul(d, a, b) + put(row, d)
    o += prod(PR + 9, E1, E128)
    for p in range(2, 8):
        o += cmul(EP(p), EP(p-1), E1) + do_q() + put(PR + p, EP(p))
        if p % 2 == 0: o += neg(EP(p))
        o += prod(PR + 8 + p, EP(p), E128)
    cur = E128; nx = 104
    for h in range(2, 17):
        o += cmul(nx, cur, E128); cur, nx = nx, (106 if nx == 104 else 104)
        if h >= 8 and jq: o += do_q()
        if h < 4:
            o += put(PR + 16 + 4*(h-2), cur)
            for p in range(1, 4): o += prod(PR + 16 + 4*(h-2) + p, cur, EP(2*p))
        elif h < 8:
            o += put(PR + 24 + 2*(h-4), cur) + prod(PR + 24 + 2*(h-4) + 1, cur, EP(4))
        else: o += put(PR + 32 + (h-8), cur)
    assert not jq
    return o
KF = [96 + 4*i for i in range(24)]
KA = 192
def k_reads():
    o = []
    for s in range(8):
        o += [f"ds_read_b128 {vr(KF[3*s],4)}, v{cKf0} offset:{64*s}",
              f"ds_read_b128 {vr(KF[3*s+1],4)}, v{cKf1} offset:{16*PITCH+64*s}",
              f"ds_read_b128 {vr(KF[3*s+2],4)}, v{cKf0} offset:{48*PITCH+64*s}"]
    return o
def k_mfma():
    o = []
    for s in range(8):
        o += [f"v_mfma_f32_16x16x32_bf16 {vr(KA,4)}, {vr(KF[3*s+1],4)}, {vr(KF[3*s],4)}, {'0' if s == 0 else vr(KA,4)}",
              f"v_mfma_f32_16x16x32_bf16 {vr(KA+4,4)}, {vr(KF[3*s+2],4)}, {vr(KF[3*s],4)}, {'0' if s == 0 else vr(KA+4,4)}"]
    return o + ["s_nop 7"]
def k_write():
    return lines(f"""
    v_cvt_pk_bf16_f32 v34, v{KA}, v{KA+1}
    v_cvt_pk_bf16_f32 v35, v{KA+2}, v{KA+3}
    v_cvt_pk_bf16_f32 v36, v{KA+4}, v{KA+5}
    v_cvt_pk_bf16_f32 v37, v{KA+6}, v{KA+7}
    ds_write_b32 v{cKd0}, v34
    ds_write_b32 v{cKd1}, v35
    ds_write_b16 v{cKd2}, v36 offset:1024
    ds_write_b16_d16_hi v{cKd2}, v36 offset:{1024+32}
    ds_write_b16 v{cKd2}, v37 offset:{1024+64}
    ds_write_b16_d16_hi v{cKd2}, v37 offset:{1024+96}
    """)
def k_gather(): return [f"ds_read_u16 v{16+e}, v{XA+e}" for e in range(18)]
def k_pack():
    o = [f"v_cmp_ne_u32 vcc, 127, v{cT}", f"ds_write_b32 v{cZ0}, v{vZero} offset:{UOFF}",
         f"ds_write_b32 v{cZ1}, v{vZero} offset:4096", "v_cndmask_b32 v33, 0, v33, vcc"]
    for hh in range(2):
        for i in range(4):
            b = 16 + 9*hh + 2*i
            o += [f"v_lshl_or_b32 v{96+4*hh+i}, v{b+1}, 16, v{b}", f"v_lshl_or_b32 v{104+4*hh+i}, v{b+2}, 16, v{b+1}"]
    o += [f"ds_write_b128 v{cImg}, v[96:99]", f"ds_write_b128 v{cImg}, v[100:103] offset:2048",
          f"ds_write_b128 v{cImg}, v[104:107] offset:4160", f"ds_write_b128 v{cImg}, v[108:111] offset:6208"]
    return o

LD_INIT = f"global_load_dword v{vPoll}, v{vZero}, s[62:63] sc1"
LD_MV = f"buffer_load_dword v{vPoll}, v{cMv}, s[20:23], 0 offen sc1"
def poll(lb, target, ld):
    A(f"""
{lb}:
    v_cmp_gt_u32 vcc, {target}, v{vPoll}
    s_cbranch_vccz {lb}_ok
    s_sub_u32 s{sSpin}, s{sSpin}, 1
    s_cbranch_scc1 {lb}_ok
    s_sleep 8
    {ld}
    s_waitcnt vmcnt(0)
    s_branch {lb}
{lb}_ok:
    """)
def poll_movers(lb): poll(lb, 1, LD_MV)

def dbar():
    if STAMP and SS == 4:
        A("s_memtime s[74:75]\ns_waitcnt lgkmcnt(0)\ns_barrier\ns_memtime s[76:77]\ns_waitcnt lgkmcnt(0)\ns_sub_u32 s74, s76, s74\ns_add_u32 s92, s92, s74")
    else: A("s_barrier")
def dclk(first):
    if STAMP and SS == 4:
        if first: A("s_memtime s[72:73]\ns_waitcnt lgkmcnt(0)")
        else: A("s_memtime s[76:77]\ns_waitcnt lgkmcnt(0)\ns_sub_u32 s94, s76, s72")
def gemm1_a():
    def reads(j):
        f = FR[j & 1]; s = (j >> 1) & 3; o = s*16384 + (j & 1)*8192; xo = ((j >> 2) & 1)*16384
        r = [f"ds_read_b64_tr_b16 {vr(f+16,2)}, v{vWr} offset:{o}",
             f"ds_read_b64_tr_b16 {vr(f+18,2)}, v{vWr} offset:{o+2048}",
             f"ds_read_b128 {vr(f,4)}, v{vXr[j & 3]} offset:{xo}",
             f"ds_read_b64_tr_b16 {vr(f+20,2)}, v{vWr} offset:{o+1024}",
             f"ds_read_b64_tr_b16 {vr(f+22,2)}, v{vWr} offset:{o+3072}"]
        return r + [f"ds_read_b128 {vr(f+4*tt,4)}, v{vXr[j & 3]} offset:{xo+4096*tt}" for tt in range(1, 4)]
    pad("lp")
    A("s_barrier")
    stamp(3); dclk(1)
    A(reads(0))
    A("L_g1_loop:")
    for j in range(8):
        A(f"s_waitcnt vmcnt({4 + AGT if j == 3 else AGT}) lgkmcnt(0)" if AW and j in (3, 5) else "s_waitcnt lgkmcnt(0)")
        if j & 1: dbar()
        f = FR[j & 1]; r = reads(j + 1)
        n = 0
        for tt in range(4):
            for o, a in ((0, 16), (16, 20)):
                d = vr(ACC1+32*tt+o, 16)
                A(f"v_mfma_f32_32x32x16_bf16 {d}, {vr(f+a,4)}, {vr(f+4*tt,4)}, {d}")
                A(r[2*n:2*n+2]); n += 1
                if j == 7 and n == 6: A(f"s_add_u32 s{sIt}, s{sIt}, 1\ns_cmp_lt_u32 s{sIt}, 4")
    if STAMP and SS == 3:
        A("s_mov_b32 s92, s94\ns_mov_b32 s94, s96\ns_mov_b32 s96, s98\ns_memrealtime s[98:99]\ns_waitcnt lgkmcnt(0)")
    A("s_cbranch_scc1 L_g1_loop")
    dclk(0)

def capture(*fns):
    global L
    keep = L; L = []
    for f in fns: f()
    out = [x.strip() for x in L]; L = keep
    return out

def slices(lst, n):
    out = []; pos = 0
    for i in range(n):
        end = (i + 1)*len(lst)//n
        while 0 < end < len(lst) and lst[end-1].startswith("s_cmp"): end += 1
        out.append(lst[pos:end]); pos = end
    return out

def gemm1_b():
    vm = Cnt("vmcnt", 63)
    def dma(kind, idx):
        if kind == "W": d = w_dma(idx) if idx < 16 else d_dma(idx - 16)
        else: d = x_dma(idx) if idx < 8 else d_dma(idx - 8 + 4)
        A(d)
        for _ in range(4): vm.note((kind, idx))
    def barrier(tags, first=False):
        n = vm.need(tags)
        if STAMP and SS == 4 and not first:
            A("s_memtime s[74:75]\ns_waitcnt lgkmcnt(0)")
            if n is not None: A(f"s_waitcnt vmcnt({n})")
            A("s_memtime s[76:77]\ns_waitcnt lgkmcnt(0)\ns_sub_u32 s74, s76, s74\ns_add_u32 s96, s96, s74")
            dbar()
        else: A(f"s_waitcnt {'vmcnt(%d) ' % n if n is not None else ''}lgkmcnt(0)\ns_barrier")
    if BPRIO: A(f"s_setprio {BPRIO}")
    dma("X", 0); dma("W", 0)
    dma("W", 1); dma("X", 1)
    warm(1)
    common_setup()
    k_setup(); pad("rb1"); conv_setup()
    if not AW: dma("W", 2)
    work = []
    stamp(1)
    A("s_barrier\ns_setprio 1")
    A(k_reads()); pad("rb2")
    m = k_mfma()
    for i in range(8):
        A(f"s_waitcnt lgkmcnt({min(15, 21 - 3*i)})"); A(m[2*i:2*i+2])
    A(m[16:]); A(k_write())
    lds_sync("L_b_k", 4)
    A(k_gather()); A("s_waitcnt lgkmcnt(0)"); A(k_pack())
    stamp(2)
    A("s_setprio 0")
    barrier({("X", 0), ("W", 0)}, True)
    stamp(3); dclk(1)
    if not AW: dma("W", 3)
    def groups(kind, idx):
        if kind == "W": d = w_dma(idx) if idx < 16 else d_dma(idx - 16)
        else: d = x_dma(idx) if idx < 8 else d_dma(idx - 8 + 4)
        for _ in range(4): vm.note((kind, idx))
        return [d[0:3], d[3:4], d[4:7], d[7:8]]
    for s in range(16):
        barrier({("W", s + 1), ("X", (s + 1)//2)} if s < 15 else ({("W", 16), ("X", 8), ("W", 17)} if LW else set()))
        if s == 15 and PF1:
            vm.wait({"mv"})
            poll_movers("L_pm1")
            conv_loads()
        g = []
        if s & 1: g += groups("X", (s + 3)//2)
        g += groups("W", s + 4)
        w = work.pop(0) if work else []
        for gi, wi in zip(g, slices(w, len(g))): A(gi); A(wi)
        if s == 5:
            A(f"s_cmp_eq_u32 s{sW}, 4\ns_cbranch_scc0 L_noinit\n{LD_INIT}\nL_noinit:")
        if s == 10:
            A(f"s_cmp_eq_u32 s{sW}, 4\ns_cbranch_scc0 L_pi_ok")
            poll("L_pi", 128, LD_INIT)
        if s == PS:
            A(LD_MV); vm.note("mv")
        if BLT and BLS <= s < BLS + 2*BLT and (s - BLS) % 2 == 0:
            A(f"buffer_load_dword v{vJunk}, v{vTch}, s[68:71], s{sTch} offen\ns_add_u32 s{sTch}, s{sTch}, {-(-74//BLT)*128}"); vm.note("t")
        if s == 4: warm(3)
        if s == 6: pad("g1b")
        if s == 12: pad("kf")
        if s in (RS, RS + 2):
            i = (s - RS)
            A(d_piece(12 + i, 24 + i) + d_piece(13 + i, 25 + i))
            for _ in range(4): vm.note("r")
    dclk(0)
    if not PF1:
        vm.wait({"mv"})
        poll_movers("L_pm1")
        conv_loads()

def publish(sreg, n):
    A(f"""
    s_mov_b64 exec, 1
    s_waitcnt vmcnt({n})
    buffer_store_dword v14, v15, s[20:23], s{sreg} offen sc1
    s_mov_b64 exec, -1
    """)

def geglu(tt, fill=()):
    if STAMP and SS == 5: A("s_memtime s[72:73]\ns_waitcnt lgkmcnt(0)")
    geglu_(tt, fill)
    if STAMP and SS == 5: A(f"s_memtime s[74:75]\ns_waitcnt lgkmcnt(0)\ns_sub_u32 s{80 + 2*(1, 2, 6, 7)[tt]}, s74, s72")
def geglu_(tt, fill=()):
    fill = list(fill)
    G = ACC1 + 32*tt; U = G + 16
    O = 16 + 8*(tt & 1); T = 32
    o = []
    for p in range(8): o.append(f"v_pk_mul_f32 {vr(T+2*p,2)}, {vr(G+2*p,2)}, {vr(G+2*p,2)}")
    for p in range(8): o.append(f"v_pk_fma_f32 {vr(T+2*p,2)}, {vr(T+2*p,2)}, s[34:35], v[2:3]")
    for p in range(8): o.append(f"v_pk_mul_f32 {vr(T+2*p,2)}, {vr(T+2*p,2)}, {vr(G+2*p,2)}")
    for p in range(16): o.append(f"v_exp_f32 v{T+p}, v{T+p}")
    for p in range(8): o.append(f"v_pk_mul_f32 {vr(G+2*p,2)}, {vr(G+2*p,2)}, {vr(U+2*p,2)}")
    for p in range(8): o.append(f"v_pk_add_f32 {vr(T+2*p,2)}, {vr(T+2*p,2)}, 1.0 op_sel_hi:[1,0]")
    for p in range(16): o.append(f"v_rcp_f32 v{T+p}, v{T+p}")
    for p in range(8): o.append(f"v_pk_mul_f32 {vr(G+2*p,2)}, {vr(G+2*p,2)}, {vr(T+2*p,2)}")
    for p in range(8): o.append(f"v_cvt_pk_bf16_f32 v{O+p}, v{G+2*p}, v{G+2*p+1}")
    for x in o:
        A(x)
        if fill and ("exp" in x or "rcp" in x): A(fill.pop(0))
    A(fill)
    A(f"buffer_store_dwordx4 {vr(O,4)}, v4, s[20:23], s{sHst} offen sc1")
    A(f"buffer_store_dwordx4 {vr(O+4,4)}, v4, s[20:23], s{sHst} offen offset:1024 sc1")
def epi_head():
    C1 = -2.0 * L2E * math.sqrt(2.0/math.pi)
    A(f"v_mov_b32 v2, {fbits(C1)}\nv_mov_b32 v3, {fbits(C1)}\nv_lshlrev_b32 v4, 4, v1\nv_mov_b32 v14, 1\nv_mov_b32 v15, 0\ns_add_u32 s{sHfl2}, s{sHfl}, {56*128}\ns_waitcnt vmcnt(0) lgkmcnt(0)")

def conv_loads():
    A(f"""
    buffer_load_dwordx4 {vr(vU,4)}, v{cLu0}, s[20:23], s{sCu} offen sc1
    buffer_load_dwordx4 {vr(vU+4,4)}, v{cLu1}, s[20:23], s{sCu} offen sc1
    buffer_load_dwordx4 {vr(vG,4)}, v{cLg0}, s[20:23], 0 offen sc1
    buffer_load_dwordx4 {vr(vG+4,4)}, v{cLg1}, s[20:23], 0 offen sc1
    """)

G1 = [0, 1, 8, 9, 2, 3]; G2 = [4, 5, 6, 7, 10, 11]
STG = {k: 48 + 8*i for i, k in enumerate(G1 + G2)}
STG.update({24 + i: 144 + 8*i for i in range(4)})
def wd_reads(kap, d0, d1):
    o = piece_off(kap)
    base = gD[0:2] if o < 65536 else gD[2:4]
    if o >= 65536: o -= 65536
    if kap >= 12: base = [2, 3]; o = piece_off(kap) - RED
    return [f"ds_read_b64_tr_b16 {vr((d0, d1)[dd]+2*ih,2)}, v{base[dd]} offset:{o + 512*ih}" for dd in range(2) for ih in range(2)]
def red_reads():
    A(f"v_add_u32 v2, {RED}, v{gD[0]}\nv_add_u32 v3, {RED}, v{gD[1]}")
    for i in range(4): A(wd_reads(12 + i, STG[24 + i], STG[24 + i] + 4))
def stage_reads(ks): return sum((wd_reads(k, STG[k], STG[k] + 4) for k in ks), [])

def role_a():
    A(f"""
L_role_a:
    s_mov_b32 s{sRole}, 0
    s_setprio 1
    v_mov_b64 v[40:41], 0
    v_mov_b64 v[42:43], 0
    v_mov_b32 v116, v{vWo}
    v_and_b32 v{vTab}, 127, v0
    v_lshlrev_b32 v{vTab}, 2, v{vTab}
    s_lshr_b32 s6, s{sWN}, 1
    s_mul_i32 s4, s6, {57*PITCH}
    s_add_u32 s4, s4, {TB}
    v_add_u32 v{vTab}, s4, v{vTab}
    s_mov_b32 s{sK1}, {fbits(struct.unpack("<f", struct.pack("<f", L2E))[0])}
    s_mov_b32 s{sK2}, {fbits(L2E - struct.unpack("<f", struct.pack("<f", L2E))[0])}
    """)
    A([x.replace(f"v{vDo[0]}", f"v{gX[0]}").replace(f"v{vDo[1]}", f"v{gX[1]}") for x in capture(common_setup)])
    A("s_cmp_ge_u32 s2, 224\ns_cbranch_scc1 L_mv_a")
    for i in range(8):
        A(f"v_mfma_f32_32x32x16_bf16 {vr(ACC1+16*i,16)}, v[40:43], v[40:43], 0")
    A("s_waitcnt vmcnt(0)\nL_a_k2:")
    stamp(1)
    t = tables()
    tp = len(t)*TPOS//100
    for i, x in enumerate(t):
        if i == 60: pad("tb0")
        if i == 170: pad("tb1")
        if i == tp and T2: touches()
        A(x)
    if TPOS >= 100 and T2: touches()
    stamp(2)
    A("s_setprio 0\ns_cmp_ge_u32 s2, 224\ns_cbranch_scc1 L_a_su")
    A("s_waitcnt lgkmcnt(0)\ns_barrier")
    if AW:
        A(f"s_add_u32 s{sM0W}, s{sM0W}, 8192\ns_add_u32 s{sWoff}, s{sWoff}, {16*3584}")
        A([x.replace(f"v{vWo}", "v116") for x in w_dma(2) + w_dma(3)])
    if AGT:
        A(f"""
        s_lshl_b32 s3, s2, 2
        s_add_u32 s3, s3, s{sW}
        s_lshl_b32 s3, s3, 11
        v_and_b32 v16, 15, v1
        v_lshlrev_b32 v16, 7, v16
        buffer_load_dword v74, v16, s[68:71], s3 offen
        """)
    A("L_a_su:")
    pad("su")
    g1_setup(); g2_setup()
    A("s_cmp_ge_u32 s2, 224\ns_cbranch_scc1 L_mv_a2")
    if PRE_ST:
        A(f"s_mov_b32 s3, s{sHst}")
        for t in range(4):
            A(f"buffer_store_dwordx4 v[16:19], v{gL16}, s[20:23], s3 offen sc1\nbuffer_store_dwordx4 v[16:19], v{gL16}, s[20:23], s3 offen offset:1024 sc1\ns_add_u32 s3, s3, {112*1024}")
    warm(2)
    if APRIO: A(f"s_setprio {APRIO}")
    A("s_waitcnt lgkmcnt(0)")
    gemm1_a()
    stamp(4)
    epi_head()
    step = f"s_add_u32 s{sHst}, s{sHst}, {112*1024}"
    geglu(0); A(step); pad("ea0")
    geglu(1); A(step)
    geglu(2); A(step); pad("ea1")
    publish(sHfl, 2)
    geglu(3)
    stamp(5)
    red_reads()
    A("s_barrier")
    sr = stage_reads(G1 + G2)
    A(sr[:PUBN])
    publish(sHfl2, 0)
    stamp(1, 2)
    A(sr[PUBN:])
    A("L_a_join:")
    gemm2()

def role_b():
    A(f"L_role_b:\ns_mov_b32 s{sRole}, 1\ns_cmp_ge_u32 s2, 224\ns_cbranch_scc1 L_mv_head")
    gemm1_b()
    stamp(4)
    A("L_b_join:")
    A(f"s_waitcnt vmcnt({10 if PF1 else 2})\nds_write_b128 v{cUw}, {vr(vU,4)}\nds_write_b128 v{cUw}, {vr(vU+4,4)} offset:2048")
    A(f"s_waitcnt vmcnt({0 if PF1 else 2}) lgkmcnt(0)\ns_barrier")
    stamp(5)
    conv()

def mover_body():
    if STUBS: A("L_pad_mv:\ns_branch L_warm_ret0")
    A(f"""
L_mv_head:
    s_sub_u32 s6, s2, 224
    s_lshl_b32 s3, s6, 16
    s_lshl_b32 s4, s{sWN}, 14
    s_add_u32 s3, s3, s4
    s_mul_i32 s4, s{sWN}, {16*UP}
    v_lshlrev_b32 v16, 4, v1
    s_add_u32 s5, s3, 16384
L_mv_ld:
    s_mov_b32 m0, s4
    s_add_u32 s4, s4, {UP}
    buffer_load_dwordx4 v16, s[8:11], s3 offen lds
    s_add_u32 s3, s3, 1024
    s_cmp_lt_u32 s3, s5
    s_cbranch_scc1 L_mv_ld
    global_load_dwordx4 v[128:131], v16, s[58:59]
    v_add_u32 v132, {GWL}, v16
    """)
    common_setup(); conv_setup(); k_setup()
    A("s_waitcnt vmcnt(0)\nds_write_b128 v132, v[128:131]\ns_branch L_mv_common")
    A("L_mv_a:")
    A(f"""
    s_sub_u32 s6, s2, 224
    s_lshl_b32 s3, s6, 2
    s_add_u32 s3, s3, s{sW}
    s_mul_i32 s3, s3, 22
    v_add_u32 v16, s3, v1
    s_add_u32 s3, s6, 2816
    v_mov_b32 v17, s3
    v_cmp_gt_u32 vcc, 22, v1
    s_getpc_b64 s[4:5]
L_pc:
    s_sub_u32 s4, s4, L_pc - {KNAME}
    s_subb_u32 s5, s5, 0
    v_cndmask_b32 v16, v17, v16, vcc
    v_lshlrev_b32 v16, 7, v16
    v_add_u32 v16, {WS_FLAG}, v16
    buffer_store_dword v{vZero}, v16, s[20:23], 0 offen sc1
    v_lshlrev_b32 v16, 7, v0
    v_min_u32 v16, L_exit - {KNAME}, v16
    global_load_dword v74, v16, s[4:5]
    s_waitcnt vmcnt(2)
    s_branch L_a_k2
L_mv_a2:
    s_waitcnt vmcnt(0)
    s_mov_b64 exec, 1
    global_atomic_add v{vZero}, v{cOne}, s[62:63] sc1
    s_mov_b64 exec, -1
    """)
    A(f"""
L_mv_common:
    s_sub_u32 s{sMov}, s2, 224
    v_and_b32 v2, 15, v1
    v_lshrrev_b32 v3, 4, v1
    v_lshlrev_b32 v16, 4, v3
    v_lshrrev_b32 v17, 2, v1
    v_and_b32 v17, 3, v17
    v_lshl_add_u32 v17, v3, 3, v17
    v_mul_u32_u24 v17, {UP}, v17
    v_and_b32 v18, 3, v1
    v_lshl_add_u32 v17, v18, 3, v17
    s_lshl_b32 s4, s{sW}, 7
    v_add_u32 v17, s4, v17
    s_lshl_b32 s3, s{sW}, 18
    s_lshl_b32 s4, s{sMov}, 11
    s_add_u32 s3, s3, s4
    s_add_u32 s3, s3, {WS_UT}
    v_lshlrev_b32 v18, 6, v2
    v_lshl_add_u32 v18, v3, 4, v18
    s_lshr_b32 s7, s{sMov}, 3
    s_mul_i32 s7, s7, {448*1024}
    s_lshl_b32 s4, s{sW}, 13
    s_add_u32 s7, s7, s4
    s_add_u32 s7, s7, {192*1024}
    v_lshlrev_b32 v19, 7, v1
    s_waitcnt lgkmcnt(0)
    s_barrier
    """)
    stamp(3)
    if MG2:
        A(f"""
        s_lshl_b32 s4, s{sMov}, 3
        s_add_u32 s4, s4, s{sW}
        s_mul_i32 s4, s4, 7168
        v_min_u32 v4, {55*128}, v19
        buffer_load_dword v47, v4, s[68:71], s4 offen
        """)
    for q in range(4):
        b = 200 + 8*q
        A(f"""
        ds_read_b64_tr_b16 {vr(b,2)}, v17 offset:{32*q}
        ds_read_b64_tr_b16 {vr(b+2,2)}, v17 offset:{32*q + 4*UP}
        ds_read_b64_tr_b16 {vr(b+4,2)}, v17 offset:{32*q + 32*UP}
        ds_read_b64_tr_b16 {vr(b+6,2)}, v17 offset:{32*q + 36*UP}
        """)
    for q in range(4):
        b = 200 + 8*q
        A(f"""
        s_waitcnt lgkmcnt({12 - 4*q})
        buffer_store_dwordx4 {vr(b,4)}, v18, s[20:23], s3 offen sc1
        buffer_store_dwordx4 {vr(b+4,4)}, v18, s[20:23], s3 offen offset:1024 sc1
        s_add_u32 s3, s3, 65536
        """)
    A(f"""
    s_cmp_eq_u32 s{sRole}, 0
    s_cbranch_scc1 L_mv_nogate
    s_mul_i32 s4, s{sWN}, {16*UP}
    v_mul_u32_u24 v17, {UP}, v2
    v_add_u32 v17, v17, v16
    v_add_u32 v17, s4, v17
    """)
    GF = [32 + 4*i for i in range(3)] + [92 + 4*i for i in range(9)] + [192, 196, 232, 236]
    A(f"v_add_u32 v4, {GWL}, v16")
    for i in range(16):
        A(f"ds_read_b128 {vr(GF[i],4)}, v17 offset:{64*i}")
        A(f"ds_read_b128 {vr(128+4*i,4)}, v4 offset:{64*i}")
    A("s_waitcnt lgkmcnt(0)")
    for i in range(16):
        c = "0" if i < 2 else vr(24+4*(i&1), 4)
        A(f"v_mfma_f32_16x16x32_bf16 {vr(24+4*(i&1),4)}, {vr(GF[i],4)}, {vr(128+4*i,4)}, {c}")
    A(f"""
    s_lshl_b32 s3, s{sMov}, 2
    s_add_u32 s3, s3, s{sWN}
    s_lshl_b32 s3, s3, 6
    s_add_u32 s3, s3, {WS_G}
    s_nop 5
    """)
    for r in range(4): A(f"v_add_f32 v{24+r}, v{24+r}, v{28+r}")
    for r in range(4): A(f"v_cvt_pk_bf16_f32 v{24+r}, 0, v{24+r}")
    for r in range(4): A(f"v_mul_f32 v{24+r}, {fbits(-L2E)}, v{24+r}")
    for r in range(4): A(f"v_exp_f32 v{24+r}, v{24+r}")
    A("s_nop 0")
    for r in range(4): A(f"v_add_f32 v{24+r}, 1.0, v{24+r}")
    for r in range(4): A(f"v_rcp_f32 v{24+r}, v{24+r}")
    A("s_nop 0")
    for r in range(4): A(f"v_cvt_pk_bf16_f32 v{24+r}, 0, v{24+r}")
    for r in range(4): A(f"v_sub_f32 v{28+r}, 1.0, v{24+r}")
    for r in range(4): A(f"v_cvt_pk_bf16_f32 v{24+r}, v{24+r}, v{28+r}")
    A(f"""
    v_cmp_eq_u32 vcc, 0, v2
    s_and_saveexec_b64 s[4:5], vcc
    buffer_store_dwordx4 v[24:27], v16, s[20:23], s3 offen sc1
    s_mov_b64 exec, s[4:5]
    """)
    A(k_reads())
    A(f"""
L_mv_nogate:
    s_waitcnt vmcnt(0) lgkmcnt(0)
    s_barrier
    s_cmp_eq_u32 s{sRole}, 0
    s_cbranch_scc0 L_mv_b2
    """)
    stamp(4)
    if MGT:
        A(f"""
        s_and_b32 s3, s{sMov}, 7
        s_lshl_b32 s3, s3, 2
        s_add_u32 s3, s3, s{sW}
        s_mul_i32 s3, s3, 6144
        s_lshr_b32 s4, s{sMov}, 3
        s_mul_i32 s4, s4, {448*1024}
        s_add_u32 s3, s3, s4
        v_min_u32 v17, {47*128}, v19
        buffer_load_dword v47, v17, s[68:71], s3 offen
        """)
    A("s_barrier")
    A(f"s_and_b32 s4, s{sMov}, 3\ns_lshl_b32 s4, s4, 15")
    for i in range(2*MROWS):
        A(f"s_add_u32 s3, s7, s4\nbuffer_load_dword v47, v19, s[68:71], s3 offen\ns_add_u32 s4, s4, 32768\ns_cmp_ge_u32 s4, {2*MROWS*32768}\ns_cselect_b32 s4, 0, s4")
    A("s_barrier")
    red_reads(); A(stage_reads(G1 + G2))
    stamp(5)
    A(f"""
    s_branch L_a_join
L_mv_b2:
    s_cmp_eq_u32 s{sW}, 4
    s_cbranch_scc0 L_mv_nosig
    s_mov_b64 exec, 1
    global_atomic_add v40, v{vZero}, v{cOne}, s[62:63] offset:128 sc0 sc1
    s_mov_b64 exec, -1
    {LD_INIT}
    s_waitcnt vmcnt(0)
    v_readfirstlane_b32 s3, v40
    v_and_b32 v17, 31, v1
    v_lshlrev_b32 v17, 7, v17
    v_add_u32 v17, {WS_FLAG3}, v17
    s_and_b32 s3, s3, 31
    s_cmp_eq_u32 s3, 31
    s_cbranch_scc0 L_pi2
    buffer_store_dword v{cOne}, v17, s[20:23], 0 offen sc1
    """)
    poll("L_pi2", 128, LD_INIT)
    A("L_mv_nosig:")
    stamp(4)
    for sig in range(6): A(d_dma(sig))
    for i in range(4): A(d_piece(12 + i, 24 + i))
    A(k_mfma()); A(k_write())
    A("s_waitcnt lgkmcnt(0)\ns_barrier")
    A(LD_MV)
    A(k_gather()); A("s_waitcnt lgkmcnt(0)"); A(k_pack())
    A(f"s_mov_b64 exec, 1\nds_add_u32 v{cCnt}, v{cOne}\ns_mov_b64 exec, -1\ns_waitcnt vmcnt(0)")
    poll_movers("L_pm2")
    conv_loads()
    A("s_waitcnt vmcnt(0)\ns_branch L_b_join")

def lds_sync(label, target):
    A(f"""
    s_mov_b64 exec, 1
    s_waitcnt lgkmcnt(0)
    ds_add_u32 v{cCnt}, v{cOne}
{label}:
    ds_read_b32 v2, v{cCnt}
    s_waitcnt lgkmcnt(0)
    v_cmp_gt_u32 vcc, {target}, v2
    s_cbranch_vccz {label}_go
    s_sub_u32 s{sSpin}, s{sSpin}, 1
    s_cbranch_scc0 {label}
{label}_go:
    s_mov_b64 exec, -1
    """)

def conv():
    FA = [96, 160]; FB = [128, 192]; ACC = 16
    def reads(rr):
        fs = rr & 1; ra = []; rb = []
        for i in range(8):
            o = (512*(1 - (i & 1)) + 64*(3 - rr)) // 4
            rb.append(f"ds_read_b128 {vr(FB[fs]+4*i,4)}, v{cB} offset:{512*i + 64*(3-rr)}")
            ra.append(f"ds_read2_b32 {vr(FA[fs]+4*i,2)}, v{cA[i>>1]} offset0:{o} offset1:{o+1}")
            ra.append(f"ds_read2_b32 {vr(FA[fs]+4*i+2,2)}, v{cA[i>>1]} offset0:{o+2} offset1:{o+3}")
        return ra, rb
    ra, rb = reads(0)
    b2 = []
    A(ra[0:2] + rb + ra[2:])
    A("s_barrier")
    A("s_setprio 2")
    stamp(6)
    cnt = 0
    pad("cv0")
    U = 128; D = 136; Y = 96; P = 160
    for rr in range(4):
        fs = rr & 1
        A("s_waitcnt lgkmcnt(14)" if rr == 0 else "s_waitcnt lgkmcnt(0)")
        if rr < 3:
            ra, rb = reads(rr+1); fill = rb + ra
        else:
            fill = [f"ds_read_b64 {vr(U,2)}, v{cUr}", f"ds_read_b64 {vr(U+2,2)}, v{cUr} offset:2048",
                    f"ds_read_b64 {vr(U+4,2)}, v{cUr} offset:{CH}", f"ds_read_b64 {vr(U+6,2)}, v{cUr} offset:{CH+2048}"]
        for i in range(8):
            if rr == 0 and i == 1: A("s_waitcnt lgkmcnt(0)")
            for t in range(i, 8):
                c = "0" if (rr == 0 and i == 0) else vr(ACC+4*t, 4)
                A(f"v_mfma_f32_16x16x32_bf16 {vr(ACC+4*t,4)}, {vr(FA[fs]+4*i,4)}, {vr(FB[fs]+4*(t-i),4)}, {c}")
                if fill and not (rr == 0 and i == 0): A(fill.pop(0))
                cnt += 1
                if b2 and cnt % B2W == 0: A(b2.pop(0))
            if rr == 3 and 2 <= i <= 4:
                A(f"ds_write_b128 v{cRw}, {vr(ACC+4*(i-2),4)} offset:{1024*(i-2)}")
        assert not fill
        if rr == 1: pad("cv1")
    assert not b2
    stamp(7)
    A("s_waitcnt vmcnt(0) lgkmcnt(3)")
    ud = []
    for k in range(8):
        d = D + 2*k
        if k & 1: ud += [f"v_and_b32 v{d}, 0xffff0000, v{U+k//2}", f"v_and_b32 v{d+1}, 0xffff0000, v{U+4+k//2}"]
        else: ud += [f"v_lshlrev_b32 v{d}, 16, v{U+k//2}", f"v_lshlrev_b32 v{d+1}, 16, v{U+4+k//2}"]
    A(ud[:8])
    for t in range(3, 8):
        A(f"ds_write_b128 v{cRw}, {vr(ACC+4*t,4)} offset:{1024*t}")
    A(ud[8:])
    for k in range(8): A(f"v_lshlrev_b32 v{vG+k}, 16, v{vG+k}")
    A(f"s_lshl_b32 s30, s{sDsk}, 16\ns_and_b32 s31, s{sDsk}, 0xffff0000")
    lds_sync("L_cv_s2", 8)
    for q in range(4):
        A(f"ds_read_b128 {vr(P+8*q,4)}, v{cRr} offset:{8192*q}")
        A(f"ds_read_b128 {vr(P+4+8*q,4)}, v{cRr} offset:{8192*q + 4096}")
    for k in range(8):
        d = D + 2*k
        A(f"v_mul_f32 v{d}, s30, v{d}\nv_mul_f32 v{d+1}, s31, v{d+1}")
    A("s_waitcnt lgkmcnt(4)")
    for k in range(8): A(f"v_add_f32 v{D+2*k}, v{D+2*k}, v{P+k}")
    for k in range(8): A(f"v_add_f32 v{D+2*k}, v{D+2*k}, v{P+8+k}")
    A("s_waitcnt lgkmcnt(0)")
    for k in range(8): A(f"v_add_f32 v{D+2*k+1}, v{D+2*k+1}, v{P+16+k}")
    for k in range(8): A(f"v_add_f32 v{D+2*k+1}, v{D+2*k+1}, v{P+24+k}")
    for k in range(8):
        A(f"v_mul_f32 v{D+2*k}, v{vG+k}, v{D+2*k}\nv_mul_f32 v{D+2*k+1}, v{vG+k}, v{D+2*k+1}")
    for k in range(8):
        A(f"v_cvt_pk_bf16_f32 v{Y+k}, v{D+2*k}, v{D+2*k+1}")
    A(f"""
    buffer_store_dwordx4 {vr(Y,4)}, v{cS0}, s[20:23], s{sCga} offen sc1
    buffer_store_dwordx4 {vr(Y+4,4)}, v{cS1}, s[20:23], s{sCga} offen sc1
    s_mov_b64 exec, 1
    """)
    stamp(8)
    A(f"""
    s_waitcnt vmcnt(0)
    buffer_store_dword v{cOne}, v{vZero}, s[20:23], s{sCfl} offen sc1
    """)
    stamp_flush()
    A("s_endpgm")

def gemm2():
    ACC = 192
    sH = [sH0, sH1]
    A("s_waitcnt lgkmcnt(0)\ns_barrier\ns_setprio 1")
    stamp(3, 2)
    vm = Cnt("vmcnt", 63); lg = Cnt("lgkmcnt", 15)
    def wd_dma(k, kap):
        A(f"s_add_u32 m0, s{sLds}, {16384*(kap >> 1) + 2048*(kap & 1)}\ns_add_u32 s3, s{sWd}, {k*16384}")
        vm.issue(("w", k), f"buffer_load_dwordx4 v{gX[0]}, s[68:71], s3 offen lds")
        vm.issue(("w", k), f"buffer_load_dwordx4 v{gX[1]}, s[68:71], s3 offen offset:1024 lds")
    ks = G1 + G2
    def refill(k): A([x.replace(f"v{vDo[0]}", f"v{gX[0]}").replace(f"v{vDo[1]}", f"v{gX[1]}") for x in d_piece(k, k + 12)])
    for k in ks: refill(k)
    pad("g20")
    A(f"""
s_mov_b64 exec, 0x3fff
L_g2_hpoll:
    buffer_load_dword v2, v{gFl}, s[20:23], s{sFl} offen sc1
    s_waitcnt vmcnt(0)
    v_cmp_eq_u32 vcc, 0, v2
    s_cbranch_vccz L_g2_hready
    s_mov_b64 exec, vcc
    s_sleep {SLP}
    s_sub_u32 s{sSpin}, s{sSpin}, 1
    s_cbranch_scc0 L_g2_hpoll
L_g2_hready:
    s_mov_b64 exec, -1
    """)
    vm.ops = []
    stamp(6)
    free = [16 + 4*i for i in range(8)] + [176 + 4*i for i in range(4)]
    hreg = {}; wreg = {k: (STG[k], STG[k] + 4) for k in STG}
    nxt = [0]; wnx = [12]; rd = {}
    def h_issue(kc, n=99):
        while n > 0 and free and nxt[0] < 56 and (nxt[0] >> 1) < kc + min(HDMAX, HD + kc):
            n -= 1
            k, tt = nxt[0] >> 1, nxt[0] & 1
            r = free.pop(0); hreg[(k, tt)] = r
            vm.issue(("h", k), f"buffer_load_dwordx4 {vr(r,4)}, v{gL16}, s[20:23], s{sH[tt]} offen offset:{(k & 3)*1024} sc1")
            if (k & 3) == 3: A(f"s_add_u32 s{sH[tt]}, s{sH[tt]}, 4096")
            nxt[0] += 1
    if HT:
        A(f"""
        v_and_b32 v2, 31, v1
        v_min_u32 v2, {28 - HD - 1}, v2
        v_lshlrev_b32 v2, 10, v2
        v_lshrrev_b32 v3, 5, v1
        v_mul_u32_u24 v3, {112*1024}, v3
        v_add_u32 v2, v2, v3
        s_min_u32 s3, s{sH0}, s{sH1}
        s_lshl_b32 s4, s{sJ}, 7
        s_add_u32 s3, s3, s4
        s_add_u32 s{sT}, s3, {HD*1024}
        """)
    h_issue(0)
    if HT: vm.issue("t", f"buffer_load_dword v2, v2, s[20:23], s{sT} offen sc1")
    A(f"""
    v_and_b32 v{gFl}, 15, v1
    v_lshlrev_b32 v{gFl}, 9, v{gFl}
    s_lshl_b32 s{sFl}, s{sD}, 13
    s_lshr_b32 s4, s{sTok}, 3
    s_and_b32 s4, s4, 3
    s_lshl_b32 s4, s4, 7
    s_add_u32 s{sFl}, s{sFl}, s4
    s_add_u32 s{sFl}, s{sFl}, {WS_FLAG2}
    v_and_b32 v{gT}, 31, v1
    v_lshlrev_b32 v14, 2, v{gT}
    s_lshl_b32 s4, s{sTok}, 7
    s_add_u32 s5, s4, {WS_G}
    v_lshrrev_b32 v15, 5, v1
    v_lshl_add_u32 v3, v15, 15, v14
    s_lshl_b32 s6, s{sD}, 17
    s_add_u32 s6, s6, s4
    s_add_u32 s6, s6, {WS_GA}
    v_lshlrev_b32 v{gT}, 10, v{gT}
    v_lshl_add_u32 v{gT}, v15, 4, v{gT}
    s_lshl_b32 s7, s{sTok}, 15
    s_lshl_b32 s4, s{sD}, 6
    s_add_u32 s7, s7, s4
    s_mov_b32 s12, s60
    s_mov_b32 s13, s61
    s_mov_b32 s14, 0x200000
    v_add_u32 v15, s{sLds}, v{gL16}
    """)
    GA = None
    for k in range(28):
        pre = []
        vm.wait({("h", k)})
        if k in (0, 8, 12, 18): stamp({0: 1, 8: 2, 12: 3, 18: 4}[k], 1)
        lg.wait({("w", k)})
        if k >= WLA and wnx[0] < 24:
            kn = wnx[0]; wnx[0] += 1
            wreg[kn] = (free.pop(), free.pop())
            pre = [(("w", kn), x) for x in wd_reads(kn - 12, *wreg[kn])]
        lw = []
        for n, (dd, tt) in enumerate(((0,0),(0,1),(1,0),(1,1))):
            c = "0" if k == 0 else vr(ACC+16*(2*dd+tt), 16)
            A(f"v_mfma_f32_32x32x16_bf16 {vr(ACC+16*(2*dd+tt),16)}, {vr(wreg[k][dd],4)}, {vr(hreg[(k,tt)],4)}, {c}")
            if HIL and n in (0, 2): h_issue(k + 1, 1)
            if n in (1, 3) and lw:
                kl, t = lw.pop(0); vm.issue(("w", kl), t)
            if pre: lg.issue(*pre.pop(0))
        free += [hreg[(k,0)], hreg[(k,1)], wreg[k][0], wreg[k][1]]
        h_issue(k + 1)
        if k == 12: pad("g21")
        if k == 20: vm.issue("f", f"buffer_load_dword v2, v{gFl}, s[20:23], s{sFl} offen sc1")
        if k == 24:
            stamp(7)
            A(f"""
            s_waitcnt vmcnt(0)
L_g2_poll:
            v_cmp_eq_u32 vcc, 0, v2
            s_cbranch_vccz L_g2_ready
            s_sub_u32 s{sSpin}, s{sSpin}, 1
            s_cbranch_scc1 L_g2_ready
            s_mov_b64 exec, vcc
            s_sleep {SLP}
            buffer_load_dword v2, v{gFl}, s[20:23], s{sFl} offen sc1
            s_waitcnt vmcnt(0)
            s_branch L_g2_poll
            """)
            pad("g22", inline=False)
            A("L_g2_ready:\ns_mov_b64 exec, -1")
            vm.ops = []
            fr = sorted(free)
            GA = next(r for r in fr if r + 4 in fr and r >= 96)
            free.remove(GA); free.remove(GA + 4)
            A("buffer_load_dword v4, v14, s[20:23], s5 offen sc1")
            for m in range(8):
                A(f"buffer_load_dword v{GA+m}, v3, s[20:23], s6 offen sc1")
                if m < 7: A(f"s_add_u32 s6, s6, {8192 if (m & 3) != 3 else 5*8192}")
    assert wnx[0] == 24
    stamp(8)
    A(f"""
    v_xor_b32 v8, 0x1000, v15
    v_xor_b32 v9, 0x2000, v15
    v_xor_b32 v10, 0x3000, v15
    s_nop 6
    """)
    for x in range(1, 4):
        for i in range(4):
            A(f"ds_write_b128 v15, {vr(ACC+16*x+4*i,4)} offset:{(x-1)*16384 + 1024*i}")
    A("s_waitcnt vmcnt(0)\nv_and_b32 v4, 0xffff0000, v4")
    for p in range(8):
        A(f"v_lshlrev_b32 v{80+2*p}, 16, v{GA+p}\nv_and_b32 v{81+2*p}, 0xffff0000, v{GA+p}")
    A("s_waitcnt lgkmcnt(0)\ns_barrier")
    for x in range(3):
        for i in range(4):
            A(f"ds_read_b128 {vr(32+16*x+4*i,4)}, v{8+x} offset:{x*16384 + 1024*i}")
    for x in range(3):
        A(f"s_waitcnt lgkmcnt({8 - 4*x})")
        for p in range(8):
            A(f"v_pk_add_f32 {vr(ACC+2*p,2)}, {vr(ACC+2*p,2)}, {vr(32+16*x+2*p,2)}")
    for p in range(8):
        A(f"v_pk_fma_f32 {vr(32+2*p,2)}, {vr(ACC+2*p,2)}, v[4:5], {vr(80+2*p,2)} op_sel_hi:[1,0,1]")
    for p in range(8):
        A(f"v_cvt_pk_bf16_f32 v{24+p}, v{32+2*p}, v{33+2*p}")
    A(f"""
    buffer_store_dwordx4 v[24:27], v{gT}, s[12:15], s7 offen
    buffer_store_dwordx4 v[28:31], v{gT}, s[12:15], s7 offen offset:32
    """)
    stamp_flush()
    A("s_endpgm")

def main():
    order = [[None]*4 + ["rb", "tb0", "tb1", "su"],
             [None]*4 + ["lp", "rb1", "rb2", "g1b"],
             ["ea0", "ea1", "g20", "g21"],
             [None]*4 + ["kf", "cv0", "cv1", "g22"]]
    for r, names in enumerate(order):
        for w, n in enumerate(names):
            if n: PLAN[n] = (r, w)
    A('.amdgcn_target "amdgcn-amd-amdhsa--gfx950"\n.text')
    A(f".globl {KNAME}\n.p2align 12\n.type {KNAME},@function\n{KNAME}:")
    if STAMP:
        for i in range(NST): A(f"s_mov_b32 s{80+2*i}, 0")
    stamp(0)
    A("s_cmp_ge_u32 s2, 256\ns_cbranch_scc1 L_exit")
    prologue()
    role_a()
    pad("rb", inline=False)
    role_b()
    mover_body()
    A("L_exit:\n    s_endpgm")
    assert not STUBS or set(PADS) == set(PLAN), set(PLAN) - set(PADS)
    A(f""".section .rodata,"a"
.p2align 6
.amdhsa_kernel {KNAME}
  .amdhsa_next_free_vgpr 256
  .amdhsa_next_free_sgpr 102
  .amdhsa_accum_offset 256
  .amdhsa_group_segment_fixed_size 0
  .amdhsa_kernarg_size 136
  .amdhsa_user_sgpr_count 2
  .amdhsa_user_sgpr_kernarg_segment_ptr 1
  .amdhsa_system_sgpr_workgroup_id_x 1
.end_amdhsa_kernel""")
    open(sys.argv[1], "w").write(HEADER + "\n".join(L) + "\n")

main()
```

```python
import sys, struct, math

OPTS = dict(a.split("=") for a in sys.argv[2:])
def opt(name, dflt): return int(OPTS.get(name, dflt))
STAMP = opt("stamp", 0); SS = opt("ss", 0)
T2 = opt("t2", 1); CT = opt("ct", 1); HD = opt("hd", 5); MROWS = opt("mrows", 2); HIL = opt("hil", 1); WLA = opt("wla", 8); E1 = opt("e1", 0); NSL = opt("nsl", 4); TPOS = opt("tpos", 50); MG2 = opt("mg2", 0); LW = opt("lw", 0); PUBN = opt("pubn", 12); TLB = opt("tlb", 0); CST = opt("cst", 0); RS = opt("rs", 5); AW = opt("aw", 0); GWL = 64*1056; PS = opt("ps", 14); PF1 = opt("pf1", 1); SLP = opt("slp", 2); WSB = opt("wsb", 0); ENC = opt("enc", -1); ENCWG = opt("encwg", 100); ENCW = opt("encw", 0); FIXT = opt("fixt", 0); PRE_ST = opt("prest", 0); PRE = opt("pre", 1); HDMAX = opt("hdmax", 8); AGT = opt("agt", 1); BLT = opt("blt", 0); BLS = opt("bls", 6); PPRIO = opt("pprio", 0); MGT = opt("mgt", 0)
SPIN = opt("spin", 0x40000); STUBS = opt("stubs", 1); NOFILL = opt("nofill", 0); PKT = opt("pkt", 1)
APRIO = opt("aprio", 1); BPRIO = opt("bprio", 0); EPRIO = opt("eprio", 2); B2W = opt("b2w", 4); KDYN = opt("kdyn", 6); B2A = opt("b2a", 1); HT = opt("ht", 0); W3E = opt("w3e", 0); MT = opt("mt", 2)
KNAME = "gated_mix__ssm_conv_s4__geglu_ffn__prompt_kernel"

WS_H, WS_UT, WS_GA = 0x0, 0x700000, 0x900000
WS_G, WS_FLAG, WS_STAMP = 0xB00000, 0xB08000, 0x1400000
WS_FLAG2 = WS_FLAG + 1792*128
WS_FLAG3 = WS_FLAG + 2816*128
WS_BYTES = 0x10000000
OOB = 0x40000000

XB = 65536
TB = 98304
PITCH = 528
KD = TB + 2*57*PITCH
CH = 12928
UOFF = 8320
RED = TB + 2*CH
CNT = KD + 3072
assert CNT + 8 <= 163840 and RED + 32768 <= KD and RED % 16 == 0
UP = 1056
L2E = math.log2(math.e)
WSTEP = 32*3584

L = []
def lines(s): return [x.strip() for x in s.strip("\n").split("\n") if x.strip()]
def A(s):
    if isinstance(s, (list, tuple)): s = "\n".join(s)
    for line in lines(s):
        L.append(line if line.endswith(":") or line.startswith(".") else "    " + line)
def fbits(x): return "0x%08x" % struct.unpack("<I", struct.pack("<f", x))[0]
def vr(b, n): return f"v[{b}:{b+n-1}]"
def srd(base, size): A(f"s_mov_b32 s{base+2}, {size:#x}\ns_mov_b32 s{base+3}, 0x00020000")

NST = 9
def stamp(idx, ss=0):
    if ENC >= 0:
        if ss == 0 and idx in (0, ENC): A(f"s_memrealtime s[{80+2*idx}:{81+2*idx}]\ns_waitcnt lgkmcnt(0)")
        return
    if STAMP and (ss == SS or (ss == 0 and not (SS in (3, 4, 5) and idx in (1, 2, 6, 7, 8)) and not (SS == 1 and idx in (1, 2, 3, 4)) and not (SS == 2 and idx in (1, 2, 3)))):
        A(f"s_memrealtime s[{80+2*idx}:{81+2*idx}]\ns_waitcnt lgkmcnt(0)")
ENCN = [0]
def stamp_flush():
    if ENC >= 0:
        ENCN[0] += 1; n = ENCN[0]
        if ENC >= 20:
            A(f"""
            s_waitcnt vmcnt(0) lgkmcnt(0)
            s_memrealtime s[98:99]
            s_waitcnt lgkmcnt(0)
            s_mov_b64 exec, 1
            v_mov_b32 v2, 0
            v_mov_b32 v3, s98
            v_mov_b32 v4, s80
            v_not_b32 v5, v4
            s_cmp_eq_u32 s{sWN}, 0
            s_cbranch_scc0 L_enc_end{n}
            global_atomic_umax v2, v3, s[62:63] offset:192 sc1
            global_atomic_umax v2, v4, s[62:63] offset:196 sc1
            global_atomic_umax v2, v5, s[62:63] offset:200 sc1
            s_cmp_eq_u32 s2, {ENCWG}
            s_cbranch_scc0 L_enc_end{n}
            s_cmp_eq_u32 s{sW}, 0
            s_cbranch_scc0 L_enc_end{n}
            s_add_u32 s3, s80, 6000
L_enc_w{n}:
            s_memrealtime s[4:5]
            s_waitcnt lgkmcnt(0)
            s_sub_u32 s6, s4, s3
            s_cmp_lt_i32 s6, 0
            s_cbranch_scc1 L_enc_w{n}
            global_load_dwordx4 v[4:7], v2, s[62:63] offset:192 sc1
            s_waitcnt vmcnt(0)
            v_readfirstlane_b32 s4, v4
            v_readfirstlane_b32 s5, v5
            v_readfirstlane_b32 s6, v6
            s_not_b32 s6, s6
            s_sub_u32 s7, {"s4" if ENC == 20 else "s5" if ENC == 21 else "s6"}, s6
            s_and_b32 s7, s7, 0xfff
            s_lshl_b32 s7, s7, 3
            s_add_u32 s3, s6, 8000
            s_add_u32 s3, s3, s7
L_enc_spin{n}:
            s_memrealtime s[4:5]
            s_waitcnt lgkmcnt(0)
            s_sub_u32 s6, s4, s3
            s_cmp_lt_i32 s6, 0
            s_cbranch_scc1 L_enc_spin{n}
L_enc_end{n}:
            """)
            return
        A(f"""
        s_cmp_eq_u32 s2, {ENCWG}
        s_cbranch_scc0 L_enc_end{n}
        s_cmp_eq_u32 s{sW}, {ENCW}
        s_cbranch_scc0 L_enc_end{n}
        s_waitcnt vmcnt(0) lgkmcnt(0)
        s_memrealtime s[98:99]
        s_waitcnt lgkmcnt(0)
        s_sub_u32 s3, s{80+2*ENC}, s80
        s_and_b32 s3, s3, 0xfff
        s_lshl_b32 s3, s3, 3
        s_add_u32 s3, s3, s98
        {f"s_add_u32 s3, s80, {FIXT}" if FIXT else ""}
L_enc_spin{n}:
        s_memrealtime s[4:5]
        s_waitcnt lgkmcnt(0)
        s_sub_u32 s6, s4, s3
        s_cmp_lt_i32 s6, 0
        s_cbranch_scc1 L_enc_spin{n}
L_enc_end{n}:
        """)
        return
    if not STAMP: return
    A(f"""
    s_waitcnt vmcnt(0) lgkmcnt(0)
    s_memrealtime s[{80+2*NST}:{81+2*NST}]
    s_waitcnt lgkmcnt(0)
    s_mov_b64 exec, -1
    v_lshrrev_b32 v1, 6, v0
    s_lshl_b32 s3, s2, 3
    v_add_u32 v1, s3, v1
    v_lshlrev_b32 v1, 6, v1
    v_add_u32 v1, {0xC00000 if WSB else WS_STAMP}, v1
    """)
    for i in range(12): A(f"v_mov_b32 v{4+i}, s{80+2*min(i, NST)}")
    A(f"""
    v_and_b32 v2, 63, v0
    v_cmp_eq_u32 vcc, 0, v2
    s_and_saveexec_b64 s[4:5], vcc
    buffer_store_dwordx4 v[4:7], v1, s[20:23], 0 offen
    buffer_store_dwordx4 v[8:11], v1, s[20:23], 0 offen offset:16
    buffer_store_dwordx4 v[12:15], v1, s[20:23], 0 offen offset:32
    """)

HEADER = f"""; gated mix of an S4 long convolution and a GeGLU FFN, one launch, one workgroup per CU.
;   woven into it: the SSM kernel K of two channels (factor tables, K = P Q by MFMA, expansion)
; @launch grid=(256,1,1) block=(512,1,1) lds=163840
"""

PADS = {}
PLAN = {}
def pad(name, inline=True):
    if not STUBS or name not in PLAN: return
    r, w = PLAN[name]
    if inline: A(f"s_branch L_skip_{name}")
    A(f"L_pad_{name}:\ns_branch L_warm_ret{r}")
    if inline: A(f"L_skip_{name}:")
    PADS[name] = PLAN[name]
def warm(r):
    if not STUBS: return
    tgt = {w: n for n, (rr, w) in PLAN.items() if rr == r}
    for w in range(8):
        if w in tgt: A(f"s_cmp_eq_u32 s{sW}, {w}\ns_cbranch_scc1 L_pad_{tgt[w]}")
    A(f"L_warm_ret{r}:")

sW, sXoff, sWoff, sM0W, sM0X, sB1 = 24, 25, 26, 27, 28, 29
sTB, sFB, sWN, sWM, sI, sJ, sMov, sSpin = 32, 33, 36, 37, 38, 39, 40, 42
sHst, sDsk, sHfl, sRole = 43, 48, 49, 100
sTok, sD, sH0, sH1, sLds, sFl, sWd = 50, 51, 52, 53, 64, 65, 66
sCu, sCga, sCfl = 50, 51, 52
sK1, sK2 = 54, 55
sT, sIt, sHfl2, sTch = 41, 30, 31, 29
vTch, vJunk = 253, 254
vXo = [240, 241]; vWo = 242; vDo = [248, 249]
vWr = 75; vXr = [76, 77, 78, 79]
vPoll, vZero, cMv, vTab = 250, 251, 252, 93
FR = [80, 104]; ACC1 = 128
vU, vG = 224, 232
PAR = 120
XA = 48
cKf0, cKf1, cKd0, cKd1, cKd2, cUw, cZ0, cZ1, cImg = 66, 67, 68, 69, 70, 71, 72, 73, 74
cA = [75, 76, 77, 78]; cB, cRw, cRr, cUr, cS0, cS1, cLu0, cLu1, cLg0, cLg1, cT, cCnt, cOne = range(79, 92)
gD = [8, 9, 10, 11]; gX = [12, 13]; gFl, gL16, gT = 5, 6, 7

class Cnt:
    def __init__(self, name, cap): self.ops = []; self.name = name; self.cap = cap
    def note(self, tag): self.ops.append(tag)
    def issue(self, tag, text): A(text); self.ops.append(tag)
    def need(self, tags):
        idx = [i for i, t in enumerate(self.ops) if t in tags]
        if not idx: return None
        n = min(len(self.ops) - 1 - max(idx), self.cap)
        self.ops = self.ops[len(self.ops)-n:] if n else []
        return n
    def wait(self, tags):
        n = self.need(tags)
        if n is not None: A(f"s_waitcnt {self.name}({n})")

def u32(x): return x & 0xffffffff
def x_dma(c):
    o = []
    for part in (1, 0):
        o += [f"s_add_u32 m0, s{sM0X}, {u32((c&1)*16384 - part*8192)}", f"s_add_u32 s{sT}, s{sXoff}, {u32(c*128 - part*65536)}",
              f"buffer_load_dwordx4 v{vXo[0]}, s[8:11], s{sT} offen lds",
              f"buffer_load_dwordx4 v{vXo[1]}, s[8:11], s{sT} offen offset:1024 lds"]
    return o
def w_dma(s):
    o = []
    for part in (1, 0):
        o += [f"s_add_u32 m0, s{sM0W}, {u32((s&3)*16384 - part*8192)}", f"s_add_u32 s{sT}, s{sWoff}, {u32(s*WSTEP - part*16*3584)}",
              f"buffer_load_dwordx4 v{vWo}, s[12:15], s{sT} offen lds",
              f"buffer_load_dwordx4 v{vWo}, s[16:19], s{sT} offen offset:1024 lds"]
    return o
def piece_off(kap): return 16384*(kap >> 1) + 2048*(kap & 1) + (RED - 98304 if kap >= 12 else 0)
def d_piece(kap, k):
    return [f"s_add_u32 m0, s{sLds}, {piece_off(kap)}", f"s_add_u32 s{sT}, s{sWd}, {k*16384}",
            f"buffer_load_dwordx4 v{vDo[0]}, s[68:71], s{sT} offen lds",
            f"buffer_load_dwordx4 v{vDo[1]}, s[68:71], s{sT} offen offset:1024 lds"]
def d_dma(sig): return d_piece(2*sig, 2*sig) + d_piece(2*sig + 1, 2*sig + 1)

def common_setup():
    A(f"""
    v_lshrrev_b32 v16, 4, v1
    v_and_b32 v16, 1, v16
    v_lshlrev_b32 v16, 2, v16
    v_and_b32 v17, 7, v1
    v_xor_b32 v16, v16, v17
    v_lshrrev_b32 v17, 3, v1
    v_lshlrev_b32 v17, 10, v17
    v_lshl_add_u32 v{vDo[0]}, v16, 4, v17
    v_add_u32 v{vDo[1]}, 7168, v{vDo[0]}
    s_mov_b32 s68, s56
    s_mov_b32 s69, s57
    s_mov_b32 s70, {1792*1024}
    s_mov_b32 s71, 0x00020000
    s_lshl_b32 s{sLds}, s{sWN}, 12
    s_mul_i32 s{sWd}, s{sWN}, {28*16384}
    s_lshl_b32 s4, s{sJ}, 7
    s_add_u32 s{sWd}, s{sWd}, s4
    s_mov_b32 s{sSpin}, {SPIN}
    """)

def g1_setup():
    A(f"""
    v_lshrrev_b32 v16, 2, v1
    v_and_b32 v16, 3, v16
    v_xor_b32 v17, s{sWN}, v16
    v_lshlrev_b32 v{vWr}, 8, v16
    v_lshl_add_u32 v{vWr}, v17, 6, v{vWr}
    v_lshrrev_b32 v16, 5, v1
    v_lshl_add_u32 v{vWr}, v16, 12, v{vWr}
    v_and_b32 v17, 16, v1
    v_lshlrev_b32 v18, 1, v17
    v_and_b32 v17, 1, v1
    v_lshl_add_u32 v18, v17, 4, v18
    v_and_b32 v17, 2, v1
    v_lshl_add_u32 v18, v17, 2, v18
    v_add_u32 v{vWr}, v{vWr}, v18
    v_lshrrev_b32 v17, 1, v1
    v_and_b32 v17, 7, v17
    v_xor_b32 v17, v17, v16
    v_and_b32 v{vXr[0]}, 31, v1
    v_lshlrev_b32 v{vXr[0]}, 7, v{vXr[0]}
    v_lshl_add_u32 v{vXr[0]}, v17, 4, v{vXr[0]}
    v_add_u32 v{vXr[0]}, {XB}, v{vXr[0]}
    v_xor_b32 v{vXr[1]}, 32, v{vXr[0]}
    v_xor_b32 v{vXr[2]}, 64, v{vXr[0]}
    v_xor_b32 v{vXr[3]}, 0x60, v{vXr[0]}
    s_mul_i32 s{sHst}, s{sTB}, 448
    s_lshl_b32 s5, s{sFB}, 2
    s_add_u32 s5, s5, s{sWN}
    s_lshl_b32 s4, s5, 1
    s_add_u32 s{sHst}, s{sHst}, s4
    s_lshl_b32 s{sHst}, s{sHst}, 10
    s_mul_i32 s3, s{sTB}, 112
    s_add_u32 s3, s3, s5
    s_lshl_b32 s3, s3, 7
    s_add_u32 s{sHfl}, s3, {WS_FLAG}
    s_mov_b32 s34, {fbits(-2.0 * L2E * math.sqrt(2.0/math.pi) * 0.044715)}
    s_mov_b32 s35, s34
    s_mov_b32 s{sIt}, 0
    """)

def k_setup():
    CB = 0x4300 - 128
    A(f"""
    v_and_b32 v{cT}, 127, v0
    s_lshr_b32 s6, s{sWN}, 1
    s_and_b32 s7, s{sWN}, 1
    s_mul_i32 s4, s6, {57*PITCH}
    s_add_u32 s4, s4, {TB}
    s_mul_i32 s5, s6, {CH}
    s_add_u32 s5, s5, {TB}
    v_and_b32 v16, 15, v1
    v_lshrrev_b32 v17, 4, v1
    v_mul_u32_u24 v{cKf0}, {PITCH}, v16
    v_lshl_add_u32 v{cKf0}, v17, 4, v{cKf0}
    v_add_u32 v{cKf0}, s4, v{cKf0}
    s_mul_i32 s4, s7, {16*PITCH}
    v_add_u32 v{cKf1}, s4, v{cKf0}
    s_mul_i32 s3, s6, 1536
    s_add_u32 s3, s3, {KD}
    v_lshrrev_b32 v18, 1, v17
    v_and_b32 v19, 1, v17
    v_lshlrev_b32 v24, 7, v18
    v_lshl_add_u32 v24, v19, 2, v24
    v_lshl_add_u32 v24, v16, 3, v24
    v_lshlrev_b32 v25, 6, v17
    v_add_u32 v25, 256, v25
    v_lshl_add_u32 v26, v16, 2, v25
    v_lshl_add_u32 v27, v16, 1, v25
    v_cmp_gt_u32 vcc, 2, v17
    v_mov_b32 v28, 32
    v_lshlrev_b32 v29, 3, v{cT}
    v_cndmask_b32 v26, v27, v26, vcc
    v_cndmask_b32 v28, v28, 2, vcc
    s_cmp_eq_u32 s7, 0
    s_cselect_b64 vcc, -1, 0
    v_sub_u32 v29, 2047, v29
    v_cndmask_b32 v26, v26, v24, vcc
    v_cndmask_b32 v28, v28, 2, vcc
    v_add_u32 v28, v26, v28
    v_lshl_add_u32 v{cKd0}, v26, 1, s3
    v_lshl_add_u32 v{cKd1}, v28, 1, s3
    v_lshl_add_u32 v25, v17, 6, v16
    v_lshl_add_u32 v{cKd2}, v25, 1, s3
    v_cvt_f32_i32 v30, v29
    v_add_u32 v29, {CB}, v29
    v_mov_b32 v31, {128 + CB}
    s_sub_u32 s3, s3, {2*CB}
    """)
    for hh in range(2):
        for e in range(9):
            r = XA + 9*hh + e; d = 1024*hh + e
            A(f"v_subrev_f32 v{r}, {fbits(float(d))}, v30\nv_cvt_pk_bf16_f32 v{r}, v{r}, 0")
            if hh: A(f"v_subrev_u32 v24, {d}, v29\nv_med3_i32 v{r}, v{r}, v24, v31")
            A(f"v_lshl_add_u32 v{r}, v{r}, 1, s3")
    A(f"""
    v_lshl_add_u32 v{cZ0}, v{cT}, 2, s5
    v_and_b32 v{cZ1}, 60, v{cZ0}
    s_mul_i32 s3, s7, 4160
    s_add_u32 s3, s3, s5
    v_add_u32 v{cZ1}, s3, v{cZ1}
    v_lshl_add_u32 v{cImg}, v{cT}, 4, s5
    s_and_b32 s3, s2, 31
    s_lshl_b32 s3, s3, 7
    s_add_u32 s3, s3, {WS_FLAG3}
    v_mov_b32 v{cMv}, s3
    """)

def conv_setup():
    A(f"""
    s_lshr_b32 s6, s{sWN}, 1
    s_and_b32 s7, s{sWN}, 1
    s_mul_i32 s5, s6, {CH}
    s_add_u32 s5, s5, {TB}
    v_and_b32 v16, 15, v1
    v_lshrrev_b32 v17, 4, v1
    v_and_b32 v24, 255, v0
    v_lshlrev_b32 v{cS0}, 4, v24
    v_add_u32 v{cS1}, 4096, v{cS0}
    v_add_u32 v{cLg0}, {WS_G}, v{cS0}
    v_add_u32 v{cLg1}, {WS_G}, v{cS1}
    v_add_u32 v{cRr}, {RED}, v{cS0}
    v_lshrrev_b32 v{cUr}, 1, v{cS0}
    v_add_u32 v{cUr}, {TB + UOFF + 512}, v{cUr}
    v_lshrrev_b32 v25, 3, v24
    v_lshlrev_b32 v{cLu0}, 10, v25
    v_and_b32 v26, 7, v24
    v_lshl_add_u32 v{cLu0}, v26, 4, v{cLu0}
    v_add_u32 v{cLu1}, 32768, v{cLu0}
    v_lshlrev_b32 v{cUw}, 6, v25
    v_and_b32 v26, 3, v24
    v_lshl_add_u32 v{cUw}, v26, 4, v{cUw}
    v_bfe_u32 v26, v24, 2, 1
    v_mul_u32_u24 v26, {CH}, v26
    v_add_u32 v{cUw}, v{cUw}, v26
    v_add_u32 v{cUw}, {TB + UOFF + 512}, v{cUw}
    v_and_b32 v24, 1, v16
    v_xor_b32 v24, 1, v24
    v_mul_u32_u24 v24, 4160, v24
    v_and_b32 v25, 14, v16
    v_lshlrev_b32 v25, 1, v25
    v_sub_u32 v24, v24, v25
    v_lshl_add_u32 v24, v17, 4, v24
    s_lshl_b32 s4, s7, 8
    s_sub_u32 s4, s5, s4
    s_add_u32 s3, s4, {4060 - 512 - 192}
    v_add_u32 v{cA[0]}, s3, v24
    v_subrev_u32 v{cA[1]}, 1024, v{cA[0]}
    v_subrev_u32 v{cA[2]}, 2048, v{cA[0]}
    v_subrev_u32 v{cA[3]}, 3072, v{cA[0]}
    v_lshlrev_b32 v{cB}, 5, v16
    v_lshl_add_u32 v{cB}, v17, 4, v{cB}
    s_add_u32 s3, s4, {UOFF + 480 - 192}
    v_add_u32 v{cB}, s3, v{cB}
    v_lshlrev_b32 v{cRw}, 6, v16
    v_lshl_add_u32 v{cRw}, v17, 4, v{cRw}
    s_lshl_b32 s3, s{sWN}, 13
    s_add_u32 s3, s3, {RED}
    v_add_u32 v{cRw}, s3, v{cRw}
    s_lshr_b32 s{sCu}, s2, 3
    s_lshl_b32 s{sCu}, s{sCu}, 16
    s_and_b32 s3, s2, 7
    s_lshl_b32 s3, s3, 7
    s_add_u32 s{sCu}, s{sCu}, s3
    s_add_u32 s{sCu}, s{sCu}, {WS_UT}
    s_lshl_b32 s{sCga}, s2, 13
    s_add_u32 s{sCga}, s{sCga}, {WS_GA}
    s_lshl_b32 s3, s2, 2
    s_load_dword s{sDsk}, s[78:79], s3
    s_add_u32 s3, s3, s{sWN}
    s_lshl_b32 s3, s3, 7
    s_add_u32 s{sCfl}, s3, {WS_FLAG2}

    """)

def g2_setup():
    A(f"""
    s_and_b32 s6, s{sW}, 1
    s_lshr_b32 s7, s{sW}, 1
    s_lshl_b32 s{sTok}, s{sI}, 1
    s_add_u32 s{sTok}, s{sTok}, s6
    s_lshl_b32 s{sD}, s{sJ}, 1
    s_add_u32 s{sD}, s{sD}, s7
    v_lshrrev_b32 v16, 2, v1
    v_and_b32 v16, 3, v16
    v_lshrrev_b32 v17, 5, v1
    v_lshl_add_u32 v19, v17, 3, v16
    v_lshl_add_u32 v{gD[0]}, v19, 7, v18
    v_lshrrev_b32 v16, 1, v16
    v_xor_b32 v16, s7, v16
    v_lshl_add_u32 v{gD[0]}, v16, 6, v{gD[0]}
    v_add_u32 v{gD[0]}, s{sLds}, v{gD[0]}
    v_xor_b32 v{gD[1]}, 64, v{gD[0]}
    v_add_u32 v{gD[2]}, 0x10000, v{gD[0]}
    v_add_u32 v{gD[3]}, 0x10000, v{gD[1]}
    v_min_u32 v{gFl}, 13, v1
    v_lshlrev_b32 v{gFl}, 7, v{gFl}
    s_lshl_b32 s{sFl}, s{sI}, 2
    s_add_u32 s{sFl}, s{sFl}, s{sW}
    s_mul_i32 s{sFl}, s{sFl}, {14*128}
    s_add_u32 s{sFl}, s{sFl}, {WS_FLAG}
    v_lshlrev_b32 v{gL16}, 4, v1
    s_mul_i32 s3, s{sW}, {28*1024}
    s_mul_i32 s{sH0}, s{sTok}, {112*1024}
    s_xor_b32 s4, s{sTok}, 1
    s_mul_i32 s{sH1}, s4, {112*1024}
    s_add_u32 s{sH0}, s{sH0}, s3
    s_add_u32 s{sH1}, s{sH1}, s3
    """)

def prologue():
    A(f"""
    s_load_dwordx16 s[64:79], s[0:1], 8
    s_load_dwordx2 s[8:9], s[0:1], 0
    s_load_dwordx4 s[12:15], s[0:1], 80
    s_load_dwordx8 s[56:63], s[0:1], 96
    s_load_dwordx2 s[20:21], s[0:1], 128
    v_lshrrev_b32 v2, 6, v0
    v_and_b32 v1, 63, v0
    v_mov_b32 v{vZero}, 0
    v_mov_b32 v{cCnt}, {CNT}
    v_mov_b32 v{cOne}, 1
    ds_write_b32 v{cCnt}, v{vZero}
    v_and_b32 v3, 255, v0
    v_readfirstlane_b32 s{sW}, v2
    s_lshl_b32 s3, s2, 8
    v_add_u32 v3, s3, v3
    v_lshlrev_b32 v3, 1, v3
    v_lshrrev_b32 v4, 7, v3
    v_and_b32 v4, 0xfffffffe, v4
    """)
    if STUBS: A(f"s_cmp_lt_u32 s2, 224\ns_cbranch_scc1 L_warm0\ns_cmp_eq_u32 s{sW}, 4\ns_cbranch_scc1 L_pad_mv\nL_warm0:")
    warm(0)
    A(f"""
    s_and_b32 s{sWN}, s{sW}, 3
    s_lshr_b32 s{sWM}, s{sW}, 2
    s_and_b32 s3, s2, 7
    s_lshr_b32 s4, s2, 3
    s_lshr_b32 s{sTB}, s3, 1
    s_lshl_b32 s{sTB}, s{sTB}, 2
    s_and_b32 s5, s4, 3
    s_add_u32 s{sTB}, s{sTB}, s5
    s_lshl_b32 s{sI}, s3, 2
    s_add_u32 s{sI}, s{sI}, s5
    s_and_b32 s{sFB}, s3, 1
    s_mul_i32 s{sFB}, s{sFB}, 7
    s_lshr_b32 s{sJ}, s4, 2
    s_add_u32 s{sFB}, s{sFB}, s{sJ}
    s_lshl_b32 s{sXoff}, s{sTB}, 17
    s_lshl_b32 s5, s{sW}, 14
    s_add_u32 s{sXoff}, s{sXoff}, s5
    s_mul_i32 s{sWoff}, s{sW}, {4*3584}
    s_lshl_b32 s5, s{sFB}, 8
    s_add_u32 s{sWoff}, s{sWoff}, s5
    s_lshl_b32 s{sM0W}, s{sW}, 11
    s_add_u32 s{sM0X}, s{sM0W}, {XB}
    v_lshrrev_b32 v16, 4, v1
    v_and_b32 v17, 7, v1
    v_xor_b32 v18, v17, v16
    v_lshrrev_b32 v19, 3, v1
    v_lshlrev_b32 v19, 10, v19
    v_lshl_add_u32 v{vXo[0]}, v18, 4, v19
    v_xor_b32 v{vXo[1]}, 64, v{vXo[0]}
    v_add_u32 v{vXo[1]}, 7168, v{vXo[1]}
    v_lshlrev_b32 v17, 2, v16
    v_and_b32 v{vWo}, 15, v1
    v_xor_b32 v{vWo}, v{vWo}, v17
    v_lshlrev_b32 v{vWo}, 4, v{vWo}
    v_mul_u32_u24 v16, 3584, v16
    v_add_u32 v{vWo}, v{vWo}, v16
    s_mov_b32 s10, 0x200000
    s_mov_b32 s11, 0x00020000
    s_mov_b32 s18, {512*1792*2 + 1024}
    s_mov_b32 s19, 0x00020000
    s_mov_b32 s22, {WS_BYTES - (WSB << 20)}
    s_mov_b32 s23, 0x00020000
    s_waitcnt lgkmcnt(0)
    s_add_u32 s20, s20, {WSB << 20}
    s_addc_u32 s21, s21, 0
    s_sub_u32 s16, s14, 1024
    s_subb_u32 s17, s15, 0
    s_mov_b32 s14, {512*1792*2}
    s_mov_b32 s15, 0x00020000
    s_cmp_ge_u32 s{sW}, 4
    s_cbranch_scc1 L_role_b
    """)
    params()

def params():
    for i, p in enumerate((76, 64, 66, 68, 70, 72, 74)):
        A(f"global_load_ushort v{PAR+i}, v{4 if i == 0 else 3}, s[{p}:{p+1}]")

def touches():
    A(f"""
    s_cmp_ge_u32 s2, 224
    s_cbranch_scc1 L_t2_done
    s_cmp_eq_u32 s{sW}, 0
    s_cbranch_scc0 L_t2_w
    v_min_u32 v112, 59, v1
    v_mul_u32_u24 v113, 43, v112
    v_lshrrev_b32 v113, 8, v113
    v_mul_u32_u24 v114, 6, v113
    v_sub_u32 v112, v112, v114
    v_lshlrev_b32 v112, 7, v112
    v_lshl_add_u32 v112, v113, 10, v112
    s_mul_i32 s3, s2, 10240
    s_add_u32 s3, s3, 256
    buffer_load_dword v74, v112, s[8:11], s3 offen
    s_branch L_t2_done
L_t2_w:
    v_min_u32 v112, 55, v1
    v_lshlrev_b32 v112, 7, v112
    s_mul_i32 s3, s2, 7168
    s_add_u32 s3, s3, {2*WSTEP}
    s_cmp_eq_u32 s{sW}, 1
    s_cbranch_scc0 L_t2_u
    buffer_load_dword v74, v112, s[12:15], s3 offen
    s_branch L_t2_done
L_t2_u:
    s_cmp_eq_u32 s{sW}, 2
    s_cbranch_scc0 L_t2_done
    buffer_load_dword v74, v112, s[16:19], s3 offen offset:1024
L_t2_done:
    """)
    if TLB:
        A(f"""
        s_cmp_eq_u32 s{sW}, 3
        s_cbranch_scc0 L_tlb_done
        v_mul_u32_u24 v112, {TLB*1024}, v1
        v_min_u32 v112, 0xC00000, v112
        buffer_load_dword v74, v112, s[20:23], 0 offen sc1
        v_lshlrev_b32 v112, 15, v1
        global_load_dword v74, v112, s[60:61] sc1
L_tlb_done:
        """)
    A("""
    """)

def tab_common(R):
    a, th, dt, t0 = R["a"], R["th"], R["dt"], R["t0"]
    return lines(f"""
    v_lshlrev_b32 v{PAR}, 16, v{PAR}
    v_lshlrev_b32 v{a}, 16, v{PAR+1}
    v_lshlrev_b32 v{th}, 16, v{PAR+2}
    v_mul_f32 v{dt}, s{sK1}, v{PAR}
    v_fma_f32 v{t0}, v{PAR}, s{sK1}, -v{dt}
    v_fma_f32 v{t0}, v{PAR}, s{sK2}, v{t0}
    v_exp_f32 v{dt}, v{dt}
    v_mul_f32 v{t0}, {fbits(math.log(2.0))}, v{t0}
    v_fmac_f32 v{dt}, v{dt}, v{t0}
    v_cvt_pk_bf16_f32 v{dt}, 0, v{dt}
    v_mul_f32 v{a}, v{dt}, v{a}
    v_mul_f32 v{th}, v{dt}, v{th}
    v_mul_f32 v{a}, s{sK1}, v{a}
    v_mul_f32 v{th}, 0.15915494, v{th}
    """)
def cexp(R, e, s, t):
    a, th = R["a"], R["th"]
    o = []
    if s == 1.0: o += [f"v_exp_f32 v{t}, v{a}", f"v_fract_f32 v{t+1}, v{th}"]
    else: o += [f"v_mul_f32 v{t}, {fbits(s)}, v{a}", f"v_mul_f32 v{t+1}, {fbits(s)}, v{th}", f"v_exp_f32 v{t}, v{t}", f"v_fract_f32 v{t+1}, v{t+1}"]
    o += [f"v_cos_f32 v{e}, v{t+1}", f"v_sin_f32 v{e+1}, v{t+1}", f"v_mul_f32 v{e}, v{t}, v{e}", f"v_mul_f32 v{e+1}, v{t}, v{e+1}"]
    return o
def neg(e): return [] if PKT else [f"v_sub_f32 v{e+2}, 0, v{e+1}"]
def cmul(d, a, b):
    if PKT:
        return [f"v_pk_mul_f32 {vr(d,2)}, {vr(a,2)}, {vr(b,2)} op_sel_hi:[0,1]",
                f"v_pk_fma_f32 {vr(d,2)}, {vr(a,2)}, {vr(b,2)}, {vr(d,2)} op_sel:[1,1,0] op_sel_hi:[1,0,1] neg_lo:[0,1,0]"]
    return [f"v_mul_f32 v{d}, v{a}, v{b}", f"v_mul_f32 v{d+1}, v{a}, v{b+1}",
            f"v_fmac_f32 v{d}, v{a+1}, v{b+2}", f"v_fmac_f32 v{d+1}, v{a+1}, v{b}"]
class Putter:
    def __init__(self, base): self.base = base; self.i = 0
    def __call__(self, row, r, ng=False):
        t = self.base + (self.i & 3); self.i += 1
        return [f"v_cvt_pk_bf16_f32 v{t}, v{r}, {'-' if ng else ''}v{r+1}", f"ds_write_b32 v{vTab}, v{t} offset:{row*PITCH}"]
PR = 16
def tables():
    R = dict(a=16, th=17, dt=18, t0=19); put = Putter(108)
    E8, E128, DB, C = 24, 28, 32, 36
    EP = lambda p: 44 + 4*p
    E1 = EP(1)
    o = tab_common(R)
    o += cexp(R, E1, 1.0, 40) + neg(E1) + cexp(R, E128, 128.0, 42) + neg(E128)
    o += ["v_mov_b32 v108, 0x3f80", f"ds_write_b32 v{vTab}, v108 offset:{PR*PITCH}"]; put.i = 1
    o += put(PR + 1, E1) + put(PR + 8, E128)
    o += cexp(R, E8, 8.0, 40) + neg(E8)
    o += lines(f"""
    v_lshlrev_b32 v{DB}, 16, v{PAR+3}
    v_lshlrev_b32 v{DB+1}, 16, v{PAR+4}
    v_lshlrev_b32 v{C}, 16, v{PAR+5}
    v_lshlrev_b32 v{C+1}, 16, v{PAR+6}
    v_mul_f32 v{DB}, v18, v{DB}
    v_mul_f32 v{DB+1}, v18, v{DB+1}
    """) + neg(DB)
    q = [20, 22]; jq = list(range(1, 16)); pp = [0]
    o += cmul(q[0], C, DB) + put(0, q[0], True)
    def do_q():
        i = jq.pop(0); r = cmul(q[1], q[0], E8); q.reverse(); return r + put(i, q[0], True)
    def prod(row, a, b):
        d = 96 + 2*(pp[0] & 3); pp[0] += 1
        return cmul(d, a, b) + put(row, d)
    o += prod(PR + 9, E1, E128)
    for p in range(2, 8):
        o += cmul(EP(p), EP(p-1), E1) + do_q() + put(PR + p, EP(p))
        if p % 2 == 0: o += neg(EP(p))
        o += prod(PR + 8 + p, EP(p), E128)
    cur = E128; nx = 104
    for h in range(2, 17):
        o += cmul(nx, cur, E128); cur, nx = nx, (106 if nx == 104 else 104)
        if h >= 8 and jq: o += do_q()
        if h < 4:
            o += put(PR + 16 + 4*(h-2), cur)
            for p in range(1, 4): o += prod(PR + 16 + 4*(h-2) + p, cur, EP(2*p))
        elif h < 8:
            o += put(PR + 24 + 2*(h-4), cur) + prod(PR + 24 + 2*(h-4) + 1, cur, EP(4))
        else: o += put(PR + 32 + (h-8), cur)
    assert not jq
    return o
KF = [96 + 4*i for i in range(24)]
KA = 192
def k_reads():
    o = []
    for s in range(8):
        o += [f"ds_read_b128 {vr(KF[3*s],4)}, v{cKf0} offset:{64*s}",
              f"ds_read_b128 {vr(KF[3*s+1],4)}, v{cKf1} offset:{16*PITCH+64*s}",
              f"ds_read_b128 {vr(KF[3*s+2],4)}, v{cKf0} offset:{48*PITCH+64*s}"]
    return o
def k_mfma():
    o = []
    for s in range(8):
        o += [f"v_mfma_f32_16x16x32_bf16 {vr(KA,4)}, {vr(KF[3*s+1],4)}, {vr(KF[3*s],4)}, {'0' if s == 0 else vr(KA,4)}",
              f"v_mfma_f32_16x16x32_bf16 {vr(KA+4,4)}, {vr(KF[3*s+2],4)}, {vr(KF[3*s],4)}, {'0' if s == 0 else vr(KA+4,4)}"]
    return o + ["s_nop 7"]
def k_write():
    return lines(f"""
    v_cvt_pk_bf16_f32 v34, v{KA}, v{KA+1}
    v_cvt_pk_bf16_f32 v35, v{KA+2}, v{KA+3}
    v_cvt_pk_bf16_f32 v36, v{KA+4}, v{KA+5}
    v_cvt_pk_bf16_f32 v37, v{KA+6}, v{KA+7}
    ds_write_b32 v{cKd0}, v34
    ds_write_b32 v{cKd1}, v35
    ds_write_b16 v{cKd2}, v36 offset:1024
    ds_write_b16_d16_hi v{cKd2}, v36 offset:{1024+32}
    ds_write_b16 v{cKd2}, v37 offset:{1024+64}
    ds_write_b16_d16_hi v{cKd2}, v37 offset:{1024+96}
    """)
def k_gather(): return [f"ds_read_u16 v{16+e}, v{XA+e}" for e in range(18)]
def k_pack():
    o = [f"v_cmp_ne_u32 vcc, 127, v{cT}", f"ds_write_b32 v{cZ0}, v{vZero} offset:{UOFF}",
         f"ds_write_b32 v{cZ1}, v{vZero} offset:4096", "v_cndmask_b32 v33, 0, v33, vcc"]
    for hh in range(2):
        for i in range(4):
            b = 16 + 9*hh + 2*i
            o += [f"v_lshl_or_b32 v{96+4*hh+i}, v{b+1}, 16, v{b}", f"v_lshl_or_b32 v{104+4*hh+i}, v{b+2}, 16, v{b+1}"]
    o += [f"ds_write_b128 v{cImg}, v[96:99]", f"ds_write_b128 v{cImg}, v[100:103] offset:2048",
          f"ds_write_b128 v{cImg}, v[104:107] offset:4160", f"ds_write_b128 v{cImg}, v[108:111] offset:6208"]
    return o

LD_INIT = f"global_load_dword v{vPoll}, v{vZero}, s[62:63] sc1"
LD_MV = f"buffer_load_dword v{vPoll}, v{cMv}, s[20:23], 0 offen sc1"
def poll(lb, target, ld):
    A(f"""
{lb}:
    v_cmp_gt_u32 vcc, {target}, v{vPoll}
    s_cbranch_vccz {lb}_ok
    s_sub_u32 s{sSpin}, s{sSpin}, 1
    s_cbranch_scc1 {lb}_ok
    s_sleep 8
    {ld}
    s_waitcnt vmcnt(0)
    s_branch {lb}
{lb}_ok:
    """)
def poll_movers(lb): poll(lb, 1, LD_MV)

def dbar():
    if STAMP and SS == 4:
        A("s_memtime s[74:75]\ns_waitcnt lgkmcnt(0)\ns_barrier\ns_memtime s[76:77]\ns_waitcnt lgkmcnt(0)\ns_sub_u32 s74, s76, s74\ns_add_u32 s92, s92, s74")
    else: A("s_barrier")
def dclk(first):
    if STAMP and SS == 4:
        if first: A("s_memtime s[72:73]\ns_waitcnt lgkmcnt(0)")
        else: A("s_memtime s[76:77]\ns_waitcnt lgkmcnt(0)\ns_sub_u32 s94, s76, s72")
def gemm1_a():
    def reads(j):
        f = FR[j & 1]; s = (j >> 1) & 3; o = s*16384 + (j & 1)*8192; xo = ((j >> 2) & 1)*16384
        r = [f"ds_read_b64_tr_b16 {vr(f+16,2)}, v{vWr} offset:{o}",
             f"ds_read_b64_tr_b16 {vr(f+18,2)}, v{vWr} offset:{o+2048}",
             f"ds_read_b128 {vr(f,4)}, v{vXr[j & 3]} offset:{xo}",
             f"ds_read_b64_tr_b16 {vr(f+20,2)}, v{vWr} offset:{o+1024}",
             f"ds_read_b64_tr_b16 {vr(f+22,2)}, v{vWr} offset:{o+3072}"]
        return r + [f"ds_read_b128 {vr(f+4*tt,4)}, v{vXr[j & 3]} offset:{xo+4096*tt}" for tt in range(1, 4)]
    pad("lp")
    A("s_barrier")
    stamp(3); dclk(1)
    A(reads(0))
    A("L_g1_loop:")
    for j in range(8):
        A(f"s_waitcnt vmcnt({4 + AGT if j == 3 else AGT}) lgkmcnt(0)" if AW and j in (3, 5) else "s_waitcnt lgkmcnt(0)")
        if j & 1: dbar()
        f = FR[j & 1]; r = reads(j + 1)
        n = 0
        for tt in range(4):
            for o, a in ((0, 16), (16, 20)):
                d = vr(ACC1+32*tt+o, 16)
                A(f"v_mfma_f32_32x32x16_bf16 {d}, {vr(f+a,4)}, {vr(f+4*tt,4)}, {d}")
                A(r[2*n:2*n+2]); n += 1
                if j == 7 and n == 6: A(f"s_add_u32 s{sIt}, s{sIt}, 1\ns_cmp_lt_u32 s{sIt}, 4")
    if STAMP and SS == 3:
        A("s_mov_b32 s92, s94\ns_mov_b32 s94, s96\ns_mov_b32 s96, s98\ns_memrealtime s[98:99]\ns_waitcnt lgkmcnt(0)")
    A("s_cbranch_scc1 L_g1_loop")
    dclk(0)

def capture(*fns):
    global L
    keep = L; L = []
    for f in fns: f()
    out = [x.strip() for x in L]; L = keep
    return out

def slices(lst, n):
    out = []; pos = 0
    for i in range(n):
        end = (i + 1)*len(lst)//n
        while 0 < end < len(lst) and lst[end-1].startswith("s_cmp"): end += 1
        out.append(lst[pos:end]); pos = end
    return out

def gemm1_b():
    vm = Cnt("vmcnt", 63)
    def dma(kind, idx):
        if kind == "W": d = w_dma(idx) if idx < 16 else d_dma(idx - 16)
        else: d = x_dma(idx) if idx < 8 else d_dma(idx - 8 + 4)
        A(d)
        for _ in range(4): vm.note((kind, idx))
    def barrier(tags, first=False):
        n = vm.need(tags)
        if STAMP and SS == 4 and not first:
            A("s_memtime s[74:75]\ns_waitcnt lgkmcnt(0)")
            if n is not None: A(f"s_waitcnt vmcnt({n})")
            A("s_memtime s[76:77]\ns_waitcnt lgkmcnt(0)\ns_sub_u32 s74, s76, s74\ns_add_u32 s96, s96, s74")
            dbar()
        else: A(f"s_waitcnt {'vmcnt(%d) ' % n if n is not None else ''}lgkmcnt(0)\ns_barrier")
    if BPRIO: A(f"s_setprio {BPRIO}")
    dma("X", 0); dma("W", 0)
    dma("W", 1); dma("X", 1)
    warm(1)
    common_setup()
    k_setup(); pad("rb1"); conv_setup()
    if not AW: dma("W", 2)
    work = []
    stamp(1)
    A("s_barrier\ns_setprio 1")
    A(k_reads()); pad("rb2")
    m = k_mfma()
    for i in range(8):
        A(f"s_waitcnt lgkmcnt({min(15, 21 - 3*i)})"); A(m[2*i:2*i+2])
    A(m[16:]); A(k_write())
    lds_sync("L_b_k", 4)
    A(k_gather()); A("s_waitcnt lgkmcnt(0)"); A(k_pack())
    stamp(2)
    A("s_setprio 0")
    barrier({("X", 0), ("W", 0)}, True)
    stamp(3); dclk(1)
    if not AW: dma("W", 3)
    def groups(kind, idx):
        if kind == "W": d = w_dma(idx) if idx < 16 else d_dma(idx - 16)
        else: d = x_dma(idx) if idx < 8 else d_dma(idx - 8 + 4)
        for _ in range(4): vm.note((kind, idx))
        return [d[0:3], d[3:4], d[4:7], d[7:8]]
    for s in range(16):
        barrier({("W", s + 1), ("X", (s + 1)//2)} if s < 15 else ({("W", 16), ("X", 8), ("W", 17)} if LW else set()))
        if s == 15 and PF1:
            vm.wait({"mv"})
            poll_movers("L_pm1")
            conv_loads()
        g = []
        if s & 1: g += groups("X", (s + 3)//2)
        g += groups("W", s + 4)
        w = work.pop(0) if work else []
        for gi, wi in zip(g, slices(w, len(g))): A(gi); A(wi)
        if s == 5:
            A(f"s_cmp_eq_u32 s{sW}, 4\ns_cbranch_scc0 L_noinit\n{LD_INIT}\nL_noinit:")
        if s == 10:
            A(f"s_cmp_eq_u32 s{sW}, 4\ns_cbranch_scc0 L_pi_ok")
            poll("L_pi", 128, LD_INIT)
        if s == PS:
            A(LD_MV); vm.note("mv")
        if BLT and BLS <= s < BLS + 2*BLT and (s - BLS) % 2 == 0:
            A(f"buffer_load_dword v{vJunk}, v{vTch}, s[68:71], s{sTch} offen\ns_add_u32 s{sTch}, s{sTch}, {-(-74//BLT)*128}"); vm.note("t")
        if s == 4: warm(3)
        if s == 6: pad("g1b")
        if s == 12: pad("kf")
        if s in (RS, RS + 2):
            i = (s - RS)
            A(d_piece(12 + i, 24 + i) + d_piece(13 + i, 25 + i))
            for _ in range(4): vm.note("r")
    dclk(0)
    if not PF1:
        vm.wait({"mv"})
        poll_movers("L_pm1")
        conv_loads()

def publish(sreg, n):
    A(f"""
    s_mov_b64 exec, 1
    s_waitcnt vmcnt({n})
    buffer_store_dword v14, v15, s[20:23], s{sreg} offen sc1
    s_mov_b64 exec, -1
    """)

def geglu(tt, fill=()):
    if STAMP and SS == 5: A("s_memtime s[72:73]\ns_waitcnt lgkmcnt(0)")
    geglu_(tt, fill)
    if STAMP and SS == 5: A(f"s_memtime s[74:75]\ns_waitcnt lgkmcnt(0)\ns_sub_u32 s{80 + 2*(1, 2, 6, 7)[tt]}, s74, s72")
def geglu_(tt, fill=()):
    fill = list(fill)
    G = ACC1 + 32*tt; U = G + 16
    O = 16 + 8*(tt & 1); T = 32
    o = []
    for p in range(8): o.append(f"v_pk_mul_f32 {vr(T+2*p,2)}, {vr(G+2*p,2)}, {vr(G+2*p,2)}")
    for p in range(8): o.append(f"v_pk_fma_f32 {vr(T+2*p,2)}, {vr(T+2*p,2)}, s[34:35], v[2:3]")
    for p in range(8): o.append(f"v_pk_mul_f32 {vr(T+2*p,2)}, {vr(T+2*p,2)}, {vr(G+2*p,2)}")
    for p in range(16): o.append(f"v_exp_f32 v{T+p}, v{T+p}")
    for p in range(8): o.append(f"v_pk_mul_f32 {vr(G+2*p,2)}, {vr(G+2*p,2)}, {vr(U+2*p,2)}")
    for p in range(8): o.append(f"v_pk_add_f32 {vr(T+2*p,2)}, {vr(T+2*p,2)}, 1.0 op_sel_hi:[1,0]")
    for p in range(16): o.append(f"v_rcp_f32 v{T+p}, v{T+p}")
    for p in range(8): o.append(f"v_pk_mul_f32 {vr(G+2*p,2)}, {vr(G+2*p,2)}, {vr(T+2*p,2)}")
    for p in range(8): o.append(f"v_cvt_pk_bf16_f32 v{O+p}, v{G+2*p}, v{G+2*p+1}")
    for x in o:
        A(x)
        if fill and ("exp" in x or "rcp" in x): A(fill.pop(0))
    A(fill)
    A(f"buffer_store_dwordx4 {vr(O,4)}, v4, s[20:23], s{sHst} offen sc1")
    A(f"buffer_store_dwordx4 {vr(O+4,4)}, v4, s[20:23], s{sHst} offen offset:1024 sc1")
def epi_head():
    C1 = -2.0 * L2E * math.sqrt(2.0/math.pi)
    A(f"v_mov_b32 v2, {fbits(C1)}\nv_mov_b32 v3, {fbits(C1)}\nv_lshlrev_b32 v4, 4, v1\nv_mov_b32 v14, 1\nv_mov_b32 v15, 0\ns_add_u32 s{sHfl2}, s{sHfl}, {56*128}\ns_waitcnt vmcnt(0) lgkmcnt(0)")

def conv_loads():
    A(f"""
    buffer_load_dwordx4 {vr(vU,4)}, v{cLu0}, s[20:23], s{sCu} offen sc1
    buffer_load_dwordx4 {vr(vU+4,4)}, v{cLu1}, s[20:23], s{sCu} offen sc1
    buffer_load_dwordx4 {vr(vG,4)}, v{cLg0}, s[20:23], 0 offen sc1
    buffer_load_dwordx4 {vr(vG+4,4)}, v{cLg1}, s[20:23], 0 offen sc1
    """)

G1 = [0, 1, 8, 9, 2, 3]; G2 = [4, 5, 6, 7, 10, 11]
STG = {k: 48 + 8*i for i, k in enumerate(G1 + G2)}
STG.update({24 + i: 144 + 8*i for i in range(4)})
def wd_reads(kap, d0, d1):
    o = piece_off(kap)
    base = gD[0:2] if o < 65536 else gD[2:4]
    if o >= 65536: o -= 65536
    if kap >= 12: base = [2, 3]; o = piece_off(kap) - RED
    return [f"ds_read_b64_tr_b16 {vr((d0, d1)[dd]+2*ih,2)}, v{base[dd]} offset:{o + 512*ih}" for dd in range(2) for ih in range(2)]
def red_reads():
    A(f"v_add_u32 v2, {RED}, v{gD[0]}\nv_add_u32 v3, {RED}, v{gD[1]}")
    for i in range(4): A(wd_reads(12 + i, STG[24 + i], STG[24 + i] + 4))
def stage_reads(ks): return sum((wd_reads(k, STG[k], STG[k] + 4) for k in ks), [])

def role_a():
    A(f"""
L_role_a:
    s_mov_b32 s{sRole}, 0
    s_setprio 1
    v_mov_b64 v[40:41], 0
    v_mov_b64 v[42:43], 0
    v_mov_b32 v116, v{vWo}
    v_and_b32 v{vTab}, 127, v0
    v_lshlrev_b32 v{vTab}, 2, v{vTab}
    s_lshr_b32 s6, s{sWN}, 1
    s_mul_i32 s4, s6, {57*PITCH}
    s_add_u32 s4, s4, {TB}
    v_add_u32 v{vTab}, s4, v{vTab}
    s_mov_b32 s{sK1}, {fbits(struct.unpack("<f", struct.pack("<f", L2E))[0])}
    s_mov_b32 s{sK2}, {fbits(L2E - struct.unpack("<f", struct.pack("<f", L2E))[0])}
    """)
    A([x.replace(f"v{vDo[0]}", f"v{gX[0]}").replace(f"v{vDo[1]}", f"v{gX[1]}") for x in capture(common_setup)])
    A("s_cmp_ge_u32 s2, 224\ns_cbranch_scc1 L_mv_a")
    for i in range(8):
        A(f"v_mfma_f32_32x32x16_bf16 {vr(ACC1+16*i,16)}, v[40:43], v[40:43], 0")
    A("s_waitcnt vmcnt(0)\nL_a_k2:")
    stamp(1)
    t = tables()
    tp = len(t)*TPOS//100
    for i, x in enumerate(t):
        if i == 60: pad("tb0")
        if i == 170: pad("tb1")
        if i == tp and T2: touches()
        A(x)
    if TPOS >= 100 and T2: touches()
    stamp(2)
    A("s_setprio 0\ns_cmp_ge_u32 s2, 224\ns_cbranch_scc1 L_a_su")
    A("s_waitcnt lgkmcnt(0)\ns_barrier")
    if AW:
        A(f"s_add_u32 s{sM0W}, s{sM0W}, 8192\ns_add_u32 s{sWoff}, s{sWoff}, {16*3584}")
        A([x.replace(f"v{vWo}", "v116") for x in w_dma(2) + w_dma(3)])
    if AGT:
        A(f"""
        s_lshl_b32 s3, s2, 2
        s_add_u32 s3, s3, s{sW}
        s_lshl_b32 s3, s3, 11
        v_and_b32 v16, 15, v1
        v_lshlrev_b32 v16, 7, v16
        buffer_load_dword v74, v16, s[68:71], s3 offen
        """)
    A("L_a_su:")
    pad("su")
    g1_setup(); g2_setup()
    A("s_cmp_ge_u32 s2, 224\ns_cbranch_scc1 L_mv_a2")
    if PRE_ST:
        A(f"s_mov_b32 s3, s{sHst}")
        for t in range(4):
            A(f"buffer_store_dwordx4 v[16:19], v{gL16}, s[20:23], s3 offen sc1\nbuffer_store_dwordx4 v[16:19], v{gL16}, s[20:23], s3 offen offset:1024 sc1\ns_add_u32 s3, s3, {112*1024}")
    warm(2)
    if APRIO: A(f"s_setprio {APRIO}")
    A("s_waitcnt lgkmcnt(0)")
    gemm1_a()
    stamp(4)
    epi_head()
    step = f"s_add_u32 s{sHst}, s{sHst}, {112*1024}"
    geglu(0); A(step); pad("ea0")
    geglu(1); A(step)
    geglu(2); A(step); pad("ea1")
    publish(sHfl, 2)
    geglu(3)
    stamp(5)
    red_reads()
    A("s_barrier")
    sr = stage_reads(G1 + G2)
    A(sr[:PUBN])
    publish(sHfl2, 0)
    stamp(1, 2)
    A(sr[PUBN:])
    A("L_a_join:")
    gemm2()

def role_b():
    A(f"L_role_b:\ns_mov_b32 s{sRole}, 1\ns_cmp_ge_u32 s2, 224\ns_cbranch_scc1 L_mv_head")
    gemm1_b()
    stamp(4)
    A("L_b_join:")
    A(f"s_waitcnt vmcnt({10 if PF1 else 2})\nds_write_b128 v{cUw}, {vr(vU,4)}\nds_write_b128 v{cUw}, {vr(vU+4,4)} offset:2048")
    A(f"s_waitcnt vmcnt({0 if PF1 else 2}) lgkmcnt(0)\ns_barrier")
    stamp(5)
    conv()

def mover_body():
    if STUBS: A("L_pad_mv:\ns_branch L_warm_ret0")
    A(f"""
L_mv_head:
    s_sub_u32 s6, s2, 224
    s_lshl_b32 s3, s6, 16
    s_lshl_b32 s4, s{sWN}, 14
    s_add_u32 s3, s3, s4
    s_mul_i32 s4, s{sWN}, {16*UP}
    v_lshlrev_b32 v16, 4, v1
    s_add_u32 s5, s3, 16384
L_mv_ld:
    s_mov_b32 m0, s4
    s_add_u32 s4, s4, {UP}
    buffer_load_dwordx4 v16, s[8:11], s3 offen lds
    s_add_u32 s3, s3, 1024
    s_cmp_lt_u32 s3, s5
    s_cbranch_scc1 L_mv_ld
    global_load_dwordx4 v[128:131], v16, s[58:59]
    v_add_u32 v132, {GWL}, v16
    """)
    common_setup(); conv_setup(); k_setup()
    A("s_waitcnt vmcnt(0)\nds_write_b128 v132, v[128:131]\ns_branch L_mv_common")
    A("L_mv_a:")
    A(f"""
    s_sub_u32 s6, s2, 224
    s_lshl_b32 s3, s6, 2
    s_add_u32 s3, s3, s{sW}
    s_mul_i32 s3, s3, 22
    v_add_u32 v16, s3, v1
    s_add_u32 s3, s6, 2816
    v_mov_b32 v17, s3
    v_cmp_gt_u32 vcc, 22, v1
    s_getpc_b64 s[4:5]
L_pc:
    s_sub_u32 s4, s4, L_pc - {KNAME}
    s_subb_u32 s5, s5, 0
    v_cndmask_b32 v16, v17, v16, vcc
    v_lshlrev_b32 v16, 7, v16
    v_add_u32 v16, {WS_FLAG}, v16
    buffer_store_dword v{vZero}, v16, s[20:23], 0 offen sc1
    v_lshlrev_b32 v16, 7, v0
    v_min_u32 v16, L_exit - {KNAME}, v16
    global_load_dword v74, v16, s[4:5]
    s_waitcnt vmcnt(2)
    s_branch L_a_k2
L_mv_a2:
    s_waitcnt vmcnt(0)
    s_mov_b64 exec, 1
    global_atomic_add v{vZero}, v{cOne}, s[62:63] sc1
    s_mov_b64 exec, -1
    """)
    A(f"""
L_mv_common:
    s_sub_u32 s{sMov}, s2, 224
    v_and_b32 v2, 15, v1
    v_lshrrev_b32 v3, 4, v1
    v_lshlrev_b32 v16, 4, v3
    v_lshrrev_b32 v17, 2, v1
    v_and_b32 v17, 3, v17
    v_lshl_add_u32 v17, v3, 3, v17
    v_mul_u32_u24 v17, {UP}, v17
    v_and_b32 v18, 3, v1
    v_lshl_add_u32 v17, v18, 3, v17
    s_lshl_b32 s4, s{sW}, 7
    v_add_u32 v17, s4, v17
    s_lshl_b32 s3, s{sW}, 18
    s_lshl_b32 s4, s{sMov}, 11
    s_add_u32 s3, s3, s4
    s_add_u32 s3, s3, {WS_UT}
    v_lshlrev_b32 v18, 6, v2
    v_lshl_add_u32 v18, v3, 4, v18
    s_lshr_b32 s7, s{sMov}, 3
    s_mul_i32 s7, s7, {448*1024}
    s_lshl_b32 s4, s{sW}, 13
    s_add_u32 s7, s7, s4
    s_add_u32 s7, s7, {192*1024}
    v_lshlrev_b32 v19, 7, v1
    s_waitcnt lgkmcnt(0)
    s_barrier
    """)
    stamp(3)
    if MG2:
        A(f"""
        s_lshl_b32 s4, s{sMov}, 3
        s_add_u32 s4, s4, s{sW}
        s_mul_i32 s4, s4, 7168
        v_min_u32 v4, {55*128}, v19
        buffer_load_dword v47, v4, s[68:71], s4 offen
        """)
    for q in range(4):
        b = 200 + 8*q
        A(f"""
        ds_read_b64_tr_b16 {vr(b,2)}, v17 offset:{32*q}
        ds_read_b64_tr_b16 {vr(b+2,2)}, v17 offset:{32*q + 4*UP}
        ds_read_b64_tr_b16 {vr(b+4,2)}, v17 offset:{32*q + 32*UP}
        ds_read_b64_tr_b16 {vr(b+6,2)}, v17 offset:{32*q + 36*UP}
        """)
    for q in range(4):
        b = 200 + 8*q
        A(f"""
        s_waitcnt lgkmcnt({12 - 4*q})
        buffer_store_dwordx4 {vr(b,4)}, v18, s[20:23], s3 offen sc1
        buffer_store_dwordx4 {vr(b+4,4)}, v18, s[20:23], s3 offen offset:1024 sc1
        s_add_u32 s3, s3, 65536
        """)
    A(f"""
    s_cmp_eq_u32 s{sRole}, 0
    s_cbranch_scc1 L_mv_nogate
    s_mul_i32 s4, s{sWN}, {16*UP}
    v_mul_u32_u24 v17, {UP}, v2
    v_add_u32 v17, v17, v16
    v_add_u32 v17, s4, v17
    """)
    GF = [32 + 4*i for i in range(3)] + [92 + 4*i for i in range(9)] + [192, 196, 232, 236]
    A(f"v_add_u32 v4, {GWL}, v16")
    for i in range(16):
        A(f"ds_read_b128 {vr(GF[i],4)}, v17 offset:{64*i}")
        A(f"ds_read_b128 {vr(128+4*i,4)}, v4 offset:{64*i}")
    A("s_waitcnt lgkmcnt(0)")
    for i in range(16):
        c = "0" if i < 2 else vr(24+4*(i&1), 4)
        A(f"v_mfma_f32_16x16x32_bf16 {vr(24+4*(i&1),4)}, {vr(GF[i],4)}, {vr(128+4*i,4)}, {c}")
    A(f"""
    s_lshl_b32 s3, s{sMov}, 2
    s_add_u32 s3, s3, s{sWN}
    s_lshl_b32 s3, s3, 6
    s_add_u32 s3, s3, {WS_G}
    s_nop 5
    """)
    for r in range(4): A(f"v_add_f32 v{24+r}, v{24+r}, v{28+r}")
    for r in range(4): A(f"v_cvt_pk_bf16_f32 v{24+r}, 0, v{24+r}")
    for r in range(4): A(f"v_mul_f32 v{24+r}, {fbits(-L2E)}, v{24+r}")
    for r in range(4): A(f"v_exp_f32 v{24+r}, v{24+r}")
    A("s_nop 0")
    for r in range(4): A(f"v_add_f32 v{24+r}, 1.0, v{24+r}")
    for r in range(4): A(f"v_rcp_f32 v{24+r}, v{24+r}")
    A("s_nop 0")
    for r in range(4): A(f"v_cvt_pk_bf16_f32 v{24+r}, 0, v{24+r}")
    for r in range(4): A(f"v_sub_f32 v{28+r}, 1.0, v{24+r}")
    for r in range(4): A(f"v_cvt_pk_bf16_f32 v{24+r}, v{24+r}, v{28+r}")
    A(f"""
    v_cmp_eq_u32 vcc, 0, v2
    s_and_saveexec_b64 s[4:5], vcc
    buffer_store_dwordx4 v[24:27], v16, s[20:23], s3 offen sc1
    s_mov_b64 exec, s[4:5]
    """)
    A(k_reads())
    A(f"""
L_mv_nogate:
    s_waitcnt vmcnt(0) lgkmcnt(0)
    s_barrier
    s_cmp_eq_u32 s{sRole}, 0
    s_cbranch_scc0 L_mv_b2
    """)
    stamp(4)
    if MGT:
        A(f"""
        s_and_b32 s3, s{sMov}, 7
        s_lshl_b32 s3, s3, 2
        s_add_u32 s3, s3, s{sW}
        s_mul_i32 s3, s3, 6144
        s_lshr_b32 s4, s{sMov}, 3
        s_mul_i32 s4, s4, {448*1024}
        s_add_u32 s3, s3, s4
        v_min_u32 v17, {47*128}, v19
        buffer_load_dword v47, v17, s[68:71], s3 offen
        """)
    A("s_barrier")
    A(f"s_and_b32 s4, s{sMov}, 3\ns_lshl_b32 s4, s4, 15")
    for i in range(2*MROWS):
        A(f"s_add_u32 s3, s7, s4\nbuffer_load_dword v47, v19, s[68:71], s3 offen\ns_add_u32 s4, s4, 32768\ns_cmp_ge_u32 s4, {2*MROWS*32768}\ns_cselect_b32 s4, 0, s4")
    A("s_barrier")
    red_reads(); A(stage_reads(G1 + G2))
    stamp(5)
    A(f"""
    s_branch L_a_join
L_mv_b2:
    s_cmp_eq_u32 s{sW}, 4
    s_cbranch_scc0 L_mv_nosig
    s_mov_b64 exec, 1
    global_atomic_add v40, v{vZero}, v{cOne}, s[62:63] offset:128 sc0 sc1
    s_mov_b64 exec, -1
    {LD_INIT}
    s_waitcnt vmcnt(0)
    v_readfirstlane_b32 s3, v40
    v_and_b32 v17, 31, v1
    v_lshlrev_b32 v17, 7, v17
    v_add_u32 v17, {WS_FLAG3}, v17
    s_and_b32 s3, s3, 31
    s_cmp_eq_u32 s3, 31
    s_cbranch_scc0 L_pi2
    buffer_store_dword v{cOne}, v17, s[20:23], 0 offen sc1
    """)
    poll("L_pi2", 128, LD_INIT)
    A("L_mv_nosig:")
    stamp(4)
    for sig in range(6): A(d_dma(sig))
    for i in range(4): A(d_piece(12 + i, 24 + i))
    A(k_mfma()); A(k_write())
    A("s_waitcnt lgkmcnt(0)\ns_barrier")
    A(LD_MV)
    A(k_gather()); A("s_waitcnt lgkmcnt(0)"); A(k_pack())
    A(f"s_mov_b64 exec, 1\nds_add_u32 v{cCnt}, v{cOne}\ns_mov_b64 exec, -1\ns_waitcnt vmcnt(0)")
    poll_movers("L_pm2")
    conv_loads()
    A("s_waitcnt vmcnt(0)\ns_branch L_b_join")

def lds_sync(label, target):
    A(f"""
    s_mov_b64 exec, 1
    s_waitcnt lgkmcnt(0)
    ds_add_u32 v{cCnt}, v{cOne}
{label}:
    ds_read_b32 v2, v{cCnt}
    s_waitcnt lgkmcnt(0)
    v_cmp_gt_u32 vcc, {target}, v2
    s_cbranch_vccz {label}_go
    s_sub_u32 s{sSpin}, s{sSpin}, 1
    s_cbranch_scc0 {label}
{label}_go:
    s_mov_b64 exec, -1
    """)

def conv():
    FA = [96, 160]; FB = [128, 192]; ACC = 16
    def reads(rr):
        fs = rr & 1; ra = []; rb = []
        for i in range(8):
            o = (512*(1 - (i & 1)) + 64*(3 - rr)) // 4
            rb.append(f"ds_read_b128 {vr(FB[fs]+4*i,4)}, v{cB} offset:{512*i + 64*(3-rr)}")
            ra.append(f"ds_read2_b32 {vr(FA[fs]+4*i,2)}, v{cA[i>>1]} offset0:{o} offset1:{o+1}")
            ra.append(f"ds_read2_b32 {vr(FA[fs]+4*i+2,2)}, v{cA[i>>1]} offset0:{o+2} offset1:{o+3}")
        return ra, rb
    ra, rb = reads(0)
    b2 = []
    A(ra[0:2] + rb + ra[2:])
    A("s_barrier")
    A("s_setprio 2")
    stamp(6)
    cnt = 0
    pad("cv0")
    U = 128; D = 136; Y = 96; P = 160
    for rr in range(4):
        fs = rr & 1
        A("s_waitcnt lgkmcnt(14)" if rr == 0 else "s_waitcnt lgkmcnt(0)")
        if rr < 3:
            ra, rb = reads(rr+1); fill = rb + ra
        else:
            fill = [f"ds_read_b64 {vr(U,2)}, v{cUr}", f"ds_read_b64 {vr(U+2,2)}, v{cUr} offset:2048",
                    f"ds_read_b64 {vr(U+4,2)}, v{cUr} offset:{CH}", f"ds_read_b64 {vr(U+6,2)}, v{cUr} offset:{CH+2048}"]
        for i in range(8):
            if rr == 0 and i == 1: A("s_waitcnt lgkmcnt(0)")
            for t in range(i, 8):
                c = "0" if (rr == 0 and i == 0) else vr(ACC+4*t, 4)
                A(f"v_mfma_f32_16x16x32_bf16 {vr(ACC+4*t,4)}, {vr(FA[fs]+4*i,4)}, {vr(FB[fs]+4*(t-i),4)}, {c}")
                if fill and not (rr == 0 and i == 0): A(fill.pop(0))
                cnt += 1
                if b2 and cnt % B2W == 0: A(b2.pop(0))
            if rr == 3 and 2 <= i <= 4:
                A(f"ds_write_b128 v{cRw}, {vr(ACC+4*(i-2),4)} offset:{1024*(i-2)}")
        assert not fill
        if rr == 1: pad("cv1")
    assert not b2
    stamp(7)
    A("s_waitcnt vmcnt(0) lgkmcnt(3)")
    ud = []
    for k in range(8):
        d = D + 2*k
        if k & 1: ud += [f"v_and_b32 v{d}, 0xffff0000, v{U+k//2}", f"v_and_b32 v{d+1}, 0xffff0000, v{U+4+k//2}"]
        else: ud += [f"v_lshlrev_b32 v{d}, 16, v{U+k//2}", f"v_lshlrev_b32 v{d+1}, 16, v{U+4+k//2}"]
    A(ud[:8])
    for t in range(3, 8):
        A(f"ds_write_b128 v{cRw}, {vr(ACC+4*t,4)} offset:{1024*t}")
    A(ud[8:])
    for k in range(8): A(f"v_lshlrev_b32 v{vG+k}, 16, v{vG+k}")
    A(f"s_lshl_b32 s30, s{sDsk}, 16\ns_and_b32 s31, s{sDsk}, 0xffff0000")
    lds_sync("L_cv_s2", 8)
    for q in range(4):
        A(f"ds_read_b128 {vr(P+8*q,4)}, v{cRr} offset:{8192*q}")
        A(f"ds_read_b128 {vr(P+4+8*q,4)}, v{cRr} offset:{8192*q + 4096}")
    for k in range(8):
        d = D + 2*k
        A(f"v_mul_f32 v{d}, s30, v{d}\nv_mul_f32 v{d+1}, s31, v{d+1}")
    A("s_waitcnt lgkmcnt(4)")
    for k in range(8): A(f"v_add_f32 v{D+2*k}, v{D+2*k}, v{P+k}")
    for k in range(8): A(f"v_add_f32 v{D+2*k}, v{D+2*k}, v{P+8+k}")
    A("s_waitcnt lgkmcnt(0)")
    for k in range(8): A(f"v_add_f32 v{D+2*k+1}, v{D+2*k+1}, v{P+16+k}")
    for k in range(8): A(f"v_add_f32 v{D+2*k+1}, v{D+2*k+1}, v{P+24+k}")
    for k in range(8):
        A(f"v_mul_f32 v{D+2*k}, v{vG+k}, v{D+2*k}\nv_mul_f32 v{D+2*k+1}, v{vG+k}, v{D+2*k+1}")
    for k in range(8):
        A(f"v_cvt_pk_bf16_f32 v{Y+k}, v{D+2*k}, v{D+2*k+1}")
    A(f"""
    buffer_store_dwordx4 {vr(Y,4)}, v{cS0}, s[20:23], s{sCga} offen sc1
    buffer_store_dwordx4 {vr(Y+4,4)}, v{cS1}, s[20:23], s{sCga} offen sc1
    s_mov_b64 exec, 1
    """)
    stamp(8)
    A(f"""
    s_waitcnt vmcnt(0)
    buffer_store_dword v{cOne}, v{vZero}, s[20:23], s{sCfl} offen sc1
    """)
    stamp_flush()
    A("s_endpgm")

def gemm2():
    ACC = 192
    sH = [sH0, sH1]
    A("s_waitcnt lgkmcnt(0)\ns_barrier\ns_setprio 1")
    stamp(3, 2)
    vm = Cnt("vmcnt", 63); lg = Cnt("lgkmcnt", 15)
    def wd_dma(k, kap):
        A(f"s_add_u32 m0, s{sLds}, {16384*(kap >> 1) + 2048*(kap & 1)}\ns_add_u32 s3, s{sWd}, {k*16384}")
        vm.issue(("w", k), f"buffer_load_dwordx4 v{gX[0]}, s[68:71], s3 offen lds")
        vm.issue(("w", k), f"buffer_load_dwordx4 v{gX[1]}, s[68:71], s3 offen offset:1024 lds")
    ks = G1 + G2
    def refill(k): A([x.replace(f"v{vDo[0]}", f"v{gX[0]}").replace(f"v{vDo[1]}", f"v{gX[1]}") for x in d_piece(k, k + 12)])
    for k in ks: refill(k)
    pad("g20")
    A(f"""
s_mov_b64 exec, 0x3fff
L_g2_hpoll:
    buffer_load_dword v2, v{gFl}, s[20:23], s{sFl} offen sc1
    s_waitcnt vmcnt(0)
    v_cmp_eq_u32 vcc, 0, v2
    s_cbranch_vccz L_g2_hready
    s_mov_b64 exec, vcc
    s_sleep {SLP}
    s_sub_u32 s{sSpin}, s{sSpin}, 1
    s_cbranch_scc0 L_g2_hpoll
L_g2_hready:
    s_mov_b64 exec, -1
    """)
    vm.ops = []
    stamp(6)
    free = [16 + 4*i for i in range(8)] + [176 + 4*i for i in range(4)]
    hreg = {}; wreg = {k: (STG[k], STG[k] + 4) for k in STG}
    nxt = [0]; wnx = [12]; rd = {}
    def h_issue(kc, n=99):
        while n > 0 and free and nxt[0] < 56 and (nxt[0] >> 1) < kc + min(HDMAX, HD + kc):
            n -= 1
            k, tt = nxt[0] >> 1, nxt[0] & 1
            r = free.pop(0); hreg[(k, tt)] = r
            vm.issue(("h", k), f"buffer_load_dwordx4 {vr(r,4)}, v{gL16}, s[20:23], s{sH[tt]} offen offset:{(k & 3)*1024} sc1")
            if (k & 3) == 3: A(f"s_add_u32 s{sH[tt]}, s{sH[tt]}, 4096")
            nxt[0] += 1
    if HT:
        A(f"""
        v_and_b32 v2, 31, v1
        v_min_u32 v2, {28 - HD - 1}, v2
        v_lshlrev_b32 v2, 10, v2
        v_lshrrev_b32 v3, 5, v1
        v_mul_u32_u24 v3, {112*1024}, v3
        v_add_u32 v2, v2, v3
        s_min_u32 s3, s{sH0}, s{sH1}
        s_lshl_b32 s4, s{sJ}, 7
        s_add_u32 s3, s3, s4
        s_add_u32 s{sT}, s3, {HD*1024}
        """)
    h_issue(0)
    if HT: vm.issue("t", f"buffer_load_dword v2, v2, s[20:23], s{sT} offen sc1")
    A(f"""
    v_and_b32 v{gFl}, 15, v1
    v_lshlrev_b32 v{gFl}, 9, v{gFl}
    s_lshl_b32 s{sFl}, s{sD}, 13
    s_lshr_b32 s4, s{sTok}, 3
    s_and_b32 s4, s4, 3
    s_lshl_b32 s4, s4, 7
    s_add_u32 s{sFl}, s{sFl}, s4
    s_add_u32 s{sFl}, s{sFl}, {WS_FLAG2}
    v_and_b32 v{gT}, 31, v1
    v_lshlrev_b32 v14, 2, v{gT}
    s_lshl_b32 s4, s{sTok}, 7
    s_add_u32 s5, s4, {WS_G}
    v_lshrrev_b32 v15, 5, v1
    v_lshl_add_u32 v3, v15, 15, v14
    s_lshl_b32 s6, s{sD}, 17
    s_add_u32 s6, s6, s4
    s_add_u32 s6, s6, {WS_GA}
    v_lshlrev_b32 v{gT}, 10, v{gT}
    v_lshl_add_u32 v{gT}, v15, 4, v{gT}
    s_lshl_b32 s7, s{sTok}, 15
    s_lshl_b32 s4, s{sD}, 6
    s_add_u32 s7, s7, s4
    s_mov_b32 s12, s60
    s_mov_b32 s13, s61
    s_mov_b32 s14, 0x200000
    v_add_u32 v15, s{sLds}, v{gL16}
    """)
    GA = None
    for k in range(28):
        pre = []
        vm.wait({("h", k)})
        if k in (0, 8, 12, 18): stamp({0: 1, 8: 2, 12: 3, 18: 4}[k], 1)
        lg.wait({("w", k)})
        if k >= WLA and wnx[0] < 24:
            kn = wnx[0]; wnx[0] += 1
            wreg[kn] = (free.pop(), free.pop())
            pre = [(("w", kn), x) for x in wd_reads(kn - 12, *wreg[kn])]
        lw = []
        for n, (dd, tt) in enumerate(((0,0),(0,1),(1,0),(1,1))):
            c = "0" if k == 0 else vr(ACC+16*(2*dd+tt), 16)
            A(f"v_mfma_f32_32x32x16_bf16 {vr(ACC+16*(2*dd+tt),16)}, {vr(wreg[k][dd],4)}, {vr(hreg[(k,tt)],4)}, {c}")
            if HIL and n in (0, 2): h_issue(k + 1, 1)
            if n in (1, 3) and lw:
                kl, t = lw.pop(0); vm.issue(("w", kl), t)
            if pre: lg.issue(*pre.pop(0))
        free += [hreg[(k,0)], hreg[(k,1)], wreg[k][0], wreg[k][1]]
        h_issue(k + 1)
        if k == 12: pad("g21")
        if k == 20: vm.issue("f", f"buffer_load_dword v2, v{gFl}, s[20:23], s{sFl} offen sc1")
        if k == 24:
            stamp(7)
            A(f"""
            s_waitcnt vmcnt(0)
L_g2_poll:
            v_cmp_eq_u32 vcc, 0, v2
            s_cbranch_vccz L_g2_ready
            s_sub_u32 s{sSpin}, s{sSpin}, 1
            s_cbranch_scc1 L_g2_ready
            s_mov_b64 exec, vcc
            s_sleep {SLP}
            buffer_load_dword v2, v{gFl}, s[20:23], s{sFl} offen sc1
            s_waitcnt vmcnt(0)
            s_branch L_g2_poll
            """)
            pad("g22", inline=False)
            A("L_g2_ready:\ns_mov_b64 exec, -1")
            vm.ops = []
            fr = sorted(free)
            GA = next(r for r in fr if r + 4 in fr and r >= 96)
            free.remove(GA); free.remove(GA + 4)
            A("buffer_load_dword v4, v14, s[20:23], s5 offen sc1")
            for m in range(8):
                A(f"buffer_load_dword v{GA+m}, v3, s[20:23], s6 offen sc1")
                if m < 7: A(f"s_add_u32 s6, s6, {8192 if (m & 3) != 3 else 5*8192}")
    assert wnx[0] == 24
    stamp(8)
    A(f"""
    v_xor_b32 v8, 0x1000, v15
    v_xor_b32 v9, 0x2000, v15
    v_xor_b32 v10, 0x3000, v15
    s_nop 6
    """)
    for x in range(1, 4):
        for i in range(4):
            A(f"ds_write_b128 v15, {vr(ACC+16*x+4*i,4)} offset:{(x-1)*16384 + 1024*i}")
    A("s_waitcnt vmcnt(0)\nv_and_b32 v4, 0xffff0000, v4")
    for p in range(8):
        A(f"v_lshlrev_b32 v{80+2*p}, 16, v{GA+p}\nv_and_b32 v{81+2*p}, 0xffff0000, v{GA+p}")
    A("s_waitcnt lgkmcnt(0)\ns_barrier")
    for x in range(3):
        for i in range(4):
            A(f"ds_read_b128 {vr(32+16*x+4*i,4)}, v{8+x} offset:{x*16384 + 1024*i}")
    for x in range(3):
        A(f"s_waitcnt lgkmcnt({8 - 4*x})")
        for p in range(8):
            A(f"v_pk_add_f32 {vr(ACC+2*p,2)}, {vr(ACC+2*p,2)}, {vr(32+16*x+2*p,2)}")
    for p in range(8):
        A(f"v_pk_fma_f32 {vr(32+2*p,2)}, {vr(ACC+2*p,2)}, v[4:5], {vr(80+2*p,2)} op_sel_hi:[1,0,1]")
    for p in range(8):
        A(f"v_cvt_pk_bf16_f32 v{24+p}, v{32+2*p}, v{33+2*p}")
    A(f"""
    buffer_store_dwordx4 v[24:27], v{gT}, s[12:15], s7 offen
    buffer_store_dwordx4 v[28:31], v{gT}, s[12:15], s7 offen offset:32
    """)
    stamp_flush()
    A("s_endpgm")

def main():
    order = [[None]*4 + ["rb", "tb0", "tb1", "su"],
             [None]*4 + ["lp", "rb1", "rb2", "g1b"],
             ["ea0", "ea1", "g20", "g21"],
             [None]*4 + ["kf", "cv0", "cv1", "g22"]]
    for r, names in enumerate(order):
        for w, n in enumerate(names):
            if n: PLAN[n] = (r, w)
    A('.amdgcn_target "amdgcn-amd-amdhsa--gfx950"\n.text')
    A(f".globl {KNAME}\n.p2align 12\n.type {KNAME},@function\n{KNAME}:")
    if STAMP:
        for i in range(NST): A(f"s_mov_b32 s{80+2*i}, 0")
    stamp(0)
    A("s_cmp_ge_u32 s2, 256\ns_cbranch_scc1 L_exit")
    prologue()
    role_a()
    pad("rb", inline=False)
    role_b()
    mover_body()
    A("L_exit:\n    s_endpgm")
    assert not STUBS or set(PADS) == set(PLAN), set(PLAN) - set(PADS)
    A(f""".section .rodata,"a"
.p2align 6
.amdhsa_kernel {KNAME}
  .amdhsa_next_free_vgpr 256
  .amdhsa_next_free_sgpr 102
  .amdhsa_accum_offset 256
  .amdhsa_group_segment_fixed_size 0
  .amdhsa_kernarg_size 136
  .amdhsa_user_sgpr_count 2
  .amdhsa_user_sgpr_kernarg_segment_ptr 1
  .amdhsa_system_sgpr_workgroup_id_x 1
.end_amdhsa_kernel""")
    open(sys.argv[1], "w").write(HEADER + "\n".join(L) + "\n")

main()
```

```python
import sys, struct, math

OPTS = dict(a.split("=") for a in sys.argv[2:])
def opt(name, dflt): return int(OPTS.get(name, dflt))
STAMP = opt("stamp", 0); SS = opt("ss", 0)
T2 = opt("t2", 1); CT = opt("ct", 1); HD = opt("hd", 5); MROWS = opt("mrows", 2); QM = opt("qm", 1); ROT3 = opt("rot3", 1); NW = opt("nw", 14); CPY = opt("cpy", 0); DLY = opt("dly", 0); FK = opt("fk", 17); CK = opt("ck", 21); HIL = opt("hil", 1); WLA = opt("wla", 8); E1 = opt("e1", 0); NSL = opt("nsl", 4); TPOS = opt("tpos", 0); MG2 = opt("mg2", 0); LW = opt("lw", 0); PUBN = opt("pubn", 12); TLB = opt("tlb", 0); CST = opt("cst", 0); RS = opt("rs", 4); AW = opt("aw", 0); AWP = opt("awp", 100); NOMID = opt("nomid", 0); HST = OPTS.get("hst", "sc1").replace("_", " "); ROT2 = opt("rot2", 1); USW = opt("usw", 1); BT = opt("bt", 0); BT0 = opt("bt0", 3); BAL = opt("bal", 1); NPOST = opt("npost", 27); T2W = opt("t2w", -1); GWL = 64*1056; PS = opt("ps", 15); PF1 = opt("pf1", 0); SLP = opt("slp", 2); WSB = opt("wsb", 0); ENC = opt("enc", -1); ENCWG = opt("encwg", 100); ENCW = opt("encw", 0); FIXT = opt("fixt", 0); AG64 = opt("ag64", 0); AGE = opt("age", 0); KFP = opt("kfp", 3); SCH = opt("sch", 0); OST = OPTS.get("ost", ""); PRE_ST = opt("prest", 0); PRE = opt("pre", 1); HDMAX = opt("hdmax", 8); AGT = opt("agt", 1); BLT = opt("blt", 0); BLS = opt("bls", 6); PPRIO = opt("pprio", 2); MGT = opt("mgt", 0)
SPIN = opt("spin", 0x40000); STUBS = opt("stubs", 1); NOFILL = opt("nofill", 0); PKT = opt("pkt", 1)
APRIO = opt("aprio", 1); BPRIO = opt("bprio", 0); EPRIO = opt("eprio", 2); B2W = opt("b2w", 4); KDYN = opt("kdyn", 6); B2A = opt("b2a", 1); HT = opt("ht", 0); W3E = opt("w3e", 0); MT = opt("mt", 2)
KNAME = "gated_mix__ssm_conv_s4__geglu_ffn__prompt_kernel"

WS_H, WS_UT, WS_GA = 0x0, 0x700000, 0x900000
WS_G, WS_FLAG, WS_STAMP = 0xB00000, 0xB08000, 0x1400000
WS_FLAG2 = WS_FLAG + 1792*128
WS_FLAG3 = WS_FLAG + 2816*128
WS_BYTES = 0x10000000
WS_WD = 0xC00000
OOB = 0x40000000

XB = 65536
TB = 98304
PITCH = 528
KD = TB + 2*57*PITCH
CH = 12928
UOFF = 8320
RED = TB + 2*CH
CNT = KD + 3072
assert CNT + 8 <= 163840 and RED + 32768 <= KD and RED % 16 == 0
UP = 1056
L2E = math.log2(math.e)
WSTEP = 32*3584

L = []
def lines(s): return [x.strip() for x in s.strip("\n").split("\n") if x.strip()]
def A(s):
    if isinstance(s, (list, tuple)): s = "\n".join(s)
    for line in lines(s):
        L.append(line if line.endswith(":") or line.startswith(".") else "    " + line)
def fbits(x): return "0x%08x" % struct.unpack("<I", struct.pack("<f", x))[0]
def vr(b, n): return f"v[{b}:{b+n-1}]"
def srd(base, size): A(f"s_mov_b32 s{base+2}, {size:#x}\ns_mov_b32 s{base+3}, 0x00020000")

NST = 9
def stamp(idx, ss=0):
    if ENC >= 0:
        if ss == 0 and idx in (0, ENC): A(f"s_memrealtime s[{80+2*idx}:{81+2*idx}]\ns_waitcnt lgkmcnt(0)")
        return
    if STAMP and (ss == SS or (ss == 0 and not (SS in (3, 4, 5) and idx in (1, 2, 6, 7, 8)) and not (SS == 6 and idx in (1, 2, 3, 6, 7, 8)) and not (SS == 1 and idx in (1, 2, 3, 4)) and not (SS == 2 and idx in (1, 2, 3)))):
        A(f"s_memrealtime s[{80+2*idx}:{81+2*idx}]\ns_waitcnt lgkmcnt(0)")
ENCN = [0]
def stamp_flush():
    if ENC >= 0:
        ENCN[0] += 1; n = ENCN[0]
        if ENC >= 20:
            A(f"""
            s_waitcnt vmcnt(0) lgkmcnt(0)
            s_memrealtime s[98:99]
            s_waitcnt lgkmcnt(0)
            s_mov_b64 exec, 1
            v_mov_b32 v2, 0
            v_mov_b32 v3, s98
            v_mov_b32 v4, s80
            v_not_b32 v5, v4
            s_cmp_eq_u32 s{sWN}, 0
            s_cbranch_scc0 L_enc_end{n}
            global_atomic_umax v2, v3, s[62:63] offset:192 sc1
            global_atomic_umax v2, v4, s[62:63] offset:196 sc1
            global_atomic_umax v2, v5, s[62:63] offset:200 sc1
            s_cmp_eq_u32 s2, {ENCWG}
            s_cbranch_scc0 L_enc_end{n}
            s_cmp_eq_u32 s{sW}, 0
            s_cbranch_scc0 L_enc_end{n}
            s_add_u32 s3, s80, 6000
L_enc_w{n}:
            s_memrealtime s[4:5]
            s_waitcnt lgkmcnt(0)
            s_sub_u32 s6, s4, s3
            s_cmp_lt_i32 s6, 0
            s_cbranch_scc1 L_enc_w{n}
            global_load_dwordx4 v[4:7], v2, s[62:63] offset:192 sc1
            s_waitcnt vmcnt(0)
            v_readfirstlane_b32 s4, v4
            v_readfirstlane_b32 s5, v5
            v_readfirstlane_b32 s6, v6
            s_not_b32 s6, s6
            s_sub_u32 s7, {"s4" if ENC == 20 else "s5" if ENC == 21 else "s6"}, s6
            s_and_b32 s7, s7, 0xfff
            s_lshl_b32 s7, s7, 3
            s_add_u32 s3, s6, 8000
            s_add_u32 s3, s3, s7
L_enc_spin{n}:
            s_memrealtime s[4:5]
            s_waitcnt lgkmcnt(0)
            s_sub_u32 s6, s4, s3
            s_cmp_lt_i32 s6, 0
            s_cbranch_scc1 L_enc_spin{n}
L_enc_end{n}:
            """)
            return
        A(f"""
        s_cmp_eq_u32 s2, {ENCWG}
        s_cbranch_scc0 L_enc_end{n}
        s_cmp_eq_u32 s{sW}, {ENCW}
        s_cbranch_scc0 L_enc_end{n}
        s_waitcnt vmcnt(0) lgkmcnt(0)
        s_memrealtime s[98:99]
        s_waitcnt lgkmcnt(0)
        s_sub_u32 s3, s{80+2*ENC}, s80
        s_and_b32 s3, s3, 0xfff
        s_lshl_b32 s3, s3, 2
        s_add_u32 s3, s3, s80
        s_add_u32 s3, s3, 2000
        {f"s_add_u32 s3, s80, {FIXT}" if FIXT else ""}
L_enc_spin{n}:
        s_memrealtime s[4:5]
        s_waitcnt lgkmcnt(0)
        s_sub_u32 s6, s4, s3
        s_cmp_lt_i32 s6, 0
        s_cbranch_scc1 L_enc_spin{n}
L_enc_end{n}:
        """)
        return
    if not STAMP: return
    A(f"""
    s_waitcnt vmcnt(0) lgkmcnt(0)
    s_memrealtime s[{80+2*NST}:{81+2*NST}]
    s_waitcnt lgkmcnt(0)
    s_mov_b64 exec, -1
    v_lshrrev_b32 v1, 6, v0
    s_lshl_b32 s3, s2, 3
    v_add_u32 v1, s3, v1
    v_lshlrev_b32 v1, 6, v1
    v_add_u32 v1, {WS_STAMP}, v1
    """)
    for i in range(12): A(f"v_mov_b32 v{4+i}, s{80+2*min(i, NST)}")
    A(f"""
    v_and_b32 v2, 63, v0
    v_cmp_eq_u32 vcc, 0, v2
    s_and_saveexec_b64 s[4:5], vcc
    buffer_store_dwordx4 v[4:7], v1, s[20:23], 0 offen
    buffer_store_dwordx4 v[8:11], v1, s[20:23], 0 offen offset:16
    buffer_store_dwordx4 v[12:15], v1, s[20:23], 0 offen offset:32
    """)

HEADER = f"""; gated mix of an S4 long convolution and a GeGLU FFN, one launch, one workgroup per CU.
;   woven into it: the SSM kernel K of two channels (factor tables, K = P Q by MFMA, expansion)
; @launch grid=(256,1,1) block=(512,1,1) lds=163840
"""

PADS = {}
PLAN = {}
def pad(name, inline=True):
    if not STUBS or name not in PLAN: return
    r, w = PLAN[name]
    if inline: A(f"s_branch L_skip_{name}")
    A(f"L_pad_{name}:\ns_branch L_warm_ret{r}")
    if inline: A(f"L_skip_{name}:")
    PADS[name] = PLAN[name]
def warm(r):
    if not STUBS: return
    tgt = {w: n for n, (rr, w) in PLAN.items() if rr == r}
    for w in range(8):
        if w in tgt: A(f"s_cmp_eq_u32 s{sW}, {w}\ns_cbranch_scc1 L_pad_{tgt[w]}")
    A(f"L_warm_ret{r}:")

sW, sXoff, sWoff, sM0W, sM0X, sB1 = 24, 25, 26, 27, 28, 29
sTB, sFB, sWN, sWM, sI, sJ, sMov, sSpin = 32, 33, 36, 37, 38, 39, 40, 42
sHst, sDsk, sHfl, sRole = 43, 48, 49, 100
sTok, sD, sH0, sH1, sLds, sFl, sWd = 50, 51, 52, 53, 64, 65, 66
sCu, sCga, sCfl = 50, 51, 52
sK1, sK2 = 54, 55
sT, sIt, sHfl2, sTch, sRX, sRW, sRho = 41, 30, 31, 29, 44, 45, 67
vTch, vJunk = 253, 254
vXo = [240, 241]; vWo = 242; vDo = [248, 249]
vWr = 75; vXr = [76, 77, 78, 79]
vPoll, vZero, cMv, vTab = 250, 251, 252, 93
FR = [80, 104]; ACC1 = 128
vU, vG = 224, 232
PAR = 120
XA = 48
cKf0, cKf1, cKd0, cKd1, cKd2 = 2, 3, 4, 14, 15
cUw, cZ0, cZ1, cImg = 71, 72, 73, 74
cA = [75, 76, 77, 78]; cB, cRw, cRr, cUr, cS0, cS1, cLu0, cLu1, cLg0, cLg1, cT, cCnt, cOne = range(79, 92)
gD = [8, 9, 10, 11]; gX = [12, 13]; gFl, gL16, gT = 5, 6, 7

class Cnt:
    def __init__(self, name, cap): self.ops = []; self.name = name; self.cap = cap
    def note(self, tag): self.ops.append(tag)
    def issue(self, tag, text): A(text); self.ops.append(tag)
    def need(self, tags):
        idx = [i for i, t in enumerate(self.ops) if t in tags]
        if not idx: return None
        n = min(len(self.ops) - 1 - max(idx), self.cap)
        self.ops = self.ops[len(self.ops)-n:] if n else []
        return n
    def wait(self, tags):
        n = self.need(tags)
        if n is not None: A(f"s_waitcnt {self.name}({n})")

def u32(x): return x & 0xffffffff
def x_dma(c):
    o = []
    pre = [f"s_add_u32 s46, s{sRX}, {c*128}", "s_and_b32 s46, s46, 1023", f"s_add_u32 s46, s46, s{sXoff}"] if ROT2 else []
    for part in (1, 0):
        o += [f"s_add_u32 m0, s{sM0X}, {u32((c&1)*16384 - part*8192)}",
              f"s_add_u32 s{sT}, s46, {u32(-part*65536)}" if ROT2 else f"s_add_u32 s{sT}, s{sXoff}, {u32(c*128 - part*65536)}",
              f"buffer_load_dwordx4 v{vXo[0]}, s[8:11], s{sT} offen lds",
              f"buffer_load_dwordx4 v{vXo[1]}, s[8:11], s{sT} offen offset:1024 lds"]
    o[0] = "\n".join(pre + [o[0]])
    return o
def w_dma(s):
    o = []
    pre = [f"s_add_u32 s46, s{sRW}, {s}", "s_and_b32 s46, s46, 15", f"s_mul_i32 s46, s46, {WSTEP}", f"s_add_u32 s46, s46, s{sWoff}"] if ROT2 else []
    for part in (1, 0):
        o += [f"s_add_u32 m0, s{sM0W}, {u32((s&3)*16384 - part*8192)}",
              f"s_add_u32 s{sT}, s46, {u32(-part*16*3584)}" if ROT2 else f"s_add_u32 s{sT}, s{sWoff}, {u32(s*WSTEP - part*16*3584)}",
              f"buffer_load_dwordx4 v{vWo}, s[12:15], s{sT} offen lds",
              f"buffer_load_dwordx4 v{vWo}, s[16:19], s{sT} offen offset:1024 lds"]
    o[0] = "\n".join(pre + [o[0]])
    return o
def piece_off(kap): return 16384*(kap >> 1) + 2048*(kap & 1) + (RED - 98304 if kap >= 12 else 0)
def d_piece(kap, k):
    off = f"s_add_u32 s{sT}, s{sWd}, {k*16384}"
    if ROT3 and k >= 4:
        off = f"s_cmp_ge_u32 s{sRho}, {28 - k}\ns_cselect_b32 s47, {28*16384}, 0\n{off}\ns_sub_u32 s{sT}, s{sT}, s47"
    return [f"s_add_u32 m0, s{sLds}, {piece_off(kap)}", off,
            f"buffer_load_dwordx4 v{vDo[0]}, s[68:71], s{sT} offen lds",
            f"buffer_load_dwordx4 v{vDo[1]}, s[68:71], s{sT} offen offset:1024 lds"]
def d_dma(sig): return d_piece(2*sig, 2*sig) + d_piece(2*sig + 1, 2*sig + 1)

def common_setup():
    A(f"""
    v_lshrrev_b32 v16, 4, v1
    v_and_b32 v16, 1, v16
    v_lshlrev_b32 v16, 2, v16
    v_and_b32 v17, 7, v1
    v_xor_b32 v16, v16, v17
    v_lshrrev_b32 v17, 3, v1
    v_lshlrev_b32 v17, 10, v17
    v_lshl_add_u32 v{vDo[0]}, v16, 4, v17
    v_add_u32 v{vDo[1]}, 7168, v{vDo[0]}
    {f"s_add_u32 s68, s20, {WS_WD}" if CPY else "s_mov_b32 s68, s56"}
    {"s_addc_u32 s69, s21, 0" if CPY else "s_mov_b32 s69, s57"}
    s_mov_b32 s70, {1792*1024}
    s_mov_b32 s71, 0x00020000
    s_lshl_b32 s{sLds}, s{sWN}, 12
    s_mul_i32 s{sWd}, s{sWN}, {28*16384}
    s_lshl_b32 s4, s{sJ}, 7
    s_add_u32 s{sWd}, s{sWd}, s4
    s_and_b32 s{sRho}, s2, {7 if ROT3 else 0}
    s_cmp_eq_u32 s{sRho}, 7
    s_cselect_b32 s{sRho}, 3, s{sRho}
    s_lshl_b32 s{sRho}, s{sRho}, 2
    s_lshl_b32 s4, s{sRho}, 14
    s_add_u32 s{sWd}, s{sWd}, s4
    s_mov_b32 s{sSpin}, {SPIN}
    """)

def g1_setup():
    A(f"""
    v_lshrrev_b32 v16, 2, v1
    v_and_b32 v16, 3, v16
    v_xor_b32 v17, s{sWN}, v16
    v_lshlrev_b32 v{vWr}, 8, v16
    v_lshl_add_u32 v{vWr}, v17, 6, v{vWr}
    v_lshrrev_b32 v16, 5, v1
    v_lshl_add_u32 v{vWr}, v16, 12, v{vWr}
    v_and_b32 v17, 16, v1
    v_lshlrev_b32 v18, 1, v17
    v_and_b32 v17, 1, v1
    v_lshl_add_u32 v18, v17, 4, v18
    v_and_b32 v17, 2, v1
    v_lshl_add_u32 v18, v17, 2, v18
    v_add_u32 v{vWr}, v{vWr}, v18
    v_lshrrev_b32 v17, 1, v1
    v_and_b32 v17, 7, v17
    v_xor_b32 v17, v17, v16
    v_and_b32 v{vXr[0]}, 31, v1
    v_lshlrev_b32 v{vXr[0]}, 7, v{vXr[0]}
    v_lshl_add_u32 v{vXr[0]}, v17, 4, v{vXr[0]}
    v_add_u32 v{vXr[0]}, {XB}, v{vXr[0]}
    v_xor_b32 v{vXr[1]}, 32, v{vXr[0]}
    v_xor_b32 v{vXr[2]}, 64, v{vXr[0]}
    v_xor_b32 v{vXr[3]}, 0x60, v{vXr[0]}
    s_mul_i32 s{sHst}, s{sTB}, 448
    s_lshl_b32 s5, s{sFB}, 2
    s_add_u32 s5, s5, s{sWN}
    s_lshl_b32 s4, s5, 1
    s_add_u32 s{sHst}, s{sHst}, s4
    s_lshl_b32 s{sHst}, s{sHst}, 10
    s_mul_i32 s3, s{sTB}, 112
    s_add_u32 s3, s3, s5
    s_lshl_b32 s3, s3, 7
    s_add_u32 s{sHfl}, s3, {WS_FLAG}
    s_mov_b32 s34, {fbits(-2.0 * L2E * math.sqrt(2.0/math.pi) * 0.044715)}
    s_mov_b32 s35, s34
    s_mov_b32 s{sIt}, 0
    """)

def k_setup1():
    A(f"""
    s_lshr_b32 s6, s{sWN}, 1
    s_and_b32 s7, s{sWN}, 1
    s_mul_i32 s4, s6, {57*PITCH}
    s_add_u32 s4, s4, {TB}
    v_and_b32 v16, 15, v1
    v_lshrrev_b32 v17, 4, v1
    v_mul_u32_u24 v{cKf0}, {PITCH}, v16
    v_lshl_add_u32 v{cKf0}, v17, 4, v{cKf0}
    v_add_u32 v{cKf0}, s4, v{cKf0}
    s_mul_i32 s4, s7, {16*PITCH}
    v_add_u32 v{cKf1}, s4, v{cKf0}
    s_lshl_b32 s3, s6, 1
    s_add_u32 s3, s3, {KD}
    v_lshrrev_b32 v18, 1, v17
    v_and_b32 v19, 1, v17
    v_lshlrev_b32 v24, 7, v18
    v_lshl_add_u32 v24, v19, 2, v24
    v_lshl_add_u32 v24, v16, 3, v24
    v_lshlrev_b32 v25, 6, v17
    v_add_u32 v25, 256, v25
    v_lshl_add_u32 v26, v16, 2, v25
    v_lshl_add_u32 v27, v16, 1, v25
    v_cmp_gt_u32 vcc, 2, v17
    v_mov_b32 v28, 32
    v_lshl_add_u32 v25, v17, 6, v16
    v_cndmask_b32 v26, v27, v26, vcc
    v_cndmask_b32 v28, v28, 2, vcc
    s_cmp_eq_u32 s7, 0
    s_cselect_b64 vcc, -1, 0
    v_lshl_add_u32 v{cKd2}, v25, 2, s3
    v_cndmask_b32 v26, v26, v24, vcc
    v_cndmask_b32 v28, v28, 2, vcc
    v_add_u32 v28, v26, v28
    v_lshl_add_u32 v{cKd0}, v26, 2, s3
    v_lshl_add_u32 v{cKd1}, v28, 2, s3
    """)
def k_setup2():
    CB = 0x4300 - 128
    A(f"""
    v_and_b32 v{cT}, 127, v0
    s_lshr_b32 s6, s{sWN}, 1
    s_and_b32 s7, s{sWN}, 1
    s_mul_i32 s5, s6, {CH}
    s_add_u32 s5, s5, {TB}
    v_and_b32 v29, 255, v0
    v_lshlrev_b32 v{cImg}, 4, v29
    v_lshlrev_b32 v29, 3, v29
    v_sub_u32 v29, 2047, v29
    v_cvt_f32_i32 v30, v29
    v_add_u32 v29, {CB}, v29
    v_mov_b32 v31, {128 + CB}
    s_mov_b32 s3, {KD - 4*CB}
    """)
    for e in range(9):
        r = XA + e
        A(f"v_subrev_f32 v{r}, {fbits(float(e))}, v30\nv_cvt_pk_bf16_f32 v{r}, v{r}, 0")
        A(f"v_subrev_u32 v24, {e}, v29\nv_med3_i32 v{r}, v{r}, v24, v31")
        A(f"v_lshl_add_u32 v{r}, v{r}, 2, s3")
    A(f"""
    v_lshl_add_u32 v{cZ0}, v{cT}, 2, s5
    v_and_b32 v{cZ1}, 60, v{cZ0}
    s_mul_i32 s3, s7, 4160
    s_add_u32 s3, s3, s5
    v_add_u32 v{cZ1}, s3, v{cZ1}
    v_add_u32 v{cImg}, {TB}, v{cImg}
    """)
def k_setup(): k_setup2()

def conv_setup1():
    A(f"""
    v_and_b32 v32, 255, v0
    v_lshlrev_b32 v{cS0}, 4, v32
    v_add_u32 v{cS1}, 4096, v{cS0}
    v_add_u32 v{cLg0}, {WS_G}, v{cS0}
    v_add_u32 v{cLg1}, {WS_G}, v{cS1}
    v_lshrrev_b32 v33, 3, v32
    v_lshlrev_b32 v{cLu0}, 10, v33
    v_and_b32 v26, 7, v32
    v_lshl_add_u32 v{cLu0}, v26, 4, v{cLu0}
    v_xor_b32 v26, s2, v33
    v_and_b32 v26, 7, v26
    v_lshl_add_u32 v{cLu0}, v26, 7, v{cLu0}
    v_add_u32 v{cLu1}, 32768, v{cLu0}
    s_lshr_b32 s{sCu}, s2, 3
    s_lshl_b32 s{sCu}, s{sCu}, 16
    s_add_u32 s{sCu}, s{sCu}, {WS_UT}
    s_and_b32 s3, s2, 31
    s_lshl_b32 s3, s3, 7
    s_add_u32 s3, s3, {WS_FLAG3}
    v_mov_b32 v{cMv}, s3
    """)
def conv_setup2():
    A(f"""
    v_lshlrev_b32 v{cUw}, 6, v33
    v_and_b32 v26, 3, v32
    v_lshl_add_u32 v{cUw}, v26, 4, v{cUw}
    v_bfe_u32 v26, v32, 2, 1
    v_mul_u32_u24 v26, {CH}, v26
    v_add_u32 v{cUw}, v{cUw}, v26
    v_add_u32 v{cUw}, {TB + UOFF + 512}, v{cUw}
    s_lshr_b32 s6, s{sWN}, 1
    s_and_b32 s7, s{sWN}, 1
    s_mul_i32 s5, s6, {CH}
    s_add_u32 s5, s5, {TB}
    v_and_b32 v16, 15, v1
    v_lshrrev_b32 v17, 4, v1
    v_add_u32 v{cRr}, {RED}, v{cS0}
    v_lshrrev_b32 v{cUr}, 1, v{cS0}
    v_add_u32 v{cUr}, {TB + UOFF + 512}, v{cUr}
    v_and_b32 v24, 1, v16
    v_xor_b32 v24, 1, v24
    v_mul_u32_u24 v24, 4160, v24
    v_and_b32 v25, 14, v16
    v_lshlrev_b32 v25, 1, v25
    v_sub_u32 v24, v24, v25
    v_lshl_add_u32 v24, v17, 4, v24
    s_lshl_b32 s4, s7, 8
    s_sub_u32 s4, s5, s4
    s_add_u32 s3, s4, {4060 - 512 - 192}
    v_add_u32 v{cA[0]}, s3, v24
    v_subrev_u32 v{cA[1]}, 1024, v{cA[0]}
    v_subrev_u32 v{cA[2]}, 2048, v{cA[0]}
    v_subrev_u32 v{cA[3]}, 3072, v{cA[0]}
    v_lshlrev_b32 v{cB}, 5, v16
    v_lshl_add_u32 v{cB}, v17, 4, v{cB}
    s_add_u32 s3, s4, {UOFF + 480 - 192}
    v_add_u32 v{cB}, s3, v{cB}
    v_lshlrev_b32 v{cRw}, 6, v16
    v_lshl_add_u32 v{cRw}, v17, 4, v{cRw}
    s_lshl_b32 s3, s{sWN}, 13
    s_add_u32 s3, s3, {RED}
    v_add_u32 v{cRw}, s3, v{cRw}
    s_lshl_b32 s{sCga}, s2, 13
    s_add_u32 s{sCga}, s{sCga}, {WS_GA}
    s_lshl_b32 s3, s2, 2
    s_load_dword s{sDsk}, s[78:79], s3
    s_add_u32 s3, s3, s{sWN}
    s_lshl_b32 s3, s3, 7
    s_add_u32 s{sCfl}, s3, {WS_FLAG2}
    """)
def conv_setup(): conv_setup1(); conv_setup2()

def g2_setup():
    A(f"""
    s_and_b32 s6, s{sW}, 1
    s_lshr_b32 s7, s{sW}, 1
    s_lshl_b32 s{sTok}, s{sI}, 1
    s_add_u32 s{sTok}, s{sTok}, s6
    s_lshl_b32 s{sD}, s{sJ}, 1
    s_add_u32 s{sD}, s{sD}, s7
    v_lshrrev_b32 v16, 2, v1
    v_and_b32 v16, 3, v16
    v_lshrrev_b32 v17, 5, v1
    v_lshl_add_u32 v19, v17, 3, v16
    v_lshl_add_u32 v{gD[0]}, v19, 7, v18
    v_lshrrev_b32 v16, 1, v16
    v_xor_b32 v16, s7, v16
    v_lshl_add_u32 v{gD[0]}, v16, 6, v{gD[0]}
    v_add_u32 v{gD[0]}, s{sLds}, v{gD[0]}
    v_xor_b32 v{gD[1]}, 64, v{gD[0]}
    v_add_u32 v{gD[2]}, 0x10000, v{gD[0]}
    v_add_u32 v{gD[3]}, 0x10000, v{gD[1]}
    v_min_u32 v{gFl}, 13, v1
    v_lshlrev_b32 v{gFl}, 7, v{gFl}
    s_lshl_b32 s{sFl}, s{sI}, 2
    s_add_u32 s{sFl}, s{sFl}, s{sW}
    s_mul_i32 s{sFl}, s{sFl}, {14*128}
    s_add_u32 s{sFl}, s{sFl}, {WS_FLAG}
    v_lshlrev_b32 v{gL16}, 4, v1
    s_mul_i32 s3, s{sW}, 28
    s_add_u32 s3, s3, s{sRho}
    s_lshl_b32 s3, s3, 10
    s_mul_i32 s{sH0}, s{sTok}, {112*1024}
    s_xor_b32 s4, s{sTok}, 1
    s_mul_i32 s{sH1}, s4, {112*1024}
    s_add_u32 s{sH0}, s{sH0}, s3
    s_add_u32 s{sH1}, s{sH1}, s3
    """)

def prologue():
    A(f"""
    s_load_dwordx16 s[64:79], s[0:1], 8
    s_load_dwordx2 s[8:9], s[0:1], 0
    s_load_dwordx4 s[12:15], s[0:1], 80
    s_load_dwordx8 s[56:63], s[0:1], 96
    s_load_dwordx2 s[20:21], s[0:1], 128
    v_lshrrev_b32 v2, 6, v0
    v_and_b32 v1, 63, v0
    v_mov_b32 v{vZero}, 0
    v_mov_b32 v{cCnt}, {CNT}
    v_mov_b32 v{cOne}, 1
    ds_write_b32 v{cCnt}, v{vZero}
    v_and_b32 v3, 255, v0
    v_readfirstlane_b32 s{sW}, v2
    s_lshl_b32 s3, s2, 8
    v_add_u32 v3, s3, v3
    v_lshlrev_b32 v3, 1, v3
    v_lshrrev_b32 v4, 7, v3
    v_and_b32 v4, 0xfffffffe, v4
    """)
    if STUBS: A(f"s_cmp_lt_u32 s2, 224\ns_cbranch_scc1 L_warm0\ns_cmp_eq_u32 s{sW}, 4\ns_cbranch_scc1 L_pad_mv\nL_warm0:")
    warm(0)
    A(f"""
    s_and_b32 s{sWN}, s{sW}, 3
    s_lshr_b32 s{sWM}, s{sW}, 2
    s_and_b32 s3, s2, 7
    s_lshr_b32 s4, s2, 3
    s_lshr_b32 s{sTB}, s3, 1
    s_lshl_b32 s{sTB}, s{sTB}, 2
    s_and_b32 s5, s4, 3
    s_add_u32 s{sTB}, s{sTB}, s5
    s_lshl_b32 s{sI}, s3, 2
    s_add_u32 s{sI}, s{sI}, s5
    s_and_b32 s{sFB}, s3, 1
    s_mul_i32 s{sFB}, s{sFB}, 7
    s_lshr_b32 s{sJ}, s4, 2
    s_add_u32 s{sFB}, s{sFB}, s{sJ}
    s_lshl_b32 s{sXoff}, s{sTB}, 17
    s_lshl_b32 s5, s{sW}, 14
    s_add_u32 s{sXoff}, s{sXoff}, s5
    s_mul_i32 s{sWoff}, s{sW}, {4*3584}
    s_lshl_b32 s5, s{sFB}, 8
    s_add_u32 s{sWoff}, s{sWoff}, s5
    s_and_b32 s{sRW}, s3, 6
    s_lshl_b32 s{sRX}, s{sRW}, 7
    s_lshl_b32 s{sRW}, s{sRW}, 1
    s_lshl_b32 s{sM0W}, s{sW}, 11
    s_add_u32 s{sM0X}, s{sM0W}, {XB}
    v_lshrrev_b32 v16, 4, v1
    v_and_b32 v17, 7, v1
    v_xor_b32 v18, v17, v16
    v_lshrrev_b32 v19, 3, v1
    v_lshlrev_b32 v19, 10, v19
    v_lshl_add_u32 v{vXo[0]}, v18, 4, v19
    v_xor_b32 v{vXo[1]}, 64, v{vXo[0]}
    v_add_u32 v{vXo[1]}, 7168, v{vXo[1]}
    v_lshlrev_b32 v17, 2, v16
    v_and_b32 v{vWo}, 15, v1
    v_xor_b32 v{vWo}, v{vWo}, v17
    v_lshlrev_b32 v{vWo}, 4, v{vWo}
    v_mul_u32_u24 v16, 3584, v16
    v_add_u32 v{vWo}, v{vWo}, v16
    s_mov_b32 s10, 0x200000
    s_mov_b32 s11, 0x00020000
    s_mov_b32 s18, {512*1792*2 + 1024}
    s_mov_b32 s19, 0x00020000
    s_mov_b32 s22, {WS_BYTES - (WSB << 20)}
    s_mov_b32 s23, 0x00020000
    s_waitcnt lgkmcnt(0)
    s_add_u32 s20, s20, {WSB << 20}
    s_addc_u32 s21, s21, 0
    s_sub_u32 s16, s14, 1024
    s_subb_u32 s17, s15, 0
    s_mov_b32 s14, {512*1792*2}
    s_mov_b32 s15, 0x00020000
    """)
    params(0, 3)
    A(f"s_cmp_ge_u32 s{sW}, 4\ns_cbranch_scc1 L_role_b")
    params(3, 7)

def params(i0, i1):
    for i, p in list(enumerate((76, 64, 66, 68, 70, 72, 74)))[i0:i1]:
        A(f"global_load_ushort v{PAR+i}, v{4 if i == 0 else 3}, s[{p}:{p+1}]")

def touches():
    if not ROT2 or T2W == 1: return touches_all()
    A(f"""
    s_cmp_ge_u32 s2, 224
    s_cbranch_scc1 L_t2_done
    s_cmp_ge_u32 s{sW}, 2
    s_cbranch_scc1 L_t2_done
    s_lshl_b32 s3, s2, 1
    s_add_u32 s3, s3, s{sW}
    s_mul_i32 s3, s3, {37*128}
    v_min_u32 v112, 36, v1
    v_lshlrev_b32 v112, 7, v112
    buffer_load_dword v74, v112, s[8:11], s3 offen
L_t2_done:
    """)
def touches_all():
    A(f"""
    s_cmp_ge_u32 s2, 224
    s_cbranch_scc1 L_t2_done
    s_cmp_eq_u32 s{sW}, 0
    s_cbranch_scc0 L_t2_w
    v_min_u32 v112, 59, v1
    v_mul_u32_u24 v113, 43, v112
    v_lshrrev_b32 v113, 8, v113
    v_mul_u32_u24 v114, 6, v113
    v_sub_u32 v112, v112, v114
    v_lshlrev_b32 v112, 7, v112
    v_lshl_add_u32 v112, v113, 10, v112
    s_mul_i32 s3, s2, 10240
    s_add_u32 s3, s3, 256
    buffer_load_dword v74, v112, s[8:11], s3 offen
    s_branch L_t2_done
L_t2_w:
    v_min_u32 v112, 55, v1
    v_lshlrev_b32 v112, 7, v112
    s_mul_i32 s3, s2, 7168
    s_add_u32 s3, s3, {2*WSTEP}
    s_cmp_eq_u32 s{sW}, 1
    s_cbranch_scc0 L_t2_u
    buffer_load_dword v74, v112, s[12:15], s3 offen
    s_branch L_t2_done
L_t2_u:
    s_cmp_eq_u32 s{sW}, 2
    s_cbranch_scc0 L_t2_done
    buffer_load_dword v74, v112, s[16:19], s3 offen offset:1024
L_t2_done:
    """)
    if TLB:
        A(f"""
        s_cmp_eq_u32 s{sW}, 3
        s_cbranch_scc0 L_tlb_done
        v_mul_u32_u24 v112, {TLB*1024}, v1
        v_min_u32 v112, 0xC00000, v112
        buffer_load_dword v74, v112, s[20:23], 0 offen sc1
        v_lshlrev_b32 v112, 15, v1
        global_load_dword v74, v112, s[60:61] sc1
L_tlb_done:
        """)
    A("""
    """)

def tab_common(R):
    a, th, dt, t0 = R["a"], R["th"], R["dt"], R["t0"]
    return lines(f"""
    v_lshlrev_b32 v{PAR}, 16, v{PAR}
    v_lshlrev_b32 v{a}, 16, v{PAR+1}
    v_lshlrev_b32 v{th}, 16, v{PAR+2}
    v_mul_f32 v{dt}, s{sK1}, v{PAR}
    v_fma_f32 v{t0}, v{PAR}, s{sK1}, -v{dt}
    v_fma_f32 v{t0}, v{PAR}, s{sK2}, v{t0}
    v_exp_f32 v{dt}, v{dt}
    v_mul_f32 v{t0}, {fbits(math.log(2.0))}, v{t0}
    v_fmac_f32 v{dt}, v{dt}, v{t0}
    v_cvt_pk_bf16_f32 v{dt}, 0, v{dt}
    v_mul_f32 v{a}, v{dt}, v{a}
    v_mul_f32 v{th}, v{dt}, v{th}
    v_mul_f32 v{a}, s{sK1}, v{a}
    v_mul_f32 v{th}, 0.15915494, v{th}
    """)
def cexp(R, e, s, t):
    a, th = R["a"], R["th"]
    o = []
    if s == 1.0: o += [f"v_exp_f32 v{t}, v{a}", f"v_fract_f32 v{t+1}, v{th}"]
    else: o += [f"v_mul_f32 v{t}, {fbits(s)}, v{a}", f"v_mul_f32 v{t+1}, {fbits(s)}, v{th}", f"v_exp_f32 v{t}, v{t}", f"v_fract_f32 v{t+1}, v{t+1}"]
    o += [f"v_cos_f32 v{e}, v{t+1}", f"v_sin_f32 v{e+1}, v{t+1}", f"v_mul_f32 v{e}, v{t}, v{e}", f"v_mul_f32 v{e+1}, v{t}, v{e+1}"]
    return o
def neg(e): return [] if PKT else [f"v_sub_f32 v{e+2}, 0, v{e+1}"]
def cmul(d, a, b):
    if PKT:
        return [f"v_pk_mul_f32 {vr(d,2)}, {vr(a,2)}, {vr(b,2)} op_sel_hi:[0,1]",
                f"v_pk_fma_f32 {vr(d,2)}, {vr(a,2)}, {vr(b,2)}, {vr(d,2)} op_sel:[1,1,0] op_sel_hi:[1,0,1] neg_lo:[0,1,0]"]
    return [f"v_mul_f32 v{d}, v{a}, v{b}", f"v_mul_f32 v{d+1}, v{a}, v{b+1}",
            f"v_fmac_f32 v{d}, v{a+1}, v{b+2}", f"v_fmac_f32 v{d+1}, v{a+1}, v{b}"]
class Putter:
    def __init__(self, base): self.base = base; self.i = 0
    def __call__(self, row, r, ng=False):
        t = self.base + (self.i & 3); self.i += 1
        return [f"v_cvt_pk_bf16_f32 v{t}, v{r}, {'-' if ng else ''}v{r+1}", f"ds_write_b32 v{vTab}, v{t} offset:{row*PITCH}"]
PR = 16
def tab_addr():
    return lines(f"""
    v_and_b32 v{vTab}, 127, v0
    v_lshlrev_b32 v{vTab}, 2, v{vTab}
    s_lshr_b32 s6, s{sWN}, 1
    s_mul_i32 s4, s6, {57*PITCH}
    s_add_u32 s4, s4, {TB}
    v_add_u32 v{vTab}, s4, v{vTab}
    s_mov_b32 s{sK1}, {fbits(struct.unpack("<f", struct.pack("<f", L2E))[0])}
    s_mov_b32 s{sK2}, {fbits(L2E - struct.unpack("<f", struct.pack("<f", L2E))[0])}
    """)
def tables_a():
    R = dict(a=16, th=17, dt=18, t0=19); put = Putter(108)
    E1, E8, E128, DB, C = 44, 24, 28, 32, 36
    o = tab_common(R)
    o += cexp(R, E1, 1.0, 40) + neg(E1) + cexp(R, E128, 128.0, 42) + neg(E128)
    o += put(PR + 1, E1) + put(PR + 8, E128)
    o += cexp(R, E8, 8.0, 40) + neg(E8)
    o += lines(f"""
    v_lshlrev_b32 v{DB}, 16, v{PAR+3}
    v_lshlrev_b32 v{DB+1}, 16, v{PAR+4}
    v_lshlrev_b32 v{C}, 16, v{PAR+5}
    v_lshlrev_b32 v{C+1}, 16, v{PAR+6}
    v_mul_f32 v{DB}, v18, v{DB}
    v_mul_f32 v{DB+1}, v18, v{DB+1}
    """) + neg(DB)
    q = [20, 22]; jq = list(range(1, 16))
    o += cmul(q[0], C, DB) + put(0, q[0], True)
    def do_q():
        i = jq.pop(0); r = cmul(q[1], q[0], E8); q.reverse(); return r + put(i, q[0], True)
    o += cmul(52, E1, E128) + do_q() + put(PR + 9, 52)
    cur = E1; nx = 48
    for p in range(2, 8):
        o += cmul(nx, cur, E1); cur, nx = nx, (50 if nx == 48 else 48)
        d = 52 + 2*(p & 1)
        o += do_q() + put(PR + p, cur) + cmul(d, cur, E128) + do_q() + put(PR + 8 + p, d)
    while jq: o += do_q()
    return o
def tables_b():
    R = dict(a=16, th=17, dt=18, t0=19); put = Putter(108)
    E128, F2, F4, F6, E256 = 20, 24, 28, 32, 44
    o = tab_common(R)
    o += cexp(R, E128, 128.0, 40) + neg(E128) + cexp(R, F2, 2.0, 42) + neg(F2)
    o += ["v_mov_b32 v111, 0x3f80", f"ds_write_b32 v{vTab}, v111 offset:{PR*PITCH}"]
    o += cmul(E256, E128, E128) + neg(E256) + cmul(F4, F2, F2) + neg(F4) + cmul(38, E256, E128) + cmul(F6, F4, F2) + neg(F6)
    ch = {0: [E256, 96, 98], 1: [38, 100, 102]}; pp = 0
    for h in range(2, 17):
        c = ch[h & 1]; cur = c[0]
        if h + 2 <= 16: o += cmul(c[1], cur, E256)
        if h < 4: rows = [(PR + 16 + 4*(h-2) + p, f) for p, f in ((1, F2), (2, F4), (3, F6))]; r0 = PR + 16 + 4*(h-2)
        elif h < 8: rows = [(PR + 24 + 2*(h-4) + 1, F4)]; r0 = PR + 24 + 2*(h-4)
        else: rows = []; r0 = PR + 32 + (h-8)
        o += put(r0, cur)
        for row, f in rows:
            d = 40 + 2*(pp & 1); pp += 1
            o += cmul(d, cur, f) + put(row, d)
        ch[h & 1] = [c[1], c[2], c[1]] if h < 4 else [c[1], c[0], c[1]]
    return o
KF = [16 + 4*i for i in range(12)] + [80 + 4*i for i in range(12)]
KA = 64
def k_reads():
    o = []
    for s in range(8):
        o += [f"ds_read_b128 {vr(KF[3*s],4)}, v{cKf0} offset:{64*s}",
              f"ds_read_b128 {vr(KF[3*s+1],4)}, v{cKf1} offset:{16*PITCH+64*s}",
              f"ds_read_b128 {vr(KF[3*s+2],4)}, v{cKf0} offset:{48*PITCH+64*s}"]
    return o
def k_mfma():
    o = []
    for s in range(8):
        o += [f"v_mfma_f32_16x16x32_bf16 {vr(KA,4)}, {vr(KF[3*s+1],4)}, {vr(KF[3*s],4)}, {'0' if s == 0 else vr(KA,4)}",
              f"v_mfma_f32_16x16x32_bf16 {vr(KA+4,4)}, {vr(KF[3*s+2],4)}, {vr(KF[3*s],4)}, {'0' if s == 0 else vr(KA+4,4)}"]
    return o + ["s_nop 7"]
def k_write():
    return lines(f"""
    v_cvt_pk_bf16_f32 v34, v{KA}, v{KA+1}
    v_cvt_pk_bf16_f32 v35, v{KA+2}, v{KA+3}
    v_cvt_pk_bf16_f32 v36, v{KA+4}, v{KA+5}
    v_cvt_pk_bf16_f32 v37, v{KA+6}, v{KA+7}
    ds_write_b16 v{cKd0}, v34
    ds_write_b16_d16_hi v{cKd0}, v34 offset:4
    ds_write_b16 v{cKd1}, v35
    ds_write_b16_d16_hi v{cKd1}, v35 offset:4
    ds_write_b16 v{cKd2}, v36 offset:2048
    ds_write_b16_d16_hi v{cKd2}, v36 offset:{2048+64}
    ds_write_b16 v{cKd2}, v37 offset:{2048+128}
    ds_write_b16_d16_hi v{cKd2}, v37 offset:{2048+192}
    """)
GV = 112
def k_gather(): return [f"ds_read_b32 v{GV+e}, v{XA+e}" for e in range(9)]
def k_pack():
    o = [f"v_cmp_ne_u32 vcc, 0x1ff, v0", f"ds_write_b32 v{cZ0}, v{vZero} offset:{UOFF}",
         f"ds_write_b32 v{cZ1}, v{vZero} offset:4096", f"v_cndmask_b32 v{GV+8}, 0, v{GV+8}, vcc",
         f"s_mov_b32 s{sK1}, 0x05040100", f"s_mov_b32 s{sK2}, 0x07060302"]
    n = 0
    for c, sel in ((0, sK1), (1, sK2)):
        for k in range(2):
            for i in range(4): o.append(f"v_perm_b32 v{96+4*n+i}, v{GV+2*i+k+1}, v{GV+2*i+k}, s{sel}")
            o.append(f"ds_write_b128 v{cImg}, {vr(96+4*n,4)} offset:{c*CH + k*4160}")
            n += 1
    return o

LD_INIT = f"global_load_dword v{vPoll}, v{vZero}, s[62:63] sc1"
LD_MV = f"buffer_load_dword v{vPoll}, v{cMv}, s[20:23], 0 offen sc1"
def poll(lb, target, ld):
    A(f"""
{lb}:
    v_cmp_gt_u32 vcc, {target}, v{vPoll}
    s_cbranch_vccz {lb}_ok
    s_sub_u32 s{sSpin}, s{sSpin}, 1
    s_cbranch_scc1 {lb}_ok
    s_sleep 8
    {ld}
    s_waitcnt vmcnt(0)
    s_branch {lb}
{lb}_ok:
    """)
def poll_movers(lb): poll(lb, 1, LD_MV)

def dbar():
    if STAMP and SS == 4:
        A("s_memtime s[74:75]\ns_waitcnt lgkmcnt(0)\ns_barrier\ns_memtime s[76:77]\ns_waitcnt lgkmcnt(0)\ns_sub_u32 s74, s76, s74\ns_add_u32 s92, s92, s74")
    else: A("s_barrier")
def dclk(first):
    if STAMP and SS == 4:
        if first: A("s_memtime s[72:73]\ns_waitcnt lgkmcnt(0)")
        else: A("s_memtime s[76:77]\ns_waitcnt lgkmcnt(0)\ns_sub_u32 s94, s76, s72")
def gemm1_a():
    def reads(j):
        f = FR[j & 1]; s = (j >> 1) & 3; o = s*16384 + (j & 1)*8192; xo = ((j >> 2) & 1)*16384
        r = [f"ds_read_b64_tr_b16 {vr(f+16,2)}, v{vWr} offset:{o}",
             f"ds_read_b64_tr_b16 {vr(f+18,2)}, v{vWr} offset:{o+2048}",
             f"ds_read_b128 {vr(f,4)}, v{vXr[j & 3]} offset:{xo}",
             f"ds_read_b64_tr_b16 {vr(f+20,2)}, v{vWr} offset:{o+1024}",
             f"ds_read_b64_tr_b16 {vr(f+22,2)}, v{vWr} offset:{o+3072}"]
        return r + [f"ds_read_b128 {vr(f+4*tt,4)}, v{vXr[j & 3]} offset:{xo+4096*tt}" for tt in range(1, 4)]
    pad("lp")
    A("s_barrier")
    tail = k_part1()
    stamp(3); dclk(1)
    A(reads(0))
    A(tail[1:])
    A("L_g1_loop:")
    for j in range(8):
        A(f"s_waitcnt vmcnt({4 + AGT if j == 3 else AGT}) lgkmcnt(0)" if AW and j in (3, 5) else "s_waitcnt lgkmcnt(0)")
        if j & 1: dbar()
        if DLY and (j & 1):
            for _ in range(DLY // 16): A("s_nop 15")
            if DLY % 16: A(f"s_nop {DLY % 16 - 1}")
        f = FR[j & 1]; r = reads(j + 1)
        n = 0
        for tt in range(4):
            for o, a in ((0, 16), (16, 20)):
                d = vr(ACC1+32*tt+o, 16)
                A(f"v_mfma_f32_32x32x16_bf16 {d}, {vr(f+a,4)}, {vr(f+4*tt,4)}, {d}")
                A(r[2*n:2*n+2]); n += 1
                if j == 7 and n == 6: A(f"s_add_u32 s{sIt}, s{sIt}, 1\ns_cmp_lt_u32 s{sIt}, 4")
    if STAMP and SS == 3:
        A("s_mov_b32 s92, s94\ns_mov_b32 s94, s96\ns_mov_b32 s96, s98\ns_memrealtime s[98:99]\ns_waitcnt lgkmcnt(0)")
    A("s_cbranch_scc1 L_g1_loop")
    dclk(0)

def capture(*fns):
    global L
    keep = L; L = []
    for f in fns: f()
    out = [x.strip() for x in L]; L = keep
    return out

def slices(lst, n):
    out = []; pos = 0
    for i in range(n):
        end = (i + 1)*len(lst)//n
        while 0 < end < len(lst) and lst[end-1].startswith("s_cmp"): end += 1
        out.append(lst[pos:end]); pos = end
    return out

def gemm1_b():
    vm = Cnt("vmcnt", 63)
    def dma(kind, idx):
        if kind == "W": d = w_dma(idx) if idx < 16 else d_dma(idx - 16)
        else: d = x_dma(idx) if idx < 8 else d_dma(idx - 8 + 4)
        A(d)
        for _ in range(4): vm.note((kind, idx))
    def barrier(tags, first=False):
        n = vm.need(tags)
        if STAMP and SS == 4 and not first:
            A("s_memtime s[74:75]\ns_waitcnt lgkmcnt(0)")
            if n is not None: A(f"s_waitcnt vmcnt({n})")
            A("s_memtime s[76:77]\ns_waitcnt lgkmcnt(0)\ns_sub_u32 s74, s76, s74\ns_add_u32 s96, s96, s74")
            dbar()
        else: A(f"s_waitcnt {'vmcnt(%d) ' % n if n is not None else ''}lgkmcnt(0)\ns_barrier")
    if BPRIO: A(f"s_setprio {BPRIO}")
    dma("X", 0); dma("W", 0); dma("W", 1)
    A(tab_addr()); common_setup()
    A("s_waitcnt vmcnt(12)")
    stamp(1)
    t = tables_b()
    A(t[:60]); pad("rb1"); dma("X", 1); A(t[60:])
    stamp(2)
    if BT:
        per = -(-128 // BT)
        A(f"""
        v_min_u32 v{vTch}, {per - 1}, v1
        v_lshlrev_b32 v{vTch}, 7, v{vTch}
        s_lshr_b32 s3, s2, 3
        s_mul_i32 s3, s3, {per*128}
        s_mul_i32 s4, s{sWN}, {448*1024}
        s_add_u32 s{sTch}, s3, s4
        """)
    allw = capture(conv_setup1, k_setup2) + k_gather() + capture(conv_setup2) + ["s_waitcnt lgkmcnt(0)"] + k_pack()
    cut = len(allw) - NPOST
    post = allw[cut:]
    work = slices(allw[:cut], NW)
    barrier({("X", 0), ("W", 0)}, True)
    stamp(3); dclk(1)
    dma("W", 2); dma("W", 3)
    warm(1)
    carry = []
    def groups(kind, idx):
        if kind == "W": d = w_dma(idx) if idx < 16 else d_dma(idx - 16)
        else: d = x_dma(idx) if idx < 8 else d_dma(idx - 8 + 4)
        return [((kind, idx), x) for x in (d[0:3], d[3:4], d[4:7], d[7:8])]
    for s in range(16):
        barrier({("W", s + 1), ("X", (s + 1)//2)} if s < 15 else set())
        if s == 15 and PF1:
            vm.wait({"mv"})
            poll_movers("L_pm1")
            conv_loads()
        g = carry; carry = []
        if s & 1:
            g += groups("X", (s + 3)//2)
            w4 = groups("W", s + 4)
            if BAL and s < 15: g += w4[:2]; carry = w4[2:]
            else: g += w4
        else: g += groups("W", s + 4)
        if RS <= s < RS + 8 and (s - RS) % 2 == 0:
            i = (s - RS)//2; p = d_piece(12 + i, 24 + i)
            g += [("r", p[0:3]), ("r", p[3:4])]
        w = work.pop(0) if work else []
        for (tag, gi), wi in zip(g, slices(w, len(g))):
            A(gi); vm.note(tag); A(wi)
        if s == 5:
            A(f"s_cmp_eq_u32 s{sW}, 4\ns_cbranch_scc0 L_noinit\n{LD_INIT}\nL_noinit:")
        if s == 10:
            A(f"s_cmp_eq_u32 s{sW}, 4\ns_cbranch_scc0 L_pi_ok")
            poll("L_pi", 128, LD_INIT)
        if s == PS:
            A(LD_MV); vm.note("mv")
        if BLT and BLS <= s < BLS + 2*BLT and (s - BLS) % 2 == 0:
            A(f"buffer_load_dword v{vJunk}, v{vTch}, s[68:71], s{sTch} offen\ns_add_u32 s{sTch}, s{sTch}, {-(-74//BLT)*128}"); vm.note("t")
        if BT and BT0 <= s < BT0 + BT:
            A(f"buffer_load_dword v{vJunk}, v{vTch}, s[68:71], s{sTch} offen\ns_add_u32 s{sTch}, s{sTch}, {28*per*128}"); vm.note("t")
        if s == 3: pad("rb2")
        if s == 8: pad("g1b")
        if s == 13: pad("kf")
    dclk(0)
    if PPRIO: A(f"s_setprio {PPRIO}")
    if not PF1:
        vm.wait({"mv"})
        poll_movers("L_pm1")
        conv_loads()
    A(post)

def publish(sreg, n):
    A(f"""
    s_mov_b64 exec, 1
    s_waitcnt vmcnt({n})
    buffer_store_dword v14, v15, s[20:23], s{sreg} offen sc1
    s_mov_b64 exec, -1
    """)

def geglu(tt, fill=()):
    if STAMP and SS == 5: A("s_memtime s[72:73]\ns_waitcnt lgkmcnt(0)")
    geglu_(tt, fill)
    if STAMP and SS == 5: A(f"s_memtime s[74:75]\ns_waitcnt lgkmcnt(0)\ns_sub_u32 s{80 + 2*(1, 2, 6, 7)[tt]}, s74, s72")
def geglu_(tt, fill=()):
    fill = list(fill)
    G = ACC1 + 32*tt; U = G + 16
    O = 16 + 8*(tt & 1); T = 32
    o = []
    for p in range(8): o.append(f"v_pk_mul_f32 {vr(T+2*p,2)}, {vr(G+2*p,2)}, {vr(G+2*p,2)}")
    for p in range(8): o.append(f"v_pk_fma_f32 {vr(T+2*p,2)}, {vr(T+2*p,2)}, s[34:35], v[2:3]")
    for p in range(8): o.append(f"v_pk_mul_f32 {vr(T+2*p,2)}, {vr(T+2*p,2)}, {vr(G+2*p,2)}")
    for p in range(16): o.append(f"v_exp_f32 v{T+p}, v{T+p}")
    for p in range(8): o.append(f"v_pk_mul_f32 {vr(G+2*p,2)}, {vr(G+2*p,2)}, {vr(U+2*p,2)}")
    for p in range(8): o.append(f"v_pk_add_f32 {vr(T+2*p,2)}, {vr(T+2*p,2)}, 1.0 op_sel_hi:[1,0]")
    for p in range(16): o.append(f"v_rcp_f32 v{T+p}, v{T+p}")
    for p in range(8): o.append(f"v_pk_mul_f32 {vr(G+2*p,2)}, {vr(G+2*p,2)}, {vr(T+2*p,2)}")
    for p in range(8): o.append(f"v_cvt_pk_bf16_f32 v{O+p}, v{G+2*p}, v{G+2*p+1}")
    for x in o:
        A(x)
        if fill and ("exp" in x or "rcp" in x): A(fill.pop(0))
    A(fill)
    A(f"buffer_store_dwordx4 {vr(O,4)}, v4, s[20:23], s{sHst} offen {HST}")
    A(f"buffer_store_dwordx4 {vr(O+4,4)}, v4, s[20:23], s{sHst} offen offset:1024 {HST}")
def epi_head():
    C1 = -2.0 * L2E * math.sqrt(2.0/math.pi)
    A(f"v_mov_b32 v2, {fbits(C1)}\nv_mov_b32 v3, {fbits(C1)}\nv_lshlrev_b32 v4, 4, v1\nv_mov_b32 v14, 1\nv_mov_b32 v15, 0\ns_add_u32 s{sHfl2}, s{sHfl}, {56*128}\ns_waitcnt vmcnt(0) lgkmcnt(0)")

def conv_loads():
    A(f"""
    buffer_load_dwordx4 {vr(vU,4)}, v{cLu0}, s[20:23], s{sCu} offen sc1
    buffer_load_dwordx4 {vr(vU+4,4)}, v{cLu1}, s[20:23], s{sCu} offen sc1
    buffer_load_dwordx4 {vr(vG,4)}, v{cLg0}, s[20:23], 0 offen sc1
    buffer_load_dwordx4 {vr(vG+4,4)}, v{cLg1}, s[20:23], 0 offen sc1
    """)

G1 = [0, 1, 8, 9, 2, 3]; G2 = [4, 5, 6, 7, 10, 11]
STG = {k: 48 + 8*i for i, k in enumerate(G1 + G2)}
STG.update({24 + i: 144 + 8*i for i in range(4)})
def wd_reads(kap, d0, d1):
    o = piece_off(kap)
    base = gD[0:2] if o < 65536 else gD[2:4]
    if o >= 65536: o -= 65536
    if kap >= 12: base = [2, 3]; o = piece_off(kap) - RED
    return [f"ds_read_b64_tr_b16 {vr((d0, d1)[dd]+2*ih,2)}, v{base[dd]} offset:{o + 512*ih}" for dd in range(2) for ih in range(2)]
def red_reads():
    A(f"v_add_u32 v2, {RED}, v{gD[0]}\nv_add_u32 v3, {RED}, v{gD[1]}")
    for i in range(4): A(wd_reads(12 + i, STG[24 + i], STG[24 + i] + 4))
def stage_reads(ks): return sum((wd_reads(k, STG[k], STG[k] + 4) for k in ks), [])

def agt():
    A(f"""
    s_lshl_b32 s3, s2, 2
    s_add_u32 s3, s3, s{sW}
    s_lshl_b32 s3, s3, 11
    v_and_b32 v112, {31 if AG64 else 15}, v1
    v_lshlrev_b32 v112, {6 if AG64 else 7}, v112
    buffer_load_dword v74, v112, s[68:71], s3 offen
    """)

def k_part1():
    A(k_reads())
    m = k_mfma()
    for i in range(8):
        A(f"s_waitcnt lgkmcnt({min(15, 21 - 3*i)})"); A(m[2*i:2*i+2])
    return m[16:] + k_write()

def role_a():
    A(f"""
L_role_a:
    s_mov_b32 s{sRole}, 0
    v_mov_b64 v[40:41], 0
    v_mov_b64 v[42:43], 0
    v_mov_b32 v116, v{vWo}
    s_add_u32 s{sM0W}, s{sM0W}, 8192
    s_add_u32 s{sWoff}, s{sWoff}, {16*3584}
    """)
    def aw():
        A("s_cmp_ge_u32 s2, 224\ns_cbranch_scc1 L_aw_done")
        A([x.replace(f"v{vWo}", "v116") for x in w_dma(2) + w_dma(3)])
        A("L_aw_done:")
    A(tab_addr())
    A([x.replace(f"v{vDo[0]}", f"v{gX[0]}").replace(f"v{vDo[1]}", f"v{gX[1]}") for x in capture(common_setup)])
    g1_setup(); pad("su"); g2_setup()
    A("s_cmp_ge_u32 s2, 224\ns_cbranch_scc1 L_mv_a")
    for i in range(8):
        A(f"v_mfma_f32_32x32x16_bf16 {vr(ACC1+16*i,16)}, v[40:43], v[40:43], 0")
    A("s_waitcnt vmcnt(0)\nL_a_k2:")
    stamp(1)
    if CPY:
        A(f"""
        s_lshl_b32 s3, s2, 2
        s_add_u32 s3, s3, s{sW}
        s_lshl_b32 s3, s3, 11
        s_min_u32 s3, s3, {1792*1024 - 2048}
        v_add_u32 v117, s3, v{gL16}
        global_load_dwordx4 v[56:59], v117, s[56:57]
        global_load_dwordx4 v[60:63], v117, s[56:57] offset:1024
        """)
    if AGT and AGE: agt()
    t = tables_a()
    tp = len(t)*TPOS//100
    for i, x in enumerate(t):
        if i == 50: pad("tb0")
        if AW and i == len(t)*AWP//100: aw()
        if i == tp and T2: touches()
        A(x)
    if AW and AWP >= 100: aw()
    if TPOS >= 100 and T2: touches()
    stamp(2)
    k_setup1()
    A("s_cmp_ge_u32 s2, 224\ns_cbranch_scc1 L_mv_a2")
    if CPY:
        A(f"s_waitcnt vmcnt(0)\nbuffer_store_dwordx4 v[56:59], v117, s[68:71], 0 offen sc1\nbuffer_store_dwordx4 v[60:63], v117, s[68:71], 0 offen offset:1024 sc1\ns_nop 1")
    elif AGT and not AGE: agt()
    if PRE_ST:
        A(f"s_mov_b32 s3, s{sHst}")
        for t in range(4):
            A(f"buffer_store_dwordx4 v[16:19], v{gL16}, s[20:23], s3 offen sc1\nbuffer_store_dwordx4 v[16:19], v{gL16}, s[20:23], s3 offen offset:1024 sc1\ns_add_u32 s3, s3, {112*1024}")
    if APRIO: A(f"s_setprio {APRIO}")
    A("s_waitcnt lgkmcnt(0)")
    gemm1_a()
    stamp(4)
    epi_head()
    step = f"s_add_u32 s{sHst}, s{sHst}, {112*1024}"
    geglu(0); A(step); pad("ea0")
    stamp(1, 6)
    geglu(1); A(step)
    stamp(2, 6)
    geglu(2); A(step); pad("ea1")
    stamp(3, 6)
    if not NOMID: publish(sHfl, 2)
    stamp(6, 6)
    geglu(3)
    stamp(5)
    sr = stage_reads(G1 + G2)
    if KFP == 1:
        publish(sHfl2, 0)
        stamp(7, 6)
        if NOMID: publish(sHfl, 1)
        A("s_barrier")
        A(sr); red_reads()
    else:
        red_reads()
        A("s_barrier")
        A(sr[:PUBN])
        publish(sHfl2, 0)
        stamp(1, 2)
        A(sr[PUBN:])
    A("L_a_join:")
    gemm2()

def role_b():
    A(f"L_role_b:\ns_mov_b32 s{sRole}, 1\ns_cmp_ge_u32 s2, 224\ns_cbranch_scc1 L_mv_head")
    gemm1_b()
    stamp(4)
    A("L_b_join:")
    A(f"s_waitcnt vmcnt({10 if PF1 else 2})\nds_write_b128 v{cUw}, {vr(vU,4)}\nds_write_b128 v{cUw}, {vr(vU+4,4)} offset:2048")
    A(f"s_waitcnt vmcnt({0 if PF1 else 2}) lgkmcnt(0)\ns_barrier")
    stamp(5)
    conv()

def mover_body():
    if STUBS: A("L_pad_mv:\ns_branch L_warm_ret0")
    A(f"""
L_mv_head:
    s_sub_u32 s6, s2, 224
    s_lshl_b32 s3, s6, 16
    s_lshl_b32 s4, s{sWN}, 14
    s_add_u32 s3, s3, s4
    s_mul_i32 s4, s{sWN}, {16*UP}
    v_lshlrev_b32 v16, 4, v1
    s_add_u32 s5, s3, 16384
L_mv_ld:
    s_mov_b32 m0, s4
    s_add_u32 s4, s4, {UP}
    buffer_load_dwordx4 v16, s[8:11], s3 offen lds
    s_add_u32 s3, s3, 1024
    s_cmp_lt_u32 s3, s5
    s_cbranch_scc1 L_mv_ld
    global_load_dwordx4 v[128:131], v16, s[58:59]
    v_add_u32 v132, {GWL}, v16
    """)
    A(tab_addr()); common_setup()
    A("s_waitcnt vmcnt(17)"); A(tables_b())
    conv_setup(); k_setup()
    A("s_waitcnt vmcnt(0)\nds_write_b128 v132, v[128:131]\ns_branch L_mv_common")
    A("L_mv_a:")
    A(f"""
    s_sub_u32 s6, s2, 224
    s_lshl_b32 s3, s6, 2
    s_add_u32 s3, s3, s{sW}
    s_mul_i32 s3, s3, 22
    v_add_u32 v16, s3, v1
    s_add_u32 s3, s6, 2816
    v_mov_b32 v17, s3
    v_cmp_gt_u32 vcc, 22, v1
    s_getpc_b64 s[4:5]
L_pc:
    s_sub_u32 s4, s4, L_pc - {KNAME}
    s_subb_u32 s5, s5, 0
    v_cndmask_b32 v16, v17, v16, vcc
    v_lshlrev_b32 v16, 7, v16
    v_add_u32 v16, {WS_FLAG}, v16
    buffer_store_dword v{vZero}, v16, s[20:23], 0 offen sc1
    v_lshlrev_b32 v16, 7, v0
    v_min_u32 v16, L_exit - {KNAME}, v16
    global_load_dword v74, v16, s[4:5]
    s_waitcnt vmcnt(2)
    s_branch L_a_k2
L_mv_a2:
    s_waitcnt vmcnt(0)
    s_mov_b64 exec, 1
    global_atomic_add v{vZero}, v{cOne}, s[62:63] sc1
    s_mov_b64 exec, -1
    """)
    A(f"""
L_mv_common:
    s_sub_u32 s{sMov}, s2, 224
    v_and_b32 v21, 15, v1
    v_lshrrev_b32 v22, 4, v1
    v_lshlrev_b32 v16, 4, v22
    v_lshrrev_b32 v17, 2, v1
    v_and_b32 v17, 3, v17
    v_lshl_add_u32 v17, v22, 3, v17
    v_mul_u32_u24 v17, {UP}, v17
    v_and_b32 v18, 3, v1
    v_lshl_add_u32 v17, v18, 3, v17
    s_lshl_b32 s4, s{sW}, 7
    v_add_u32 v17, s4, v17
    s_lshl_b32 s3, s{sW}, 18
    s_lshl_b32 s4, s{sMov}, 11
    s_add_u32 s3, s3, s4
    s_add_u32 s3, s3, {WS_UT}
    v_lshlrev_b32 v18, 6, v21
    v_lshl_add_u32 v18, v22, 4, v18
    s_and_b32 s4, s{sMov}, {3 if USW else 0}
    s_lshl_b32 s4, s4, 8
    v_xor_b32 v18, s4, v18
    v_xor_b32 v20, {128 if USW else 0}, v18
    s_lshr_b32 s7, s{sMov}, 3
    s_mul_i32 s7, s7, {448*1024}
    s_lshl_b32 s4, s{sW}, 13
    s_add_u32 s7, s7, s4
    s_add_u32 s7, s7, {192*1024}
    v_lshlrev_b32 v19, 7, v1
    s_waitcnt lgkmcnt(0)
    s_barrier
    """)
    stamp(3)
    if MG2:
        A(f"""
        s_lshl_b32 s4, s{sMov}, 3
        s_add_u32 s4, s4, s{sW}
        s_mul_i32 s4, s4, 7168
        v_min_u32 v23, {55*128}, v19
        buffer_load_dword v47, v23, s[68:71], s4 offen
        """)
    for q in range(4):
        b = 200 + 8*q
        A(f"""
        ds_read_b64_tr_b16 {vr(b,2)}, v17 offset:{32*q}
        ds_read_b64_tr_b16 {vr(b+2,2)}, v17 offset:{32*q + 4*UP}
        ds_read_b64_tr_b16 {vr(b+4,2)}, v17 offset:{32*q + 32*UP}
        ds_read_b64_tr_b16 {vr(b+6,2)}, v17 offset:{32*q + 36*UP}
        """)
    for q in range(4):
        b = 200 + 8*q
        A(f"""
        s_waitcnt lgkmcnt({12 - 4*q})
        buffer_store_dwordx4 {vr(b,4)}, v18, s[20:23], s3 offen sc1
        buffer_store_dwordx4 {vr(b+4,4)}, v20, s[20:23], s3 offen offset:1024 sc1
        s_add_u32 s3, s3, 65536
        """)
    A(f"""
    s_cmp_eq_u32 s{sRole}, 0
    s_cbranch_scc1 L_mv_nogate
    s_mul_i32 s4, s{sWN}, {16*UP}
    v_mul_u32_u24 v17, {UP}, v21
    v_add_u32 v17, v17, v16
    v_add_u32 v17, s4, v17
    """)
    GF = [32 + 4*i for i in range(3)] + [92 + 4*i for i in range(9)] + [192, 196, 232, 236]
    A(f"v_add_u32 v23, {GWL}, v16")
    for i in range(16):
        A(f"ds_read_b128 {vr(GF[i],4)}, v17 offset:{64*i}")
        A(f"ds_read_b128 {vr(128+4*i,4)}, v23 offset:{64*i}")
    A("s_waitcnt lgkmcnt(0)")
    for i in range(16):
        c = "0" if i < 2 else vr(24+4*(i&1), 4)
        A(f"v_mfma_f32_16x16x32_bf16 {vr(24+4*(i&1),4)}, {vr(GF[i],4)}, {vr(128+4*i,4)}, {c}")
    A(f"""
    s_lshl_b32 s3, s{sMov}, 2
    s_add_u32 s3, s3, s{sWN}
    s_lshl_b32 s3, s3, 6
    s_add_u32 s3, s3, {WS_G}
    s_nop 5
    """)
    for r in range(4): A(f"v_add_f32 v{24+r}, v{24+r}, v{28+r}")
    for r in range(4): A(f"v_cvt_pk_bf16_f32 v{24+r}, 0, v{24+r}")
    for r in range(4): A(f"v_mul_f32 v{24+r}, {fbits(-L2E)}, v{24+r}")
    for r in range(4): A(f"v_exp_f32 v{24+r}, v{24+r}")
    A("s_nop 0")
    for r in range(4): A(f"v_add_f32 v{24+r}, 1.0, v{24+r}")
    for r in range(4): A(f"v_rcp_f32 v{24+r}, v{24+r}")
    A("s_nop 0")
    for r in range(4): A(f"v_cvt_pk_bf16_f32 v{24+r}, 0, v{24+r}")
    for r in range(4): A(f"v_sub_f32 v{28+r}, 1.0, v{24+r}")
    for r in range(4): A(f"v_cvt_pk_bf16_f32 v{24+r}, v{24+r}, v{28+r}")
    A(f"""
    v_cmp_eq_u32 vcc, 0, v21
    s_and_saveexec_b64 s[4:5], vcc
    buffer_store_dwordx4 v[24:27], v16, s[20:23], s3 offen sc1
    s_mov_b64 exec, s[4:5]
    """)
    A("s_branch L_mv_k1\nL_mv_nogate:\nv_mov_b32 v72, v19")
    A(k_part1())
    A(f"""
    v_mov_b32 v19, v72
L_mv_k1:
    s_waitcnt vmcnt(0) lgkmcnt(0)
    s_barrier
    s_cmp_eq_u32 s{sRole}, 0
    s_cbranch_scc0 L_mv_b2
    """)
    stamp(4)
    if MGT:
        A(f"""
        s_and_b32 s3, s{sMov}, 7
        s_lshl_b32 s3, s3, 2
        s_add_u32 s3, s3, s{sW}
        s_mul_i32 s3, s3, 6144
        s_lshr_b32 s4, s{sMov}, 3
        s_mul_i32 s4, s4, {448*1024}
        s_add_u32 s3, s3, s4
        v_min_u32 v17, {47*128}, v19
        buffer_load_dword v47, v17, s[68:71], s3 offen
        """)
    A("s_barrier")
    A(f"s_sub_u32 s7, s7, {192*1024}\ns_lshl_b32 s4, s{sRho}, 14\ns_add_u32 s4, s4, {192*1024}")
    for i in range(2*MROWS):
        A(f"s_cmp_ge_u32 s4, {448*1024}\ns_cselect_b32 s3, {448*1024}, 0\ns_sub_u32 s4, s4, s3\ns_add_u32 s3, s7, s4\nbuffer_load_dword v47, v19, s[68:71], s3 offen\ns_add_u32 s4, s4, 32768")
    A("s_barrier")
    red_reads(); A(stage_reads(G1 + G2))
    stamp(5)
    A(f"""
    s_branch L_a_join
L_mv_b2:
    s_cmp_eq_u32 s{sW}, 4
    s_cbranch_scc0 L_mv_nosig
    s_mov_b64 exec, 1
    global_atomic_add v40, v{vZero}, v{cOne}, s[62:63] offset:128 sc0 sc1
    s_mov_b64 exec, -1
    {LD_INIT}
    s_waitcnt vmcnt(0)
    v_readfirstlane_b32 s3, v40
    v_and_b32 v17, 31, v1
    v_lshlrev_b32 v17, 7, v17
    v_add_u32 v17, {WS_FLAG3}, v17
    s_and_b32 s3, s3, 31
    s_cmp_eq_u32 s3, 31
    s_cbranch_scc0 L_pi2
    buffer_store_dword v{cOne}, v17, s[20:23], 0 offen sc1
    """)
    poll("L_pi2", 128, LD_INIT)
    A("L_mv_nosig:")
    stamp(4)
    for sig in range(6): A(d_dma(sig))
    for i in range(4): A(d_piece(12 + i, 24 + i))
    A("s_barrier")
    A(LD_MV)
    A(k_gather()); A("s_waitcnt lgkmcnt(0)"); A(k_pack())
    A("s_waitcnt vmcnt(0)")
    poll_movers("L_pm2")
    conv_loads()
    A("s_waitcnt vmcnt(0)\ns_branch L_b_join")

def lds_sync(label, target):
    A(f"""
    s_mov_b64 exec, 1
    s_waitcnt lgkmcnt(0)
    ds_add_u32 v{cCnt}, v{cOne}
{label}:
    ds_read_b32 v2, v{cCnt}
    s_waitcnt lgkmcnt(0)
    v_cmp_gt_u32 vcc, {target}, v2
    s_cbranch_vccz {label}_go
    s_sub_u32 s{sSpin}, s{sSpin}, 1
    s_cbranch_scc0 {label}
{label}_go:
    s_mov_b64 exec, -1
    """)

def conv():
    FA = [96, 160]; FB = [128, 192]; ACC = 16
    def reads(rr):
        fs = rr & 1; ra = []; rb = []
        for i in range(8):
            o = (512*(1 - (i & 1)) + 64*(3 - rr)) // 4
            rb.append(f"ds_read_b128 {vr(FB[fs]+4*i,4)}, v{cB} offset:{512*i + 64*(3-rr)}")
            ra.append(f"ds_read2_b32 {vr(FA[fs]+4*i,2)}, v{cA[i>>1]} offset0:{o} offset1:{o+1}")
            ra.append(f"ds_read2_b32 {vr(FA[fs]+4*i+2,2)}, v{cA[i>>1]} offset0:{o+2} offset1:{o+3}")
        return ra, rb
    ra, rb = reads(0)
    b2 = []
    A(ra[0:2] + rb + ra[2:])
    warm(2)
    A("s_barrier")
    A("s_setprio 2")
    stamp(6)
    cnt = 0
    pad("cv0")
    U = 128; D = 136; Y = 96; P = 160
    for rr in range(4):
        fs = rr & 1
        A("s_waitcnt lgkmcnt(14)" if rr == 0 else "s_waitcnt lgkmcnt(0)")
        if rr < 3:
            ra, rb = reads(rr+1); fill = rb + ra
        else:
            fill = [f"ds_read_b64 {vr(U,2)}, v{cUr}", f"ds_read_b64 {vr(U+2,2)}, v{cUr} offset:2048",
                    f"ds_read_b64 {vr(U+4,2)}, v{cUr} offset:{CH}", f"ds_read_b64 {vr(U+6,2)}, v{cUr} offset:{CH+2048}"]
        for i in range(8):
            if rr == 0 and i == 1: A("s_waitcnt lgkmcnt(0)")
            for t in range(i, 8):
                c = "0" if (rr == 0 and i == 0) else vr(ACC+4*t, 4)
                A(f"v_mfma_f32_16x16x32_bf16 {vr(ACC+4*t,4)}, {vr(FA[fs]+4*i,4)}, {vr(FB[fs]+4*(t-i),4)}, {c}")
                if fill and not (rr == 0 and i == 0): A(fill.pop(0))
                cnt += 1
                if b2 and cnt % B2W == 0: A(b2.pop(0))
            if rr == 3 and 2 <= i <= 4:
                A(f"ds_write_b128 v{cRw}, {vr(ACC+4*(i-2),4)} offset:{1024*(i-2)}")
        assert not fill
        if rr == 1: pad("cv1")
    assert not b2
    stamp(7)
    A("s_waitcnt vmcnt(0) lgkmcnt(3)")
    ud = []
    for k in range(8):
        d = D + 2*k
        if k & 1: ud += [f"v_and_b32 v{d}, 0xffff0000, v{U+k//2}", f"v_and_b32 v{d+1}, 0xffff0000, v{U+4+k//2}"]
        else: ud += [f"v_lshlrev_b32 v{d}, 16, v{U+k//2}", f"v_lshlrev_b32 v{d+1}, 16, v{U+4+k//2}"]
    A(ud[:8])
    for t in range(3, 8):
        A(f"ds_write_b128 v{cRw}, {vr(ACC+4*t,4)} offset:{1024*t}")
    A(ud[8:])
    for k in range(8): A(f"v_lshlrev_b32 v{vG+k}, 16, v{vG+k}")
    A(f"s_lshl_b32 s30, s{sDsk}, 16\ns_and_b32 s31, s{sDsk}, 0xffff0000")
    lds_sync("L_cv_s2", 4)
    for q in range(4):
        A(f"ds_read_b128 {vr(P+8*q,4)}, v{cRr} offset:{8192*q}")
        A(f"ds_read_b128 {vr(P+4+8*q,4)}, v{cRr} offset:{8192*q + 4096}")
    for k in range(8):
        d = D + 2*k
        A(f"v_mul_f32 v{d}, s30, v{d}\nv_mul_f32 v{d+1}, s31, v{d+1}")
    A("s_waitcnt lgkmcnt(4)")
    for k in range(8): A(f"v_add_f32 v{D+2*k}, v{D+2*k}, v{P+k}")
    for k in range(8): A(f"v_add_f32 v{D+2*k}, v{D+2*k}, v{P+8+k}")
    A("s_waitcnt lgkmcnt(0)")
    for k in range(8): A(f"v_add_f32 v{D+2*k+1}, v{D+2*k+1}, v{P+16+k}")
    for k in range(8): A(f"v_add_f32 v{D+2*k+1}, v{D+2*k+1}, v{P+24+k}")
    for k in range(8):
        A(f"v_mul_f32 v{D+2*k}, v{vG+k}, v{D+2*k}\nv_mul_f32 v{D+2*k+1}, v{vG+k}, v{D+2*k+1}")
    for k in range(8):
        A(f"v_cvt_pk_bf16_f32 v{Y+k}, v{D+2*k}, v{D+2*k+1}")
    A(f"""
    buffer_store_dwordx4 {vr(Y,4)}, v{cS0}, s[20:23], s{sCga} offen sc1
    buffer_store_dwordx4 {vr(Y+4,4)}, v{cS1}, s[20:23], s{sCga} offen sc1
    s_mov_b64 exec, 1
    """)
    stamp(8)
    A(f"""
    s_waitcnt vmcnt(0)
    buffer_store_dword v{cOne}, v{vZero}, s[20:23], s{sCfl} offen sc1
    """)
    stamp_flush()
    A("s_endpgm")

def gemm2():
    ACC = 192
    sH = [sH0, sH1]
    A("s_waitcnt lgkmcnt(0)\ns_barrier\ns_setprio 1")
    stamp(3, 2)
    vm = Cnt("vmcnt", 63); lg = Cnt("lgkmcnt", 15)
    def wd_dma(k, kap):
        A(f"s_add_u32 m0, s{sLds}, {16384*(kap >> 1) + 2048*(kap & 1)}\ns_add_u32 s3, s{sWd}, {k*16384}")
        vm.issue(("w", k), f"buffer_load_dwordx4 v{gX[0]}, s[68:71], s3 offen lds")
        vm.issue(("w", k), f"buffer_load_dwordx4 v{gX[1]}, s[68:71], s3 offen offset:1024 lds")
    ks = G1 + G2
    def refill(k): A([x.replace(f"v{vDo[0]}", f"v{gX[0]}").replace(f"v{vDo[1]}", f"v{gX[1]}") for x in d_piece(k, k + 12)])
    for k in ks: refill(k)
    pad("g20")
    A(f"""
s_mov_b64 exec, 0x3fff
L_g2_hpoll:
    buffer_load_dword v2, v{gFl}, s[20:23], s{sFl} offen sc1
    s_waitcnt vmcnt(0)
    v_cmp_eq_u32 vcc, 0, v2
    s_cbranch_vccz L_g2_hready
    s_mov_b64 exec, vcc
    s_sleep {SLP}
    s_sub_u32 s{sSpin}, s{sSpin}, 1
    s_cbranch_scc0 L_g2_hpoll
L_g2_hready:
    s_mov_b64 exec, -1
    """)
    vm.ops = []
    stamp(6)
    free = [16 + 4*i for i in range(8)] + [176 + 4*i for i in range(4)]
    hreg = {}; wreg = {k: (STG[k], STG[k] + 4) for k in STG}
    nxt = [0]; wnx = [12]; rd = {}
    def h_issue(kc, n=99):
        while n > 0 and free and nxt[0] < 56 and (nxt[0] >> 1) < kc + min(HDMAX, HD + kc):
            n -= 1
            k, tt = nxt[0] >> 1, nxt[0] & 1
            r = free.pop(0); hreg[(k, tt)] = r
            vm.issue(("h", k), f"buffer_load_dwordx4 {vr(r,4)}, v{gL16}, s[20:23], s{sH[tt]} offen offset:{(k & 3)*1024} sc1")
            if (k & 3) == 3 and k < 27:
                if ROT3:
                    if tt == 0: A(f"s_cmp_eq_u32 s{sRho}, {24 - (k - 3)}\ns_cselect_b32 s47, {u32(4096 - 28672)}, s46")
                    A(f"s_add_u32 s{sH[tt]}, s{sH[tt]}, s47")
                else: A(f"s_add_u32 s{sH[tt]}, s{sH[tt]}, 4096")
            nxt[0] += 1
    if HT:
        A(f"""
        v_and_b32 v2, 31, v1
        v_min_u32 v2, {28 - HD - 1}, v2
        v_lshlrev_b32 v2, 10, v2
        v_lshrrev_b32 v3, 5, v1
        v_mul_u32_u24 v3, {112*1024}, v3
        v_add_u32 v2, v2, v3
        s_min_u32 s3, s{sH0}, s{sH1}
        s_lshl_b32 s4, s{sJ}, 7
        s_add_u32 s3, s3, s4
        s_add_u32 s{sT}, s3, {HD*1024}
        """)
    if ROT3: A("s_movk_i32 s46, 4096")
    h_issue(0)
    if HT: vm.issue("t", f"buffer_load_dword v2, v2, s[20:23], s{sT} offen sc1")
    A(f"""
    v_and_b32 v{gFl}, 15, v1
    v_lshlrev_b32 v{gFl}, 9, v{gFl}
    s_lshl_b32 s{sFl}, s{sD}, 13
    s_lshr_b32 s4, s{sTok}, 3
    s_and_b32 s4, s4, 3
    s_lshl_b32 s4, s4, 7
    s_add_u32 s{sFl}, s{sFl}, s4
    s_add_u32 s{sFl}, s{sFl}, {WS_FLAG2}
    v_and_b32 v{gT}, 31, v1
    v_lshlrev_b32 v14, 2, v{gT}
    s_lshl_b32 s4, s{sTok}, 7
    s_add_u32 s5, s4, {WS_G}
    v_lshrrev_b32 v15, 5, v1
    v_lshl_add_u32 v3, v15, 15, v14
    s_lshl_b32 s6, s{sD}, 17
    s_add_u32 s6, s6, s4
    s_add_u32 s6, s6, {WS_GA}
    v_lshlrev_b32 v{gT}, 10, v{gT}
    v_lshl_add_u32 v{gT}, v15, 4, v{gT}
    s_lshl_b32 s7, s{sTok}, 15
    s_lshl_b32 s4, s{sD}, 6
    s_add_u32 s7, s7, s4
    s_mov_b32 s12, s60
    s_mov_b32 s13, s61
    s_mov_b32 s14, 0x200000
    v_add_u32 v15, s{sLds}, v{gL16}
    """)
    GA = None
    gal = []
    def mf(k, dd, tt):
        c = "0" if k == 0 else vr(ACC+16*(2*dd+tt), 16)
        A(f"v_mfma_f32_32x32x16_bf16 {vr(ACC+16*(2*dd+tt),16)}, {vr(wreg[k][dd],4)}, {vr(hreg[(k,tt)],4)}, {c}")
    KE = 24 if QM else 28
    for k in range(KE):
        pre = []
        vm.wait({("h", k)})
        if k in (0, 8, 12, 18): stamp({0: 1, 8: 2, 12: 3, 18: 4}[k], 1)
        lg.wait({("w", k)})
        if k >= WLA and wnx[0] < 24:
            kn = wnx[0]; wnx[0] += 1
            wreg[kn] = (free.pop(), free.pop())
            pre = [(("w", kn), x) for x in wd_reads(kn - 12, *wreg[kn])]
        for n, (dd, tt) in enumerate(((0,0),(0,1),(1,0),(1,1))):
            mf(k, dd, tt)
            if HIL and n in (0, 2): h_issue(k + 1, 1)
            if pre: lg.issue(*pre.pop(0))
            if gal: vm.issue("ga", gal.pop(0))
        free += [hreg[(k,0)], hreg[(k,1)], wreg[k][0], wreg[k][1]]
        h_issue(k + 1)
        if k == 12: pad("g21")
        if k == FK: vm.issue("f", f"buffer_load_dword v2, v{gFl}, s[20:23], s{sFl} offen sc1")
        if k == CK:
            stamp(7)
            vm.wait({"f"})
            A(f"""
L_g2_poll:
            v_cmp_eq_u32 vcc, 0, v2
            s_cbranch_vccz L_g2_ready
            s_sub_u32 s{sSpin}, s{sSpin}, 1
            s_cbranch_scc1 L_g2_ready
            s_mov_b64 exec, vcc
            s_sleep {SLP}
            buffer_load_dword v2, v{gFl}, s[20:23], s{sFl} offen sc1
            s_waitcnt vmcnt(0)
            s_branch L_g2_poll
            """)
            pad("g22", inline=False)
            A("L_g2_ready:\ns_mov_b64 exec, -1")
            assert nxt[0] == 56
            fr = sorted(free)
            GA = next(r for r in fr if r + 4 in fr and r >= 96)
            free.remove(GA); free.remove(GA + 4)
            gal = ["buffer_load_dword v4, v14, s[20:23], s5 offen sc1"]
            for m in range(8):
                gal.append(f"buffer_load_dword v{GA+m}, v3, s[20:23], s6 offen sc1" + (f"\ns_add_u32 s6, s6, {8192 if (m & 3) != 3 else 5*8192}" if m < 7 else ""))
    assert wnx[0] == 24
    wr = lambda x: [f"ds_write_b128 v15, {vr(ACC+16*x+4*i,4)} offset:{(x-1)*16384 + 1024*i}" for i in range(4)]
    A("v_xor_b32 v8, 0x1000, v15\nv_xor_b32 v9, 0x2000, v15\nv_xor_b32 v10, 0x3000, v15")
    if QM:
        vm.wait({("h", 27)})
        pend = []
        for x in (1, 2, 3, 0):
            for i, k in enumerate(range(24, 28)):
                mf(k, x >> 1, x & 1)
                if gal: vm.issue("ga", gal.pop(0))
                if pend:
                    if i == 0: A("s_nop 7")
                    elif i == 1: A("s_nop 1"); A(pend[0:2])
                    elif i == 2: A(pend[2:4])
            pend = wr(x) if x else []
        stamp(8)
    else:
        stamp(8)
        A("s_nop 6")
        for x in range(1, 4): A(wr(x))
    assert not gal
    A("s_waitcnt vmcnt(0)\nv_and_b32 v4, 0xffff0000, v4")
    for p in range(8):
        A(f"v_lshlrev_b32 v{80+2*p}, 16, v{GA+p}\nv_and_b32 v{81+2*p}, 0xffff0000, v{GA+p}")
    A("s_waitcnt lgkmcnt(0)\ns_barrier")
    for x in range(3):
        for i in range(4):
            A(f"ds_read_b128 {vr(32+16*x+4*i,4)}, v{8+x} offset:{x*16384 + 1024*i}")
    for x in range(3):
        A(f"s_waitcnt lgkmcnt({8 - 4*x})")
        for p in range(8):
            A(f"v_pk_add_f32 {vr(ACC+2*p,2)}, {vr(ACC+2*p,2)}, {vr(32+16*x+2*p,2)}")
    for p in range(8):
        A(f"v_pk_fma_f32 {vr(32+2*p,2)}, {vr(ACC+2*p,2)}, v[4:5], {vr(80+2*p,2)} op_sel_hi:[1,0,1]")
    for p in range(8):
        A(f"v_cvt_pk_bf16_f32 v{24+p}, v{32+2*p}, v{33+2*p}")
    A(f"""
    buffer_store_dwordx4 v[24:27], v{gT}, s[12:15], s7 offen {OST}
    buffer_store_dwordx4 v[28:31], v{gT}, s[12:15], s7 offen offset:32 {OST}
    """)
    stamp_flush()
    A("s_endpgm")

def main():
    order = [[None]*4 + ["rb", "su", "tb0", "rb1"],
             [None]*4 + ["rb2", "g1b", "ea0", "ea1"],
             [None]*4 + ["g20", "g22", "g21", "cv1"]]
    for r, names in enumerate(order):
        for w, n in enumerate(names):
            if n: PLAN[n] = (r, w)
    A('.amdgcn_target "amdgcn-amd-amdhsa--gfx950"\n.text')
    A(f".globl {KNAME}\n.p2align 12\n.type {KNAME},@function\n{KNAME}:")
    if STAMP:
        for i in range(NST): A(f"s_mov_b32 s{80+2*i}, 0")
    stamp(0)
    A("s_cmp_ge_u32 s2, 256\ns_cbranch_scc1 L_exit")
    prologue()
    role_a()
    pad("rb", inline=False)
    role_b()
    mover_body()
    A("L_exit:\n    s_endpgm")
    assert not STUBS or set(PADS) == set(PLAN), set(PLAN) - set(PADS)
    A(f""".section .rodata,"a"
.p2align 6
.amdhsa_kernel {KNAME}
  .amdhsa_next_free_vgpr 256
  .amdhsa_next_free_sgpr 102
  .amdhsa_accum_offset 256
  .amdhsa_group_segment_fixed_size 0
  .amdhsa_kernarg_size 136
  .amdhsa_user_sgpr_count 2
  .amdhsa_user_sgpr_kernarg_segment_ptr 1
  .amdhsa_system_sgpr_workgroup_id_x 1
.end_amdhsa_kernel""")
    open(sys.argv[1], "w").write(HEADER + "\n".join(L) + "\n")

main()
```

```python
import sys, struct, math

OPTS = dict(a.split("=") for a in sys.argv[2:])
def opt(name, dflt): return int(OPTS.get(name, dflt))
STAMP = opt("stamp", 0); SS = opt("ss", 0)
T2 = opt("t2", 1); CT = opt("ct", 1); HD = opt("hd", 5); MROWS = opt("mrows", 2); QM = opt("qm", 1); ROT3 = opt("rot3", 1); NW = opt("nw", 14); CPY = opt("cpy", 0); DLY = opt("dly", 0); BRK = opt("brk", 0); M16 = opt("m16", 1); UPF = opt("upf", 6); UP0 = opt("up0", 0); AORD = opt("aord", 0); FK = opt("fk", 17); CK = opt("ck", 21); HIL = opt("hil", 1); WLA = opt("wla", 8); E1 = opt("e1", 0); NSL = opt("nsl", 4); TPOS = opt("tpos", 0); MG2 = opt("mg2", 0); LW = opt("lw", 0); PUBN = opt("pubn", 12); TLB = opt("tlb", 0); CST = opt("cst", 0); RS = opt("rs", 4); AW = opt("aw", 0); AWP = opt("awp", 100); NOMID = opt("nomid", 0); HST = OPTS.get("hst", "sc1").replace("_", " "); ROT2 = opt("rot2", 1); USW = opt("usw", 1); BT = opt("bt", 0); BT0 = opt("bt0", 3); BAL = opt("bal", 1); NPOST = opt("npost", 27); T2W = opt("t2w", -1); GWL = 64*1056; PS = opt("ps", 15); PF1 = opt("pf1", 0); SLP = opt("slp", 2); WSB = opt("wsb", 0); ENC = opt("enc", -1); ENCWG = opt("encwg", 100); ENCW = opt("encw", 0); FIXT = opt("fixt", 0); AG64 = opt("ag64", 0); AGE = opt("age", 0); KFP = opt("kfp", 3); SCH = opt("sch", 0); OST = OPTS.get("ost", ""); PRE_ST = opt("prest", 0); PRE = opt("pre", 1); HDMAX = opt("hdmax", 8); AGT = opt("agt", 1); BLT = opt("blt", 0); BLS = opt("bls", 6); PPRIO = opt("pprio", 2); MGT = opt("mgt", 0)
SPIN = opt("spin", 0x40000); STUBS = opt("stubs", 1); NOFILL = opt("nofill", 0); PKT = opt("pkt", 1)
APRIO = opt("aprio", 1); BPRIO = opt("bprio", 0); EPRIO = opt("eprio", 2); B2W = opt("b2w", 4); KDYN = opt("kdyn", 6); B2A = opt("b2a", 1); HT = opt("ht", 0); W3E = opt("w3e", 0); MT = opt("mt", 2)
KNAME = "gated_mix__ssm_conv_s4__geglu_ffn__prompt_kernel"

WS_H, WS_UT, WS_GA = 0x0, 0x700000, 0x900000
WS_G, WS_FLAG, WS_STAMP = 0xB00000, 0xB08000, 0x1400000
WS_FLAG2 = WS_FLAG + 1792*128
WS_FLAG3 = WS_FLAG + 2816*128
WS_BYTES = 0x10000000
WS_WD = 0xC00000
OOB = 0x40000000

XB = 65536
TB = 98304
PITCH = 528
KD = TB + 2*57*PITCH
CH = 12928
UOFF = 8320
RED = TB + 2*CH
CNT = KD + 3072
assert CNT + 8 <= 163840 and RED + 32768 <= KD and RED % 16 == 0
UP = 1056
L2E = math.log2(math.e)
WSTEP = 32*3584

L = []
def lines(s): return [x.strip() for x in s.strip("\n").split("\n") if x.strip()]
def A(s):
    if isinstance(s, (list, tuple)): s = "\n".join(s)
    for line in lines(s):
        L.append(line if line.endswith(":") or line.startswith(".") else "    " + line)
def fbits(x): return "0x%08x" % struct.unpack("<I", struct.pack("<f", x))[0]
def vr(b, n): return f"v[{b}:{b+n-1}]"
def srd(base, size): A(f"s_mov_b32 s{base+2}, {size:#x}\ns_mov_b32 s{base+3}, 0x00020000")

NST = 9
def stamp(idx, ss=0):
    if ENC >= 0:
        if ss == 0 and idx in (0, ENC): A(f"s_memrealtime s[{80+2*idx}:{81+2*idx}]\ns_waitcnt lgkmcnt(0)")
        return
    if STAMP and (ss == SS or (ss == 0 and not (SS in (3, 4, 5) and idx in (1, 2, 6, 7, 8)) and not (SS == 6 and idx in (1, 2, 3, 6, 7, 8)) and not (SS == 1 and idx in (1, 2, 3, 4)) and not (SS == 2 and idx in (1, 2, 3)))):
        A(f"s_memrealtime s[{80+2*idx}:{81+2*idx}]\ns_waitcnt lgkmcnt(0)")
ENCN = [0]
def stamp_flush():
    if ENC >= 0:
        ENCN[0] += 1; n = ENCN[0]
        if ENC >= 20:
            A(f"""
            s_waitcnt vmcnt(0) lgkmcnt(0)
            s_memrealtime s[98:99]
            s_waitcnt lgkmcnt(0)
            s_mov_b64 exec, 1
            v_mov_b32 v2, 0
            v_mov_b32 v3, s98
            v_mov_b32 v4, s80
            v_not_b32 v5, v4
            s_cmp_eq_u32 s{sWN}, 0
            s_cbranch_scc0 L_enc_end{n}
            global_atomic_umax v2, v3, s[62:63] offset:192 sc1
            global_atomic_umax v2, v4, s[62:63] offset:196 sc1
            global_atomic_umax v2, v5, s[62:63] offset:200 sc1
            s_cmp_eq_u32 s2, {ENCWG}
            s_cbranch_scc0 L_enc_end{n}
            s_cmp_eq_u32 s{sW}, 0
            s_cbranch_scc0 L_enc_end{n}
            s_add_u32 s3, s80, 6000
L_enc_w{n}:
            s_memrealtime s[4:5]
            s_waitcnt lgkmcnt(0)
            s_sub_u32 s6, s4, s3
            s_cmp_lt_i32 s6, 0
            s_cbranch_scc1 L_enc_w{n}
            global_load_dwordx4 v[4:7], v2, s[62:63] offset:192 sc1
            s_waitcnt vmcnt(0)
            v_readfirstlane_b32 s4, v4
            v_readfirstlane_b32 s5, v5
            v_readfirstlane_b32 s6, v6
            s_not_b32 s6, s6
            s_sub_u32 s7, {"s4" if ENC == 20 else "s5" if ENC == 21 else "s6"}, s6
            s_and_b32 s7, s7, 0xfff
            s_lshl_b32 s7, s7, 3
            s_add_u32 s3, s6, 8000
            s_add_u32 s3, s3, s7
L_enc_spin{n}:
            s_memrealtime s[4:5]
            s_waitcnt lgkmcnt(0)
            s_sub_u32 s6, s4, s3
            s_cmp_lt_i32 s6, 0
            s_cbranch_scc1 L_enc_spin{n}
L_enc_end{n}:
            """)
            return
        A(f"""
        s_cmp_eq_u32 s2, {ENCWG}
        s_cbranch_scc0 L_enc_end{n}
        s_cmp_eq_u32 s{sW}, {ENCW}
        s_cbranch_scc0 L_enc_end{n}
        s_waitcnt vmcnt(0) lgkmcnt(0)
        s_memrealtime s[98:99]
        s_waitcnt lgkmcnt(0)
        s_sub_u32 s3, s{80+2*ENC}, s80
        s_and_b32 s3, s3, 0xfff
        s_lshl_b32 s3, s3, 2
        s_add_u32 s3, s3, s80
        s_add_u32 s3, s3, 2000
        {f"s_add_u32 s3, s80, {FIXT}" if FIXT else ""}
L_enc_spin{n}:
        s_memrealtime s[4:5]
        s_waitcnt lgkmcnt(0)
        s_sub_u32 s6, s4, s3
        s_cmp_lt_i32 s6, 0
        s_cbranch_scc1 L_enc_spin{n}
L_enc_end{n}:
        """)
        return
    if not STAMP: return
    A(f"""
    s_waitcnt vmcnt(0) lgkmcnt(0)
    s_memrealtime s[{80+2*NST}:{81+2*NST}]
    s_waitcnt lgkmcnt(0)
    s_mov_b64 exec, -1
    v_lshrrev_b32 v1, 6, v0
    s_lshl_b32 s3, s2, 3
    v_add_u32 v1, s3, v1
    v_lshlrev_b32 v1, 6, v1
    v_add_u32 v1, {WS_STAMP}, v1
    """)
    for i in range(12): A(f"v_mov_b32 v{4+i}, s{80+2*min(i, NST)}")
    A(f"""
    v_and_b32 v2, 63, v0
    v_cmp_eq_u32 vcc, 0, v2
    s_and_saveexec_b64 s[4:5], vcc
    buffer_store_dwordx4 v[4:7], v1, s[20:23], 0 offen
    buffer_store_dwordx4 v[8:11], v1, s[20:23], 0 offen offset:16
    buffer_store_dwordx4 v[12:15], v1, s[20:23], 0 offen offset:32
    """)

HEADER = f"""; gated mix of an S4 long convolution and a GeGLU FFN, one launch, one workgroup per CU.
;   woven into it: the SSM kernel K of two channels (factor tables, K = P Q by MFMA, expansion)
; @launch grid=(256,1,1) block=(512,1,1) lds=163840
"""

PADS = {}
PLAN = {}
def pad(name, inline=True):
    if not STUBS or name not in PLAN: return
    r, w = PLAN[name]
    if inline: A(f"s_branch L_skip_{name}")
    A(f"L_pad_{name}:\ns_branch L_warm_ret{r}")
    if inline: A(f"L_skip_{name}:")
    PADS[name] = PLAN[name]
def warm(r):
    if not STUBS: return
    tgt = {w: n for n, (rr, w) in PLAN.items() if rr == r}
    for w in range(8):
        if w in tgt: A(f"s_cmp_eq_u32 s{sW}, {w}\ns_cbranch_scc1 L_pad_{tgt[w]}")
    A(f"L_warm_ret{r}:")

sW, sXoff, sWoff, sM0W, sM0X, sB1 = 24, 25, 26, 27, 28, 29
sTB, sFB, sWN, sWM, sI, sJ, sMov, sSpin = 32, 33, 36, 37, 38, 39, 40, 42
sHst, sDsk, sHfl, sRole = 43, 48, 49, 100
sTok, sD, sH0, sH1, sLds, sFl, sWd = 50, 51, 52, 53, 64, 65, 66
sCu, sCga, sCfl = 50, 51, 52
sK1, sK2 = 54, 55
sT, sIt, sHfl2, sTch, sRX, sRW, sRho = 41, 30, 31, 29, 44, 45, 67
vTch, vJunk = 253, 254
vXo = [240, 241]; vWo = 242; vDo = [248, 249]
vWr = 75; vXr = [76, 77, 78, 79]
vPoll, vZero, cMv, vTab = 250, 251, 252, 93
FR = [80, 104]; ACC1 = 128
vU, vG = 224, 232
PAR = 120
XA = 48
cKf0, cKf1, cKd0, cKd1, cKd2 = 2, 3, 4, 14, 15
cUw, cZ0, cZ1, cImg = 71, 72, 73, 74
cA = [75, 76, 77, 78]; cB, cRw, cRr, cUr, cS0, cS1, cLu0, cLu1, cLg0, cLg1, cT, cCnt, cOne = range(79, 92)
gD = [8, 9, 10, 11]; gX = [12, 13]; gFl, gL16, gT = 5, 6, 7

class Cnt:
    def __init__(self, name, cap): self.ops = []; self.name = name; self.cap = cap
    def note(self, tag): self.ops.append(tag)
    def issue(self, tag, text): A(text); self.ops.append(tag)
    def need(self, tags):
        idx = [i for i, t in enumerate(self.ops) if t in tags]
        if not idx: return None
        n = min(len(self.ops) - 1 - max(idx), self.cap)
        self.ops = self.ops[len(self.ops)-n:] if n else []
        return n
    def wait(self, tags):
        n = self.need(tags)
        if n is not None: A(f"s_waitcnt {self.name}({n})")

def u32(x): return x & 0xffffffff
def x_dma(c):
    o = []
    pre = [f"s_add_u32 s46, s{sRX}, {c*128}", "s_and_b32 s46, s46, 1023", f"s_add_u32 s46, s46, s{sXoff}"] if ROT2 else []
    for part in (1, 0):
        o += [f"s_add_u32 m0, s{sM0X}, {u32((c&1)*16384 - part*8192)}",
              f"s_add_u32 s{sT}, s46, {u32(-part*65536)}" if ROT2 else f"s_add_u32 s{sT}, s{sXoff}, {u32(c*128 - part*65536)}",
              f"buffer_load_dwordx4 v{vXo[0]}, s[8:11], s{sT} offen lds",
              f"buffer_load_dwordx4 v{vXo[1]}, s[8:11], s{sT} offen offset:1024 lds"]
    o[0] = "\n".join(pre + [o[0]])
    return o
def w_dma(s):
    o = []
    pre = [f"s_add_u32 s46, s{sRW}, {s}", "s_and_b32 s46, s46, 15", f"s_mul_i32 s46, s46, {WSTEP}", f"s_add_u32 s46, s46, s{sWoff}"] if ROT2 else []
    for part in (1, 0):
        o += [f"s_add_u32 m0, s{sM0W}, {u32((s&3)*16384 - part*8192)}",
              f"s_add_u32 s{sT}, s46, {u32(-part*16*3584)}" if ROT2 else f"s_add_u32 s{sT}, s{sWoff}, {u32(s*WSTEP - part*16*3584)}",
              f"buffer_load_dwordx4 v{vWo}, s[12:15], s{sT} offen lds",
              f"buffer_load_dwordx4 v{vWo}, s[16:19], s{sT} offen offset:1024 lds"]
    o[0] = "\n".join(pre + [o[0]])
    return o
def piece_off(kap): return 16384*(kap >> 1) + 2048*(kap & 1) + (RED - 98304 if kap >= 12 else 0)
def d_piece(kap, k):
    off = f"s_add_u32 s{sT}, s{sWd}, {(k >> 1)*32768 + (k & 1)*8192 if M16 else k*16384}"
    if ROT3 and k >= 4:
        off = f"s_cmp_ge_u32 s{sRho}, {28 - k}\ns_cselect_b32 s47, {28*16384}, 0\n{off}\ns_sub_u32 s{sT}, s{sT}, s47"
    return [f"s_add_u32 m0, s{sLds}, {piece_off(kap)}", off,
            f"buffer_load_dwordx4 v{vDo[0]}, s[68:71], s{sT} offen lds",
            f"buffer_load_dwordx4 v{vDo[1]}, s[68:71], s{sT} offen offset:1024 lds"]
def d_dma(sig): return d_piece(2*sig, 2*sig) + d_piece(2*sig + 1, 2*sig + 1)

def common_setup():
    A(f"""
    v_lshrrev_b32 v16, 4, v1
    v_and_b32 v16, 1, v16
    v_lshlrev_b32 v16, 2, v16
    v_and_b32 v17, 7, v1
    v_xor_b32 v16, v16, v17
    v_lshrrev_b32 v17, 3, v1
    v_lshlrev_b32 v17, 10, v17
    v_lshl_add_u32 v{vDo[0]}, v16, 4, v17
    v_add_u32 v{vDo[1]}, {15360 if M16 else 7168}, v{vDo[0]}
    {f"s_add_u32 s68, s20, {WS_WD}" if CPY else "s_mov_b32 s68, s56"}
    {"s_addc_u32 s69, s21, 0" if CPY else "s_mov_b32 s69, s57"}
    s_mov_b32 s70, {1792*1024}
    s_mov_b32 s71, 0x00020000
    s_lshl_b32 s{sLds}, s{sWN}, 12
    s_mul_i32 s{sWd}, s{sWN}, {28*16384}
    s_lshl_b32 s4, s{sJ}, 7
    s_add_u32 s{sWd}, s{sWd}, s4
    s_and_b32 s{sRho}, s2, {7 if ROT3 else 0}
    s_cmp_eq_u32 s{sRho}, 7
    s_cselect_b32 s{sRho}, 3, s{sRho}
    s_lshl_b32 s{sRho}, s{sRho}, 2
    s_lshl_b32 s4, s{sRho}, 14
    s_add_u32 s{sWd}, s{sWd}, s4
    s_mov_b32 s{sSpin}, {SPIN}
    """)

def g1_setup():
    A(f"""
    v_lshrrev_b32 v16, 2, v1
    v_and_b32 v16, 3, v16
    v_xor_b32 v17, s{sWN}, v16
    v_lshlrev_b32 v{vWr}, 8, v16
    v_lshl_add_u32 v{vWr}, v17, 6, v{vWr}
    v_lshrrev_b32 v16, 5, v1
    v_lshl_add_u32 v{vWr}, v16, 12, v{vWr}
    v_and_b32 v17, 16, v1
    v_lshlrev_b32 v18, 1, v17
    v_and_b32 v17, 1, v1
    v_lshl_add_u32 v18, v17, 4, v18
    v_and_b32 v17, 2, v1
    v_lshl_add_u32 v18, v17, 2, v18
    v_add_u32 v{vWr}, v{vWr}, v18
    v_lshrrev_b32 v17, 1, v1
    v_and_b32 v17, 7, v17
    v_xor_b32 v17, v17, v16
    v_and_b32 v{vXr[0]}, 31, v1
    v_lshlrev_b32 v{vXr[0]}, 7, v{vXr[0]}
    v_lshl_add_u32 v{vXr[0]}, v17, 4, v{vXr[0]}
    v_add_u32 v{vXr[0]}, {XB}, v{vXr[0]}
    v_xor_b32 v{vXr[1]}, 32, v{vXr[0]}
    v_xor_b32 v{vXr[2]}, 64, v{vXr[0]}
    v_xor_b32 v{vXr[3]}, 0x60, v{vXr[0]}
    """)
    if M16:
        A(f"""
        v_lshrrev_b32 v16, 2, v1
        v_and_b32 v16, 3, v16
        v_xor_b32 v17, s{sWN}, v16
        v_lshlrev_b32 v{vWr}, 8, v16
        v_lshl_add_u32 v{vWr}, v17, 6, v{vWr}
        v_lshrrev_b32 v16, 4, v1
        v_lshl_add_u32 v{vWr}, v16, 12, v{vWr}
        v_and_b32 v17, 1, v16
        v_lshl_add_u32 v{vWr}, v17, 5, v{vWr}
        v_and_b32 v17, 3, v1
        v_lshl_add_u32 v{vWr}, v17, 3, v{vWr}
        v_xor_b32 v{vXr[2]}, 32, v{vWr}
        v_lshrrev_b32 v17, 1, v1
        v_and_b32 v17, 7, v17
        v_xor_b32 v17, v17, v16
        v_and_b32 v{vXr[0]}, 15, v1
        v_lshlrev_b32 v{vXr[0]}, 7, v{vXr[0]}
        v_lshl_add_u32 v{vXr[0]}, v17, 4, v{vXr[0]}
        v_add_u32 v{vXr[0]}, {XB}, v{vXr[0]}
        v_xor_b32 v{vXr[1]}, 64, v{vXr[0]}
        """)
    A(f"""
    s_mul_i32 s{sHst}, s{sTB}, 448
    s_lshl_b32 s5, s{sFB}, 2
    s_add_u32 s5, s5, s{sWN}
    s_lshl_b32 s4, s5, 1
    s_add_u32 s{sHst}, s{sHst}, s4
    s_lshl_b32 s{sHst}, s{sHst}, 10
    s_mul_i32 s3, s{sTB}, 112
    s_add_u32 s3, s3, s5
    s_lshl_b32 s3, s3, 7
    s_add_u32 s{sHfl}, s3, {WS_FLAG}
    s_mov_b32 s34, {fbits(-2.0 * L2E * math.sqrt(2.0/math.pi) * 0.044715)}
    s_mov_b32 s35, s34
    s_mov_b32 s{sIt}, 0
    """)

def k_setup1():
    A(f"""
    s_lshr_b32 s6, s{sWN}, 1
    s_and_b32 s7, s{sWN}, 1
    s_mul_i32 s4, s6, {57*PITCH}
    s_add_u32 s4, s4, {TB}
    v_and_b32 v16, 15, v1
    v_lshrrev_b32 v17, 4, v1
    v_mul_u32_u24 v{cKf0}, {PITCH}, v16
    v_lshl_add_u32 v{cKf0}, v17, 4, v{cKf0}
    v_add_u32 v{cKf0}, s4, v{cKf0}
    s_mul_i32 s4, s7, {16*PITCH}
    v_add_u32 v{cKf1}, s4, v{cKf0}
    s_lshl_b32 s3, s6, 1
    s_add_u32 s3, s3, {KD}
    v_lshrrev_b32 v18, 1, v17
    v_and_b32 v19, 1, v17
    v_lshlrev_b32 v24, 7, v18
    v_lshl_add_u32 v24, v19, 2, v24
    v_lshl_add_u32 v24, v16, 3, v24
    v_lshlrev_b32 v25, 6, v17
    v_add_u32 v25, 256, v25
    v_lshl_add_u32 v26, v16, 2, v25
    v_lshl_add_u32 v27, v16, 1, v25
    v_cmp_gt_u32 vcc, 2, v17
    v_mov_b32 v28, 32
    v_lshl_add_u32 v25, v17, 6, v16
    v_cndmask_b32 v26, v27, v26, vcc
    v_cndmask_b32 v28, v28, 2, vcc
    s_cmp_eq_u32 s7, 0
    s_cselect_b64 vcc, -1, 0
    v_lshl_add_u32 v{cKd2}, v25, 2, s3
    v_cndmask_b32 v26, v26, v24, vcc
    v_cndmask_b32 v28, v28, 2, vcc
    v_add_u32 v28, v26, v28
    v_lshl_add_u32 v{cKd0}, v26, 2, s3
    v_lshl_add_u32 v{cKd1}, v28, 2, s3
    """)
def k_setup2():
    CB = 0x4300 - 128
    A(f"""
    v_and_b32 v{cT}, 127, v0
    s_lshr_b32 s6, s{sWN}, 1
    s_and_b32 s7, s{sWN}, 1
    s_mul_i32 s5, s6, {CH}
    s_add_u32 s5, s5, {TB}
    v_and_b32 v29, 255, v0
    v_lshlrev_b32 v{cImg}, 4, v29
    v_lshlrev_b32 v29, 3, v29
    v_sub_u32 v29, 2047, v29
    v_cvt_f32_i32 v30, v29
    v_add_u32 v29, {CB}, v29
    v_mov_b32 v31, {128 + CB}
    s_mov_b32 s3, {KD - 4*CB}
    """)
    for e in range(9):
        r = XA + e
        A(f"v_subrev_f32 v{r}, {fbits(float(e))}, v30\nv_cvt_pk_bf16_f32 v{r}, v{r}, 0")
        A(f"v_subrev_u32 v24, {e}, v29\nv_med3_i32 v{r}, v{r}, v24, v31")
        A(f"v_lshl_add_u32 v{r}, v{r}, 2, s3")
    A(f"""
    v_lshl_add_u32 v{cZ0}, v{cT}, 2, s5
    v_and_b32 v{cZ1}, 60, v{cZ0}
    s_mul_i32 s3, s7, 4160
    s_add_u32 s3, s3, s5
    v_add_u32 v{cZ1}, s3, v{cZ1}
    v_add_u32 v{cImg}, {TB}, v{cImg}
    """)
def k_setup(): k_setup2()

def conv_setup1():
    A(f"""
    v_and_b32 v32, 255, v0
    v_lshlrev_b32 v{cS0}, 4, v32
    v_add_u32 v{cS1}, 4096, v{cS0}
    v_add_u32 v{cLg0}, {WS_G}, v{cS0}
    v_add_u32 v{cLg1}, {WS_G}, v{cS1}
    v_lshrrev_b32 v33, 3, v32
    v_lshlrev_b32 v{cLu0}, 10, v33
    v_and_b32 v26, 7, v32
    v_lshl_add_u32 v{cLu0}, v26, 4, v{cLu0}
    v_xor_b32 v26, s2, v33
    v_and_b32 v26, 7, v26
    v_lshl_add_u32 v{cLu0}, v26, 7, v{cLu0}
    v_add_u32 v{cLu1}, 32768, v{cLu0}
    s_lshr_b32 s{sCu}, s2, 3
    s_lshl_b32 s{sCu}, s{sCu}, 16
    s_add_u32 s{sCu}, s{sCu}, {WS_UT}
    s_and_b32 s3, s2, 31
    s_lshl_b32 s3, s3, 7
    s_add_u32 s3, s3, {WS_FLAG3}
    v_mov_b32 v{cMv}, s3
    """)
def conv_setup2():
    A(f"""
    v_lshlrev_b32 v{cUw}, 6, v33
    v_and_b32 v26, 3, v32
    v_lshl_add_u32 v{cUw}, v26, 4, v{cUw}
    v_bfe_u32 v26, v32, 2, 1
    v_mul_u32_u24 v26, {CH}, v26
    v_add_u32 v{cUw}, v{cUw}, v26
    v_add_u32 v{cUw}, {TB + UOFF + 512}, v{cUw}
    s_lshr_b32 s6, s{sWN}, 1
    s_and_b32 s7, s{sWN}, 1
    s_mul_i32 s5, s6, {CH}
    s_add_u32 s5, s5, {TB}
    v_and_b32 v16, 15, v1
    v_lshrrev_b32 v17, 4, v1
    v_add_u32 v{cRr}, {RED}, v{cS0}
    v_lshrrev_b32 v{cUr}, 1, v{cS0}
    v_add_u32 v{cUr}, {TB + UOFF + 512}, v{cUr}
    v_and_b32 v24, 1, v16
    v_xor_b32 v24, 1, v24
    v_mul_u32_u24 v24, 4160, v24
    v_and_b32 v25, 14, v16
    v_lshlrev_b32 v25, 1, v25
    v_sub_u32 v24, v24, v25
    v_lshl_add_u32 v24, v17, 4, v24
    s_lshl_b32 s4, s7, 8
    s_sub_u32 s4, s5, s4
    s_add_u32 s3, s4, {4060 - 512 - 192}
    v_add_u32 v{cA[0]}, s3, v24
    v_subrev_u32 v{cA[1]}, 1024, v{cA[0]}
    v_subrev_u32 v{cA[2]}, 2048, v{cA[0]}
    v_subrev_u32 v{cA[3]}, 3072, v{cA[0]}
    v_lshlrev_b32 v{cB}, 5, v16
    v_lshl_add_u32 v{cB}, v17, 4, v{cB}
    s_add_u32 s3, s4, {UOFF + 480 - 192}
    v_add_u32 v{cB}, s3, v{cB}
    v_lshlrev_b32 v{cRw}, 6, v16
    v_lshl_add_u32 v{cRw}, v17, 4, v{cRw}
    s_lshl_b32 s3, s{sWN}, 13
    s_add_u32 s3, s3, {RED}
    v_add_u32 v{cRw}, s3, v{cRw}
    s_lshl_b32 s{sCga}, s2, 13
    s_add_u32 s{sCga}, s{sCga}, {WS_GA}
    s_lshl_b32 s3, s2, 2
    s_load_dword s{sDsk}, s[78:79], s3
    s_add_u32 s3, s3, s{sWN}
    s_lshl_b32 s3, s3, 7
    s_add_u32 s{sCfl}, s3, {WS_FLAG2}
    """)
def conv_setup(): conv_setup1(); conv_setup2()

def g2_setup():
    A(f"""
    s_and_b32 s6, s{sW}, 1
    s_lshr_b32 s7, s{sW}, 1
    s_lshl_b32 s{sTok}, s{sI}, 1
    s_add_u32 s{sTok}, s{sTok}, s6
    s_lshl_b32 s{sD}, s{sJ}, 1
    s_add_u32 s{sD}, s{sD}, s7
    v_lshrrev_b32 v16, 2, v1
    v_and_b32 v16, 3, v16
    v_lshrrev_b32 v17, 5, v1
    v_lshl_add_u32 v19, v17, {2 if M16 else 3}, v16
    v_lshl_add_u32 v{gD[0]}, v19, 7, v18
    v_lshrrev_b32 v16, 1, v16
    v_xor_b32 v16, s7, v16
    v_lshl_add_u32 v{gD[0]}, v16, 6, v{gD[0]}
    v_add_u32 v{gD[0]}, s{sLds}, v{gD[0]}
    v_xor_b32 v{gD[1]}, 64, v{gD[0]}
    v_add_u32 v{gD[2]}, 0x10000, v{gD[0]}
    v_add_u32 v{gD[3]}, 0x10000, v{gD[1]}
    v_min_u32 v{gFl}, 13, v1
    v_lshlrev_b32 v{gFl}, 7, v{gFl}
    s_lshl_b32 s{sFl}, s{sI}, 2
    s_add_u32 s{sFl}, s{sFl}, s{sW}
    s_mul_i32 s{sFl}, s{sFl}, {14*128}
    s_add_u32 s{sFl}, s{sFl}, {WS_FLAG}
    v_lshlrev_b32 v{gL16}, 4, v1
    s_mul_i32 s3, s{sW}, 28
    s_add_u32 s3, s3, s{sRho}
    s_lshl_b32 s3, s3, 10
    s_mul_i32 s{sH0}, s{sTok}, {112*1024}
    s_xor_b32 s4, s{sTok}, 1
    s_mul_i32 s{sH1}, s4, {112*1024}
    s_add_u32 s{sH0}, s{sH0}, s3
    s_add_u32 s{sH1}, s{sH1}, s3
    """)

def prologue():
    A(f"""
    s_load_dwordx16 s[64:79], s[0:1], 8
    s_load_dwordx2 s[8:9], s[0:1], 0
    s_load_dwordx4 s[12:15], s[0:1], 80
    s_load_dwordx8 s[56:63], s[0:1], 96
    s_load_dwordx2 s[20:21], s[0:1], 128
    v_lshrrev_b32 v2, 6, v0
    v_and_b32 v1, 63, v0
    v_mov_b32 v{vZero}, 0
    v_mov_b32 v{cCnt}, {CNT}
    v_mov_b32 v{cOne}, 1
    ds_write_b32 v{cCnt}, v{vZero}
    v_and_b32 v3, 255, v0
    v_readfirstlane_b32 s{sW}, v2
    s_lshl_b32 s3, s2, 8
    v_add_u32 v3, s3, v3
    v_lshlrev_b32 v3, 1, v3
    v_lshrrev_b32 v4, 7, v3
    v_and_b32 v4, 0xfffffffe, v4
    """)
    if STUBS: A(f"s_cmp_lt_u32 s2, 224\ns_cbranch_scc1 L_warm0\ns_cmp_eq_u32 s{sW}, 4\ns_cbranch_scc1 L_pad_mv\nL_warm0:")
    warm(0)
    A(f"""
    s_and_b32 s{sWN}, s{sW}, 3
    s_lshr_b32 s{sWM}, s{sW}, 2
    s_and_b32 s3, s2, 7
    s_lshr_b32 s4, s2, 3
    s_lshr_b32 s{sTB}, s3, 1
    s_lshl_b32 s{sTB}, s{sTB}, 2
    s_and_b32 s5, s4, 3
    s_add_u32 s{sTB}, s{sTB}, s5
    s_lshl_b32 s{sI}, s3, 2
    s_add_u32 s{sI}, s{sI}, s5
    s_and_b32 s{sFB}, s3, 1
    s_mul_i32 s{sFB}, s{sFB}, 7
    s_lshr_b32 s{sJ}, s4, 2
    s_add_u32 s{sFB}, s{sFB}, s{sJ}
    s_lshl_b32 s{sXoff}, s{sTB}, 17
    s_lshl_b32 s5, s{sW}, 14
    s_add_u32 s{sXoff}, s{sXoff}, s5
    s_mul_i32 s{sWoff}, s{sW}, {4*3584}
    s_lshl_b32 s5, s{sFB}, 8
    s_add_u32 s{sWoff}, s{sWoff}, s5
    s_and_b32 s{sRW}, s3, 6
    s_lshl_b32 s{sRX}, s{sRW}, 7
    s_lshl_b32 s{sRW}, s{sRW}, 1
    s_lshl_b32 s{sM0W}, s{sW}, 11
    s_add_u32 s{sM0X}, s{sM0W}, {XB}
    v_lshrrev_b32 v16, 4, v1
    v_and_b32 v17, 7, v1
    v_xor_b32 v18, v17, v16
    v_lshrrev_b32 v19, 3, v1
    v_lshlrev_b32 v19, 10, v19
    v_lshl_add_u32 v{vXo[0]}, v18, 4, v19
    v_xor_b32 v{vXo[1]}, 64, v{vXo[0]}
    v_add_u32 v{vXo[1]}, 7168, v{vXo[1]}
    v_lshlrev_b32 v17, 2, v16
    v_and_b32 v{vWo}, 15, v1
    v_xor_b32 v{vWo}, v{vWo}, v17
    s_and_b32 s5, s{sW}, {2 if M16 else 0}
    v_xor_b32 v{vWo}, s5, v{vWo}
    v_lshlrev_b32 v{vWo}, 4, v{vWo}
    v_mul_u32_u24 v16, 3584, v16
    v_add_u32 v{vWo}, v{vWo}, v16
    s_mov_b32 s10, 0x200000
    s_mov_b32 s11, 0x00020000
    s_mov_b32 s18, {512*1792*2 + 1024}
    s_mov_b32 s19, 0x00020000
    s_mov_b32 s22, {WS_BYTES - (WSB << 20)}
    s_mov_b32 s23, 0x00020000
    s_waitcnt lgkmcnt(0)
    s_add_u32 s20, s20, {WSB << 20}
    s_addc_u32 s21, s21, 0
    s_sub_u32 s16, s14, 1024
    s_subb_u32 s17, s15, 0
    s_mov_b32 s14, {512*1792*2}
    s_mov_b32 s15, 0x00020000
    """)
    params(0, 3)
    A(f"s_cmp_ge_u32 s{sW}, 4\ns_cbranch_scc1 L_role_b")
    params(3, 7)

def params(i0, i1):
    for i, p in list(enumerate((76, 64, 66, 68, 70, 72, 74)))[i0:i1]:
        A(f"global_load_ushort v{PAR+i}, v{4 if i == 0 else 3}, s[{p}:{p+1}]")

def touches():
    if not ROT2 or T2W == 1: return touches_all()
    A(f"""
    s_cmp_ge_u32 s2, 224
    s_cbranch_scc1 L_t2_done
    s_cmp_ge_u32 s{sW}, 2
    s_cbranch_scc1 L_t2_done
    s_lshl_b32 s3, s2, 1
    s_add_u32 s3, s3, s{sW}
    s_mul_i32 s3, s3, {37*128}
    v_min_u32 v112, 36, v1
    v_lshlrev_b32 v112, 7, v112
    buffer_load_dword v74, v112, s[8:11], s3 offen
L_t2_done:
    """)
def touches_all():
    A(f"""
    s_cmp_ge_u32 s2, 224
    s_cbranch_scc1 L_t2_done
    s_cmp_eq_u32 s{sW}, 0
    s_cbranch_scc0 L_t2_w
    v_min_u32 v112, 59, v1
    v_mul_u32_u24 v113, 43, v112
    v_lshrrev_b32 v113, 8, v113
    v_mul_u32_u24 v114, 6, v113
    v_sub_u32 v112, v112, v114
    v_lshlrev_b32 v112, 7, v112
    v_lshl_add_u32 v112, v113, 10, v112
    s_mul_i32 s3, s2, 10240
    s_add_u32 s3, s3, 256
    buffer_load_dword v74, v112, s[8:11], s3 offen
    s_branch L_t2_done
L_t2_w:
    v_min_u32 v112, 55, v1
    v_lshlrev_b32 v112, 7, v112
    s_mul_i32 s3, s2, 7168
    s_add_u32 s3, s3, {2*WSTEP}
    s_cmp_eq_u32 s{sW}, 1
    s_cbranch_scc0 L_t2_u
    buffer_load_dword v74, v112, s[12:15], s3 offen
    s_branch L_t2_done
L_t2_u:
    s_cmp_eq_u32 s{sW}, 2
    s_cbranch_scc0 L_t2_done
    buffer_load_dword v74, v112, s[16:19], s3 offen offset:1024
L_t2_done:
    """)
    if TLB:
        A(f"""
        s_cmp_eq_u32 s{sW}, 3
        s_cbranch_scc0 L_tlb_done
        v_mul_u32_u24 v112, {TLB*1024}, v1
        v_min_u32 v112, 0xC00000, v112
        buffer_load_dword v74, v112, s[20:23], 0 offen sc1
        v_lshlrev_b32 v112, 15, v1
        global_load_dword v74, v112, s[60:61] sc1
L_tlb_done:
        """)
    A("""
    """)

def tab_common(R):
    a, th, dt, t0 = R["a"], R["th"], R["dt"], R["t0"]
    return lines(f"""
    v_lshlrev_b32 v{PAR}, 16, v{PAR}
    v_lshlrev_b32 v{a}, 16, v{PAR+1}
    v_lshlrev_b32 v{th}, 16, v{PAR+2}
    v_mul_f32 v{dt}, s{sK1}, v{PAR}
    v_fma_f32 v{t0}, v{PAR}, s{sK1}, -v{dt}
    v_fma_f32 v{t0}, v{PAR}, s{sK2}, v{t0}
    v_exp_f32 v{dt}, v{dt}
    v_mul_f32 v{t0}, {fbits(math.log(2.0))}, v{t0}
    v_fmac_f32 v{dt}, v{dt}, v{t0}
    v_cvt_pk_bf16_f32 v{dt}, 0, v{dt}
    v_mul_f32 v{a}, v{dt}, v{a}
    v_mul_f32 v{th}, v{dt}, v{th}
    v_mul_f32 v{a}, s{sK1}, v{a}
    v_mul_f32 v{th}, 0.15915494, v{th}
    """)
def cexp(R, e, s, t):
    a, th = R["a"], R["th"]
    o = []
    if s == 1.0: o += [f"v_exp_f32 v{t}, v{a}", f"v_fract_f32 v{t+1}, v{th}"]
    else: o += [f"v_mul_f32 v{t}, {fbits(s)}, v{a}", f"v_mul_f32 v{t+1}, {fbits(s)}, v{th}", f"v_exp_f32 v{t}, v{t}", f"v_fract_f32 v{t+1}, v{t+1}"]
    o += [f"v_cos_f32 v{e}, v{t+1}", f"v_sin_f32 v{e+1}, v{t+1}", f"v_mul_f32 v{e}, v{t}, v{e}", f"v_mul_f32 v{e+1}, v{t}, v{e+1}"]
    return o
def neg(e): return [] if PKT else [f"v_sub_f32 v{e+2}, 0, v{e+1}"]
def cmul(d, a, b):
    if PKT:
        return [f"v_pk_mul_f32 {vr(d,2)}, {vr(a,2)}, {vr(b,2)} op_sel_hi:[0,1]",
                f"v_pk_fma_f32 {vr(d,2)}, {vr(a,2)}, {vr(b,2)}, {vr(d,2)} op_sel:[1,1,0] op_sel_hi:[1,0,1] neg_lo:[0,1,0]"]
    return [f"v_mul_f32 v{d}, v{a}, v{b}", f"v_mul_f32 v{d+1}, v{a}, v{b+1}",
            f"v_fmac_f32 v{d}, v{a+1}, v{b+2}", f"v_fmac_f32 v{d+1}, v{a+1}, v{b}"]
class Putter:
    def __init__(self, base): self.base = base; self.i = 0
    def __call__(self, row, r, ng=False):
        t = self.base + (self.i & 3); self.i += 1
        return [f"v_cvt_pk_bf16_f32 v{t}, v{r}, {'-' if ng else ''}v{r+1}", f"ds_write_b32 v{vTab}, v{t} offset:{row*PITCH}"]
PR = 16
def tab_addr():
    return lines(f"""
    v_and_b32 v{vTab}, 127, v0
    v_lshlrev_b32 v{vTab}, 2, v{vTab}
    s_lshr_b32 s6, s{sWN}, 1
    s_mul_i32 s4, s6, {57*PITCH}
    s_add_u32 s4, s4, {TB}
    v_add_u32 v{vTab}, s4, v{vTab}
    s_mov_b32 s{sK1}, {fbits(struct.unpack("<f", struct.pack("<f", L2E))[0])}
    s_mov_b32 s{sK2}, {fbits(L2E - struct.unpack("<f", struct.pack("<f", L2E))[0])}
    """)
def tables_a():
    R = dict(a=16, th=17, dt=18, t0=19); put = Putter(108)
    E1, E8, E128, DB, C = 44, 24, 28, 32, 36
    o = tab_common(R)
    o += cexp(R, E1, 1.0, 40) + neg(E1) + cexp(R, E128, 128.0, 42) + neg(E128)
    o += put(PR + 1, E1) + put(PR + 8, E128)
    o += cexp(R, E8, 8.0, 40) + neg(E8)
    o += lines(f"""
    v_lshlrev_b32 v{DB}, 16, v{PAR+3}
    v_lshlrev_b32 v{DB+1}, 16, v{PAR+4}
    v_lshlrev_b32 v{C}, 16, v{PAR+5}
    v_lshlrev_b32 v{C+1}, 16, v{PAR+6}
    v_mul_f32 v{DB}, v18, v{DB}
    v_mul_f32 v{DB+1}, v18, v{DB+1}
    """) + neg(DB)
    q = [20, 22]; jq = list(range(1, 16))
    o += cmul(q[0], C, DB) + put(0, q[0], True)
    def do_q():
        i = jq.pop(0); r = cmul(q[1], q[0], E8); q.reverse(); return r + put(i, q[0], True)
    o += cmul(52, E1, E128) + do_q() + put(PR + 9, 52)
    cur = E1; nx = 48
    for p in range(2, 8):
        o += cmul(nx, cur, E1); cur, nx = nx, (50 if nx == 48 else 48)
        d = 52 + 2*(p & 1)
        o += do_q() + put(PR + p, cur) + cmul(d, cur, E128) + do_q() + put(PR + 8 + p, d)
    while jq: o += do_q()
    return o
def tables_b():
    R = dict(a=16, th=17, dt=18, t0=19); put = Putter(108)
    E128, F2, F4, F6, E256 = 20, 24, 28, 32, 44
    o = tab_common(R)
    o += cexp(R, E128, 128.0, 40) + neg(E128) + cexp(R, F2, 2.0, 42) + neg(F2)
    o += ["v_mov_b32 v111, 0x3f80", f"ds_write_b32 v{vTab}, v111 offset:{PR*PITCH}"]
    o += cmul(E256, E128, E128) + neg(E256) + cmul(F4, F2, F2) + neg(F4) + cmul(38, E256, E128) + cmul(F6, F4, F2) + neg(F6)
    ch = {0: [E256, 96, 98], 1: [38, 100, 102]}; pp = 0
    for h in range(2, 17):
        c = ch[h & 1]; cur = c[0]
        if h + 2 <= 16: o += cmul(c[1], cur, E256)
        if h < 4: rows = [(PR + 16 + 4*(h-2) + p, f) for p, f in ((1, F2), (2, F4), (3, F6))]; r0 = PR + 16 + 4*(h-2)
        elif h < 8: rows = [(PR + 24 + 2*(h-4) + 1, F4)]; r0 = PR + 24 + 2*(h-4)
        else: rows = []; r0 = PR + 32 + (h-8)
        o += put(r0, cur)
        for row, f in rows:
            d = 40 + 2*(pp & 1); pp += 1
            o += cmul(d, cur, f) + put(row, d)
        ch[h & 1] = [c[1], c[2], c[1]] if h < 4 else [c[1], c[0], c[1]]
    return o
KF = [16 + 4*i for i in range(12)] + [80 + 4*i for i in range(12)]
KA = 64
def k_reads():
    o = []
    for s in range(8):
        o += [f"ds_read_b128 {vr(KF[3*s],4)}, v{cKf0} offset:{64*s}",
              f"ds_read_b128 {vr(KF[3*s+1],4)}, v{cKf1} offset:{16*PITCH+64*s}",
              f"ds_read_b128 {vr(KF[3*s+2],4)}, v{cKf0} offset:{48*PITCH+64*s}"]
    return o
def k_mfma():
    o = []
    for s in range(8):
        o += [f"v_mfma_f32_16x16x32_bf16 {vr(KA,4)}, {vr(KF[3*s+1],4)}, {vr(KF[3*s],4)}, {'0' if s == 0 else vr(KA,4)}",
              f"v_mfma_f32_16x16x32_bf16 {vr(KA+4,4)}, {vr(KF[3*s+2],4)}, {vr(KF[3*s],4)}, {'0' if s == 0 else vr(KA+4,4)}"]
    return o + ["s_nop 7"]
def k_write():
    return lines(f"""
    v_cvt_pk_bf16_f32 v34, v{KA}, v{KA+1}
    v_cvt_pk_bf16_f32 v35, v{KA+2}, v{KA+3}
    v_cvt_pk_bf16_f32 v36, v{KA+4}, v{KA+5}
    v_cvt_pk_bf16_f32 v37, v{KA+6}, v{KA+7}
    ds_write_b16 v{cKd0}, v34
    ds_write_b16_d16_hi v{cKd0}, v34 offset:4
    ds_write_b16 v{cKd1}, v35
    ds_write_b16_d16_hi v{cKd1}, v35 offset:4
    ds_write_b16 v{cKd2}, v36 offset:2048
    ds_write_b16_d16_hi v{cKd2}, v36 offset:{2048+64}
    ds_write_b16 v{cKd2}, v37 offset:{2048+128}
    ds_write_b16_d16_hi v{cKd2}, v37 offset:{2048+192}
    """)
GV = 112
def k_gather(): return [f"ds_read_b32 v{GV+e}, v{XA+e}" for e in range(9)]
def k_pack():
    o = [f"v_cmp_ne_u32 vcc, 0x1ff, v0", f"ds_write_b32 v{cZ0}, v{vZero} offset:{UOFF}",
         f"ds_write_b32 v{cZ1}, v{vZero} offset:4096", f"v_cndmask_b32 v{GV+8}, 0, v{GV+8}, vcc",
         f"s_mov_b32 s{sK1}, 0x05040100", f"s_mov_b32 s{sK2}, 0x07060302"]
    n = 0
    for c, sel in ((0, sK1), (1, sK2)):
        for k in range(2):
            for i in range(4): o.append(f"v_perm_b32 v{96+4*n+i}, v{GV+2*i+k+1}, v{GV+2*i+k}, s{sel}")
            o.append(f"ds_write_b128 v{cImg}, {vr(96+4*n,4)} offset:{c*CH + k*4160}")
            n += 1
    return o

LD_INIT = f"global_load_dword v{vPoll}, v{vZero}, s[62:63] sc1"
LD_MV = f"buffer_load_dword v{vPoll}, v{cMv}, s[20:23], 0 offen sc1"
def poll(lb, target, ld):
    A(f"""
{lb}:
    v_cmp_gt_u32 vcc, {target}, v{vPoll}
    s_cbranch_vccz {lb}_ok
    s_sub_u32 s{sSpin}, s{sSpin}, 1
    s_cbranch_scc1 {lb}_ok
    s_sleep 8
    {ld}
    s_waitcnt vmcnt(0)
    s_branch {lb}
{lb}_ok:
    """)
def poll_movers(lb): poll(lb, 1, LD_MV)

def dbar():
    if STAMP and SS == 4:
        A("s_memtime s[74:75]\ns_waitcnt lgkmcnt(0)\ns_barrier\ns_memtime s[76:77]\ns_waitcnt lgkmcnt(0)\ns_sub_u32 s74, s76, s74\ns_add_u32 s92, s92, s74")
    else: A("s_barrier")
def dclk(first):
    if STAMP and SS == 4:
        if first: A("s_memtime s[72:73]\ns_waitcnt lgkmcnt(0)")
        else: A("s_memtime s[76:77]\ns_waitcnt lgkmcnt(0)\ns_sub_u32 s94, s76, s72")
def gemm1_a():
    def reads(j):
        f = FR[j & 1]; s = (j >> 1) & 3; o = s*16384 + (j & 1)*8192; xo = ((j >> 2) & 1)*16384
        r = [f"ds_read_b64_tr_b16 {vr(f+16,2)}, v{vWr} offset:{o}",
             f"ds_read_b64_tr_b16 {vr(f+18,2)}, v{vWr} offset:{o+2048}",
             f"ds_read_b128 {vr(f,4)}, v{vXr[j & 3]} offset:{xo}",
             f"ds_read_b64_tr_b16 {vr(f+20,2)}, v{vWr} offset:{o+1024}",
             f"ds_read_b64_tr_b16 {vr(f+22,2)}, v{vWr} offset:{o+3072}"]
        return r + [f"ds_read_b128 {vr(f+4*tt,4)}, v{vXr[j & 3]} offset:{xo+4096*tt}" for tt in range(1, 4)]
    pad("lp")
    A("s_barrier")
    tail = k_part1()
    stamp(3); dclk(1)
    A(reads(0))
    A(tail[1:])
    A("L_g1_loop:")
    for j in range(8):
        A(f"s_waitcnt vmcnt({4 + AGT if j == 3 else AGT}) lgkmcnt(0)" if AW and j in (3, 5) else "s_waitcnt lgkmcnt(0)")
        if j & 1: dbar()
        if DLY and (j & 1):
            for _ in range(DLY // 16): A("s_nop 15")
            if DLY % 16: A(f"s_nop {DLY % 16 - 1}")
        f = FR[j & 1]; r = reads(j + 1)
        n = 0
        for tt in range(4):
            for o, a in ((0, 16), (16, 20)):
                d = vr(ACC1+32*tt+o, 16)
                A(f"v_mfma_f32_32x32x16_bf16 {d}, {vr(f+a,4)}, {vr(f+4*tt,4)}, {d}")
                A(r[2*n:2*n+2]); n += 1
                if j == 7 and n == 6: A(f"s_add_u32 s{sIt}, s{sIt}, 1\ns_cmp_lt_u32 s{sIt}, 4")
    if STAMP and SS == 3:
        A("s_mov_b32 s92, s94\ns_mov_b32 s94, s96\ns_mov_b32 s96, s98\ns_memrealtime s[98:99]\ns_waitcnt lgkmcnt(0)")
    if BRK: A(f"s_cbranch_scc0 L_g1_out\ns_sleep {BRK}\ns_branch L_g1_loop\nL_g1_out:")
    else: A("s_cbranch_scc1 L_g1_loop")
    dclk(0)

def gemm1_a16():
    FA = [16, 32]; FB = [80, 96]
    def ra(p):
        f = FA[p & 1]; o = (p & 3)*16384; r = []
        for mat in range(2):
            for T in range(2):
                for ih in range(2):
                    r.append(f"ds_read_b64_tr_b16 {vr(f+8*mat+4*T+2*ih,2)}, v{(vWr, vXr[2])[T]} offset:{o + 1024*mat + 2048*ih}")
        return r
    def rb(p, h):
        xo = ((p >> 1) & 1)*16384
        return [f"ds_read_b128 {vr(FB[h]+4*i,4)}, v{vXr[p & 1]} offset:{xo + 2048*(4*h + i)}" for i in range(4)]
    pad("lp")
    A("s_barrier")
    A(k_part1())
    stamp(3); dclk(1)
    A("s_waitcnt lgkmcnt(0)")
    A(ra(0) + rb(0, 0))
    A("L_g1_loop:")
    for p in range(4):
        for h in range(2):
            A("s_waitcnt lgkmcnt(0)")
            if h: dbar()
            if DLY and h:
                for _ in range(DLY // 16): A("s_nop 15")
                if DLY % 16: A(f"s_nop {DLY % 16 - 1}")
            r = rb(p, 1) if h == 0 else (ra(p + 1)[:2] + rb(p + 1, 0)[:1] + ra(p + 1)[2:] + rb(p + 1, 0)[1:])
            n = 0
            up = UPF if h else UP0
            A(r[:up]); r = r[up:]
            order = [(i, mat, T) for i in range(4) for mat in range(2) for T in range(2)]
            if AORD: order = [(i, mat, T) for mat in range(2) for T in range(2) for i in range(4)]
            for (i, mat, T) in order:
                tt = 4*h + i
                if True:
                    if True:
                        d = vr(ACC1 + 32*(tt >> 1) + 16*mat + 8*(tt & 1) + 4*T, 4)
                        A(f"v_mfma_f32_16x16x32_bf16 {d}, {vr(FA[p & 1]+8*mat+4*T,4)}, {vr(FB[h]+4*i,4)}, {d}")
                        if r: A(r.pop(0))
                        n += 1
                        if p == 3 and h == 1 and n == 14: A(f"s_add_u32 s{sIt}, s{sIt}, 1\ns_cmp_lt_u32 s{sIt}, 4")
    if STAMP and SS == 3:
        A("s_mov_b32 s92, s94\ns_mov_b32 s94, s96\ns_mov_b32 s96, s98\ns_memrealtime s[98:99]\ns_waitcnt lgkmcnt(0)")
    A("s_cbranch_scc1 L_g1_loop")
    dclk(0)

def capture(*fns):
    global L
    keep = L; L = []
    for f in fns: f()
    out = [x.strip() for x in L]; L = keep
    return out

def slices(lst, n):
    out = []; pos = 0
    for i in range(n):
        end = (i + 1)*len(lst)//n
        while 0 < end < len(lst) and lst[end-1].startswith("s_cmp"): end += 1
        out.append(lst[pos:end]); pos = end
    return out

def gemm1_b():
    vm = Cnt("vmcnt", 63)
    def dma(kind, idx):
        if kind == "W": d = w_dma(idx) if idx < 16 else d_dma(idx - 16)
        else: d = x_dma(idx) if idx < 8 else d_dma(idx - 8 + 4)
        A(d)
        for _ in range(4): vm.note((kind, idx))
    def barrier(tags, first=False):
        n = vm.need(tags)
        if STAMP and SS == 4 and not first:
            A("s_memtime s[74:75]\ns_waitcnt lgkmcnt(0)")
            if n is not None: A(f"s_waitcnt vmcnt({n})")
            A("s_memtime s[76:77]\ns_waitcnt lgkmcnt(0)\ns_sub_u32 s74, s76, s74\ns_add_u32 s96, s96, s74")
            dbar()
        else: A(f"s_waitcnt {'vmcnt(%d) ' % n if n is not None else ''}lgkmcnt(0)\ns_barrier")
    if BPRIO: A(f"s_setprio {BPRIO}")
    dma("X", 0); dma("W", 0); dma("W", 1)
    A(tab_addr()); common_setup()
    A("s_waitcnt vmcnt(12)")
    stamp(1)
    t = tables_b()
    A(t[:60]); pad("rb1"); dma("X", 1); A(t[60:])
    stamp(2)
    if BT:
        per = -(-128 // BT)
        A(f"""
        v_min_u32 v{vTch}, {per - 1}, v1
        v_lshlrev_b32 v{vTch}, 7, v{vTch}
        s_lshr_b32 s3, s2, 3
        s_mul_i32 s3, s3, {per*128}
        s_mul_i32 s4, s{sWN}, {448*1024}
        s_add_u32 s{sTch}, s3, s4
        """)
    allw = capture(conv_setup1, k_setup2) + k_gather() + capture(conv_setup2) + ["s_waitcnt lgkmcnt(0)"] + k_pack()
    cut = len(allw) - NPOST
    post = allw[cut:]
    work = slices(allw[:cut], NW)
    barrier({("X", 0), ("W", 0)}, True)
    stamp(3); dclk(1)
    dma("W", 2); dma("W", 3)
    warm(1)
    carry = []
    def groups(kind, idx):
        if kind == "W": d = w_dma(idx) if idx < 16 else d_dma(idx - 16)
        else: d = x_dma(idx) if idx < 8 else d_dma(idx - 8 + 4)
        return [((kind, idx), x) for x in (d[0:3], d[3:4], d[4:7], d[7:8])]
    for s in range(16):
        barrier({("W", s + 1), ("X", (s + 1)//2)} if s < 15 else set())
        if s == 15 and PF1:
            vm.wait({"mv"})
            poll_movers("L_pm1")
            conv_loads()
        g = carry; carry = []
        if s & 1:
            g += groups("X", (s + 3)//2)
            w4 = groups("W", s + 4)
            if BAL and s < 15: g += w4[:2]; carry = w4[2:]
            else: g += w4
        else: g += groups("W", s + 4)
        if RS <= s < RS + 8 and (s - RS) % 2 == 0:
            i = (s - RS)//2; p = d_piece(12 + i, 24 + i)
            g += [("r", p[0:3]), ("r", p[3:4])]
        w = work.pop(0) if work else []
        for (tag, gi), wi in zip(g, slices(w, len(g))):
            A(gi); vm.note(tag); A(wi)
        if s == 5:
            A(f"s_cmp_eq_u32 s{sW}, 4\ns_cbranch_scc0 L_noinit\n{LD_INIT}\nL_noinit:")
        if s == 10:
            A(f"s_cmp_eq_u32 s{sW}, 4\ns_cbranch_scc0 L_pi_ok")
            poll("L_pi", 128, LD_INIT)
        if s == PS:
            A(LD_MV); vm.note("mv")
        if BLT and BLS <= s < BLS + 2*BLT and (s - BLS) % 2 == 0:
            A(f"buffer_load_dword v{vJunk}, v{vTch}, s[68:71], s{sTch} offen\ns_add_u32 s{sTch}, s{sTch}, {-(-74//BLT)*128}"); vm.note("t")
        if BT and BT0 <= s < BT0 + BT:
            A(f"buffer_load_dword v{vJunk}, v{vTch}, s[68:71], s{sTch} offen\ns_add_u32 s{sTch}, s{sTch}, {28*per*128}"); vm.note("t")
        if s == 3: pad("rb2")
        if s == 8: pad("g1b")
        if s == 13: pad("kf")
    dclk(0)
    if PPRIO: A(f"s_setprio {PPRIO}")
    if not PF1:
        vm.wait({"mv"})
        poll_movers("L_pm1")
        conv_loads()
    A(post)

def publish(sreg, n):
    A(f"""
    s_mov_b64 exec, 1
    s_waitcnt vmcnt({n})
    buffer_store_dword v14, v15, s[20:23], s{sreg} offen sc1
    s_mov_b64 exec, -1
    """)

def geglu(tt, fill=()):
    if STAMP and SS == 5: A("s_memtime s[72:73]\ns_waitcnt lgkmcnt(0)")
    geglu_(tt, fill)
    if STAMP and SS == 5: A(f"s_memtime s[74:75]\ns_waitcnt lgkmcnt(0)\ns_sub_u32 s{80 + 2*(1, 2, 6, 7)[tt]}, s74, s72")
def geglu_(tt, fill=()):
    fill = list(fill)
    G = ACC1 + 32*tt; U = G + 16
    O = 16 + 8*(tt & 1); T = 32
    o = []
    for p in range(8): o.append(f"v_pk_mul_f32 {vr(T+2*p,2)}, {vr(G+2*p,2)}, {vr(G+2*p,2)}")
    for p in range(8): o.append(f"v_pk_fma_f32 {vr(T+2*p,2)}, {vr(T+2*p,2)}, s[34:35], v[2:3]")
    for p in range(8): o.append(f"v_pk_mul_f32 {vr(T+2*p,2)}, {vr(T+2*p,2)}, {vr(G+2*p,2)}")
    for p in range(16): o.append(f"v_exp_f32 v{T+p}, v{T+p}")
    for p in range(8): o.append(f"v_pk_mul_f32 {vr(G+2*p,2)}, {vr(G+2*p,2)}, {vr(U+2*p,2)}")
    for p in range(8): o.append(f"v_pk_add_f32 {vr(T+2*p,2)}, {vr(T+2*p,2)}, 1.0 op_sel_hi:[1,0]")
    for p in range(16): o.append(f"v_rcp_f32 v{T+p}, v{T+p}")
    for p in range(8): o.append(f"v_pk_mul_f32 {vr(G+2*p,2)}, {vr(G+2*p,2)}, {vr(T+2*p,2)}")
    for p in range(8): o.append(f"v_cvt_pk_bf16_f32 v{O+p}, v{G+2*p}, v{G+2*p+1}")
    for x in o:
        A(x)
        if fill and ("exp" in x or "rcp" in x): A(fill.pop(0))
    A(fill)
    A(f"buffer_store_dwordx4 {vr(O,4)}, v4, s[20:23], s{sHst} offen {HST}")
    A(f"buffer_store_dwordx4 {vr(O+4,4)}, v4, s[20:23], s{sHst} offen offset:{256 if M16 else 1024} {HST}")
def epi_head():
    C1 = -2.0 * L2E * math.sqrt(2.0/math.pi)
    A(f"v_mov_b32 v2, {fbits(C1)}\nv_mov_b32 v3, {fbits(C1)}")
    if M16: A("v_lshrrev_b32 v14, 4, v1\nv_and_b32 v4, 15, v1\nv_lshlrev_b32 v4, 4, v4\nv_lshl_add_u32 v4, v14, 9, v4")
    else: A("v_lshlrev_b32 v4, 4, v1")
    A(f"v_mov_b32 v14, 1\nv_mov_b32 v15, 0\ns_add_u32 s{sHfl2}, s{sHfl}, {56*128}\ns_waitcnt vmcnt(0) lgkmcnt(0)")

def conv_loads():
    A(f"""
    buffer_load_dwordx4 {vr(vU,4)}, v{cLu0}, s[20:23], s{sCu} offen sc1
    buffer_load_dwordx4 {vr(vU+4,4)}, v{cLu1}, s[20:23], s{sCu} offen sc1
    buffer_load_dwordx4 {vr(vG,4)}, v{cLg0}, s[20:23], 0 offen sc1
    buffer_load_dwordx4 {vr(vG+4,4)}, v{cLg1}, s[20:23], 0 offen sc1
    """)

G1 = [0, 1, 8, 9, 2, 3]; G2 = [4, 5, 6, 7, 10, 11]
STG = {k: 48 + 8*i for i, k in enumerate(G1 + G2)}
STG.update({24 + i: 144 + 8*i for i in range(4)})
def wd_reads(kap, d0, d1):
    o = piece_off(kap)
    base = gD[0:2] if o < 65536 else gD[2:4]
    if o >= 65536: o -= 65536
    if kap >= 12: base = [2, 3]; o = piece_off(kap) - RED
    return [f"ds_read_b64_tr_b16 {vr((d0, d1)[dd]+2*ih,2)}, v{base[dd]} offset:{o + (1024 if M16 else 512)*ih}" for dd in range(2) for ih in range(2)]
def red_reads():
    A(f"v_add_u32 v2, {RED}, v{gD[0]}\nv_add_u32 v3, {RED}, v{gD[1]}")
    for i in range(4): A(wd_reads(12 + i, STG[24 + i], STG[24 + i] + 4))
def stage_reads(ks): return sum((wd_reads(k, STG[k], STG[k] + 4) for k in ks), [])

def agt():
    A(f"""
    s_lshl_b32 s3, s2, 2
    s_add_u32 s3, s3, s{sW}
    s_lshl_b32 s3, s3, 11
    v_and_b32 v112, {31 if AG64 else 15}, v1
    v_lshlrev_b32 v112, {6 if AG64 else 7}, v112
    buffer_load_dword v74, v112, s[68:71], s3 offen
    """)

def k_part1():
    A(k_reads())
    m = k_mfma()
    for i in range(8):
        A(f"s_waitcnt lgkmcnt({min(15, 21 - 3*i)})"); A(m[2*i:2*i+2])
    return m[16:] + k_write()

def role_a():
    A(f"""
L_role_a:
    s_mov_b32 s{sRole}, 0
    v_mov_b64 v[40:41], 0
    v_mov_b64 v[42:43], 0
    v_mov_b32 v116, v{vWo}
    s_add_u32 s{sM0W}, s{sM0W}, 8192
    s_add_u32 s{sWoff}, s{sWoff}, {16*3584}
    """)
    def aw():
        A("s_cmp_ge_u32 s2, 224\ns_cbranch_scc1 L_aw_done")
        A([x.replace(f"v{vWo}", "v116") for x in w_dma(2) + w_dma(3)])
        A("L_aw_done:")
    A(tab_addr())
    A([x.replace(f"v{vDo[0]}", f"v{gX[0]}").replace(f"v{vDo[1]}", f"v{gX[1]}") for x in capture(common_setup)])
    g1_setup(); pad("su"); g2_setup()
    A("s_cmp_ge_u32 s2, 224\ns_cbranch_scc1 L_mv_a")
    for i in range(8):
        A(f"v_mfma_f32_32x32x16_bf16 {vr(ACC1+16*i,16)}, v[40:43], v[40:43], 0")
    A("s_waitcnt vmcnt(0)\nL_a_k2:")
    stamp(1)
    if CPY:
        A(f"""
        s_lshl_b32 s3, s2, 2
        s_add_u32 s3, s3, s{sW}
        s_lshl_b32 s3, s3, 11
        s_min_u32 s3, s3, {1792*1024 - 2048}
        v_add_u32 v117, s3, v{gL16}
        global_load_dwordx4 v[56:59], v117, s[56:57]
        global_load_dwordx4 v[60:63], v117, s[56:57] offset:1024
        """)
    if AGT and AGE: agt()
    t = tables_a()
    tp = len(t)*TPOS//100
    for i, x in enumerate(t):
        if i == 50: pad("tb0")
        if AW and i == len(t)*AWP//100: aw()
        if i == tp and T2: touches()
        A(x)
    if AW and AWP >= 100: aw()
    if TPOS >= 100 and T2: touches()
    stamp(2)
    k_setup1()
    A("s_cmp_ge_u32 s2, 224\ns_cbranch_scc1 L_mv_a2")
    if CPY:
        A(f"s_waitcnt vmcnt(0)\nbuffer_store_dwordx4 v[56:59], v117, s[68:71], 0 offen sc1\nbuffer_store_dwordx4 v[60:63], v117, s[68:71], 0 offen offset:1024 sc1\ns_nop 1")
    elif AGT and not AGE: agt()
    if PRE_ST:
        A(f"s_mov_b32 s3, s{sHst}")
        for t in range(4):
            A(f"buffer_store_dwordx4 v[16:19], v{gL16}, s[20:23], s3 offen sc1\nbuffer_store_dwordx4 v[16:19], v{gL16}, s[20:23], s3 offen offset:1024 sc1\ns_add_u32 s3, s3, {112*1024}")
    if APRIO: A(f"s_setprio {APRIO}")
    A("s_waitcnt lgkmcnt(0)")
    gemm1_a16() if M16 else gemm1_a()
    stamp(4)
    epi_head()
    step = f"s_add_u32 s{sHst}, s{sHst}, {112*1024}"
    geglu(0); A(step); pad("ea0")
    stamp(1, 6)
    geglu(1); A(step)
    stamp(2, 6)
    geglu(2); A(step); pad("ea1")
    stamp(3, 6)
    if not NOMID: publish(sHfl, 2)
    stamp(6, 6)
    geglu(3)
    stamp(5)
    sr = stage_reads(G1 + G2)
    if KFP == 1:
        publish(sHfl2, 0)
        stamp(7, 6)
        if NOMID: publish(sHfl, 1)
        A("s_barrier")
        A(sr); red_reads()
    else:
        red_reads()
        A("s_barrier")
        A(sr[:PUBN])
        publish(sHfl2, 0)
        stamp(1, 2)
        A(sr[PUBN:])
    A("L_a_join:")
    gemm2()

def role_b():
    A(f"L_role_b:\ns_mov_b32 s{sRole}, 1\ns_cmp_ge_u32 s2, 224\ns_cbranch_scc1 L_mv_head")
    gemm1_b()
    stamp(4)
    A("L_b_join:")
    A(f"s_waitcnt vmcnt({10 if PF1 else 2})\nds_write_b128 v{cUw}, {vr(vU,4)}\nds_write_b128 v{cUw}, {vr(vU+4,4)} offset:2048")
    A(f"s_waitcnt vmcnt({0 if PF1 else 2}) lgkmcnt(0)\ns_barrier")
    stamp(5)
    conv()

def mover_body():
    if STUBS: A("L_pad_mv:\ns_branch L_warm_ret0")
    A(f"""
L_mv_head:
    s_sub_u32 s6, s2, 224
    s_lshl_b32 s3, s6, 16
    s_lshl_b32 s4, s{sWN}, 14
    s_add_u32 s3, s3, s4
    s_mul_i32 s4, s{sWN}, {16*UP}
    v_lshlrev_b32 v16, 4, v1
    s_add_u32 s5, s3, 16384
L_mv_ld:
    s_mov_b32 m0, s4
    s_add_u32 s4, s4, {UP}
    buffer_load_dwordx4 v16, s[8:11], s3 offen lds
    s_add_u32 s3, s3, 1024
    s_cmp_lt_u32 s3, s5
    s_cbranch_scc1 L_mv_ld
    global_load_dwordx4 v[128:131], v16, s[58:59]
    v_add_u32 v132, {GWL}, v16
    """)
    A(tab_addr()); common_setup()
    A("s_waitcnt vmcnt(17)"); A(tables_b())
    conv_setup(); k_setup()
    A("s_waitcnt vmcnt(0)\nds_write_b128 v132, v[128:131]\ns_branch L_mv_common")
    A("L_mv_a:")
    A(f"""
    s_sub_u32 s6, s2, 224
    s_lshl_b32 s3, s6, 2
    s_add_u32 s3, s3, s{sW}
    s_mul_i32 s3, s3, 22
    v_add_u32 v16, s3, v1
    s_add_u32 s3, s6, 2816
    v_mov_b32 v17, s3
    v_cmp_gt_u32 vcc, 22, v1
    s_getpc_b64 s[4:5]
L_pc:
    s_sub_u32 s4, s4, L_pc - {KNAME}
    s_subb_u32 s5, s5, 0
    v_cndmask_b32 v16, v17, v16, vcc
    v_lshlrev_b32 v16, 7, v16
    v_add_u32 v16, {WS_FLAG}, v16
    buffer_store_dword v{vZero}, v16, s[20:23], 0 offen sc1
    v_lshlrev_b32 v16, 7, v0
    v_min_u32 v16, L_exit - {KNAME}, v16
    global_load_dword v74, v16, s[4:5]
    s_waitcnt vmcnt(2)
    s_branch L_a_k2
L_mv_a2:
    s_waitcnt vmcnt(0)
    s_mov_b64 exec, 1
    global_atomic_add v{vZero}, v{cOne}, s[62:63] sc1
    s_mov_b64 exec, -1
    """)
    A(f"""
L_mv_common:
    s_sub_u32 s{sMov}, s2, 224
    v_and_b32 v21, 15, v1
    v_lshrrev_b32 v22, 4, v1
    v_lshlrev_b32 v16, 4, v22
    v_lshrrev_b32 v17, 2, v1
    v_and_b32 v17, 3, v17
    v_lshl_add_u32 v17, v22, 3, v17
    v_mul_u32_u24 v17, {UP}, v17
    v_and_b32 v18, 3, v1
    v_lshl_add_u32 v17, v18, 3, v17
    s_lshl_b32 s4, s{sW}, 7
    v_add_u32 v17, s4, v17
    s_lshl_b32 s3, s{sW}, 18
    s_lshl_b32 s4, s{sMov}, 11
    s_add_u32 s3, s3, s4
    s_add_u32 s3, s3, {WS_UT}
    v_lshlrev_b32 v18, 6, v21
    v_lshl_add_u32 v18, v22, 4, v18
    s_and_b32 s4, s{sMov}, {3 if USW else 0}
    s_lshl_b32 s4, s4, 8
    v_xor_b32 v18, s4, v18
    v_xor_b32 v20, {128 if USW else 0}, v18
    s_lshr_b32 s7, s{sMov}, 3
    s_mul_i32 s7, s7, {448*1024}
    s_lshl_b32 s4, s{sW}, 13
    s_add_u32 s7, s7, s4
    s_add_u32 s7, s7, {192*1024}
    v_lshlrev_b32 v19, 7, v1
    s_waitcnt lgkmcnt(0)
    s_barrier
    """)
    stamp(3)
    if MG2:
        A(f"""
        s_lshl_b32 s4, s{sMov}, 3
        s_add_u32 s4, s4, s{sW}
        s_mul_i32 s4, s4, 7168
        v_min_u32 v23, {55*128}, v19
        buffer_load_dword v47, v23, s[68:71], s4 offen
        """)
    for q in range(4):
        b = 200 + 8*q
        A(f"""
        ds_read_b64_tr_b16 {vr(b,2)}, v17 offset:{32*q}
        ds_read_b64_tr_b16 {vr(b+2,2)}, v17 offset:{32*q + 4*UP}
        ds_read_b64_tr_b16 {vr(b+4,2)}, v17 offset:{32*q + 32*UP}
        ds_read_b64_tr_b16 {vr(b+6,2)}, v17 offset:{32*q + 36*UP}
        """)
    for q in range(4):
        b = 200 + 8*q
        A(f"""
        s_waitcnt lgkmcnt({12 - 4*q})
        buffer_store_dwordx4 {vr(b,4)}, v18, s[20:23], s3 offen sc1
        buffer_store_dwordx4 {vr(b+4,4)}, v20, s[20:23], s3 offen offset:1024 sc1
        s_add_u32 s3, s3, 65536
        """)
    A(f"""
    s_cmp_eq_u32 s{sRole}, 0
    s_cbranch_scc1 L_mv_nogate
    s_mul_i32 s4, s{sWN}, {16*UP}
    v_mul_u32_u24 v17, {UP}, v21
    v_add_u32 v17, v17, v16
    v_add_u32 v17, s4, v17
    """)
    GF = [32 + 4*i for i in range(3)] + [92 + 4*i for i in range(9)] + [192, 196, 232, 236]
    A(f"v_add_u32 v23, {GWL}, v16")
    for i in range(16):
        A(f"ds_read_b128 {vr(GF[i],4)}, v17 offset:{64*i}")
        A(f"ds_read_b128 {vr(128+4*i,4)}, v23 offset:{64*i}")
    A("s_waitcnt lgkmcnt(0)")
    for i in range(16):
        c = "0" if i < 2 else vr(24+4*(i&1), 4)
        A(f"v_mfma_f32_16x16x32_bf16 {vr(24+4*(i&1),4)}, {vr(GF[i],4)}, {vr(128+4*i,4)}, {c}")
    A(f"""
    s_lshl_b32 s3, s{sMov}, 2
    s_add_u32 s3, s3, s{sWN}
    s_lshl_b32 s3, s3, 6
    s_add_u32 s3, s3, {WS_G}
    s_nop 5
    """)
    for r in range(4): A(f"v_add_f32 v{24+r}, v{24+r}, v{28+r}")
    for r in range(4): A(f"v_cvt_pk_bf16_f32 v{24+r}, 0, v{24+r}")
    for r in range(4): A(f"v_mul_f32 v{24+r}, {fbits(-L2E)}, v{24+r}")
    for r in range(4): A(f"v_exp_f32 v{24+r}, v{24+r}")
    A("s_nop 0")
    for r in range(4): A(f"v_add_f32 v{24+r}, 1.0, v{24+r}")
    for r in range(4): A(f"v_rcp_f32 v{24+r}, v{24+r}")
    A("s_nop 0")
    for r in range(4): A(f"v_cvt_pk_bf16_f32 v{24+r}, 0, v{24+r}")
    for r in range(4): A(f"v_sub_f32 v{28+r}, 1.0, v{24+r}")
    for r in range(4): A(f"v_cvt_pk_bf16_f32 v{24+r}, v{24+r}, v{28+r}")
    A(f"""
    v_cmp_eq_u32 vcc, 0, v21
    s_and_saveexec_b64 s[4:5], vcc
    buffer_store_dwordx4 v[24:27], v16, s[20:23], s3 offen sc1
    s_mov_b64 exec, s[4:5]
    """)
    A("s_branch L_mv_k1\nL_mv_nogate:\nv_mov_b32 v72, v19")
    A(k_part1())
    A(f"""
    v_mov_b32 v19, v72
L_mv_k1:
    s_waitcnt vmcnt(0) lgkmcnt(0)
    s_barrier
    s_cmp_eq_u32 s{sRole}, 0
    s_cbranch_scc0 L_mv_b2
    """)
    stamp(4)
    if MGT:
        A(f"""
        s_and_b32 s3, s{sMov}, 7
        s_lshl_b32 s3, s3, 2
        s_add_u32 s3, s3, s{sW}
        s_mul_i32 s3, s3, 6144
        s_lshr_b32 s4, s{sMov}, 3
        s_mul_i32 s4, s4, {448*1024}
        s_add_u32 s3, s3, s4
        v_min_u32 v17, {47*128}, v19
        buffer_load_dword v47, v17, s[68:71], s3 offen
        """)
    A("s_barrier")
    A(f"s_sub_u32 s7, s7, {192*1024}\ns_lshl_b32 s4, s{sRho}, 14\ns_add_u32 s4, s4, {192*1024}")
    for i in range(2*MROWS):
        A(f"s_cmp_ge_u32 s4, {448*1024}\ns_cselect_b32 s3, {448*1024}, 0\ns_sub_u32 s4, s4, s3\ns_add_u32 s3, s7, s4\nbuffer_load_dword v47, v19, s[68:71], s3 offen\ns_add_u32 s4, s4, 32768")
    A("s_barrier")
    red_reads(); A(stage_reads(G1 + G2))
    stamp(5)
    A(f"""
    s_branch L_a_join
L_mv_b2:
    s_cmp_eq_u32 s{sW}, 4
    s_cbranch_scc0 L_mv_nosig
    s_mov_b64 exec, 1
    global_atomic_add v40, v{vZero}, v{cOne}, s[62:63] offset:128 sc0 sc1
    s_mov_b64 exec, -1
    {LD_INIT}
    s_waitcnt vmcnt(0)
    v_readfirstlane_b32 s3, v40
    v_and_b32 v17, 31, v1
    v_lshlrev_b32 v17, 7, v17
    v_add_u32 v17, {WS_FLAG3}, v17
    s_and_b32 s3, s3, 31
    s_cmp_eq_u32 s3, 31
    s_cbranch_scc0 L_pi2
    buffer_store_dword v{cOne}, v17, s[20:23], 0 offen sc1
    """)
    poll("L_pi2", 128, LD_INIT)
    A("L_mv_nosig:")
    stamp(4)
    for sig in range(6): A(d_dma(sig))
    for i in range(4): A(d_piece(12 + i, 24 + i))
    A("s_barrier")
    A(LD_MV)
    A(k_gather()); A("s_waitcnt lgkmcnt(0)"); A(k_pack())
    A("s_waitcnt vmcnt(0)")
    poll_movers("L_pm2")
    conv_loads()
    A("s_waitcnt vmcnt(0)\ns_branch L_b_join")

def lds_sync(label, target):
    A(f"""
    s_mov_b64 exec, 1
    s_waitcnt lgkmcnt(0)
    ds_add_u32 v{cCnt}, v{cOne}
{label}:
    ds_read_b32 v2, v{cCnt}
    s_waitcnt lgkmcnt(0)
    v_cmp_gt_u32 vcc, {target}, v2
    s_cbranch_vccz {label}_go
    s_sub_u32 s{sSpin}, s{sSpin}, 1
    s_cbranch_scc0 {label}
{label}_go:
    s_mov_b64 exec, -1
    """)

def conv():
    FA = [96, 160]; FB = [128, 192]; ACC = 16
    def reads(rr):
        fs = rr & 1; ra = []; rb = []
        for i in range(8):
            o = (512*(1 - (i & 1)) + 64*(3 - rr)) // 4
            rb.append(f"ds_read_b128 {vr(FB[fs]+4*i,4)}, v{cB} offset:{512*i + 64*(3-rr)}")
            ra.append(f"ds_read2_b32 {vr(FA[fs]+4*i,2)}, v{cA[i>>1]} offset0:{o} offset1:{o+1}")
            ra.append(f"ds_read2_b32 {vr(FA[fs]+4*i+2,2)}, v{cA[i>>1]} offset0:{o+2} offset1:{o+3}")
        return ra, rb
    ra, rb = reads(0)
    b2 = []
    A(ra[0:2] + rb + ra[2:])
    warm(2)
    A("s_barrier")
    A("s_setprio 2")
    stamp(6)
    cnt = 0
    pad("cv0")
    U = 128; D = 136; Y = 96; P = 160
    for rr in range(4):
        fs = rr & 1
        A("s_waitcnt lgkmcnt(14)" if rr == 0 else "s_waitcnt lgkmcnt(0)")
        if rr < 3:
            ra, rb = reads(rr+1); fill = rb + ra
        else:
            fill = [f"ds_read_b64 {vr(U,2)}, v{cUr}", f"ds_read_b64 {vr(U+2,2)}, v{cUr} offset:2048",
                    f"ds_read_b64 {vr(U+4,2)}, v{cUr} offset:{CH}", f"ds_read_b64 {vr(U+6,2)}, v{cUr} offset:{CH+2048}"]
        for i in range(8):
            if rr == 0 and i == 1: A("s_waitcnt lgkmcnt(0)")
            for t in range(i, 8):
                c = "0" if (rr == 0 and i == 0) else vr(ACC+4*t, 4)
                A(f"v_mfma_f32_16x16x32_bf16 {vr(ACC+4*t,4)}, {vr(FA[fs]+4*i,4)}, {vr(FB[fs]+4*(t-i),4)}, {c}")
                if fill and not (rr == 0 and i == 0): A(fill.pop(0))
                cnt += 1
                if b2 and cnt % B2W == 0: A(b2.pop(0))
            if rr == 3 and 2 <= i <= 4:
                A(f"ds_write_b128 v{cRw}, {vr(ACC+4*(i-2),4)} offset:{1024*(i-2)}")
        assert not fill
        if rr == 1: pad("cv1")
    assert not b2
    stamp(7)
    A("s_waitcnt vmcnt(0) lgkmcnt(3)")
    ud = []
    for k in range(8):
        d = D + 2*k
        if k & 1: ud += [f"v_and_b32 v{d}, 0xffff0000, v{U+k//2}", f"v_and_b32 v{d+1}, 0xffff0000, v{U+4+k//2}"]
        else: ud += [f"v_lshlrev_b32 v{d}, 16, v{U+k//2}", f"v_lshlrev_b32 v{d+1}, 16, v{U+4+k//2}"]
    A(ud[:8])
    for t in range(3, 8):
        A(f"ds_write_b128 v{cRw}, {vr(ACC+4*t,4)} offset:{1024*t}")
    A(ud[8:])
    for k in range(8): A(f"v_lshlrev_b32 v{vG+k}, 16, v{vG+k}")
    A(f"s_lshl_b32 s30, s{sDsk}, 16\ns_and_b32 s31, s{sDsk}, 0xffff0000")
    lds_sync("L_cv_s2", 4)
    for q in range(4):
        A(f"ds_read_b128 {vr(P+8*q,4)}, v{cRr} offset:{8192*q}")
        A(f"ds_read_b128 {vr(P+4+8*q,4)}, v{cRr} offset:{8192*q + 4096}")
    for k in range(8):
        d = D + 2*k
        A(f"v_mul_f32 v{d}, s30, v{d}\nv_mul_f32 v{d+1}, s31, v{d+1}")
    A("s_waitcnt lgkmcnt(4)")
    for k in range(8): A(f"v_add_f32 v{D+2*k}, v{D+2*k}, v{P+k}")
    for k in range(8): A(f"v_add_f32 v{D+2*k}, v{D+2*k}, v{P+8+k}")
    A("s_waitcnt lgkmcnt(0)")
    for k in range(8): A(f"v_add_f32 v{D+2*k+1}, v{D+2*k+1}, v{P+16+k}")
    for k in range(8): A(f"v_add_f32 v{D+2*k+1}, v{D+2*k+1}, v{P+24+k}")
    for k in range(8):
        A(f"v_mul_f32 v{D+2*k}, v{vG+k}, v{D+2*k}\nv_mul_f32 v{D+2*k+1}, v{vG+k}, v{D+2*k+1}")
    for k in range(8):
        A(f"v_cvt_pk_bf16_f32 v{Y+k}, v{D+2*k}, v{D+2*k+1}")
    A(f"""
    buffer_store_dwordx4 {vr(Y,4)}, v{cS0}, s[20:23], s{sCga} offen sc1
    buffer_store_dwordx4 {vr(Y+4,4)}, v{cS1}, s[20:23], s{sCga} offen sc1
    s_mov_b64 exec, 1
    """)
    stamp(8)
    A(f"""
    s_waitcnt vmcnt(0)
    buffer_store_dword v{cOne}, v{vZero}, s[20:23], s{sCfl} offen sc1
    """)
    stamp_flush()
    A("s_endpgm")

def gemm2():
    ACC = 192
    sH = [sH0, sH1]
    A("s_waitcnt lgkmcnt(0)\ns_barrier\ns_setprio 1")
    stamp(3, 2)
    vm = Cnt("vmcnt", 63); lg = Cnt("lgkmcnt", 15)
    def wd_dma(k, kap):
        A(f"s_add_u32 m0, s{sLds}, {16384*(kap >> 1) + 2048*(kap & 1)}\ns_add_u32 s3, s{sWd}, {k*16384}")
        vm.issue(("w", k), f"buffer_load_dwordx4 v{gX[0]}, s[68:71], s3 offen lds")
        vm.issue(("w", k), f"buffer_load_dwordx4 v{gX[1]}, s[68:71], s3 offen offset:1024 lds")
    ks = G1 + G2
    def refill(k): A([x.replace(f"v{vDo[0]}", f"v{gX[0]}").replace(f"v{vDo[1]}", f"v{gX[1]}") for x in d_piece(k, k + 12)])
    for k in ks: refill(k)
    pad("g20")
    A(f"""
s_mov_b64 exec, 0x3fff
L_g2_hpoll:
    buffer_load_dword v2, v{gFl}, s[20:23], s{sFl} offen sc1
    s_waitcnt vmcnt(0)
    v_cmp_eq_u32 vcc, 0, v2
    s_cbranch_vccz L_g2_hready
    s_mov_b64 exec, vcc
    s_sleep {SLP}
    s_sub_u32 s{sSpin}, s{sSpin}, 1
    s_cbranch_scc0 L_g2_hpoll
L_g2_hready:
    s_mov_b64 exec, -1
    """)
    vm.ops = []
    stamp(6)
    free = [16 + 4*i for i in range(8)] + [176 + 4*i for i in range(4)]
    hreg = {}; wreg = {k: (STG[k], STG[k] + 4) for k in STG}
    nxt = [0]; wnx = [12]; rd = {}
    def h_issue(kc, n=99):
        while n > 0 and free and nxt[0] < 56 and (nxt[0] >> 1) < kc + min(HDMAX, HD + kc):
            n -= 1
            k, tt = nxt[0] >> 1, nxt[0] & 1
            r = free.pop(0); hreg[(k, tt)] = r
            vm.issue(("h", k), f"buffer_load_dwordx4 {vr(r,4)}, v{gL16}, s[20:23], s{sH[tt]} offen offset:{(k & 3)*1024} sc1")
            if (k & 3) == 3 and k < 27:
                if ROT3:
                    if tt == 0: A(f"s_cmp_eq_u32 s{sRho}, {24 - (k - 3)}\ns_cselect_b32 s47, {u32(4096 - 28672)}, s46")
                    A(f"s_add_u32 s{sH[tt]}, s{sH[tt]}, s47")
                else: A(f"s_add_u32 s{sH[tt]}, s{sH[tt]}, 4096")
            nxt[0] += 1
    if HT:
        A(f"""
        v_and_b32 v2, 31, v1
        v_min_u32 v2, {28 - HD - 1}, v2
        v_lshlrev_b32 v2, 10, v2
        v_lshrrev_b32 v3, 5, v1
        v_mul_u32_u24 v3, {112*1024}, v3
        v_add_u32 v2, v2, v3
        s_min_u32 s3, s{sH0}, s{sH1}
        s_lshl_b32 s4, s{sJ}, 7
        s_add_u32 s3, s3, s4
        s_add_u32 s{sT}, s3, {HD*1024}
        """)
    if ROT3: A("s_movk_i32 s46, 4096")
    h_issue(0)
    if HT: vm.issue("t", f"buffer_load_dword v2, v2, s[20:23], s{sT} offen sc1")
    A(f"""
    v_and_b32 v{gFl}, 15, v1
    v_lshlrev_b32 v{gFl}, 9, v{gFl}
    s_lshl_b32 s{sFl}, s{sD}, 13
    s_lshr_b32 s4, s{sTok}, 3
    s_and_b32 s4, s4, 3
    s_lshl_b32 s4, s4, 7
    s_add_u32 s{sFl}, s{sFl}, s4
    s_add_u32 s{sFl}, s{sFl}, {WS_FLAG2}
    v_and_b32 v{gT}, 31, v1
    v_lshlrev_b32 v14, 2, v{gT}
    s_lshl_b32 s4, s{sTok}, 7
    s_add_u32 s5, s4, {WS_G}
    v_lshrrev_b32 v15, 5, v1
    v_lshl_add_u32 v3, v15, 15, v14
    s_lshl_b32 s6, s{sD}, 17
    s_add_u32 s6, s6, s4
    s_add_u32 s6, s6, {WS_GA}
    v_lshlrev_b32 v{gT}, 10, v{gT}
    v_lshl_add_u32 v{gT}, v15, 4, v{gT}
    s_lshl_b32 s7, s{sTok}, 15
    s_lshl_b32 s4, s{sD}, 6
    s_add_u32 s7, s7, s4
    s_mov_b32 s12, s60
    s_mov_b32 s13, s61
    s_mov_b32 s14, 0x200000
    v_add_u32 v15, s{sLds}, v{gL16}
    """)
    GA = None
    gal = []
    def mf(k, dd, tt):
        c = "0" if k == 0 else vr(ACC+16*(2*dd+tt), 16)
        A(f"v_mfma_f32_32x32x16_bf16 {vr(ACC+16*(2*dd+tt),16)}, {vr(wreg[k][dd],4)}, {vr(hreg[(k,tt)],4)}, {c}")
    KE = 24 if QM else 28
    for k in range(KE):
        pre = []
        vm.wait({("h", k)})
        if k in (0, 8, 12, 18): stamp({0: 1, 8: 2, 12: 3, 18: 4}[k], 1)
        lg.wait({("w", k)})
        if k >= WLA and wnx[0] < 24:
            kn = wnx[0]; wnx[0] += 1
            wreg[kn] = (free.pop(), free.pop())
            pre = [(("w", kn), x) for x in wd_reads(kn - 12, *wreg[kn])]
        for n, (dd, tt) in enumerate(((0,0),(0,1),(1,0),(1,1))):
            mf(k, dd, tt)
            if HIL and n in (0, 2): h_issue(k + 1, 1)
            if pre: lg.issue(*pre.pop(0))
            if gal: vm.issue("ga", gal.pop(0))
        free += [hreg[(k,0)], hreg[(k,1)], wreg[k][0], wreg[k][1]]
        h_issue(k + 1)
        if k == 12: pad("g21")
        if k == FK: vm.issue("f", f"buffer_load_dword v2, v{gFl}, s[20:23], s{sFl} offen sc1")
        if k == CK:
            stamp(7)
            vm.wait({"f"})
            A(f"""
L_g2_poll:
            v_cmp_eq_u32 vcc, 0, v2
            s_cbranch_vccz L_g2_ready
            s_sub_u32 s{sSpin}, s{sSpin}, 1
            s_cbranch_scc1 L_g2_ready
            s_mov_b64 exec, vcc
            s_sleep {SLP}
            buffer_load_dword v2, v{gFl}, s[20:23], s{sFl} offen sc1
            s_waitcnt vmcnt(0)
            s_branch L_g2_poll
            """)
            pad("g22", inline=False)
            A("L_g2_ready:\ns_mov_b64 exec, -1")
            assert nxt[0] == 56
            fr = sorted(free)
            GA = next(r for r in fr if r + 4 in fr and r >= 96)
            free.remove(GA); free.remove(GA + 4)
            gal = ["buffer_load_dword v4, v14, s[20:23], s5 offen sc1"]
            for m in range(8):
                gal.append(f"buffer_load_dword v{GA+m}, v3, s[20:23], s6 offen sc1" + (f"\ns_add_u32 s6, s6, {8192 if (m & 3) != 3 else 5*8192}" if m < 7 else ""))
    assert wnx[0] == 24
    wr = lambda x: [f"ds_write_b128 v15, {vr(ACC+16*x+4*i,4)} offset:{(x-1)*16384 + 1024*i}" for i in range(4)]
    A("v_xor_b32 v8, 0x1000, v15\nv_xor_b32 v9, 0x2000, v15\nv_xor_b32 v10, 0x3000, v15")
    if QM:
        vm.wait({("h", 27)})
        pend = []
        for x in (1, 2, 3, 0):
            for i, k in enumerate(range(24, 28)):
                mf(k, x >> 1, x & 1)
                if gal: vm.issue("ga", gal.pop(0))
                if pend:
                    if i == 0: A("s_nop 7")
                    elif i == 1: A("s_nop 1"); A(pend[0:2])
                    elif i == 2: A(pend[2:4])
            pend = wr(x) if x else []
        stamp(8)
    else:
        stamp(8)
        A("s_nop 6")
        for x in range(1, 4): A(wr(x))
    assert not gal
    A("s_waitcnt vmcnt(0)\nv_and_b32 v4, 0xffff0000, v4")
    for p in range(8):
        A(f"v_lshlrev_b32 v{80+2*p}, 16, v{GA+p}\nv_and_b32 v{81+2*p}, 0xffff0000, v{GA+p}")
    A("s_waitcnt lgkmcnt(0)\ns_barrier")
    for x in range(3):
        for i in range(4):
            A(f"ds_read_b128 {vr(32+16*x+4*i,4)}, v{8+x} offset:{x*16384 + 1024*i}")
    for x in range(3):
        A(f"s_waitcnt lgkmcnt({8 - 4*x})")
        for p in range(8):
            A(f"v_pk_add_f32 {vr(ACC+2*p,2)}, {vr(ACC+2*p,2)}, {vr(32+16*x+2*p,2)}")
    for p in range(8):
        A(f"v_pk_fma_f32 {vr(32+2*p,2)}, {vr(ACC+2*p,2)}, v[4:5], {vr(80+2*p,2)} op_sel_hi:[1,0,1]")
    for p in range(8):
        A(f"v_cvt_pk_bf16_f32 v{24+p}, v{32+2*p}, v{33+2*p}")
    A(f"""
    buffer_store_dwordx4 v[24:27], v{gT}, s[12:15], s7 offen {OST}
    buffer_store_dwordx4 v[28:31], v{gT}, s[12:15], s7 offen offset:32 {OST}
    """)
    stamp_flush()
    A("s_endpgm")

def main():
    order = [[None]*4 + ["rb", "su", "tb0", "rb1"],
             [None]*4 + ["rb2", "g1b", "ea0", "ea1"],
             [None]*4 + ["g20", "g22", "g21", "cv1"]]
    for r, names in enumerate(order):
        for w, n in enumerate(names):
            if n: PLAN[n] = (r, w)
    A('.amdgcn_target "amdgcn-amd-amdhsa--gfx950"\n.text')
    A(f".globl {KNAME}\n.p2align 12\n.type {KNAME},@function\n{KNAME}:")
    if STAMP:
        for i in range(NST): A(f"s_mov_b32 s{80+2*i}, 0")
    stamp(0)
    A("s_cmp_ge_u32 s2, 256\ns_cbranch_scc1 L_exit")
    prologue()
    role_a()
    pad("rb", inline=False)
    role_b()
    mover_body()
    A("L_exit:\n    s_endpgm")
    assert not STUBS or set(PADS) == set(PLAN), set(PLAN) - set(PADS)
    A(f""".section .rodata,"a"
.p2align 6
.amdhsa_kernel {KNAME}
  .amdhsa_next_free_vgpr 256
  .amdhsa_next_free_sgpr 102
  .amdhsa_accum_offset 256
  .amdhsa_group_segment_fixed_size 0
  .amdhsa_kernarg_size 136
  .amdhsa_user_sgpr_count 2
  .amdhsa_user_sgpr_kernarg_segment_ptr 1
  .amdhsa_system_sgpr_workgroup_id_x 1
.end_amdhsa_kernel""")
    open(sys.argv[1], "w").write(HEADER + "\n".join(L) + "\n")

main()
```

```python
import sys, struct, math

OPTS = dict(a.split("=") for a in sys.argv[2:])
def opt(name, dflt): return int(OPTS.get(name, dflt))
STAMP = opt("stamp", 0); SS = opt("ss", 0)
ENC = opt("enc", -1); ENCWG = opt("encwg", 8); ENCW = opt("encw", 0)
SPIN = opt("spin", 0x40000); STUBS = opt("stubs", 1)
T2 = opt("t2", 1); AGT = opt("agt", 1); MT = opt("mt", 4); MPRE = opt("mpre", 0); TFIRST = opt("tfirst", 0)
UPF = opt("upf", 6); RS = opt("rs", 6); NW = opt("nw", 14); PPRIO = opt("pprio", 0); P1 = opt("p1", 12); P2 = opt("p2", 0); KB = opt("kb", 1); NPRE = opt("npre", 0); NBK = opt("nbk", 1); SLP = opt("slp", 2)
HD = opt("hd", 5); HDMAX = opt("hdmax", 8); WLA = opt("wla", 8); FK = opt("fk", 17); CK = opt("ck", 21)
RLATE = opt("rlate", 12); CPRIO = opt("cprio", 2); GPRIO = opt("gprio", 1)
KNAME = "gated_mix__ssm_conv_s4__geglu_ffn__prompt_kernel"

WS_H, WS_UT, WS_GA, WS_G, WS_FLAG, WS_STAMP = 0x0, 0x700000, 0x900000, 0xB00000, 0xB08000, 0x1400000
WS_FLAG2 = WS_FLAG + 1792*128
WS_FLAG3 = WS_FLAG + 2816*128
WS_BYTES = 0x10000000

XB = 65536
TB = 98304
PITCH = 528
KD = TB + 2*57*PITCH
CH = 12928
UOFF = 8320
RED = TB + 2*CH
CNT = KD + 3072
assert CNT + 8 <= 163840 and RED + 32768 <= KD and RED % 256 == 0
UP = 1056
GWL = 64*UP
L2E = math.log2(math.e)
WSTEP = 32*3584

L = []
def lines(s): return [x.strip() for x in s.strip("\n").split("\n") if x.strip()]
def A(s):
    if isinstance(s, (list, tuple)): s = "\n".join(s)
    for line in lines(s):
        L.append(line if line.endswith(":") or line.startswith(".") else "    " + line)
def fbits(x): return "0x%08x" % struct.unpack("<I", struct.pack("<f", x))[0]
def f32(x): return struct.unpack("<f", struct.pack("<f", x))[0]
def vr(b, n): return f"v[{b}:{b+n-1}]"
def u32(x): return x & 0xffffffff
def slices(lst, n):
    out = []; pos = 0
    for i in range(n):
        end = (i + 1)*len(lst)//n
        while 0 < end < len(lst) and lst[end-1].startswith("s_cmp"): end += 1
        out.append(lst[pos:end]); pos = max(pos, end)
    return out

NST = 9
def stamp(idx, ss=0):
    if ENC >= 0:
        if ss == 0 and idx in (0, ENC): A(f"s_memrealtime s[{80+2*idx}:{81+2*idx}]\ns_waitcnt lgkmcnt(0)")
        return
    hide = {1: (1, 2, 3, 4), 2: (1, 2, 3), 3: (1, 2, 6, 7, 8)}.get(SS, ())
    if STAMP and (ss == SS or (ss == 0 and idx not in hide)):
        A(f"s_memrealtime s[{80+2*idx}:{81+2*idx}]\ns_waitcnt lgkmcnt(0)")
ENCN = [0]
def stamp_flush():
    if ENC >= 0:
        ENCN[0] += 1; n = ENCN[0]
        A(f"""
        s_cmp_eq_u32 s2, {ENCWG}
        s_cbranch_scc0 L_enc_end{n}
        s_cmp_eq_u32 s{sW}, {ENCW}
        s_cbranch_scc0 L_enc_end{n}
        s_waitcnt vmcnt(0) lgkmcnt(0)
        s_memrealtime s[98:99]
        s_waitcnt lgkmcnt(0)
        s_sub_u32 s3, s{80+2*ENC}, s80
        s_and_b32 s3, s3, 0xfff
        s_lshl_b32 s3, s3, 2
        s_add_u32 s3, s3, s80
        s_add_u32 s3, s3, 2000
L_enc_spin{n}:
        s_memrealtime s[4:5]
        s_waitcnt lgkmcnt(0)
        s_sub_u32 s6, s4, s3
        s_cmp_lt_i32 s6, 0
        s_cbranch_scc1 L_enc_spin{n}
L_enc_end{n}:
        """)
        return
    if not STAMP: return
    A(f"""
    s_waitcnt vmcnt(0) lgkmcnt(0)
    s_memrealtime s[{80+2*NST}:{81+2*NST}]
    s_waitcnt lgkmcnt(0)
    s_mov_b64 exec, -1
    v_lshrrev_b32 v1, 6, v0
    s_lshl_b32 s3, s2, 3
    v_add_u32 v1, s3, v1
    v_lshlrev_b32 v1, 6, v1
    v_add_u32 v1, {WS_STAMP}, v1
    """)
    for i in range(12): A(f"v_mov_b32 v{4+i}, s{80+2*min(i, NST)}")
    A(f"""
    v_and_b32 v2, 63, v0
    v_cmp_eq_u32 vcc, 0, v2
    s_and_saveexec_b64 s[4:5], vcc
    buffer_store_dwordx4 v[4:7], v1, s[20:23], 0 offen
    buffer_store_dwordx4 v[8:11], v1, s[20:23], 0 offen offset:16
    buffer_store_dwordx4 v[12:15], v1, s[20:23], 0 offen offset:32
    """)

HEADER = f"""; gated mix of an S4 long convolution and a GeGLU FFN: one launch, one workgroup per CU, two wave programs.
; @launch grid=(256,1,1) block=(512,1,1) lds=163840
"""

PADS = set(); PLAN = {}
def pad(name, inline=True):
    if not STUBS or name not in PLAN: return
    if inline: A(f"s_branch L_skip_{name}")
    A(f"L_pad_{name}:\ns_branch L_warm_ret{PLAN[name][0]}")
    if inline: A(f"L_skip_{name}:")
    PADS.add(name)
def warm(r):
    if not STUBS: return
    for n, (rr, w) in PLAN.items():
        if rr == r: A(f"s_cmp_eq_u32 s{sW}, {w}\ns_cbranch_scc1 L_pad_{n}")
    A(f"L_warm_ret{r}:")

sW, sXoff, sWoff, sM0W, sM0X = 24, 25, 26, 27, 28
sIt, sHfl2, sTB, sFB, sWN, sI, sJ, sMov, sT, sSpin, sHst, sRX, sRW = 30, 31, 32, 33, 36, 38, 39, 40, 41, 42, 43, 44, 45
sDsk, sHfl, sK1, sK2, sRole = 48, 49, 54, 55, 100
sTok, sD, sH0, sH1, sLds, sFl, sWd, sRho, sCu = 50, 51, 52, 53, 64, 65, 66, 67, 29
sCga, sCfl = 50, 51
PAR = 120; vTab = 127
vWr = [72, 73]; vXr = [74, 75]; vJA = 76
ACC1 = 128
if KB:
    cKf0, cKf1, cKd0, cKd1, cKd2, cDk, cCb = 219, 220, 221, 222, 223, 232, 233
    KF = [48 + 4*i for i in range(24)]; KA = 176; KT = 184
else:
    cKf0, cKf1, cKd0, cKd1, cKd2, cDk = 5, 6, 7, 8, 9, 11
    KF = [16 + 4*i for i in range(12)] + [80 + 4*i for i in range(10)] + [64, 68]
    KA = 120; KT = 60
cA = [48, 49, 50, 51]; cB, cRw, cRr, cUr, cS0, cS1, cCnt = range(52, 59)
vG = 232
vXo = [240, 241]; vWo = 242; vDo = [248, 249]; vPoll, vZero, cMv, vOne = 250, 251, 252, 253
XA = 192; GV = 204; cZ0, cZ1, cImg, cUw, cLu0, cLu1 = range(213, 219); vU = 224
gD = [8, 9, 10, 11]; gR = [12, 13]; gFl, gL16, gT = 5, 6, 7

class Cnt:
    def __init__(self, name, cap): self.ops = []; self.name = name; self.cap = cap
    def note(self, tag): self.ops.append(tag)
    def issue(self, tag, text): A(text); self.ops.append(tag)
    def need(self, tags):
        idx = [i for i, t in enumerate(self.ops) if t in tags]
        if not idx: return None
        n = min(len(self.ops) - 1 - max(idx), self.cap)
        self.ops = self.ops[len(self.ops)-n:] if n else []
        return n
    def wait(self, tags):
        n = self.need(tags)
        if n is not None: A(f"s_waitcnt {self.name}({n})")

def x_dma(c):
    o = []
    for part in (1, 0):
        pre = [f"s_add_u32 s46, s{sRX}, {c*128}", "s_and_b32 s46, s46, 1023", f"s_add_u32 s46, s46, s{sXoff}"] if part else []
        o += [pre + [f"s_add_u32 m0, s{sM0X}, {u32((c&1)*16384 - part*8192)}", f"s_add_u32 s{sT}, s46, {u32(-part*65536)}",
                     f"buffer_load_dwordx4 v{vXo[0]}, s[8:11], s{sT} offen lds"],
              [f"buffer_load_dwordx4 v{vXo[1]}, s[8:11], s{sT} offen offset:1024 lds"]]
    return o
def w_dma(s):
    o = []
    for part in (1, 0):
        pre = [f"s_add_u32 s46, s{sRW}, {s}", "s_and_b32 s46, s46, 15", f"s_mul_i32 s46, s46, {WSTEP}", f"s_add_u32 s46, s46, s{sWoff}"] if part else []
        o += [pre + [f"s_add_u32 m0, s{sM0W}, {u32((s&3)*16384 - part*8192)}", f"s_add_u32 s{sT}, s46, {u32(-part*16*3584)}",
                     f"buffer_load_dwordx4 v{vWo}, s[12:15], s{sT} offen lds"],
              [f"buffer_load_dwordx4 v{vWo}, s[16:19], s{sT} offen offset:1024 lds"]]
    return o
def piece_off(kap): return 16384*(kap >> 1) + 2048*(kap & 1) + (RED - 98304 if kap >= 12 else 0)
def d_piece(kap, k):
    off = [f"s_add_u32 s{sT}, s{sWd}, {(k >> 1)*32768 + (k & 1)*8192}"]
    if k >= 4: off = [f"s_cmp_ge_u32 s{sRho}, {28 - k}", f"s_cselect_b32 s47, {28*16384}, 0"] + off + [f"s_sub_u32 s{sT}, s{sT}, s47"]
    return [[f"s_add_u32 m0, s{sLds}, {piece_off(kap)}"] + off + [f"buffer_load_dwordx4 v{vDo[0]}, s[68:71], s{sT} offen lds"],
            [f"buffer_load_dwordx4 v{vDo[1]}, s[68:71], s{sT} offen offset:1024 lds"]]

def prologue():
    A(f"""
    s_load_dwordx16 s[64:79], s[0:1], 8
    s_load_dwordx2 s[8:9], s[0:1], 0
    s_load_dwordx4 s[12:15], s[0:1], 80
    s_load_dwordx8 s[56:63], s[0:1], 96
    s_load_dwordx2 s[20:21], s[0:1], 128
    v_lshrrev_b32 v2, 6, v0
    v_and_b32 v1, 63, v0
    v_mov_b32 v{vZero}, 0
    v_mov_b32 v16, {CNT}
    v_mov_b32 v{vOne}, 1
    ds_write_b32 v16, v{vZero}
    ds_write_b32 v16, v{vZero} offset:4
    v_and_b32 v3, 255, v0
    v_readfirstlane_b32 s{sW}, v2
    s_lshl_b32 s3, s2, 8
    v_add_u32 v3, s3, v3
    v_lshlrev_b32 v3, 1, v3
    v_lshrrev_b32 v4, 7, v3
    v_and_b32 v4, 0xfffffffe, v4
    """)
    if STUBS: A(f"s_cmp_lt_u32 s2, 224\ns_cbranch_scc1 L_warm0\ns_cmp_eq_u32 s{sW}, 4\ns_cbranch_scc1 L_pad_mv\nL_warm0:")
    warm(0)
    A(f"""
    s_and_b32 s{sWN}, s{sW}, 3
    s_and_b32 s3, s2, 7
    s_lshr_b32 s4, s2, 3
    s_lshr_b32 s{sTB}, s3, 1
    s_lshl_b32 s{sTB}, s{sTB}, 2
    s_and_b32 s5, s4, 3
    s_add_u32 s{sTB}, s{sTB}, s5
    s_lshl_b32 s{sI}, s3, 2
    s_add_u32 s{sI}, s{sI}, s5
    s_and_b32 s{sFB}, s3, 1
    s_mul_i32 s{sFB}, s{sFB}, 7
    s_lshr_b32 s{sJ}, s4, 2
    s_add_u32 s{sFB}, s{sFB}, s{sJ}
    s_lshl_b32 s{sXoff}, s{sTB}, 17
    s_lshl_b32 s5, s{sW}, 14
    s_add_u32 s{sXoff}, s{sXoff}, s5
    s_mul_i32 s{sWoff}, s{sW}, {4*3584}
    s_lshl_b32 s5, s{sFB}, 8
    s_add_u32 s{sWoff}, s{sWoff}, s5
    s_and_b32 s{sRW}, s3, 6
    s_lshl_b32 s{sRX}, s{sRW}, 7
    s_lshl_b32 s{sRW}, s{sRW}, 1
    s_lshl_b32 s{sM0W}, s{sW}, 11
    s_add_u32 s{sM0X}, s{sM0W}, {XB}
    v_lshrrev_b32 v16, 4, v1
    v_and_b32 v17, 7, v1
    v_xor_b32 v18, v17, v16
    v_lshrrev_b32 v19, 3, v1
    v_lshlrev_b32 v19, 10, v19
    v_lshl_add_u32 v{vXo[0]}, v18, 4, v19
    v_xor_b32 v{vXo[1]}, 64, v{vXo[0]}
    v_add_u32 v{vXo[1]}, 7168, v{vXo[1]}
    v_lshlrev_b32 v17, 2, v16
    v_and_b32 v{vWo}, 15, v1
    v_xor_b32 v{vWo}, v{vWo}, v17
    s_and_b32 s5, s{sW}, 2
    v_xor_b32 v{vWo}, s5, v{vWo}
    v_lshlrev_b32 v{vWo}, 4, v{vWo}
    v_mul_u32_u24 v16, 3584, v16
    v_add_u32 v{vWo}, v{vWo}, v16
    s_mov_b32 s10, 0x200000
    s_mov_b32 s11, 0x00020000
    s_mov_b32 s18, {512*1792*2 + 1024}
    s_mov_b32 s19, 0x00020000
    s_mov_b32 s22, {WS_BYTES}
    s_mov_b32 s23, 0x00020000
    s_waitcnt lgkmcnt(0)
    s_sub_u32 s16, s14, 1024
    s_subb_u32 s17, s15, 0
    s_mov_b32 s14, {512*1792*2}
    s_mov_b32 s15, 0x00020000
    """)
    params(0, 3)
    A(f"s_cmp_ge_u32 s{sW}, 4\ns_cbranch_scc1 L_role_b")
    params(3, 7)

def params(i0, i1):
    for i, p in list(enumerate((76, 64, 66, 68, 70, 72, 74)))[i0:i1]:
        A(f"global_load_ushort v{PAR+i}, v{4 if i == 0 else 3}, s[{p}:{p+1}]")

def common_setup():
    A(f"""
    v_and_b32 v{vTab}, 127, v0
    v_lshlrev_b32 v{vTab}, 2, v{vTab}
    s_lshr_b32 s6, s{sWN}, 1
    s_mul_i32 s4, s6, {57*PITCH}
    s_add_u32 s4, s4, {TB}
    v_add_u32 v{vTab}, s4, v{vTab}
    s_mov_b32 s{sK1}, {fbits(f32(L2E))}
    s_mov_b32 s{sK2}, {fbits(L2E - f32(L2E))}
    s_mov_b32 s68, s56
    s_mov_b32 s69, s57
    s_mov_b32 s70, {1792*1024}
    s_mov_b32 s71, 0x00020000
    s_and_b32 s{sRho}, s2, 7
    s_cmp_eq_u32 s{sRho}, 7
    s_cselect_b32 s{sRho}, 3, s{sRho}
    s_lshl_b32 s{sRho}, s{sRho}, 2
    s_mov_b32 s{sSpin}, {SPIN}
    s_lshl_b32 s3, s2, 2
    s_load_dword s{sDsk}, s[78:79], s3
    """)

def g1_setup():
    A(f"""
    v_lshrrev_b32 v16, 2, v1
    v_and_b32 v16, 3, v16
    v_xor_b32 v17, s{sWN}, v16
    v_lshlrev_b32 v{vWr[0]}, 8, v16
    v_lshl_add_u32 v{vWr[0]}, v17, 6, v{vWr[0]}
    v_lshrrev_b32 v16, 4, v1
    v_lshl_add_u32 v{vWr[0]}, v16, 12, v{vWr[0]}
    v_and_b32 v17, 1, v16
    v_lshl_add_u32 v{vWr[0]}, v17, 5, v{vWr[0]}
    v_and_b32 v17, 3, v1
    v_lshl_add_u32 v{vWr[0]}, v17, 3, v{vWr[0]}
    v_xor_b32 v{vWr[1]}, 32, v{vWr[0]}
    v_lshrrev_b32 v17, 1, v1
    v_and_b32 v17, 7, v17
    v_xor_b32 v17, v17, v16
    v_and_b32 v18, 15, v1
    v_lshlrev_b32 v{vXr[0]}, 7, v18
    v_lshl_add_u32 v{vXr[0]}, v17, 4, v{vXr[0]}
    v_add_u32 v{vXr[0]}, {XB}, v{vXr[0]}
    v_xor_b32 v{vXr[1]}, 64, v{vXr[0]}
    v_lshlrev_b32 v10, 4, v18
    v_lshl_add_u32 v10, v16, 9, v10
    v_mov_b32 v12, {fbits(-2.0 * L2E * math.sqrt(2.0/math.pi))}
    v_mov_b32 v13, v12
    v_mov_b32 v14, 1
    v_mov_b32 v15, 0
    s_mul_i32 s{sHst}, s{sTB}, 448
    s_lshl_b32 s5, s{sFB}, 2
    s_add_u32 s5, s5, s{sWN}
    s_lshl_b32 s4, s5, 1
    s_add_u32 s{sHst}, s{sHst}, s4
    s_lshl_b32 s{sHst}, s{sHst}, 10
    s_mul_i32 s3, s{sTB}, 112
    s_add_u32 s3, s3, s5
    s_lshl_b32 s3, s3, 7
    s_add_u32 s{sHfl}, s3, {WS_FLAG}
    s_add_u32 s{sHfl2}, s{sHfl}, {56*128}
    s_mov_b32 s34, {fbits(-2.0 * L2E * math.sqrt(2.0/math.pi) * 0.044715)}
    s_mov_b32 s35, s34
    s_mov_b32 s{sIt}, 0
    s_lshl_b32 s{sCga}, s2, 13
    s_add_u32 s{sCga}, s{sCga}, {WS_GA}
    s_lshl_b32 s3, s2, 2
    s_add_u32 s3, s3, s{sWN}
    s_lshl_b32 s3, s3, 7
    s_add_u32 s{sCfl}, s3, {WS_FLAG2}
    """)

def k_setup1():
    return lines(f"""
    s_lshr_b32 s6, s{sWN}, 1
    s_and_b32 s7, s{sWN}, 1
    s_mul_i32 s4, s6, {57*PITCH}
    s_add_u32 s4, s4, {TB}
    v_and_b32 v16, 15, v1
    v_lshrrev_b32 v17, 4, v1
    v_mul_u32_u24 v{cKf0}, {PITCH}, v16
    v_lshl_add_u32 v{cKf0}, v17, 4, v{cKf0}
    v_add_u32 v{cKf0}, s4, v{cKf0}
    s_mul_i32 s4, s7, {16*PITCH}
    v_add_u32 v{cKf1}, s4, v{cKf0}
    s_lshl_b32 s3, s6, 1
    s_add_u32 s3, s3, {KD}
    v_lshrrev_b32 v18, 1, v17
    v_and_b32 v19, 1, v17
    v_lshlrev_b32 v24, 7, v18
    v_lshl_add_u32 v24, v19, 2, v24
    v_lshl_add_u32 v24, v16, 3, v24
    v_lshlrev_b32 v25, 6, v17
    v_add_u32 v25, 256, v25
    v_lshl_add_u32 v26, v16, 2, v25
    v_lshl_add_u32 v27, v16, 1, v25
    v_cmp_gt_u32 vcc, 2, v17
    v_mov_b32 v28, 32
    v_lshl_add_u32 v25, v17, 6, v16
    v_cndmask_b32 v26, v27, v26, vcc
    v_cndmask_b32 v28, v28, 2, vcc
    s_cmp_eq_u32 s7, 0
    s_cselect_b64 vcc, -1, 0
    v_lshl_add_u32 v{cKd2}, v25, 2, s3
    v_cndmask_b32 v26, v26, v24, vcc
    v_cndmask_b32 v28, v28, 2, vcc
    v_add_u32 v28, v26, v28
    v_lshl_add_u32 v{cKd0}, v26, 2, s3
    v_lshl_add_u32 v{cKd1}, v28, 2, s3
    """)

def conv_setup():
    A(f"""
    s_lshr_b32 s6, s{sWN}, 1
    s_and_b32 s7, s{sWN}, 1
    s_mul_i32 s5, s6, {CH}
    s_add_u32 s5, s5, {TB}
    v_and_b32 v60, 15, v1
    v_lshrrev_b32 v61, 4, v1
    v_and_b32 v62, 1, v60
    v_xor_b32 v62, 1, v62
    v_mul_u32_u24 v62, 4160, v62
    v_and_b32 v63, 14, v60
    v_lshlrev_b32 v63, 1, v63
    v_sub_u32 v62, v62, v63
    v_lshl_add_u32 v62, v61, 4, v62
    s_lshl_b32 s4, s7, 8
    s_sub_u32 s4, s5, s4
    s_add_u32 s3, s4, {4060 - 512 - 192}
    v_add_u32 v{cA[0]}, s3, v62
    v_subrev_u32 v{cA[1]}, 1024, v{cA[0]}
    v_subrev_u32 v{cA[2]}, 2048, v{cA[0]}
    v_subrev_u32 v{cA[3]}, 3072, v{cA[0]}
    v_lshlrev_b32 v{cB}, 5, v60
    v_lshl_add_u32 v{cB}, v61, 4, v{cB}
    s_add_u32 s3, s4, {UOFF + 480 - 192}
    v_add_u32 v{cB}, s3, v{cB}
    v_lshlrev_b32 v{cRw}, 6, v60
    v_lshl_add_u32 v{cRw}, v61, 4, v{cRw}
    s_lshl_b32 s3, s{sWN}, 13
    s_add_u32 s3, s3, {RED}
    v_add_u32 v{cRw}, s3, v{cRw}
    v_lshlrev_b32 v{cS0}, 4, v0
    v_add_u32 v{cS1}, 4096, v{cS0}
    v_add_u32 v{cRr}, {RED}, v{cS0}
    v_mov_b32 v{cCnt}, {CNT}
    """)

def b_setup1():
    return lines(f"""
    v_lshrrev_b32 v16, 4, v1
    v_and_b32 v16, 1, v16
    v_lshlrev_b32 v16, 2, v16
    v_and_b32 v17, 7, v1
    v_xor_b32 v16, v16, v17
    v_lshrrev_b32 v17, 3, v1
    v_lshlrev_b32 v17, 10, v17
    v_lshl_add_u32 v{vDo[0]}, v16, 4, v17
    v_add_u32 v{vDo[1]}, 15360, v{vDo[0]}
    s_lshl_b32 s{sLds}, s{sWN}, 12
    s_mul_i32 s{sWd}, s{sWN}, 28
    s_add_u32 s{sWd}, s{sWd}, s{sRho}
    s_lshl_b32 s3, s{sWd}, 10
    s_lshl_b32 s{sWd}, s{sWd}, 14
    s_lshl_b32 s4, s{sJ}, 7
    s_add_u32 s{sWd}, s{sWd}, s4
    s_and_b32 s6, s{sWN}, 1
    s_lshr_b32 s7, s{sWN}, 1
    s_lshl_b32 s{sTok}, s{sI}, 1
    s_add_u32 s{sTok}, s{sTok}, s6
    s_lshl_b32 s{sD}, s{sJ}, 1
    s_add_u32 s{sD}, s{sD}, s7
    s_mul_i32 s{sH0}, s{sTok}, {112*1024}
    s_xor_b32 s4, s{sTok}, 1
    s_mul_i32 s{sH1}, s4, {112*1024}
    s_add_u32 s{sH0}, s{sH0}, s3
    s_add_u32 s{sH1}, s{sH1}, s3
    v_and_b32 v17, 16, v1
    v_lshlrev_b32 v18, 1, v17
    v_and_b32 v17, 1, v1
    v_lshl_add_u32 v18, v17, 4, v18
    v_and_b32 v17, 2, v1
    v_lshl_add_u32 v18, v17, 2, v18
    v_lshrrev_b32 v16, 2, v1
    v_and_b32 v16, 3, v16
    v_lshrrev_b32 v17, 5, v1
    v_lshl_add_u32 v19, v17, 2, v16
    v_lshl_add_u32 v{gD[0]}, v19, 7, v18
    v_lshrrev_b32 v16, 1, v16
    v_xor_b32 v16, s7, v16
    v_lshl_add_u32 v{gD[0]}, v16, 6, v{gD[0]}
    v_add_u32 v{gD[0]}, s{sLds}, v{gD[0]}
    v_xor_b32 v{gD[1]}, 64, v{gD[0]}
    v_add_u32 v{gD[2]}, 0x10000, v{gD[0]}
    v_add_u32 v{gD[3]}, 0x10000, v{gD[1]}
    v_add_u32 v{gR[0]}, {RED}, v{gD[0]}
    v_add_u32 v{gR[1]}, {RED}, v{gD[1]}
    v_lshlrev_b32 v{gFl}, 7, v1
    s_lshl_b32 s{sFl}, s{sI}, 2
    s_add_u32 s{sFl}, s{sFl}, s{sWN}
    s_mul_i32 s{sFl}, s{sFl}, {14*128}
    s_add_u32 s{sFl}, s{sFl}, {WS_FLAG}
    v_lshlrev_b32 v{gL16}, 4, v1
    """)
def b_setup2():
    CB = 0x4300 - 128
    o = lines(f"""
    v_and_b32 v32, 255, v0
    v_lshrrev_b32 v33, 3, v32
    v_lshlrev_b32 v{cLu0}, 10, v33
    v_and_b32 v26, 7, v32
    v_lshl_add_u32 v{cLu0}, v26, 4, v{cLu0}
    v_xor_b32 v26, s2, v33
    v_and_b32 v26, 7, v26
    v_lshl_add_u32 v{cLu0}, v26, 7, v{cLu0}
    v_add_u32 v{cLu1}, 32768, v{cLu0}
    s_lshr_b32 s{sCu}, s2, 3
    s_lshl_b32 s{sCu}, s{sCu}, 16
    s_add_u32 s{sCu}, s{sCu}, {WS_UT}
    s_and_b32 s3, s2, 31
    s_lshl_b32 s3, s3, 7
    s_add_u32 s3, s3, {WS_FLAG3}
    v_mov_b32 v{cMv}, s3
    v_lshlrev_b32 v{cUw}, 6, v33
    v_and_b32 v26, 3, v32
    v_lshl_add_u32 v{cUw}, v26, 4, v{cUw}
    v_bfe_u32 v26, v32, 2, 1
    v_mul_u32_u24 v26, {CH}, v26
    v_add_u32 v{cUw}, v{cUw}, v26
    v_add_u32 v{cUw}, {TB + UOFF + 512}, v{cUw}
    s_lshr_b32 s6, s{sWN}, 1
    s_and_b32 s7, s{sWN}, 1
    s_mul_i32 s5, s6, {CH}
    s_add_u32 s5, s5, {TB}
    v_and_b32 v26, 127, v0
    v_lshl_add_u32 v{cZ0}, v26, 2, s5
    v_and_b32 v{cZ1}, 60, v{cZ0}
    s_mul_i32 s3, s7, 4160
    s_add_u32 s3, s3, s5
    v_add_u32 v{cZ1}, s3, v{cZ1}
    v_lshlrev_b32 v{cImg}, 4, v32
    v_add_u32 v{cImg}, {TB}, v{cImg}
    v_lshlrev_b32 v29, 3, v32
    v_sub_u32 v29, 2047, v29
    v_cvt_f32_i32 v30, v29
    v_add_u32 v29, {CB}, v29
    v_mov_b32 v31, {128 + CB}
    s_mov_b32 s3, {KD - 4*CB}
    """)
    for e in range(9):
        r = XA + e
        o += [f"v_subrev_f32 v{r}, {fbits(float(e))}, v30", f"v_cvt_pk_bf16_f32 v{r}, v{r}, 0",
              f"v_subrev_u32 v24, {e}, v29", f"v_med3_i32 v{r}, v{r}, v24, v31", f"v_lshl_add_u32 v{r}, v{r}, 2, s3"]
    return o

def tab_common():
    return lines(f"""
    v_lshlrev_b32 v{PAR}, 16, v{PAR}
    v_lshlrev_b32 v16, 16, v{PAR+1}
    v_lshlrev_b32 v17, 16, v{PAR+2}
    v_mul_f32 v18, s{sK1}, v{PAR}
    v_fma_f32 v19, v{PAR}, s{sK1}, -v18
    v_fma_f32 v19, v{PAR}, s{sK2}, v19
    v_exp_f32 v18, v18
    v_mul_f32 v19, {fbits(math.log(2.0))}, v19
    v_fmac_f32 v18, v18, v19
    v_cvt_pk_bf16_f32 v18, 0, v18
    v_mul_f32 v16, v18, v16
    v_mul_f32 v17, v18, v17
    v_mul_f32 v16, s{sK1}, v16
    v_mul_f32 v17, 0.15915494, v17
    """)
def cexp(e, s, t):
    if s == 1.0: o = [f"v_exp_f32 v{t}, v16", f"v_fract_f32 v{t+1}, v17"]
    else: o = [f"v_mul_f32 v{t}, {fbits(s)}, v16", f"v_mul_f32 v{t+1}, {fbits(s)}, v17", f"v_exp_f32 v{t}, v{t}", f"v_fract_f32 v{t+1}, v{t+1}"]
    return o + [f"v_cos_f32 v{e}, v{t+1}", f"v_sin_f32 v{e+1}, v{t+1}", f"v_mul_f32 v{e}, v{t}, v{e}", f"v_mul_f32 v{e+1}, v{t}, v{e+1}"]
def cmul(d, a, b):
    return [f"v_pk_mul_f32 {vr(d,2)}, {vr(a,2)}, {vr(b,2)} op_sel_hi:[0,1]",
            f"v_pk_fma_f32 {vr(d,2)}, {vr(a,2)}, {vr(b,2)}, {vr(d,2)} op_sel:[1,1,0] op_sel_hi:[1,0,1] neg_lo:[0,1,0]"]
class Putter:
    def __init__(self, base): self.base = base; self.i = 0
    def __call__(self, row, r, ng=False):
        t = self.base + (self.i & 3); self.i += 1
        return [f"v_cvt_pk_bf16_f32 v{t}, v{r}, {'-' if ng else ''}v{r+1}", f"ds_write_b32 v{vTab}, v{t} offset:{row*PITCH}"]
PR = 16
def tables_a():
    put = Putter(108)
    E1, E8, E128, DB, C = 44, 24, 28, 32, 36
    o = tab_common() + cexp(E1, 1.0, 40) + cexp(E128, 128.0, 42)
    o += put(PR + 1, E1) + put(PR + 8, E128) + cexp(E8, 8.0, 40)
    o += lines(f"""
    v_lshlrev_b32 v{DB}, 16, v{PAR+3}
    v_lshlrev_b32 v{DB+1}, 16, v{PAR+4}
    v_lshlrev_b32 v{C}, 16, v{PAR+5}
    v_lshlrev_b32 v{C+1}, 16, v{PAR+6}
    v_mul_f32 v{DB}, v18, v{DB}
    v_mul_f32 v{DB+1}, v18, v{DB+1}
    """)
    q = [20, 22]; jq = list(range(1, 16))
    o += cmul(q[0], C, DB) + put(0, q[0], True)
    def do_q():
        i = jq.pop(0); r = cmul(q[1], q[0], E8); q.reverse(); return r + put(i, q[0], True)
    o += cmul(52, E1, E128) + do_q() + put(PR + 9, 52)
    cur = E1; nx = 48
    for p in range(2, 8):
        o += cmul(nx, cur, E1); cur, nx = nx, (50 if nx == 48 else 48)
        d = 52 + 2*(p & 1)
        o += do_q() + put(PR + p, cur) + cmul(d, cur, E128) + do_q() + put(PR + 8 + p, d)
    while jq: o += do_q()
    return o
def tables_b():
    put = Putter(108)
    E128, F2, F4, F6, E256 = 20, 24, 28, 32, 44
    o = tab_common() + cexp(E128, 128.0, 40) + cexp(F2, 2.0, 42)
    o += ["v_mov_b32 v111, 0x3f80", f"ds_write_b32 v{vTab}, v111 offset:{PR*PITCH}"]
    o += cmul(E256, E128, E128) + cmul(F4, F2, F2) + cmul(38, E256, E128) + cmul(F6, F4, F2)
    ch = {0: [E256, 96, 98], 1: [38, 100, 102]}; pp = 0
    for h in range(2, 17):
        c = ch[h & 1]; cur = c[0]
        if h + 2 <= 16: o += cmul(c[1], cur, E256)
        if h < 4: rows = [(PR + 16 + 4*(h-2) + p, f) for p, f in ((1, F2), (2, F4), (3, F6))]; r0 = PR + 16 + 4*(h-2)
        elif h < 8: rows = [(PR + 24 + 2*(h-4) + 1, F4)]; r0 = PR + 24 + 2*(h-4)
        else: rows = []; r0 = PR + 32 + (h-8)
        o += put(r0, cur)
        for row, f in rows:
            d = 40 + 2*(pp & 1); pp += 1
            o += cmul(d, cur, f) + put(row, d)
        ch[h & 1] = [c[1], c[2], c[1]] if h < 4 else [c[1], c[0], c[1]]
    return o
def k_reads():
    return sum(([f"ds_read_b128 {vr(KF[3*s],4)}, v{cKf0} offset:{64*s}",
                 f"ds_read_b128 {vr(KF[3*s+1],4)}, v{cKf1} offset:{16*PITCH+64*s}",
                 f"ds_read_b128 {vr(KF[3*s+2],4)}, v{cKf0} offset:{48*PITCH+64*s}"] for s in range(8)), [])
def k_mfma(waits):
    for s in range(8):
        if waits: A(f"s_waitcnt lgkmcnt({min(15, 21 - 3*s)})")
        A([f"v_mfma_f32_16x16x32_bf16 {vr(KA,4)}, {vr(KF[3*s+1],4)}, {vr(KF[3*s],4)}, {'0' if s == 0 else vr(KA,4)}",
           f"v_mfma_f32_16x16x32_bf16 {vr(KA+4,4)}, {vr(KF[3*s+2],4)}, {vr(KF[3*s],4)}, {'0' if s == 0 else vr(KA+4,4)}"])
    return lines(f"""
    v_add_f32 v{KA}, v{KA}, v{cDk}
    v_cvt_pk_bf16_f32 v{KT}, v{KA}, v{KA+1}
    v_cvt_pk_bf16_f32 v{KT+1}, v{KA+2}, v{KA+3}
    v_cvt_pk_bf16_f32 v{KT+2}, v{KA+4}, v{KA+5}
    v_cvt_pk_bf16_f32 v{KT+3}, v{KA+6}, v{KA+7}
    ds_write_b16 v{cKd0}, v{KT}
    ds_write_b16_d16_hi v{cKd0}, v{KT} offset:4
    ds_write_b16 v{cKd1}, v{KT+1}
    ds_write_b16_d16_hi v{cKd1}, v{KT+1} offset:4
    ds_write_b16 v{cKd2}, v{KT+2} offset:2048
    ds_write_b16_d16_hi v{cKd2}, v{KT+2} offset:{2048+64}
    ds_write_b16 v{cKd2}, v{KT+3} offset:{2048+128}
    ds_write_b16_d16_hi v{cKd2}, v{KT+3} offset:{2048+192}
    """)
def k_part1():
    A(k_reads()); return k_mfma(True)
def dskip():
    return lines(f"""
    s_lshl_b32 s3, s{sDsk}, 16
    s_and_b32 s4, s{sDsk}, 0xffff0000
    s_cmp_lt_u32 s{sWN}, 2
    s_cselect_b32 s3, s3, s4
    s_and_b32 s4, s{sWN}, 1
    s_cmp_eq_u32 s4, 0
    s_cselect_b32 s3, s3, 0
    v_mov_b32 v{cDk}, 0
    v_writelane_b32 v{cDk}, s3, 0
    """)
def k_gather(): return [f"ds_read_b32 v{GV+e}, v{XA+e}" for e in range(9)]
def k_pack():
    o = ["v_cmp_ne_u32 vcc, 0x1ff, v0", f"ds_write_b32 v{cZ0}, v{vZero} offset:{UOFF}",
         f"ds_write_b32 v{cZ1}, v{vZero} offset:4096", f"v_cndmask_b32 v{GV+8}, 0, v{GV+8}, vcc",
         f"s_mov_b32 s{sK1}, 0x05040100", f"s_mov_b32 s{sK2}, 0x07060302"]
    n = 0
    for c, sel in ((0, sK1), (1, sK2)):
        for k in range(2):
            for i in range(4): o.append(f"v_perm_b32 v{16+4*n+i}, v{GV+2*i+k+1}, v{GV+2*i+k}, s{sel}")
            o.append(f"ds_write_b128 v{cImg}, {vr(16+4*n,4)} offset:{c*CH + k*4160}")
            n += 1
    return o

LD_INIT = f"global_load_dword v{vPoll}, v{vZero}, s[62:63] sc1"
LD_MV = f"buffer_load_dword v{vPoll}, v{cMv}, s[20:23], 0 offen sc1"
def poll(lb, target, ld):
    A(f"""
{lb}:
    v_cmp_gt_u32 vcc, {target}, v{vPoll}
    s_cbranch_vccz {lb}_ok
    s_sub_u32 s{sSpin}, s{sSpin}, 1
    s_cbranch_scc1 {lb}_ok
    s_sleep 8
    {ld}
    s_waitcnt vmcnt(0)
    s_branch {lb}
{lb}_ok:
    """)

def gemm1_a():
    FA = [16, 32]; FB = [80, 96]
    def ra(p):
        f = FA[p & 1]; o = (p & 3)*16384
        return [f"ds_read_b64_tr_b16 {vr(f+8*mat+4*T+2*ih,2)}, v{vWr[T]} offset:{o + 1024*mat + 2048*ih}"
                for mat in range(2) for T in range(2) for ih in range(2)]
    def rb(p, h):
        xo = ((p >> 1) & 1)*16384
        return [f"ds_read_b128 {vr(FB[h]+4*i,4)}, v{vXr[p & 1]} offset:{xo + 2048*(4*h + i)}" for i in range(4)]
    A("s_waitcnt lgkmcnt(0)\ns_barrier")
    tail = [] if KB else k_part1()
    stamp(3)
    A(ra(0) + rb(0, 0)); A(tail)
    A("L_g1_loop:")
    for p in range(4):
        for h in range(2):
            A("s_waitcnt lgkmcnt(0)")
            if h: A("s_barrier")
            r = rb(p, 1) if h == 0 else (ra(p + 1)[:2] + rb(p + 1, 0)[:1] + ra(p + 1)[2:] + rb(p + 1, 0)[1:])
            if h: A(r[:UPF]); r = r[UPF:]
            n = 0
            for i in range(4):
                tt = 4*h + i
                for mat in range(2):
                    for T in range(2):
                        d = vr(ACC1 + 32*(tt >> 1) + 16*mat + 8*(tt & 1) + 4*T, 4)
                        A(f"v_mfma_f32_16x16x32_bf16 {d}, {vr(FA[p & 1]+8*mat+4*T,4)}, {vr(FB[h]+4*i,4)}, {d}")
                        if r: A(r.pop(0))
                        n += 1
                        if p == 3 and h == 1 and n == 14: A(f"s_add_u32 s{sIt}, s{sIt}, 1\ns_cmp_lt_u32 s{sIt}, 4")
    if STAMP and SS == 3:
        A("s_mov_b32 s92, s94\ns_mov_b32 s94, s96\ns_mov_b32 s96, s98\ns_memrealtime s[98:99]\ns_waitcnt lgkmcnt(0)")
    A("s_cbranch_scc1 L_g1_loop")

def publish(sreg, n):
    A(f"""
    s_mov_b64 exec, 1
    s_waitcnt vmcnt({n})
    buffer_store_dword v14, v15, s[20:23], s{sreg} offen sc1
    s_mov_b64 exec, -1
    """)

def geglu(tt):
    G = ACC1 + 32*tt; U = G + 16
    O = 96 + 8*(tt & 1); T = 32
    for p in range(8): A(f"v_pk_mul_f32 {vr(T+2*p,2)}, {vr(G+2*p,2)}, {vr(G+2*p,2)}")
    for p in range(8): A(f"v_pk_fma_f32 {vr(T+2*p,2)}, {vr(T+2*p,2)}, s[34:35], v[12:13]")
    for p in range(8): A(f"v_pk_mul_f32 {vr(T+2*p,2)}, {vr(T+2*p,2)}, {vr(G+2*p,2)}")
    for p in range(16): A(f"v_exp_f32 v{T+p}, v{T+p}")
    for p in range(8): A(f"v_pk_mul_f32 {vr(G+2*p,2)}, {vr(G+2*p,2)}, {vr(U+2*p,2)}")
    for p in range(8): A(f"v_pk_add_f32 {vr(T+2*p,2)}, {vr(T+2*p,2)}, 1.0 op_sel_hi:[1,0]")
    for p in range(16): A(f"v_rcp_f32 v{T+p}, v{T+p}")
    for p in range(8): A(f"v_pk_mul_f32 {vr(G+2*p,2)}, {vr(G+2*p,2)}, {vr(T+2*p,2)}")
    for p in range(8): A(f"v_cvt_pk_bf16_f32 v{O+p}, v{G+2*p}, v{G+2*p+1}")
    A(f"buffer_store_dwordx4 {vr(O,4)}, v10, s[20:23], s{sHst} offen sc1")
    A(f"buffer_store_dwordx4 {vr(O+4,4)}, v10, s[20:23], s{sHst} offen offset:256 sc1")
    if tt < 3: A(f"s_add_u32 s{sHst}, s{sHst}, {112*1024}")

def role_a():
    A(f"s_mov_b32 s{sRole}, 0\nv_mov_b64 v[40:41], 0\nv_mov_b64 v[42:43], 0")
    common_setup(); g1_setup(); pad("su")
    if not KB: A(k_setup1())
    A("s_cmp_ge_u32 s2, 224\ns_cbranch_scc1 L_mv_a")
    for i in range(8):
        A(f"v_mfma_f32_32x32x16_bf16 {vr(ACC1+16*i,16)}, v[40:43], v[40:43], 0")
    A("s_waitcnt vmcnt(0)")
    if T2:
        A(f"""
        s_cmp_ge_u32 s{sW}, 2
        s_cbranch_scc1 L_a_tab
        s_lshl_b32 s3, s2, 1
        s_add_u32 s3, s3, s{sW}
        s_mul_i32 s3, s3, {37*128}
        v_min_u32 v112, 36, v1
        v_lshlrev_b32 v112, 7, v112
        buffer_load_dword v{vJA}, v112, s[8:11], s3 offen
        """)
    A("L_a_tab:")
    stamp(1)
    t = tables_a()
    A(t[:50]); pad("tb0"); A(t[50:])
    stamp(2)
    if not KB: A("s_waitcnt lgkmcnt(0)"); A(dskip())
    A("s_cmp_ge_u32 s2, 224\ns_cbranch_scc1 L_mv_a2")
    if AGT:
        A(f"""
        s_lshl_b32 s3, s2, 2
        s_add_u32 s3, s3, s{sW}
        s_lshl_b32 s3, s3, 11
        v_and_b32 v112, 15, v1
        v_lshlrev_b32 v112, 7, v112
        buffer_load_dword v{vJA}, v112, s[68:71], s3 offen
        """)
    A("s_setprio 1")
    gemm1_a()
    stamp(4)
    geglu(0); pad("ea0")
    geglu(1)
    geglu(2); pad("ea1")
    publish(sHfl, 2)
    geglu(3)
    stamp(5)
    conv_setup()
    publish(sHfl2, 0)
    A("L_a_join:")
    conv()

G1 = [0, 1, 8, 9, 2, 3]; G2 = [4, 5, 10, 11, 6, 7]
STG = {k: 48 + 8*i for i, k in enumerate(G1 + G2)}
STG.update({24 + i: 144 + 8*i for i in range(4)})
def wd_reads(kap, d0, d1):
    o = piece_off(kap)
    if kap >= 12: base = gR; o -= RED
    elif o >= 65536: base = gD[2:4]; o -= 65536
    else: base = gD[0:2]
    return [f"ds_read_b64_tr_b16 {vr((d0, d1)[dd]+2*ih,2)}, v{base[dd]} offset:{o + 1024*ih}" for dd in range(2) for ih in range(2)]

def u_loads(vm):
    vm.issue("u", f"buffer_load_dwordx4 {vr(vU,4)}, v{cLu0}, s[20:23], s{sCu} offen sc1")
    vm.issue("u", f"buffer_load_dwordx4 {vr(vU+4,4)}, v{cLu1}, s[20:23], s{sCu} offen sc1")

def b_finish(vm, lb):
    late = []
    if KB:
        tail = k_mfma(False)
        vm.wait({"mv"}); poll(lb, 1, LD_MV)
        u_loads(vm)
        A("s_nop 3"); A(tail)
        A(f"""
        s_mov_b64 exec, 1
        s_waitcnt lgkmcnt(0)
        ds_add_u32 v{cCb}, v{vOne}
        s_mov_b64 exec, -1
        """)
    def stage(ks, refill=True):
        vm.wait({("d", k) for k in ks})
        for k in ks: A(wd_reads(k, STG[k], STG[k] + 4))
        A("s_waitcnt lgkmcnt(0)")
        for k in ks:
            if refill:
                for g in d_piece(k, k + 12): vm.issue(("d", k + 12), g)
            else: late.append(k)
    stage(G1[0:2], RLATE < 12); stage(G1[2:4], RLATE < 10)
    if not KB:
        vm.wait({"mv"}); poll(lb, 1, LD_MV)
        u_loads(vm)
    else:
        A(f"""
        s_mov_b64 exec, 1
{lb}_k:
        ds_read_b32 v2, v{cCb}
        s_waitcnt lgkmcnt(0)
        v_cmp_gt_u32 vcc, 4, v2
        s_cbranch_vccz {lb}_kgo
        s_sub_u32 s{sSpin}, s{sSpin}, 1
        s_cbranch_scc0 {lb}_k
{lb}_kgo:
        s_mov_b64 exec, -1
        """)
        A(k_gather())
    stage(G1[4:6] + G2[0:2], RLATE < 8)
    vm.wait({("d", 24 + i) for i in range(4)})
    for i in range(4): A(wd_reads(12 + i, STG[24 + i], STG[24 + i] + 4))
    A(k_pack())
    stage(G2[2:6], RLATE < 4)
    vm.wait({"u"})
    A(f"ds_write_b128 v{cUw}, {vr(vU,4)}\nds_write_b128 v{cUw}, {vr(vU+4,4)} offset:2048")
    return late

def role_b():
    A(f"L_role_b:\ns_mov_b32 s{sRole}, 1\ns_cmp_ge_u32 s2, 224\ns_cbranch_scc1 L_mv_head")
    vm = Cnt("vmcnt", 63)
    def groups(kind, idx):
        if kind == "W" and idx < 16: return [((kind, idx), g) for g in w_dma(idx)]
        if kind == "X" and idx < 8: return [((kind, idx), g) for g in x_dma(idx)]
        sig = idx - 16 if kind == "W" else idx - 4
        return [(("d", k), g) for k in (2*sig, 2*sig + 1) for g in d_piece(k, k)]
    def dma(kind, idx):
        for tag, g in groups(kind, idx): vm.issue(tag, g)
    def barrier(tags):
        n = vm.need(tags)
        A(f"s_waitcnt {'vmcnt(%d) ' % n if n is not None else ''}lgkmcnt(0)\ns_barrier")
    dma("X", 0); dma("W", 0); dma("W", 1)
    common_setup()
    A("s_waitcnt vmcnt(12)")
    stamp(1)
    t = tables_b()
    A(t[:60]); pad("rb1"); dma("X", 1); A(t[60:])
    stamp(2)
    if KB:
        k1 = k_setup1()
        allw = k1[:11] + k_reads() + k1[11:] + b_setup1() + dskip() + [f"v_mov_b32 v{cCb}, {CNT + 4}"] + b_setup2()
    else: allw = b_setup1() + b_setup2() + k_gather()
    work = slices(allw, NW)
    barrier({("X", 0), ("W", 0)})
    stamp(3)
    dma("W", 2)
    if not KB: dma("W", 3); warm(1)
    carry = groups("W", 3) if KB else []
    for s in range(16):
        barrier({("W", s + 1), ("X", (s + 1)//2)})
        g = carry; carry = []
        if s & 1:
            g += groups("X", (s + 3)//2)
            w4 = groups("W", s + 4)
            if s < 15: g += w4[:2]; carry = w4[2:]
            else: g += w4
        else: g += groups("W", s + 4)
        if (RS <= s < RS + 4) if KB else (RS <= s < RS + 8 and (s - RS) % 2 == 0):
            i = s - RS if KB else (s - RS)//2
            g += [(("d", 24 + i), x) for x in d_piece(12 + i, 24 + i)]
        w = work.pop(0) if work else []
        for (tag, gi), wi in zip(g, slices(w, len(g))):
            vm.issue(tag, gi); A(wi)
        if s == 5: A(f"s_cmp_eq_u32 s{sW}, 4\ns_cbranch_scc0 L_noinit\n{LD_INIT}\nL_noinit:")
        if s == 10:
            A(f"s_cmp_eq_u32 s{sW}, 4\ns_cbranch_scc0 L_pi_ok")
            poll("L_pi", 128, LD_INIT)
        if s == 14: vm.issue("mv", LD_MV)
        if s == 1 and KB: warm(1)
        if s == 3: pad("rb2")
        if s == 8: pad("g1b")
    A(f"s_setprio {PPRIO}")
    stamp(4)
    late = b_finish(vm, "L_pm1")
    A("L_b_join:")
    warm(2)
    stamp(5)
    A("s_waitcnt lgkmcnt(0)\ns_barrier")
    gemm2(sorted(late))

def mover():
    if STUBS: A("L_pad_mv:\ns_branch L_warm_ret0")
    A(f"""
L_mv_head:
    s_sub_u32 s6, s2, 224
    s_lshl_b32 s3, s6, 16
    s_lshl_b32 s4, s{sWN}, 14
    s_add_u32 s3, s3, s4
    s_mul_i32 s4, s{sWN}, {16*UP}
    v_lshlrev_b32 v16, 4, v1
    s_add_u32 s5, s3, 16384
L_mv_ld:
    s_mov_b32 m0, s4
    s_add_u32 s4, s4, {UP}
    buffer_load_dwordx4 v16, s[8:11], s3 offen lds
    s_add_u32 s3, s3, 1024
    s_cmp_lt_u32 s3, s5
    s_cbranch_scc1 L_mv_ld
    global_load_dwordx4 v[128:131], v16, s[58:59]
    v_add_u32 v132, {GWL}, v16
    """)
    common_setup()
    A("s_waitcnt vmcnt(17)"); A(tables_b())
    A(b_setup1()); A(b_setup2())
    if KB: A(k_setup1()); A("s_waitcnt lgkmcnt(0)"); A(dskip()); A(f"v_mov_b32 v{cCb}, {CNT + 4}")
    A("s_waitcnt vmcnt(0)\nds_write_b128 v132, v[128:131]\ns_branch L_mv_common")
    A(f"""
L_mv_a:
    s_sub_u32 s6, s2, 224
    s_lshl_b32 s3, s6, 2
    s_add_u32 s3, s3, s{sW}
    s_mul_i32 s3, s3, 22
    v_add_u32 v16, s3, v1
    s_add_u32 s3, s6, 2816
    v_mov_b32 v17, s3
    v_cmp_gt_u32 vcc, 22, v1
    s_getpc_b64 s[4:5]
L_pc:
    s_sub_u32 s4, s4, L_pc - {KNAME}
    s_subb_u32 s5, s5, 0
    v_cndmask_b32 v16, v17, v16, vcc
    v_lshlrev_b32 v16, 7, v16
    v_add_u32 v16, {WS_FLAG}, v16
    buffer_store_dword v15, v16, s[20:23], 0 offen sc1
    v_lshlrev_b32 v16, 7, v0
    v_min_u32 v16, L_exit - {KNAME}, v16
    global_load_dword v{vJA}, v16, s[4:5]
    s_waitcnt vmcnt(2)
    s_branch L_a_tab
L_mv_a2:
    s_waitcnt vmcnt(0)
    s_mov_b64 exec, 1
    global_atomic_add v15, v14, s[62:63] sc1
    s_mov_b64 exec, -1
L_mv_common:
    s_sub_u32 s{sMov}, s2, 224
    v_and_b32 v2, 15, v1
    v_lshrrev_b32 v3, 4, v1
    v_lshlrev_b32 v16, 4, v3
    v_lshrrev_b32 v17, 2, v1
    v_and_b32 v17, 3, v17
    v_lshl_add_u32 v17, v3, 3, v17
    v_mul_u32_u24 v17, {UP}, v17
    v_and_b32 v18, 3, v1
    v_lshl_add_u32 v17, v18, 3, v17
    s_lshl_b32 s4, s{sW}, 7
    v_add_u32 v17, s4, v17
    s_lshl_b32 s3, s{sW}, 18
    s_lshl_b32 s4, s{sMov}, 11
    s_add_u32 s3, s3, s4
    s_add_u32 s3, s3, {WS_UT}
    v_lshlrev_b32 v18, 6, v2
    v_lshl_add_u32 v18, v3, 4, v18
    s_and_b32 s4, s{sMov}, 3
    s_lshl_b32 s4, s4, 8
    v_xor_b32 v18, s4, v18
    v_xor_b32 v19, 128, v18
    s_waitcnt lgkmcnt(0)
    s_barrier
    """)
    stamp(3)
    for q in range(4):
        b = 160 + 8*q
        A(f"""
        ds_read_b64_tr_b16 {vr(b,2)}, v17 offset:{32*q}
        ds_read_b64_tr_b16 {vr(b+2,2)}, v17 offset:{32*q + 4*UP}
        ds_read_b64_tr_b16 {vr(b+4,2)}, v17 offset:{32*q + 32*UP}
        ds_read_b64_tr_b16 {vr(b+6,2)}, v17 offset:{32*q + 36*UP}
        """)
    for q in range(4):
        b = 160 + 8*q
        A(f"""
        s_waitcnt lgkmcnt({12 - 4*q})
        buffer_store_dwordx4 {vr(b,4)}, v18, s[20:23], s3 offen sc1
        buffer_store_dwordx4 {vr(b+4,4)}, v19, s[20:23], s3 offen offset:1024 sc1
        s_add_u32 s3, s3, 65536
        """)
    A(f"""
    s_cmp_eq_u32 s{sRole}, 0
    s_cbranch_scc1 L_mv_a3
    s_mul_i32 s4, s{sWN}, {16*UP}
    v_mul_u32_u24 v17, {UP}, v2
    v_add_u32 v17, v17, v16
    v_add_u32 v17, s4, v17
    v_add_u32 v4, {GWL}, v16
    """)
    for i in range(16):
        A(f"ds_read_b128 {vr(32+4*i,4)}, v17 offset:{64*i}\nds_read_b128 {vr(96+4*i,4)}, v4 offset:{64*i}")
    A("s_waitcnt lgkmcnt(0)")
    for i in range(16):
        c = "0" if i < 2 else vr(24+4*(i&1), 4)
        A(f"v_mfma_f32_16x16x32_bf16 {vr(24+4*(i&1),4)}, {vr(32+4*i,4)}, {vr(96+4*i,4)}, {c}")
    A(f"""
    s_lshl_b32 s3, s{sMov}, 2
    s_add_u32 s3, s3, s{sWN}
    s_lshl_b32 s3, s3, 6
    s_add_u32 s3, s3, {WS_G}
    s_nop 5
    """)
    for r in range(4): A(f"v_add_f32 v{24+r}, v{24+r}, v{28+r}")
    for r in range(4): A(f"v_cvt_pk_bf16_f32 v{24+r}, 0, v{24+r}")
    for r in range(4): A(f"v_mul_f32 v{24+r}, {fbits(-L2E)}, v{24+r}")
    for r in range(4): A(f"v_exp_f32 v{24+r}, v{24+r}")
    A("s_nop 0")
    for r in range(4): A(f"v_add_f32 v{24+r}, 1.0, v{24+r}")
    for r in range(4): A(f"v_rcp_f32 v{24+r}, v{24+r}")
    A("s_nop 0")
    for r in range(4): A(f"v_cvt_pk_bf16_f32 v{24+r}, 0, v{24+r}")
    for r in range(4): A(f"v_sub_f32 v{28+r}, 1.0, v{24+r}")
    for r in range(4): A(f"v_cvt_pk_bf16_f32 v{24+r}, v{24+r}, v{28+r}")
    A(f"""
    v_cmp_eq_u32 vcc, 0, v2
    s_and_saveexec_b64 s[4:5], vcc
    buffer_store_dwordx4 v[24:27], v16, s[20:23], s3 offen sc1
    s_mov_b64 exec, s[4:5]
    """)
    if KB: A(k_reads())
    A(f"""
    s_waitcnt vmcnt(0) lgkmcnt(0)
    s_barrier
    s_cmp_eq_u32 s{sW}, 4
    s_cbranch_scc0 L_pi2_ok
    s_mov_b64 exec, 1
    global_atomic_add v40, v{vZero}, v{vOne}, s[62:63] offset:128 sc0 sc1
    s_mov_b64 exec, -1
    {LD_INIT}
    s_waitcnt vmcnt(0)
    v_readfirstlane_b32 s3, v40
    v_and_b32 v17, 31, v1
    v_lshlrev_b32 v17, 7, v17
    v_add_u32 v17, {WS_FLAG3}, v17
    s_and_b32 s3, s3, 31
    s_cmp_eq_u32 s3, 31
    s_cbranch_scc0 L_pi2
    buffer_store_dword v{vOne}, v17, s[20:23], 0 offen sc1
    """)
    poll("L_pi2", 128, LD_INIT)
    stamp(4)
    vm = Cnt("vmcnt", 63)
    if not KB: A(k_gather())
    if TFIRST: A("s_barrier")
    for k in G1 + G2:
        for g in d_piece(k, k): vm.issue(("d", k), g)
    for i in range(4):
        for g in d_piece(12 + i, 24 + i): vm.issue(("d", 24 + i), g)
    if not TFIRST: A("s_barrier")
    vm.issue("mv", LD_MV)
    b_finish(vm, "L_pm2")
    A("s_branch L_b_join")
    def mtouch(n):
        for i in range(n):
            A(f"s_cmp_ge_u32 s46, {448*1024}\ns_cselect_b32 s3, {448*1024}, 0\ns_sub_u32 s46, s46, s3\ns_add_u32 s3, s47, s46\nbuffer_load_dword v{vJA}, v77, s[68:71], s3 offen\ns_add_u32 s46, s46, 32768")
    A(f"""
L_mv_a3:
    s_lshr_b32 s47, s{sMov}, 3
    s_mul_i32 s47, s47, {448*1024}
    s_lshl_b32 s4, s{sW}, 13
    s_add_u32 s47, s47, s4
    s_lshl_b32 s46, s{sRho}, 14
    s_add_u32 s46, s46, {192*1024}
    v_lshlrev_b32 v77, 7, v1
    """)
    if not KB:
        tail = k_part1(); A("s_nop 7"); A(tail)
    mtouch(MPRE)
    A(f"s_waitcnt vmcnt({MPRE}) lgkmcnt(0)\ns_barrier")
    stamp(4)
    A("s_barrier")
    mtouch(MT - MPRE)
    stamp(5)
    conv_setup()
    A("s_branch L_a_join")

def conv():
    FA = [96, 160]; FB = [128, 192]; ACC = 16
    def reads(rr):
        fs = rr & 1; ra = []; rb = []
        for i in range(8):
            o = (512*(1 - (i & 1)) + 64*(3 - rr)) // 4
            rb.append(f"ds_read_b128 {vr(FB[fs]+4*i,4)}, v{cB} offset:{512*i + 64*(3-rr)}")
            ra.append(f"ds_read2_b32 {vr(FA[fs]+4*i,2)}, v{cA[i>>1]} offset0:{o} offset1:{o+1}")
            ra.append(f"ds_read2_b32 {vr(FA[fs]+4*i+2,2)}, v{cA[i>>1]} offset0:{o+2} offset1:{o+3}")
        return ra, rb
    A(f"s_waitcnt lgkmcnt(0)\ns_barrier\ns_setprio {CPRIO}")
    stamp(6)
    ra, rb = reads(0)
    A(ra[0:2] + rb + ra[2:])
    U = 128; D = 136; Y = 96; P = 160
    for rr in range(4):
        fs = rr & 1
        A("s_waitcnt lgkmcnt(14)" if rr == 0 else "s_waitcnt lgkmcnt(0)")
        if rr < 3:
            ra, rb = reads(rr+1); fill = rb + ra
        else: fill = []
        for i in range(8):
            if rr == 0 and i == 1: A("s_waitcnt lgkmcnt(0)")
            for t in range(i, 8):
                c = "0" if (rr == 0 and i == 0) else vr(ACC+4*t, 4)
                A(f"v_mfma_f32_16x16x32_bf16 {vr(ACC+4*t,4)}, {vr(FA[fs]+4*i,4)}, {vr(FB[fs]+4*(t-i),4)}, {c}")
                if fill and not (rr == 0 and i == 0): A(fill.pop(0))
            if rr == 3 and 2 <= i <= 4:
                A(f"ds_write_b128 v{cRw}, {vr(ACC+4*(i-2),4)} offset:{1024*(i-2)}")
        assert not fill
        if rr == 0: pad("cv0")
        if rr == 2: pad("cv1")
    stamp(7)
    A("s_nop 3")
    for t in range(3, 8):
        A(f"ds_write_b128 v{cRw}, {vr(ACC+4*t,4)} offset:{1024*t}")
    A(f"""
    s_mov_b64 exec, 1
    s_waitcnt lgkmcnt(0)
    ds_add_u32 v{cCnt}, v14
L_cv_sync:
    ds_read_b32 v2, v{cCnt}
    s_waitcnt lgkmcnt(0)
    v_cmp_gt_u32 vcc, 4, v2
    s_cbranch_vccz L_cv_go
    s_sub_u32 s{sSpin}, s{sSpin}, 1
    s_cbranch_scc0 L_cv_sync
L_cv_go:
    s_mov_b64 exec, -1
    """)
    for hh in range(2):
        for q in range(4):
            A(f"ds_read_b128 {vr(P+16*hh+4*q,4)}, v{cRr} offset:{8192*q + 4096*hh}")
    for hh in range(2):
        b = P + 16*hh
        A(f"s_waitcnt lgkmcnt({4 - 4*hh})")
        for k in range(4): A(f"v_add_f32 v{b+k}, v{b+k}, v{b+4+k}\nv_add_f32 v{b+8+k}, v{b+8+k}, v{b+12+k}")
        for k in range(4): A(f"v_cvt_pk_bf16_f32 v{Y+4*hh+k}, v{b+k}, v{b+8+k}")
    A(f"""
    buffer_store_dwordx4 {vr(Y,4)}, v{cS0}, s[20:23], s{sCga} offen sc1
    buffer_store_dwordx4 {vr(Y+4,4)}, v{cS1}, s[20:23], s{sCga} offen sc1
    s_mov_b64 exec, 1
    """)
    stamp(8)
    A(f"s_waitcnt vmcnt(0)\nbuffer_store_dword v14, v15, s[20:23], s{sCfl} offen sc1")
    stamp_flush()
    A("s_endpgm")

def gemm2(late):
    ACC = 192
    sH = [sH0, sH1]
    vm = Cnt("vmcnt", 63); lg = Cnt("lgkmcnt", 15)
    A(f"s_setprio {GPRIO}\nv_mov_b32 v{gR[0]}, v{vDo[0]}\nv_mov_b32 v{gR[1]}, v{vDo[1]}")
    lw = [(("w", k + 12), [x.replace(f"v{vDo[0]}", f"v{gR[0]}").replace(f"v{vDo[1]}", f"v{gR[1]}").replace("s47", "s3") for x in g])
          for k in late for g in d_piece(k, k + 12)]
    for _ in range(min(2*P1, len(lw))): vm.issue(*lw.pop(0))
    A(f"s_mov_b64 exec, 0x3fff\nbuffer_load_dword v2, v{gFl}, s[20:23], s{sFl} offen sc1\ns_mov_b64 exec, -1")
    vm.ops = []
    n2 = min(2*P2, len(lw))
    for _ in range(n2): vm.issue(*lw.pop(0))
    A(f"""
    s_movk_i32 s46, 4096
    s_mov_b64 exec, 0x3fff
    s_waitcnt vmcnt({n2})
L_g2_hpoll:
    v_cmp_eq_u32 vcc, 0, v2
    s_cbranch_vccz L_g2_hready
    s_mov_b64 exec, vcc
    s_sub_u32 s{sSpin}, s{sSpin}, 1
    s_cbranch_scc1 L_g2_hready
    buffer_load_dword v2, v{gFl}, s[20:23], s{sFl} offen sc1
    s_waitcnt vmcnt(0)
    s_branch L_g2_hpoll
L_g2_hready:
    s_mov_b64 exec, -1
    """)
    stamp(6)
    free = [16 + 4*i for i in range(8)] + [176 + 4*i for i in range(4)]
    hreg = {}; wreg = {k: (STG[k], STG[k] + 4) for k in STG}
    nxt = [0]; wnx = [12]
    def h_issue(kc, n=99):
        while n > 0 and free and nxt[0] < 56 and (nxt[0] >> 1) < kc + min(HDMAX, HD + kc):
            n -= 1
            k, tt = nxt[0] >> 1, nxt[0] & 1
            r = free.pop(0); hreg[(k, tt)] = r
            vm.issue(("h", k), f"buffer_load_dwordx4 {vr(r,4)}, v{gL16}, s[20:23], s{sH[tt]} offen offset:{(k & 3)*1024} sc1")
            if (k & 3) == 3 and k < 27:
                if tt == 0: A(f"s_cmp_eq_u32 s{sRho}, {24 - (k - 3)}\ns_cselect_b32 s47, {u32(4096 - 28672)}, s46")
                A(f"s_add_u32 s{sH[tt]}, s{sH[tt]}, s47")
            nxt[0] += 1
    h_issue(0)
    A(f"""
    v_and_b32 v{gFl}, 15, v1
    v_lshlrev_b32 v{gFl}, 9, v{gFl}
    s_lshl_b32 s{sFl}, s{sD}, 13
    s_lshr_b32 s4, s{sTok}, 3
    s_and_b32 s4, s4, 3
    s_lshl_b32 s4, s4, 7
    s_add_u32 s{sFl}, s{sFl}, s4
    s_add_u32 s{sFl}, s{sFl}, {WS_FLAG2}
    v_and_b32 v{gT}, 31, v1
    v_lshlrev_b32 v14, 2, v{gT}
    s_lshl_b32 s4, s{sTok}, 7
    s_add_u32 s5, s4, {WS_G}
    v_lshrrev_b32 v15, 5, v1
    v_lshl_add_u32 v3, v15, 15, v14
    s_lshl_b32 s6, s{sD}, 17
    s_add_u32 s6, s6, s4
    s_add_u32 s6, s6, {WS_GA}
    v_lshlrev_b32 v{gT}, 10, v{gT}
    v_lshl_add_u32 v{gT}, v15, 4, v{gT}
    s_lshl_b32 s7, s{sTok}, 15
    s_lshl_b32 s4, s{sD}, 6
    s_add_u32 s7, s7, s4
    s_mov_b32 s12, s60
    s_mov_b32 s13, s61
    s_mov_b32 s14, 0x200000
    v_add_u32 v15, s{sLds}, v{gL16}
    """)
    GA = None; gal = []
    def cpoll(first):
        if first: A("s_branch L_g2_reload")
        A(f"""
L_g2_poll:
        v_cmp_eq_u32 vcc, 0, v2
        s_cbranch_vccz L_g2_ready
        s_sub_u32 s{sSpin}, s{sSpin}, 1
        s_cbranch_scc1 L_g2_ready
        s_mov_b64 exec, vcc
        s_sleep {SLP}
L_g2_reload:
        buffer_load_dword v2, v{gFl}, s[20:23], s{sFl} offen sc1
        s_waitcnt vmcnt(0)
        s_branch L_g2_poll
        """)
        pad("g22", inline=False)
        A("L_g2_ready:\ns_mov_b64 exec, -1")
    def mf(k, dd, tt):
        c = "0" if k == 0 else vr(ACC+16*(2*dd+tt), 16)
        A(f"v_mfma_f32_32x32x16_bf16 {vr(ACC+16*(2*dd+tt),16)}, {vr(wreg[k][dd],4)}, {vr(hreg[(k,tt)],4)}, {c}")
    for k in range(24):
        pre = []
        vm.wait({("h", k)})
        if k in (0, 8, 12, 18): stamp({0: 1, 8: 2, 12: 3, 18: 4}[k], 1)
        lg.wait({("w", k)})
        if k >= WLA and wnx[0] < 24:
            kn = wnx[0]; wnx[0] += 1
            vm.wait({("w", kn)})
            wreg[kn] = (free.pop(), free.pop())
            pre = [(("w", kn), x) for x in wd_reads(kn - 12, *wreg[kn])]
        for n, (dd, tt) in enumerate(((0,0),(0,1),(1,0),(1,1))):
            mf(k, dd, tt)
            if n in (0, 2): h_issue(k + 1, 1)
            elif lw: vm.issue(*lw.pop(0))
            if pre: lg.issue(*pre.pop(0))
            if gal: vm.issue("ga", gal.pop(0))
        free += [hreg[(k,0)], hreg[(k,1)], wreg[k][0], wreg[k][1]]
        h_issue(k + 1)
        if k == 8: pad("g21")
        if k == FK: vm.issue("f", f"buffer_load_dword v2, v{gFl}, s[20:23], s{sFl} offen sc1")
        if k == CK:
            stamp(7)
            vm.wait({"f"})
            assert nxt[0] == 56
            fr = sorted(free)
            GA = next(r for r in fr if r + 4 in fr and r >= 96)
            free.remove(GA); free.remove(GA + 4)
            gl = ["buffer_load_dword v4, v14, s[20:23], s5 offen sc1"]
            for m in range(8):
                gl.append(f"buffer_load_dword v{GA+m}, v3, s[20:23], s6 offen sc1" + (f"\ns_add_u32 s6, s6, {8192 if (m & 3) != 3 else 5*8192}" if m < 7 else ""))
            if NBK:
                A(f"""
                v_cmp_eq_u32 vcc, 0, v2
                s_mov_b32 s{sT}, s6
                s_cmp_eq_u64 vcc, 0
                s_cselect_b32 s6, s6, 0x40000000
                s_cselect_b32 s{sWd}, 0, 1
                """)
            else: cpoll(False)
            gal = list(gl)
    assert wnx[0] == 24
    A("v_xor_b32 v8, 0x1000, v15\nv_xor_b32 v9, 0x2000, v15\nv_xor_b32 v10, 0x3000, v15")
    vm.wait({("h", 27)})
    pend = []
    for x in (1, 2, 3, 0):
        for i, k in enumerate(range(24, 28)):
            mf(k, x >> 1, x & 1)
            if gal: vm.issue("ga", gal.pop(0))
            if pend:
                if i == 0: A("s_nop 7")
                elif i == 1: A("s_nop 1"); A(pend[0:2])
                elif i == 2: A(pend[2:4])
        pend = [f"ds_write_b128 v15, {vr(ACC+16*x+4*i,4)} offset:{(x-1)*16384 + 1024*i}" for i in range(4)] if x else []
    assert not gal and not lw
    stamp(8)
    if NBK:
        A(f"s_cmp_eq_u32 s{sWd}, 0\ns_cbranch_scc1 L_g2_have")
        cpoll(True)
        A(f"s_mov_b32 s6, s{sT}"); A(gl)
        A("L_g2_have:")
    A("s_waitcnt vmcnt(0)\nv_lshlrev_b32 v5, 16, v4\nv_and_b32 v4, 0xffff0000, v4")
    for p in range(8):
        A(f"v_lshlrev_b32 v{80+2*p}, 16, v{GA+p}\nv_and_b32 v{81+2*p}, 0xffff0000, v{GA+p}")
    for p in range(8):
        A(f"v_pk_mul_f32 {vr(80+2*p,2)}, {vr(80+2*p,2)}, v[4:5] op_sel:[0,1]")
    A("s_waitcnt lgkmcnt(0)\ns_barrier")
    for x in range(3):
        for i in range(4):
            A(f"ds_read_b128 {vr(32+16*x+4*i,4)}, v{8+x} offset:{x*16384 + 1024*i}")
    for x in range(3):
        A(f"s_waitcnt lgkmcnt({8 - 4*x})")
        for p in range(8):
            A(f"v_pk_add_f32 {vr(ACC+2*p,2)}, {vr(ACC+2*p,2)}, {vr(32+16*x+2*p,2)}")
    for p in range(8):
        A(f"v_pk_fma_f32 {vr(32+2*p,2)}, {vr(ACC+2*p,2)}, v[4:5], {vr(80+2*p,2)} op_sel_hi:[1,0,1]")
    for p in range(8):
        A(f"v_cvt_pk_bf16_f32 v{24+p}, v{32+2*p}, v{33+2*p}")
    A(f"""
    buffer_store_dwordx4 v[24:27], v{gT}, s[12:15], s7 offen
    buffer_store_dwordx4 v[28:31], v{gT}, s[12:15], s7 offen offset:32
    """)
    stamp_flush()
    A("s_endpgm")

def main():
    order = [["rb", "su", "tb0", "rb1"], ["rb2", "g1b", "ea0", "ea1"], ["cv0", "cv1", "g21", "g22"]]
    for r, names in enumerate(order):
        for w, n in enumerate(names): PLAN[n] = (r, 4 + w)
    A('.amdgcn_target "amdgcn-amd-amdhsa--gfx950"\n.text')
    A(f".globl {KNAME}\n.p2align 12\n.type {KNAME},@function\n{KNAME}:")
    if STAMP:
        for i in range(NST): A(f"s_mov_b32 s{80+2*i}, 0")
    stamp(0)
    A("s_cmp_ge_u32 s2, 256\ns_cbranch_scc1 L_exit")
    prologue()
    role_a()
    pad("rb", inline=False)
    role_b()
    mover()
    A("L_exit:\n    s_endpgm")
    assert not STUBS or PADS == set(PLAN), set(PLAN) - PADS
    A(f""".section .rodata,"a"
.p2align 6
.amdhsa_kernel {KNAME}
  .amdhsa_next_free_vgpr 256
  .amdhsa_next_free_sgpr 102
  .amdhsa_accum_offset 256
  .amdhsa_group_segment_fixed_size 0
  .amdhsa_kernarg_size 136
  .amdhsa_user_sgpr_count 2
  .amdhsa_user_sgpr_kernarg_segment_ptr 1
  .amdhsa_system_sgpr_workgroup_id_x 1
.end_amdhsa_kernel""")
    open(sys.argv[1], "w").write(HEADER + "\n".join(L) + "\n")

main()
```

```python
import sys, struct, math

OPTS = dict(a.split("=") for a in sys.argv[2:])
def opt(name, dflt): return int(OPTS.get(name, dflt))
STAMP = opt("stamp", 0); SS = opt("ss", 0)
ENC = opt("enc", -1); ENCWG = opt("encwg", 8); ENCW = opt("encw", 0)
SPIN = opt("spin", 0x40000); STUBS = opt("stubs", 1)
T2 = opt("t2", 1); AGT = opt("agt", 1); MT = opt("mt", 4); MPRE = opt("mpre", 0); TFIRST = opt("tfirst", 0)
UPF = opt("upf", 6); RS = opt("rs", 6); NW = opt("nw", 14); PPRIO = opt("pprio", 0); P1 = opt("p1", 8); P2 = opt("p2", 4); KB = opt("kb", 1); NPRE = opt("npre", 0); O64 = opt("o64", 1); OST = OPTS.get("ost", "").replace("_", " "); NBK = opt("nbk", 1); SLP = opt("slp", 2)
HD = opt("hd", 5); HDMAX = opt("hdmax", 8); WLA = opt("wla", 8); FK = opt("fk", 17); CK = opt("ck", 21)
RLATE = opt("rlate", 12); CPRIO = opt("cprio", 2); GPRIO = opt("gprio", 1)
KNAME = "gated_mix__ssm_conv_s4__geglu_ffn__prompt_kernel"

WS_H, WS_UT, WS_GA, WS_G, WS_FLAG, WS_STAMP = 0x0, 0x700000, 0x900000, 0xB00000, 0xB08000, 0x1400000
WS_FLAG2 = WS_FLAG + 1792*128
WS_FLAG3 = WS_FLAG + 2816*128
WS_BYTES = 0x10000000

XB = 65536
TB = 98304
PITCH = 528
KD = TB + 2*57*PITCH
CH = 12928
UOFF = 8320
RED = TB + 2*CH
CNT = KD + 3072
assert CNT + 8 <= 163840 and RED + 32768 <= KD and RED % 256 == 0
UP = 1056
GWL = 64*UP
L2E = math.log2(math.e)
WSTEP = 32*3584

L = []
def lines(s): return [x.strip() for x in s.strip("\n").split("\n") if x.strip()]
def A(s):
    if isinstance(s, (list, tuple)): s = "\n".join(s)
    for line in lines(s):
        L.append(line if line.endswith(":") or line.startswith(".") else "    " + line)
def fbits(x): return "0x%08x" % struct.unpack("<I", struct.pack("<f", x))[0]
def f32(x): return struct.unpack("<f", struct.pack("<f", x))[0]
def vr(b, n): return f"v[{b}:{b+n-1}]"
def u32(x): return x & 0xffffffff
def slices(lst, n):
    out = []; pos = 0
    for i in range(n):
        end = (i + 1)*len(lst)//n
        while 0 < end < len(lst) and lst[end-1].startswith("s_cmp"): end += 1
        out.append(lst[pos:end]); pos = max(pos, end)
    return out

NST = 9
def stamp(idx, ss=0):
    if ENC >= 0:
        if ss == 0 and idx in (0, ENC): A(f"s_memrealtime s[{80+2*idx}:{81+2*idx}]\ns_waitcnt lgkmcnt(0)")
        return
    hide = {1: (1, 2, 3, 4), 2: (1, 2, 3), 3: (1, 2, 6, 7, 8)}.get(SS, ())
    if STAMP and (ss == SS or (ss == 0 and idx not in hide)):
        A(f"s_memrealtime s[{80+2*idx}:{81+2*idx}]\ns_waitcnt lgkmcnt(0)")
ENCN = [0]
def stamp_flush():
    if ENC >= 0:
        ENCN[0] += 1; n = ENCN[0]
        A(f"""
        s_cmp_eq_u32 s2, {ENCWG}
        s_cbranch_scc0 L_enc_end{n}
        s_cmp_eq_u32 s{sW}, {ENCW}
        s_cbranch_scc0 L_enc_end{n}
        s_waitcnt vmcnt(0) lgkmcnt(0)
        s_memrealtime s[98:99]
        s_waitcnt lgkmcnt(0)
        s_sub_u32 s3, s{80+2*ENC}, s80
        s_and_b32 s3, s3, 0xfff
        s_lshl_b32 s3, s3, 2
        s_add_u32 s3, s3, s80
        s_add_u32 s3, s3, 2000
L_enc_spin{n}:
        s_memrealtime s[4:5]
        s_waitcnt lgkmcnt(0)
        s_sub_u32 s6, s4, s3
        s_cmp_lt_i32 s6, 0
        s_cbranch_scc1 L_enc_spin{n}
L_enc_end{n}:
        """)
        return
    if not STAMP: return
    A(f"""
    s_waitcnt vmcnt(0) lgkmcnt(0)
    s_memrealtime s[{80+2*NST}:{81+2*NST}]
    s_waitcnt lgkmcnt(0)
    s_mov_b64 exec, -1
    v_lshrrev_b32 v1, 6, v0
    s_lshl_b32 s3, s2, 3
    v_add_u32 v1, s3, v1
    v_lshlrev_b32 v1, 6, v1
    v_add_u32 v1, {WS_STAMP}, v1
    """)
    for i in range(12): A(f"v_mov_b32 v{4+i}, s{80+2*min(i, NST)}")
    A(f"""
    v_and_b32 v2, 63, v0
    v_cmp_eq_u32 vcc, 0, v2
    s_and_saveexec_b64 s[4:5], vcc
    buffer_store_dwordx4 v[4:7], v1, s[20:23], 0 offen
    buffer_store_dwordx4 v[8:11], v1, s[20:23], 0 offen offset:16
    buffer_store_dwordx4 v[12:15], v1, s[20:23], 0 offen offset:32
    """)

HEADER = f"""; gated mix of an S4 long convolution and a GeGLU FFN: one launch, one workgroup per CU, two wave programs.
; @launch grid=(256,1,1) block=(512,1,1) lds=163840
"""

PADS = set(); PLAN = {}
def pad(name, inline=True):
    if not STUBS or name not in PLAN: return
    if inline: A(f"s_branch L_skip_{name}")
    A(f"L_pad_{name}:\ns_branch L_warm_ret{PLAN[name][0]}")
    if inline: A(f"L_skip_{name}:")
    PADS.add(name)
def warm(r):
    if not STUBS: return
    for n, (rr, w) in PLAN.items():
        if rr == r: A(f"s_cmp_eq_u32 s{sW}, {w}\ns_cbranch_scc1 L_pad_{n}")
    A(f"L_warm_ret{r}:")

sW, sXoff, sWoff, sM0W, sM0X = 24, 25, 26, 27, 28
sIt, sHfl2, sTB, sFB, sWN, sI, sJ, sMov, sT, sSpin, sHst, sRX, sRW = 30, 31, 32, 33, 36, 38, 39, 40, 41, 42, 43, 44, 45
sDsk, sHfl, sK1, sK2, sRole = 48, 49, 54, 55, 100
sTok, sD, sH0, sH1, sLds, sFl, sWd, sRho, sCu = 50, 51, 52, 53, 64, 65, 66, 67, 29
sCga, sCfl = 50, 51
PAR = 120; vTab = 127
vWr = [72, 73]; vXr = [74, 75]; vJA = 76
ACC1 = 128
if KB:
    cKf0, cKf1, cKd0, cKd1, cKd2, cDk, cCb = 219, 220, 221, 222, 223, 232, 233
    KF = [48 + 4*i for i in range(24)]; KA = 176; KT = 184
else:
    cKf0, cKf1, cKd0, cKd1, cKd2, cDk = 5, 6, 7, 8, 9, 11
    KF = [16 + 4*i for i in range(12)] + [80 + 4*i for i in range(10)] + [64, 68]
    KA = 120; KT = 60
cA = [48, 49, 50, 51]; cB, cRw, cRr, cUr, cS0, cS1, cCnt = range(52, 59)
vG = 232
vXo = [240, 241]; vWo = 242; vDo = [248, 249]; vPoll, vZero, cMv, vOne = 250, 251, 252, 253
XA = 192; GV = 204; cZ0, cZ1, cImg, cUw, cLu0, cLu1 = range(213, 219); vU = 224
gD = [8, 9, 10, 11]; gR = [12, 13]; gFl, gL16, gT = 5, 6, 7

class Cnt:
    def __init__(self, name, cap): self.ops = []; self.name = name; self.cap = cap
    def note(self, tag): self.ops.append(tag)
    def issue(self, tag, text): A(text); self.ops.append(tag)
    def need(self, tags):
        idx = [i for i, t in enumerate(self.ops) if t in tags]
        if not idx: return None
        n = min(len(self.ops) - 1 - max(idx), self.cap)
        self.ops = self.ops[len(self.ops)-n:] if n else []
        return n
    def wait(self, tags):
        n = self.need(tags)
        if n is not None: A(f"s_waitcnt {self.name}({n})")

def x_dma(c):
    o = []
    for part in (1, 0):
        pre = [f"s_add_u32 s46, s{sRX}, {c*128}", "s_and_b32 s46, s46, 1023", f"s_add_u32 s46, s46, s{sXoff}"] if part else []
        o += [pre + [f"s_add_u32 m0, s{sM0X}, {u32((c&1)*16384 - part*8192)}", f"s_add_u32 s{sT}, s46, {u32(-part*65536)}",
                     f"buffer_load_dwordx4 v{vXo[0]}, s[8:11], s{sT} offen lds"],
              [f"buffer_load_dwordx4 v{vXo[1]}, s[8:11], s{sT} offen offset:1024 lds"]]
    return o
def w_dma(s):
    o = []
    for part in (1, 0):
        pre = [f"s_add_u32 s46, s{sRW}, {s}", "s_and_b32 s46, s46, 15", f"s_mul_i32 s46, s46, {WSTEP}", f"s_add_u32 s46, s46, s{sWoff}"] if part else []
        o += [pre + [f"s_add_u32 m0, s{sM0W}, {u32((s&3)*16384 - part*8192)}", f"s_add_u32 s{sT}, s46, {u32(-part*16*3584)}",
                     f"buffer_load_dwordx4 v{vWo}, s[12:15], s{sT} offen lds"],
              [f"buffer_load_dwordx4 v{vWo}, s[16:19], s{sT} offen offset:1024 lds"]]
    return o
def piece_off(kap): return 16384*(kap >> 1) + 2048*(kap & 1) + (RED - 98304 if kap >= 12 else 0)
def d_piece(kap, k):
    off = [f"s_add_u32 s{sT}, s{sWd}, {(k >> 1)*32768 + (k & 1)*8192}"]
    if k >= 4: off = [f"s_cmp_ge_u32 s{sRho}, {28 - k}", f"s_cselect_b32 s47, {28*16384}, 0"] + off + [f"s_sub_u32 s{sT}, s{sT}, s47"]
    return [[f"s_add_u32 m0, s{sLds}, {piece_off(kap)}"] + off + [f"buffer_load_dwordx4 v{vDo[0]}, s[68:71], s{sT} offen lds"],
            [f"buffer_load_dwordx4 v{vDo[1]}, s[68:71], s{sT} offen offset:1024 lds"]]

def prologue():
    A(f"""
    s_load_dwordx16 s[64:79], s[0:1], 8
    s_load_dwordx2 s[8:9], s[0:1], 0
    s_load_dwordx4 s[12:15], s[0:1], 80
    s_load_dwordx8 s[56:63], s[0:1], 96
    s_load_dwordx2 s[20:21], s[0:1], 128
    v_lshrrev_b32 v2, 6, v0
    v_and_b32 v1, 63, v0
    v_mov_b32 v{vZero}, 0
    v_mov_b32 v16, {CNT}
    v_mov_b32 v{vOne}, 1
    ds_write_b32 v16, v{vZero}
    ds_write_b32 v16, v{vZero} offset:4
    v_and_b32 v3, 255, v0
    v_readfirstlane_b32 s{sW}, v2
    s_lshl_b32 s3, s2, 8
    v_add_u32 v3, s3, v3
    v_lshlrev_b32 v3, 1, v3
    v_lshrrev_b32 v4, 7, v3
    v_and_b32 v4, 0xfffffffe, v4
    """)
    if STUBS: A(f"s_cmp_lt_u32 s2, 224\ns_cbranch_scc1 L_warm0\ns_cmp_eq_u32 s{sW}, 4\ns_cbranch_scc1 L_pad_mv\nL_warm0:")
    warm(0)
    A(f"""
    s_and_b32 s{sWN}, s{sW}, 3
    s_and_b32 s3, s2, 7
    s_lshr_b32 s4, s2, 3
    s_lshr_b32 s{sTB}, s3, 1
    s_lshl_b32 s{sTB}, s{sTB}, 2
    s_and_b32 s5, s4, 3
    s_add_u32 s{sTB}, s{sTB}, s5
    s_lshl_b32 s{sI}, s3, 2
    s_add_u32 s{sI}, s{sI}, s5
    s_and_b32 s{sFB}, s3, 1
    s_mul_i32 s{sFB}, s{sFB}, 7
    s_lshr_b32 s{sJ}, s4, 2
    s_add_u32 s{sFB}, s{sFB}, s{sJ}
    s_lshl_b32 s{sXoff}, s{sTB}, 17
    s_lshl_b32 s5, s{sW}, 14
    s_add_u32 s{sXoff}, s{sXoff}, s5
    s_mul_i32 s{sWoff}, s{sW}, {4*3584}
    s_lshl_b32 s5, s{sFB}, 8
    s_add_u32 s{sWoff}, s{sWoff}, s5
    s_and_b32 s{sRW}, s3, 6
    s_lshl_b32 s{sRX}, s{sRW}, 7
    s_lshl_b32 s{sRW}, s{sRW}, 1
    s_lshl_b32 s{sM0W}, s{sW}, 11
    s_add_u32 s{sM0X}, s{sM0W}, {XB}
    v_lshrrev_b32 v16, 4, v1
    v_and_b32 v17, 7, v1
    v_xor_b32 v18, v17, v16
    v_lshrrev_b32 v19, 3, v1
    v_lshlrev_b32 v19, 10, v19
    v_lshl_add_u32 v{vXo[0]}, v18, 4, v19
    v_xor_b32 v{vXo[1]}, 64, v{vXo[0]}
    v_add_u32 v{vXo[1]}, 7168, v{vXo[1]}
    v_lshlrev_b32 v17, 2, v16
    v_and_b32 v{vWo}, 15, v1
    v_xor_b32 v{vWo}, v{vWo}, v17
    s_and_b32 s5, s{sW}, 2
    v_xor_b32 v{vWo}, s5, v{vWo}
    v_lshlrev_b32 v{vWo}, 4, v{vWo}
    v_mul_u32_u24 v16, 3584, v16
    v_add_u32 v{vWo}, v{vWo}, v16
    s_mov_b32 s10, 0x200000
    s_mov_b32 s11, 0x00020000
    s_mov_b32 s18, {512*1792*2 + 1024}
    s_mov_b32 s19, 0x00020000
    s_mov_b32 s22, {WS_BYTES}
    s_mov_b32 s23, 0x00020000
    s_waitcnt lgkmcnt(0)
    s_sub_u32 s16, s14, 1024
    s_subb_u32 s17, s15, 0
    s_mov_b32 s14, {512*1792*2}
    s_mov_b32 s15, 0x00020000
    """)
    params(0, 3)
    A(f"s_cmp_ge_u32 s{sW}, 4\ns_cbranch_scc1 L_role_b")
    params(3, 7)

def params(i0, i1):
    for i, p in list(enumerate((76, 64, 66, 68, 70, 72, 74)))[i0:i1]:
        A(f"global_load_ushort v{PAR+i}, v{4 if i == 0 else 3}, s[{p}:{p+1}]")

def common_setup():
    A(f"""
    v_and_b32 v{vTab}, 127, v0
    v_lshlrev_b32 v{vTab}, 2, v{vTab}
    s_lshr_b32 s6, s{sWN}, 1
    s_mul_i32 s4, s6, {57*PITCH}
    s_add_u32 s4, s4, {TB}
    v_add_u32 v{vTab}, s4, v{vTab}
    s_mov_b32 s{sK1}, {fbits(f32(L2E))}
    s_mov_b32 s{sK2}, {fbits(L2E - f32(L2E))}
    s_mov_b32 s68, s56
    s_mov_b32 s69, s57
    s_mov_b32 s70, {1792*1024}
    s_mov_b32 s71, 0x00020000
    s_and_b32 s{sRho}, s2, 7
    s_cmp_eq_u32 s{sRho}, 7
    s_cselect_b32 s{sRho}, 3, s{sRho}
    s_lshl_b32 s{sRho}, s{sRho}, 2
    s_mov_b32 s{sSpin}, {SPIN}
    s_lshl_b32 s3, s2, 2
    s_load_dword s{sDsk}, s[78:79], s3
    """)

def g1_setup():
    A(f"""
    v_lshrrev_b32 v16, 2, v1
    v_and_b32 v16, 3, v16
    v_xor_b32 v17, s{sWN}, v16
    v_lshlrev_b32 v{vWr[0]}, 8, v16
    v_lshl_add_u32 v{vWr[0]}, v17, 6, v{vWr[0]}
    v_lshrrev_b32 v16, 4, v1
    v_lshl_add_u32 v{vWr[0]}, v16, 12, v{vWr[0]}
    v_and_b32 v17, 1, v16
    v_lshl_add_u32 v{vWr[0]}, v17, 5, v{vWr[0]}
    v_and_b32 v17, 3, v1
    v_lshl_add_u32 v{vWr[0]}, v17, 3, v{vWr[0]}
    v_xor_b32 v{vWr[1]}, 32, v{vWr[0]}
    v_lshrrev_b32 v17, 1, v1
    v_and_b32 v17, 7, v17
    v_xor_b32 v17, v17, v16
    v_and_b32 v18, 15, v1
    v_lshlrev_b32 v{vXr[0]}, 7, v18
    v_lshl_add_u32 v{vXr[0]}, v17, 4, v{vXr[0]}
    v_add_u32 v{vXr[0]}, {XB}, v{vXr[0]}
    v_xor_b32 v{vXr[1]}, 64, v{vXr[0]}
    v_lshlrev_b32 v10, 4, v18
    v_lshl_add_u32 v10, v16, 9, v10
    v_mov_b32 v12, {fbits(-2.0 * L2E * math.sqrt(2.0/math.pi))}
    v_mov_b32 v13, v12
    v_mov_b32 v14, 1
    v_mov_b32 v15, 0
    s_mul_i32 s{sHst}, s{sTB}, 448
    s_lshl_b32 s5, s{sFB}, 2
    s_add_u32 s5, s5, s{sWN}
    s_lshl_b32 s4, s5, 1
    s_add_u32 s{sHst}, s{sHst}, s4
    s_lshl_b32 s{sHst}, s{sHst}, 10
    s_mul_i32 s3, s{sTB}, 112
    s_add_u32 s3, s3, s5
    s_lshl_b32 s3, s3, 7
    s_add_u32 s{sHfl}, s3, {WS_FLAG}
    s_add_u32 s{sHfl2}, s{sHfl}, {56*128}
    s_mov_b32 s34, {fbits(-2.0 * L2E * math.sqrt(2.0/math.pi) * 0.044715)}
    s_mov_b32 s35, s34
    s_mov_b32 s{sIt}, 0
    s_lshl_b32 s{sCga}, s2, 13
    s_add_u32 s{sCga}, s{sCga}, {WS_GA}
    s_lshl_b32 s3, s2, 2
    s_add_u32 s3, s3, s{sWN}
    s_lshl_b32 s3, s3, 7
    s_add_u32 s{sCfl}, s3, {WS_FLAG2}
    """)

def k_setup1():
    return lines(f"""
    s_lshr_b32 s6, s{sWN}, 1
    s_and_b32 s7, s{sWN}, 1
    s_mul_i32 s4, s6, {57*PITCH}
    s_add_u32 s4, s4, {TB}
    v_and_b32 v16, 15, v1
    v_lshrrev_b32 v17, 4, v1
    v_mul_u32_u24 v{cKf0}, {PITCH}, v16
    v_lshl_add_u32 v{cKf0}, v17, 4, v{cKf0}
    v_add_u32 v{cKf0}, s4, v{cKf0}
    s_mul_i32 s4, s7, {16*PITCH}
    v_add_u32 v{cKf1}, s4, v{cKf0}
    s_lshl_b32 s3, s6, 1
    s_add_u32 s3, s3, {KD}
    v_lshrrev_b32 v18, 1, v17
    v_and_b32 v19, 1, v17
    v_lshlrev_b32 v24, 7, v18
    v_lshl_add_u32 v24, v19, 2, v24
    v_lshl_add_u32 v24, v16, 3, v24
    v_lshlrev_b32 v25, 6, v17
    v_add_u32 v25, 256, v25
    v_lshl_add_u32 v26, v16, 2, v25
    v_lshl_add_u32 v27, v16, 1, v25
    v_cmp_gt_u32 vcc, 2, v17
    v_mov_b32 v28, 32
    v_lshl_add_u32 v25, v17, 6, v16
    v_cndmask_b32 v26, v27, v26, vcc
    v_cndmask_b32 v28, v28, 2, vcc
    s_cmp_eq_u32 s7, 0
    s_cselect_b64 vcc, -1, 0
    v_lshl_add_u32 v{cKd2}, v25, 2, s3
    v_cndmask_b32 v26, v26, v24, vcc
    v_cndmask_b32 v28, v28, 2, vcc
    v_add_u32 v28, v26, v28
    v_lshl_add_u32 v{cKd0}, v26, 2, s3
    v_lshl_add_u32 v{cKd1}, v28, 2, s3
    """)

def conv_setup():
    A(f"""
    s_lshr_b32 s6, s{sWN}, 1
    s_and_b32 s7, s{sWN}, 1
    s_mul_i32 s5, s6, {CH}
    s_add_u32 s5, s5, {TB}
    v_and_b32 v60, 15, v1
    v_lshrrev_b32 v61, 4, v1
    v_and_b32 v62, 1, v60
    v_xor_b32 v62, 1, v62
    v_mul_u32_u24 v62, 4160, v62
    v_and_b32 v63, 14, v60
    v_lshlrev_b32 v63, 1, v63
    v_sub_u32 v62, v62, v63
    v_lshl_add_u32 v62, v61, 4, v62
    s_lshl_b32 s4, s7, 8
    s_sub_u32 s4, s5, s4
    s_add_u32 s3, s4, {4060 - 512 - 192}
    v_add_u32 v{cA[0]}, s3, v62
    v_subrev_u32 v{cA[1]}, 1024, v{cA[0]}
    v_subrev_u32 v{cA[2]}, 2048, v{cA[0]}
    v_subrev_u32 v{cA[3]}, 3072, v{cA[0]}
    v_lshlrev_b32 v{cB}, 5, v60
    v_lshl_add_u32 v{cB}, v61, 4, v{cB}
    s_add_u32 s3, s4, {UOFF + 480 - 192}
    v_add_u32 v{cB}, s3, v{cB}
    v_lshlrev_b32 v{cRw}, 6, v60
    v_lshl_add_u32 v{cRw}, v61, 4, v{cRw}
    s_lshl_b32 s3, s{sWN}, 13
    s_add_u32 s3, s3, {RED}
    v_add_u32 v{cRw}, s3, v{cRw}
    v_lshlrev_b32 v{cS0}, 4, v0
    v_add_u32 v{cS1}, 4096, v{cS0}
    v_add_u32 v{cRr}, {RED}, v{cS0}
    v_mov_b32 v{cCnt}, {CNT}
    """)

def b_setup1():
    return lines(f"""
    v_lshrrev_b32 v16, 4, v1
    v_and_b32 v16, 1, v16
    v_lshlrev_b32 v16, 2, v16
    v_and_b32 v17, 7, v1
    v_xor_b32 v16, v16, v17
    v_lshrrev_b32 v17, 3, v1
    v_lshlrev_b32 v17, 10, v17
    v_lshl_add_u32 v{vDo[0]}, v16, 4, v17
    v_add_u32 v{vDo[1]}, 15360, v{vDo[0]}
    s_lshl_b32 s{sLds}, s{sWN}, 12
    s_mul_i32 s{sWd}, s{sWN}, 28
    s_add_u32 s{sWd}, s{sWd}, s{sRho}
    s_lshl_b32 s3, s{sWd}, 10
    s_lshl_b32 s{sWd}, s{sWd}, 14
    s_lshl_b32 s4, s{sJ}, 7
    s_add_u32 s{sWd}, s{sWd}, s4
    s_and_b32 s6, s{sWN}, 1
    s_lshr_b32 s7, s{sWN}, 1
    s_lshl_b32 s{sTok}, s{sI}, 1
    s_add_u32 s{sTok}, s{sTok}, s6
    s_lshl_b32 s{sD}, s{sJ}, 1
    s_add_u32 s{sD}, s{sD}, s7
    s_mul_i32 s{sH0}, s{sTok}, {112*1024}
    s_xor_b32 s4, s{sTok}, 1
    s_mul_i32 s{sH1}, s4, {112*1024}
    s_add_u32 s{sH0}, s{sH0}, s3
    s_add_u32 s{sH1}, s{sH1}, s3
    v_and_b32 v17, 16, v1
    v_lshlrev_b32 v18, 1, v17
    v_and_b32 v17, 1, v1
    v_lshl_add_u32 v18, v17, 4, v18
    v_and_b32 v17, 2, v1
    v_lshl_add_u32 v18, v17, 2, v18
    v_lshrrev_b32 v16, 2, v1
    v_and_b32 v16, 3, v16
    v_lshrrev_b32 v17, 5, v1
    v_lshl_add_u32 v19, v17, 2, v16
    v_lshl_add_u32 v{gD[0]}, v19, 7, v18
    v_lshrrev_b32 v16, 1, v16
    v_xor_b32 v16, s7, v16
    v_lshl_add_u32 v{gD[0]}, v16, 6, v{gD[0]}
    v_add_u32 v{gD[0]}, s{sLds}, v{gD[0]}
    v_xor_b32 v{gD[1]}, 64, v{gD[0]}
    v_add_u32 v{gD[2]}, 0x10000, v{gD[0]}
    v_add_u32 v{gD[3]}, 0x10000, v{gD[1]}
    v_add_u32 v{gR[0]}, {RED}, v{gD[0]}
    v_add_u32 v{gR[1]}, {RED}, v{gD[1]}
    v_lshlrev_b32 v{gFl}, 7, v1
    s_lshl_b32 s{sFl}, s{sI}, 2
    s_add_u32 s{sFl}, s{sFl}, s{sWN}
    s_mul_i32 s{sFl}, s{sFl}, {14*128}
    s_add_u32 s{sFl}, s{sFl}, {WS_FLAG}
    v_lshlrev_b32 v{gL16}, 4, v1
    """)
def b_setup2():
    CB = 0x4300 - 128
    o = lines(f"""
    v_and_b32 v32, 255, v0
    v_lshrrev_b32 v33, 3, v32
    v_lshlrev_b32 v{cLu0}, 10, v33
    v_and_b32 v26, 7, v32
    v_lshl_add_u32 v{cLu0}, v26, 4, v{cLu0}
    v_xor_b32 v26, s2, v33
    v_and_b32 v26, 7, v26
    v_lshl_add_u32 v{cLu0}, v26, 7, v{cLu0}
    v_add_u32 v{cLu1}, 32768, v{cLu0}
    s_lshr_b32 s{sCu}, s2, 3
    s_lshl_b32 s{sCu}, s{sCu}, 16
    s_add_u32 s{sCu}, s{sCu}, {WS_UT}
    s_and_b32 s3, s2, 31
    s_lshl_b32 s3, s3, 7
    s_add_u32 s3, s3, {WS_FLAG3}
    v_mov_b32 v{cMv}, s3
    v_lshlrev_b32 v{cUw}, 6, v33
    v_and_b32 v26, 3, v32
    v_lshl_add_u32 v{cUw}, v26, 4, v{cUw}
    v_bfe_u32 v26, v32, 2, 1
    v_mul_u32_u24 v26, {CH}, v26
    v_add_u32 v{cUw}, v{cUw}, v26
    v_add_u32 v{cUw}, {TB + UOFF + 512}, v{cUw}
    s_lshr_b32 s6, s{sWN}, 1
    s_and_b32 s7, s{sWN}, 1
    s_mul_i32 s5, s6, {CH}
    s_add_u32 s5, s5, {TB}
    v_and_b32 v26, 127, v0
    v_lshl_add_u32 v{cZ0}, v26, 2, s5
    v_and_b32 v{cZ1}, 60, v{cZ0}
    s_mul_i32 s3, s7, 4160
    s_add_u32 s3, s3, s5
    v_add_u32 v{cZ1}, s3, v{cZ1}
    v_lshlrev_b32 v{cImg}, 4, v32
    v_add_u32 v{cImg}, {TB}, v{cImg}
    v_lshlrev_b32 v29, 3, v32
    v_sub_u32 v29, 2047, v29
    v_cvt_f32_i32 v30, v29
    v_add_u32 v29, {CB}, v29
    v_mov_b32 v31, {128 + CB}
    s_mov_b32 s3, {KD - 4*CB}
    """)
    for e in range(9):
        r = XA + e
        o += [f"v_subrev_f32 v{r}, {fbits(float(e))}, v30", f"v_cvt_pk_bf16_f32 v{r}, v{r}, 0",
              f"v_subrev_u32 v24, {e}, v29", f"v_med3_i32 v{r}, v{r}, v24, v31", f"v_lshl_add_u32 v{r}, v{r}, 2, s3"]
    return o

def tab_common():
    return lines(f"""
    v_lshlrev_b32 v{PAR}, 16, v{PAR}
    v_lshlrev_b32 v16, 16, v{PAR+1}
    v_lshlrev_b32 v17, 16, v{PAR+2}
    v_mul_f32 v18, s{sK1}, v{PAR}
    v_fma_f32 v19, v{PAR}, s{sK1}, -v18
    v_fma_f32 v19, v{PAR}, s{sK2}, v19
    v_exp_f32 v18, v18
    v_mul_f32 v19, {fbits(math.log(2.0))}, v19
    v_fmac_f32 v18, v18, v19
    v_cvt_pk_bf16_f32 v18, 0, v18
    v_mul_f32 v16, v18, v16
    v_mul_f32 v17, v18, v17
    v_mul_f32 v16, s{sK1}, v16
    v_mul_f32 v17, 0.15915494, v17
    """)
def cexp(e, s, t):
    if s == 1.0: o = [f"v_exp_f32 v{t}, v16", f"v_fract_f32 v{t+1}, v17"]
    else: o = [f"v_mul_f32 v{t}, {fbits(s)}, v16", f"v_mul_f32 v{t+1}, {fbits(s)}, v17", f"v_exp_f32 v{t}, v{t}", f"v_fract_f32 v{t+1}, v{t+1}"]
    return o + [f"v_cos_f32 v{e}, v{t+1}", f"v_sin_f32 v{e+1}, v{t+1}", f"v_mul_f32 v{e}, v{t}, v{e}", f"v_mul_f32 v{e+1}, v{t}, v{e+1}"]
def cmul(d, a, b):
    return [f"v_pk_mul_f32 {vr(d,2)}, {vr(a,2)}, {vr(b,2)} op_sel_hi:[0,1]",
            f"v_pk_fma_f32 {vr(d,2)}, {vr(a,2)}, {vr(b,2)}, {vr(d,2)} op_sel:[1,1,0] op_sel_hi:[1,0,1] neg_lo:[0,1,0]"]
class Putter:
    def __init__(self, base): self.base = base; self.i = 0
    def __call__(self, row, r, ng=False):
        t = self.base + (self.i & 3); self.i += 1
        return [f"v_cvt_pk_bf16_f32 v{t}, v{r}, {'-' if ng else ''}v{r+1}", f"ds_write_b32 v{vTab}, v{t} offset:{row*PITCH}"]
PR = 16
def tables_a():
    put = Putter(108)
    E1, E8, E128, DB, C = 44, 24, 28, 32, 36
    o = tab_common() + cexp(E1, 1.0, 40) + cexp(E128, 128.0, 42)
    o += put(PR + 1, E1) + put(PR + 8, E128) + cexp(E8, 8.0, 40)
    o += lines(f"""
    v_lshlrev_b32 v{DB}, 16, v{PAR+3}
    v_lshlrev_b32 v{DB+1}, 16, v{PAR+4}
    v_lshlrev_b32 v{C}, 16, v{PAR+5}
    v_lshlrev_b32 v{C+1}, 16, v{PAR+6}
    v_mul_f32 v{DB}, v18, v{DB}
    v_mul_f32 v{DB+1}, v18, v{DB+1}
    """)
    q = [20, 22]; jq = list(range(1, 16))
    o += cmul(q[0], C, DB) + put(0, q[0], True)
    def do_q():
        i = jq.pop(0); r = cmul(q[1], q[0], E8); q.reverse(); return r + put(i, q[0], True)
    o += cmul(52, E1, E128) + do_q() + put(PR + 9, 52)
    cur = E1; nx = 48
    for p in range(2, 8):
        o += cmul(nx, cur, E1); cur, nx = nx, (50 if nx == 48 else 48)
        d = 52 + 2*(p & 1)
        o += do_q() + put(PR + p, cur) + cmul(d, cur, E128) + do_q() + put(PR + 8 + p, d)
    while jq: o += do_q()
    return o
def tables_b():
    put = Putter(108)
    E128, F2, F4, F6, E256 = 20, 24, 28, 32, 44
    o = tab_common() + cexp(E128, 128.0, 40) + cexp(F2, 2.0, 42)
    o += ["v_mov_b32 v111, 0x3f80", f"ds_write_b32 v{vTab}, v111 offset:{PR*PITCH}"]
    o += cmul(E256, E128, E128) + cmul(F4, F2, F2) + cmul(38, E256, E128) + cmul(F6, F4, F2)
    ch = {0: [E256, 96, 98], 1: [38, 100, 102]}; pp = 0
    for h in range(2, 17):
        c = ch[h & 1]; cur = c[0]
        if h + 2 <= 16: o += cmul(c[1], cur, E256)
        if h < 4: rows = [(PR + 16 + 4*(h-2) + p, f) for p, f in ((1, F2), (2, F4), (3, F6))]; r0 = PR + 16 + 4*(h-2)
        elif h < 8: rows = [(PR + 24 + 2*(h-4) + 1, F4)]; r0 = PR + 24 + 2*(h-4)
        else: rows = []; r0 = PR + 32 + (h-8)
        o += put(r0, cur)
        for row, f in rows:
            d = 40 + 2*(pp & 1); pp += 1
            o += cmul(d, cur, f) + put(row, d)
        ch[h & 1] = [c[1], c[2], c[1]] if h < 4 else [c[1], c[0], c[1]]
    return o
def k_reads():
    return sum(([f"ds_read_b128 {vr(KF[3*s],4)}, v{cKf0} offset:{64*s}",
                 f"ds_read_b128 {vr(KF[3*s+1],4)}, v{cKf1} offset:{16*PITCH+64*s}",
                 f"ds_read_b128 {vr(KF[3*s+2],4)}, v{cKf0} offset:{48*PITCH+64*s}"] for s in range(8)), [])
def k_mfma(waits):
    for s in range(8):
        if waits: A(f"s_waitcnt lgkmcnt({min(15, 21 - 3*s)})")
        A([f"v_mfma_f32_16x16x32_bf16 {vr(KA,4)}, {vr(KF[3*s+1],4)}, {vr(KF[3*s],4)}, {'0' if s == 0 else vr(KA,4)}",
           f"v_mfma_f32_16x16x32_bf16 {vr(KA+4,4)}, {vr(KF[3*s+2],4)}, {vr(KF[3*s],4)}, {'0' if s == 0 else vr(KA+4,4)}"])
    return lines(f"""
    v_add_f32 v{KA}, v{KA}, v{cDk}
    v_cvt_pk_bf16_f32 v{KT}, v{KA}, v{KA+1}
    v_cvt_pk_bf16_f32 v{KT+1}, v{KA+2}, v{KA+3}
    v_cvt_pk_bf16_f32 v{KT+2}, v{KA+4}, v{KA+5}
    v_cvt_pk_bf16_f32 v{KT+3}, v{KA+6}, v{KA+7}
    ds_write_b16 v{cKd0}, v{KT}
    ds_write_b16_d16_hi v{cKd0}, v{KT} offset:4
    ds_write_b16 v{cKd1}, v{KT+1}
    ds_write_b16_d16_hi v{cKd1}, v{KT+1} offset:4
    ds_write_b16 v{cKd2}, v{KT+2} offset:2048
    ds_write_b16_d16_hi v{cKd2}, v{KT+2} offset:{2048+64}
    ds_write_b16 v{cKd2}, v{KT+3} offset:{2048+128}
    ds_write_b16_d16_hi v{cKd2}, v{KT+3} offset:{2048+192}
    """)
def k_part1():
    A(k_reads()); return k_mfma(True)
def dskip():
    return lines(f"""
    s_lshl_b32 s3, s{sDsk}, 16
    s_and_b32 s4, s{sDsk}, 0xffff0000
    s_cmp_lt_u32 s{sWN}, 2
    s_cselect_b32 s3, s3, s4
    s_and_b32 s4, s{sWN}, 1
    s_cmp_eq_u32 s4, 0
    s_cselect_b32 s3, s3, 0
    v_mov_b32 v{cDk}, 0
    v_writelane_b32 v{cDk}, s3, 0
    """)
def k_gather(): return [f"ds_read_b32 v{GV+e}, v{XA+e}" for e in range(9)]
def k_pack():
    o = ["v_cmp_ne_u32 vcc, 0x1ff, v0", f"ds_write_b32 v{cZ0}, v{vZero} offset:{UOFF}",
         f"ds_write_b32 v{cZ1}, v{vZero} offset:4096", f"v_cndmask_b32 v{GV+8}, 0, v{GV+8}, vcc",
         f"s_mov_b32 s{sK1}, 0x05040100", f"s_mov_b32 s{sK2}, 0x07060302"]
    n = 0
    for c, sel in ((0, sK1), (1, sK2)):
        for k in range(2):
            for i in range(4): o.append(f"v_perm_b32 v{16+4*n+i}, v{GV+2*i+k+1}, v{GV+2*i+k}, s{sel}")
            o.append(f"ds_write_b128 v{cImg}, {vr(16+4*n,4)} offset:{c*CH + k*4160}")
            n += 1
    return o

LD_INIT = f"global_load_dword v{vPoll}, v{vZero}, s[62:63] sc1"
LD_MV = f"buffer_load_dword v{vPoll}, v{cMv}, s[20:23], 0 offen sc1"
def poll(lb, target, ld):
    A(f"""
{lb}:
    v_cmp_gt_u32 vcc, {target}, v{vPoll}
    s_cbranch_vccz {lb}_ok
    s_sub_u32 s{sSpin}, s{sSpin}, 1
    s_cbranch_scc1 {lb}_ok
    s_sleep 8
    {ld}
    s_waitcnt vmcnt(0)
    s_branch {lb}
{lb}_ok:
    """)

def gemm1_a():
    FA = [16, 32]; FB = [80, 96]
    def ra(p):
        f = FA[p & 1]; o = (p & 3)*16384
        return [f"ds_read_b64_tr_b16 {vr(f+8*mat+4*T+2*ih,2)}, v{vWr[T]} offset:{o + 1024*mat + 2048*ih}"
                for mat in range(2) for T in range(2) for ih in range(2)]
    def rb(p, h):
        xo = ((p >> 1) & 1)*16384
        return [f"ds_read_b128 {vr(FB[h]+4*i,4)}, v{vXr[p & 1]} offset:{xo + 2048*(4*h + i)}" for i in range(4)]
    A("s_waitcnt lgkmcnt(0)\ns_barrier")
    tail = [] if KB else k_part1()
    stamp(3)
    A(ra(0) + rb(0, 0)); A(tail)
    A("L_g1_loop:")
    for p in range(4):
        for h in range(2):
            A("s_waitcnt lgkmcnt(0)")
            if h: A("s_barrier")
            r = rb(p, 1) if h == 0 else (ra(p + 1)[:2] + rb(p + 1, 0)[:1] + ra(p + 1)[2:] + rb(p + 1, 0)[1:])
            if h: A(r[:UPF]); r = r[UPF:]
            n = 0
            for i in range(4):
                tt = 4*h + i
                for mat in range(2):
                    for T in range(2):
                        d = vr(ACC1 + 32*(tt >> 1) + 16*mat + 8*(tt & 1) + 4*T, 4)
                        A(f"v_mfma_f32_16x16x32_bf16 {d}, {vr(FA[p & 1]+8*mat+4*T,4)}, {vr(FB[h]+4*i,4)}, {d}")
                        if r: A(r.pop(0))
                        n += 1
                        if p == 3 and h == 1 and n == 14: A(f"s_add_u32 s{sIt}, s{sIt}, 1\ns_cmp_lt_u32 s{sIt}, 4")
    if STAMP and SS == 3:
        A("s_mov_b32 s92, s94\ns_mov_b32 s94, s96\ns_mov_b32 s96, s98\ns_memrealtime s[98:99]\ns_waitcnt lgkmcnt(0)")
    A("s_cbranch_scc1 L_g1_loop")

def publish(sreg, n):
    A(f"""
    s_mov_b64 exec, 1
    s_waitcnt vmcnt({n})
    buffer_store_dword v14, v15, s[20:23], s{sreg} offen sc1
    s_mov_b64 exec, -1
    """)

def geglu(tt):
    G = ACC1 + 32*tt; U = G + 16
    O = 96 + 8*(tt & 1); T = 32
    for p in range(8): A(f"v_pk_mul_f32 {vr(T+2*p,2)}, {vr(G+2*p,2)}, {vr(G+2*p,2)}")
    for p in range(8): A(f"v_pk_fma_f32 {vr(T+2*p,2)}, {vr(T+2*p,2)}, s[34:35], v[12:13]")
    for p in range(8): A(f"v_pk_mul_f32 {vr(T+2*p,2)}, {vr(T+2*p,2)}, {vr(G+2*p,2)}")
    for p in range(16): A(f"v_exp_f32 v{T+p}, v{T+p}")
    for p in range(8): A(f"v_pk_mul_f32 {vr(G+2*p,2)}, {vr(G+2*p,2)}, {vr(U+2*p,2)}")
    for p in range(8): A(f"v_pk_add_f32 {vr(T+2*p,2)}, {vr(T+2*p,2)}, 1.0 op_sel_hi:[1,0]")
    for p in range(16): A(f"v_rcp_f32 v{T+p}, v{T+p}")
    for p in range(8): A(f"v_pk_mul_f32 {vr(G+2*p,2)}, {vr(G+2*p,2)}, {vr(T+2*p,2)}")
    for p in range(8): A(f"v_cvt_pk_bf16_f32 v{O+p}, v{G+2*p}, v{G+2*p+1}")
    A(f"buffer_store_dwordx4 {vr(O,4)}, v10, s[20:23], s{sHst} offen sc1")
    A(f"buffer_store_dwordx4 {vr(O+4,4)}, v10, s[20:23], s{sHst} offen offset:256 sc1")
    if tt < 3: A(f"s_add_u32 s{sHst}, s{sHst}, {112*1024}")

def role_a():
    A(f"s_mov_b32 s{sRole}, 0\nv_mov_b64 v[40:41], 0\nv_mov_b64 v[42:43], 0")
    common_setup(); g1_setup(); pad("su")
    if not KB: A(k_setup1())
    A("s_cmp_ge_u32 s2, 224\ns_cbranch_scc1 L_mv_a")
    for i in range(8):
        A(f"v_mfma_f32_32x32x16_bf16 {vr(ACC1+16*i,16)}, v[40:43], v[40:43], 0")
    A("s_waitcnt vmcnt(0)")
    if T2:
        A(f"""
        s_cmp_ge_u32 s{sW}, 2
        s_cbranch_scc1 L_a_tab
        s_lshl_b32 s3, s2, 1
        s_add_u32 s3, s3, s{sW}
        s_mul_i32 s3, s3, {37*128}
        v_min_u32 v112, 36, v1
        v_lshlrev_b32 v112, 7, v112
        buffer_load_dword v{vJA}, v112, s[8:11], s3 offen
        """)
    A("L_a_tab:")
    stamp(1)
    t = tables_a()
    A(t[:50]); pad("tb0"); A(t[50:])
    stamp(2)
    if not KB: A("s_waitcnt lgkmcnt(0)"); A(dskip())
    A("s_cmp_ge_u32 s2, 224\ns_cbranch_scc1 L_mv_a2")
    if AGT:
        A(f"""
        s_lshl_b32 s3, s2, 2
        s_add_u32 s3, s3, s{sW}
        s_lshl_b32 s3, s3, 11
        v_and_b32 v112, 15, v1
        v_lshlrev_b32 v112, 7, v112
        buffer_load_dword v{vJA}, v112, s[68:71], s3 offen
        """)
    A("s_setprio 1")
    gemm1_a()
    stamp(4)
    geglu(0); pad("ea0")
    geglu(1)
    geglu(2); pad("ea1")
    publish(sHfl, 2)
    geglu(3)
    stamp(5)
    conv_setup()
    publish(sHfl2, 0)
    A("L_a_join:")
    conv()

G1 = [0, 1, 8, 9, 2, 3]; G2 = [4, 5, 10, 11, 6, 7]
STG = {k: 48 + 8*i for i, k in enumerate(G1 + G2)}
STG.update({24 + i: 144 + 8*i for i in range(4)})
def wd_reads(kap, d0, d1):
    o = piece_off(kap)
    if kap >= 12: base = gR; o -= RED
    elif o >= 65536: base = gD[2:4]; o -= 65536
    else: base = gD[0:2]
    return [f"ds_read_b64_tr_b16 {vr((d0, d1)[dd]+2*ih,2)}, v{base[dd]} offset:{o + 1024*ih}" for dd in range(2) for ih in range(2)]

def u_loads(vm):
    vm.issue("u", f"buffer_load_dwordx4 {vr(vU,4)}, v{cLu0}, s[20:23], s{sCu} offen sc1")
    vm.issue("u", f"buffer_load_dwordx4 {vr(vU+4,4)}, v{cLu1}, s[20:23], s{sCu} offen sc1")

def b_finish(vm, lb):
    late = []
    if KB:
        tail = k_mfma(False)
        vm.wait({"mv"}); poll(lb, 1, LD_MV)
        u_loads(vm)
        A("s_nop 3"); A(tail)
        A(f"""
        s_mov_b64 exec, 1
        s_waitcnt lgkmcnt(0)
        ds_add_u32 v{cCb}, v{vOne}
        s_mov_b64 exec, -1
        """)
    def stage(ks, refill=True):
        vm.wait({("d", k) for k in ks})
        for k in ks: A(wd_reads(k, STG[k], STG[k] + 4))
        A("s_waitcnt lgkmcnt(0)")
        for k in ks:
            if refill:
                for g in d_piece(k, k + 12): vm.issue(("d", k + 12), g)
            else: late.append(k)
    stage(G1[0:2], RLATE < 12); stage(G1[2:4], RLATE < 10)
    if not KB:
        vm.wait({"mv"}); poll(lb, 1, LD_MV)
        u_loads(vm)
    else:
        A(f"""
        s_mov_b64 exec, 1
{lb}_k:
        ds_read_b32 v2, v{cCb}
        s_waitcnt lgkmcnt(0)
        v_cmp_gt_u32 vcc, 4, v2
        s_cbranch_vccz {lb}_kgo
        s_sub_u32 s{sSpin}, s{sSpin}, 1
        s_cbranch_scc0 {lb}_k
{lb}_kgo:
        s_mov_b64 exec, -1
        """)
        A(k_gather())
    stage(G1[4:6] + G2[0:2], RLATE < 8)
    vm.wait({("d", 24 + i) for i in range(4)})
    for i in range(4): A(wd_reads(12 + i, STG[24 + i], STG[24 + i] + 4))
    A(k_pack())
    stage(G2[2:6], RLATE < 4)
    vm.wait({"u"})
    A(f"ds_write_b128 v{cUw}, {vr(vU,4)}\nds_write_b128 v{cUw}, {vr(vU+4,4)} offset:2048")
    return late

def role_b():
    A(f"L_role_b:\ns_mov_b32 s{sRole}, 1\ns_cmp_ge_u32 s2, 224\ns_cbranch_scc1 L_mv_head")
    vm = Cnt("vmcnt", 63)
    def groups(kind, idx):
        if kind == "W" and idx < 16: return [((kind, idx), g) for g in w_dma(idx)]
        if kind == "X" and idx < 8: return [((kind, idx), g) for g in x_dma(idx)]
        sig = idx - 16 if kind == "W" else idx - 4
        return [(("d", k), g) for k in (2*sig, 2*sig + 1) for g in d_piece(k, k)]
    def dma(kind, idx):
        for tag, g in groups(kind, idx): vm.issue(tag, g)
    def barrier(tags):
        n = vm.need(tags)
        A(f"s_waitcnt {'vmcnt(%d) ' % n if n is not None else ''}lgkmcnt(0)\ns_barrier")
    dma("X", 0); dma("W", 0); dma("W", 1)
    common_setup()
    A("s_waitcnt vmcnt(12)")
    stamp(1)
    t = tables_b()
    A(t[:60]); pad("rb1"); dma("X", 1); A(t[60:])
    stamp(2)
    if KB:
        k1 = k_setup1()
        allw = k1[:11] + k_reads() + k1[11:] + b_setup1() + dskip() + [f"v_mov_b32 v{cCb}, {CNT + 4}"] + b_setup2()
    else: allw = b_setup1() + b_setup2() + k_gather()
    work = slices(allw, NW)
    barrier({("X", 0), ("W", 0)})
    stamp(3)
    dma("W", 2)
    if not KB: dma("W", 3); warm(1)
    carry = groups("W", 3) if KB else []
    for s in range(16):
        barrier({("W", s + 1), ("X", (s + 1)//2)})
        g = carry; carry = []
        if s & 1:
            g += groups("X", (s + 3)//2)
            w4 = groups("W", s + 4)
            if s < 15: g += w4[:2]; carry = w4[2:]
            else: g += w4
        else: g += groups("W", s + 4)
        if (RS <= s < RS + 4) if KB else (RS <= s < RS + 8 and (s - RS) % 2 == 0):
            i = s - RS if KB else (s - RS)//2
            g += [(("d", 24 + i), x) for x in d_piece(12 + i, 24 + i)]
        w = work.pop(0) if work else []
        for (tag, gi), wi in zip(g, slices(w, len(g))):
            vm.issue(tag, gi); A(wi)
        if s == 5: A(f"s_cmp_eq_u32 s{sW}, 4\ns_cbranch_scc0 L_noinit\n{LD_INIT}\nL_noinit:")
        if s == 10:
            A(f"s_cmp_eq_u32 s{sW}, 4\ns_cbranch_scc0 L_pi_ok")
            poll("L_pi", 128, LD_INIT)
        if s == 14: vm.issue("mv", LD_MV)
        if s == 1 and KB: warm(1)
        if s == 3: pad("rb2")
        if s == 8: pad("g1b")
    A(f"s_setprio {PPRIO}")
    stamp(4)
    late = b_finish(vm, "L_pm1")
    A("L_b_join:")
    warm(2)
    stamp(5)
    A("s_waitcnt lgkmcnt(0)\ns_barrier")
    gemm2(sorted(late))

def mover():
    if STUBS: A("L_pad_mv:\ns_branch L_warm_ret0")
    A(f"""
L_mv_head:
    s_sub_u32 s6, s2, 224
    s_lshl_b32 s3, s6, 16
    s_lshl_b32 s4, s{sWN}, 14
    s_add_u32 s3, s3, s4
    s_mul_i32 s4, s{sWN}, {16*UP}
    v_lshlrev_b32 v16, 4, v1
    s_add_u32 s5, s3, 16384
L_mv_ld:
    s_mov_b32 m0, s4
    s_add_u32 s4, s4, {UP}
    buffer_load_dwordx4 v16, s[8:11], s3 offen lds
    s_add_u32 s3, s3, 1024
    s_cmp_lt_u32 s3, s5
    s_cbranch_scc1 L_mv_ld
    global_load_dwordx4 v[128:131], v16, s[58:59]
    v_add_u32 v132, {GWL}, v16
    """)
    common_setup()
    A("s_waitcnt vmcnt(17)"); A(tables_b())
    A(b_setup1()); A(b_setup2())
    if KB: A(k_setup1()); A("s_waitcnt lgkmcnt(0)"); A(dskip()); A(f"v_mov_b32 v{cCb}, {CNT + 4}")
    A("s_waitcnt vmcnt(0)\nds_write_b128 v132, v[128:131]\ns_branch L_mv_common")
    A(f"""
L_mv_a:
    s_sub_u32 s6, s2, 224
    s_lshl_b32 s3, s6, 2
    s_add_u32 s3, s3, s{sW}
    s_mul_i32 s3, s3, 22
    v_add_u32 v16, s3, v1
    s_add_u32 s3, s6, 2816
    v_mov_b32 v17, s3
    v_cmp_gt_u32 vcc, 22, v1
    s_getpc_b64 s[4:5]
L_pc:
    s_sub_u32 s4, s4, L_pc - {KNAME}
    s_subb_u32 s5, s5, 0
    v_cndmask_b32 v16, v17, v16, vcc
    v_lshlrev_b32 v16, 7, v16
    v_add_u32 v16, {WS_FLAG}, v16
    buffer_store_dword v15, v16, s[20:23], 0 offen sc1
    v_lshlrev_b32 v16, 7, v0
    v_min_u32 v16, L_exit - {KNAME}, v16
    global_load_dword v{vJA}, v16, s[4:5]
    s_waitcnt vmcnt(2)
    s_branch L_a_tab
L_mv_a2:
    s_waitcnt vmcnt(0)
    s_mov_b64 exec, 1
    global_atomic_add v15, v14, s[62:63] sc1
    s_mov_b64 exec, -1
L_mv_common:
    s_sub_u32 s{sMov}, s2, 224
    v_and_b32 v2, 15, v1
    v_lshrrev_b32 v3, 4, v1
    v_lshlrev_b32 v16, 4, v3
    v_lshrrev_b32 v17, 2, v1
    v_and_b32 v17, 3, v17
    v_lshl_add_u32 v17, v3, 3, v17
    v_mul_u32_u24 v17, {UP}, v17
    v_and_b32 v18, 3, v1
    v_lshl_add_u32 v17, v18, 3, v17
    s_lshl_b32 s4, s{sW}, 7
    v_add_u32 v17, s4, v17
    s_lshl_b32 s3, s{sW}, 18
    s_lshl_b32 s4, s{sMov}, 11
    s_add_u32 s3, s3, s4
    s_add_u32 s3, s3, {WS_UT}
    v_lshlrev_b32 v18, 6, v2
    v_lshl_add_u32 v18, v3, 4, v18
    s_and_b32 s4, s{sMov}, 3
    s_lshl_b32 s4, s4, 8
    v_xor_b32 v18, s4, v18
    v_xor_b32 v19, 128, v18
    s_waitcnt lgkmcnt(0)
    s_barrier
    """)
    stamp(3)
    for q in range(4):
        b = 160 + 8*q
        A(f"""
        ds_read_b64_tr_b16 {vr(b,2)}, v17 offset:{32*q}
        ds_read_b64_tr_b16 {vr(b+2,2)}, v17 offset:{32*q + 4*UP}
        ds_read_b64_tr_b16 {vr(b+4,2)}, v17 offset:{32*q + 32*UP}
        ds_read_b64_tr_b16 {vr(b+6,2)}, v17 offset:{32*q + 36*UP}
        """)
    for q in range(4):
        b = 160 + 8*q
        A(f"""
        s_waitcnt lgkmcnt({12 - 4*q})
        buffer_store_dwordx4 {vr(b,4)}, v18, s[20:23], s3 offen sc1
        buffer_store_dwordx4 {vr(b+4,4)}, v19, s[20:23], s3 offen offset:1024 sc1
        s_add_u32 s3, s3, 65536
        """)
    A(f"""
    s_cmp_eq_u32 s{sRole}, 0
    s_cbranch_scc1 L_mv_a3
    s_mul_i32 s4, s{sWN}, {16*UP}
    v_mul_u32_u24 v17, {UP}, v2
    v_add_u32 v17, v17, v16
    v_add_u32 v17, s4, v17
    v_add_u32 v4, {GWL}, v16
    """)
    for i in range(16):
        A(f"ds_read_b128 {vr(32+4*i,4)}, v17 offset:{64*i}\nds_read_b128 {vr(96+4*i,4)}, v4 offset:{64*i}")
    A("s_waitcnt lgkmcnt(0)")
    for i in range(16):
        c = "0" if i < 2 else vr(24+4*(i&1), 4)
        A(f"v_mfma_f32_16x16x32_bf16 {vr(24+4*(i&1),4)}, {vr(32+4*i,4)}, {vr(96+4*i,4)}, {c}")
    A(f"""
    s_lshl_b32 s3, s{sMov}, 2
    s_add_u32 s3, s3, s{sWN}
    s_lshl_b32 s3, s3, 6
    s_add_u32 s3, s3, {WS_G}
    s_nop 5
    """)
    for r in range(4): A(f"v_add_f32 v{24+r}, v{24+r}, v{28+r}")
    for r in range(4): A(f"v_cvt_pk_bf16_f32 v{24+r}, 0, v{24+r}")
    for r in range(4): A(f"v_mul_f32 v{24+r}, {fbits(-L2E)}, v{24+r}")
    for r in range(4): A(f"v_exp_f32 v{24+r}, v{24+r}")
    A("s_nop 0")
    for r in range(4): A(f"v_add_f32 v{24+r}, 1.0, v{24+r}")
    for r in range(4): A(f"v_rcp_f32 v{24+r}, v{24+r}")
    A("s_nop 0")
    for r in range(4): A(f"v_cvt_pk_bf16_f32 v{24+r}, 0, v{24+r}")
    for r in range(4): A(f"v_sub_f32 v{28+r}, 1.0, v{24+r}")
    for r in range(4): A(f"v_cvt_pk_bf16_f32 v{24+r}, v{24+r}, v{28+r}")
    A(f"""
    v_cmp_eq_u32 vcc, 0, v2
    s_and_saveexec_b64 s[4:5], vcc
    buffer_store_dwordx4 v[24:27], v16, s[20:23], s3 offen sc1
    s_mov_b64 exec, s[4:5]
    """)
    if KB: A(k_reads())
    A(f"""
    s_waitcnt vmcnt(0) lgkmcnt(0)
    s_barrier
    s_cmp_eq_u32 s{sW}, 4
    s_cbranch_scc0 L_pi2_ok
    s_mov_b64 exec, 1
    global_atomic_add v40, v{vZero}, v{vOne}, s[62:63] offset:128 sc0 sc1
    s_mov_b64 exec, -1
    {LD_INIT}
    s_waitcnt vmcnt(0)
    v_readfirstlane_b32 s3, v40
    v_and_b32 v17, 31, v1
    v_lshlrev_b32 v17, 7, v17
    v_add_u32 v17, {WS_FLAG3}, v17
    s_and_b32 s3, s3, 31
    s_cmp_eq_u32 s3, 31
    s_cbranch_scc0 L_pi2
    buffer_store_dword v{vOne}, v17, s[20:23], 0 offen sc1
    """)
    poll("L_pi2", 128, LD_INIT)
    stamp(4)
    vm = Cnt("vmcnt", 63)
    if not KB: A(k_gather())
    if TFIRST: A("s_barrier")
    for k in G1 + G2:
        for g in d_piece(k, k): vm.issue(("d", k), g)
    for i in range(4):
        for g in d_piece(12 + i, 24 + i): vm.issue(("d", 24 + i), g)
    if not TFIRST: A("s_barrier")
    vm.issue("mv", LD_MV)
    b_finish(vm, "L_pm2")
    A("s_branch L_b_join")
    def mtouch(n):
        for i in range(n):
            A(f"s_cmp_ge_u32 s46, {448*1024}\ns_cselect_b32 s3, {448*1024}, 0\ns_sub_u32 s46, s46, s3\ns_add_u32 s3, s47, s46\nbuffer_load_dword v{vJA}, v77, s[68:71], s3 offen\ns_add_u32 s46, s46, 32768")
    A(f"""
L_mv_a3:
    s_lshr_b32 s47, s{sMov}, 3
    s_mul_i32 s47, s47, {448*1024}
    s_lshl_b32 s4, s{sW}, 13
    s_add_u32 s47, s47, s4
    s_lshl_b32 s46, s{sRho}, 14
    s_add_u32 s46, s46, {192*1024}
    v_lshlrev_b32 v77, 7, v1
    """)
    if not KB:
        tail = k_part1(); A("s_nop 7"); A(tail)
    mtouch(MPRE)
    A(f"s_waitcnt vmcnt({MPRE}) lgkmcnt(0)\ns_barrier")
    stamp(4)
    A("s_barrier")
    mtouch(MT - MPRE)
    stamp(5)
    conv_setup()
    A("s_branch L_a_join")

def conv():
    FA = [96, 160]; FB = [128, 192]; ACC = 16
    def reads(rr):
        fs = rr & 1; ra = []; rb = []
        for i in range(8):
            o = (512*(1 - (i & 1)) + 64*(3 - rr)) // 4
            rb.append(f"ds_read_b128 {vr(FB[fs]+4*i,4)}, v{cB} offset:{512*i + 64*(3-rr)}")
            ra.append(f"ds_read2_b32 {vr(FA[fs]+4*i,2)}, v{cA[i>>1]} offset0:{o} offset1:{o+1}")
            ra.append(f"ds_read2_b32 {vr(FA[fs]+4*i+2,2)}, v{cA[i>>1]} offset0:{o+2} offset1:{o+3}")
        return ra, rb
    A(f"s_waitcnt lgkmcnt(0)\ns_barrier\ns_setprio {CPRIO}")
    stamp(6)
    ra, rb = reads(0)
    A(ra[0:2] + rb + ra[2:])
    U = 128; D = 136; Y = 96; P = 160
    for rr in range(4):
        fs = rr & 1
        A("s_waitcnt lgkmcnt(14)" if rr == 0 else "s_waitcnt lgkmcnt(0)")
        if rr < 3:
            ra, rb = reads(rr+1); fill = rb + ra
        else: fill = []
        for i in range(8):
            if rr == 0 and i == 1: A("s_waitcnt lgkmcnt(0)")
            for t in range(i, 8):
                c = "0" if (rr == 0 and i == 0) else vr(ACC+4*t, 4)
                A(f"v_mfma_f32_16x16x32_bf16 {vr(ACC+4*t,4)}, {vr(FA[fs]+4*i,4)}, {vr(FB[fs]+4*(t-i),4)}, {c}")
                if fill and not (rr == 0 and i == 0): A(fill.pop(0))
            if rr == 3 and 2 <= i <= 4:
                A(f"ds_write_b128 v{cRw}, {vr(ACC+4*(i-2),4)} offset:{1024*(i-2)}")
        assert not fill
        if rr == 0: pad("cv0")
        if rr == 2: pad("cv1")
    stamp(7)
    A("s_nop 3")
    for t in range(3, 8):
        A(f"ds_write_b128 v{cRw}, {vr(ACC+4*t,4)} offset:{1024*t}")
    A(f"""
    s_mov_b64 exec, 1
    s_waitcnt lgkmcnt(0)
    ds_add_u32 v{cCnt}, v14
L_cv_sync:
    ds_read_b32 v2, v{cCnt}
    s_waitcnt lgkmcnt(0)
    v_cmp_gt_u32 vcc, 4, v2
    s_cbranch_vccz L_cv_go
    s_sub_u32 s{sSpin}, s{sSpin}, 1
    s_cbranch_scc0 L_cv_sync
L_cv_go:
    s_mov_b64 exec, -1
    """)
    for hh in range(2):
        for q in range(4):
            A(f"ds_read_b128 {vr(P+16*hh+4*q,4)}, v{cRr} offset:{8192*q + 4096*hh}")
    for hh in range(2):
        b = P + 16*hh
        A(f"s_waitcnt lgkmcnt({4 - 4*hh})")
        for k in range(4): A(f"v_add_f32 v{b+k}, v{b+k}, v{b+4+k}\nv_add_f32 v{b+8+k}, v{b+8+k}, v{b+12+k}")
        for k in range(4): A(f"v_cvt_pk_bf16_f32 v{Y+4*hh+k}, v{b+k}, v{b+8+k}")
    A(f"""
    buffer_store_dwordx4 {vr(Y,4)}, v{cS0}, s[20:23], s{sCga} offen sc1
    buffer_store_dwordx4 {vr(Y+4,4)}, v{cS1}, s[20:23], s{sCga} offen sc1
    s_mov_b64 exec, 1
    """)
    stamp(8)
    A(f"s_waitcnt vmcnt(0)\nbuffer_store_dword v14, v15, s[20:23], s{sCfl} offen sc1")
    stamp_flush()
    A("s_endpgm")

def gemm2(late):
    ACC = 192
    sH = [sH0, sH1]
    vm = Cnt("vmcnt", 63); lg = Cnt("lgkmcnt", 15)
    A(f"s_setprio {GPRIO}\nv_mov_b32 v{gR[0]}, v{vDo[0]}\nv_mov_b32 v{gR[1]}, v{vDo[1]}")
    lw = [(("w", k + 12), [x.replace(f"v{vDo[0]}", f"v{gR[0]}").replace(f"v{vDo[1]}", f"v{gR[1]}").replace("s47", "s3") for x in g])
          for k in late for g in d_piece(k, k + 12)]
    for _ in range(min(2*P1, len(lw))): vm.issue(*lw.pop(0))
    A(f"s_mov_b64 exec, 0x3fff\nbuffer_load_dword v2, v{gFl}, s[20:23], s{sFl} offen sc1\ns_mov_b64 exec, -1")
    vm.ops = []
    n2 = min(2*P2, len(lw))
    for _ in range(n2): vm.issue(*lw.pop(0))
    A(f"""
    s_movk_i32 s46, 4096
    s_mov_b64 exec, 0x3fff
    s_waitcnt vmcnt({n2})
L_g2_hpoll:
    v_cmp_eq_u32 vcc, 0, v2
    s_cbranch_vccz L_g2_hready
    s_mov_b64 exec, vcc
    s_sub_u32 s{sSpin}, s{sSpin}, 1
    s_cbranch_scc1 L_g2_hready
    buffer_load_dword v2, v{gFl}, s[20:23], s{sFl} offen sc1
    s_waitcnt vmcnt(0)
    s_branch L_g2_hpoll
L_g2_hready:
    s_mov_b64 exec, -1
    """)
    stamp(6)
    free = [16 + 4*i for i in range(8)] + [176 + 4*i for i in range(4)]
    hreg = {}; wreg = {k: (STG[k], STG[k] + 4) for k in STG}
    nxt = [0]; wnx = [12]
    def h_issue(kc, n=99):
        while n > 0 and free and nxt[0] < 56 and (nxt[0] >> 1) < kc + min(HDMAX, HD + kc):
            n -= 1
            k, tt = nxt[0] >> 1, nxt[0] & 1
            r = free.pop(0); hreg[(k, tt)] = r
            vm.issue(("h", k), f"buffer_load_dwordx4 {vr(r,4)}, v{gL16}, s[20:23], s{sH[tt]} offen offset:{(k & 3)*1024} sc1")
            if (k & 3) == 3 and k < 27:
                if tt == 0: A(f"s_cmp_eq_u32 s{sRho}, {24 - (k - 3)}\ns_cselect_b32 s47, {u32(4096 - 28672)}, s46")
                A(f"s_add_u32 s{sH[tt]}, s{sH[tt]}, s47")
            nxt[0] += 1
    h_issue(0)
    A(f"""
    v_and_b32 v{gFl}, 15, v1
    v_lshlrev_b32 v{gFl}, 9, v{gFl}
    s_lshl_b32 s{sFl}, s{sD}, 13
    s_lshr_b32 s4, s{sTok}, 3
    s_and_b32 s4, s4, 3
    s_lshl_b32 s4, s4, 7
    s_add_u32 s{sFl}, s{sFl}, s4
    s_add_u32 s{sFl}, s{sFl}, {WS_FLAG2}
    v_and_b32 v{gT}, 31, v1
    v_lshlrev_b32 v14, 2, v{gT}
    s_lshl_b32 s4, s{sTok}, 7
    s_add_u32 s5, s4, {WS_G}
    v_lshrrev_b32 v15, 5, v1
    v_lshl_add_u32 v3, v15, 15, v14
    s_lshl_b32 s6, s{sD}, 17
    s_add_u32 s6, s6, s4
    s_add_u32 s6, s6, {WS_GA}
    """)
    if O64:
        A(f"""
        v_and_b32 v{gT}, 15, v1
        v_lshlrev_b32 v{gT}, 10, v{gT}
        v_lshl_add_u32 v{gT}, v15, 4, v{gT}
        v_and_b32 v15, 16, v1
        v_lshl_add_u32 v{gT}, v15, 1, v{gT}
        """)
    else: A(f"v_lshlrev_b32 v{gT}, 10, v{gT}\nv_lshl_add_u32 v{gT}, v15, 4, v{gT}")
    A(f"""
    s_lshl_b32 s7, s{sTok}, 15
    s_lshl_b32 s4, s{sD}, 6
    s_add_u32 s7, s7, s4
    s_mov_b32 s12, s60
    s_mov_b32 s13, s61
    s_mov_b32 s14, 0x200000
    v_add_u32 v15, s{sLds}, v{gL16}
    """)
    GA = None; gal = []
    def cpoll(first):
        if first: A("s_branch L_g2_reload")
        A(f"""
L_g2_poll:
        v_cmp_eq_u32 vcc, 0, v2
        s_cbranch_vccz L_g2_ready
        s_sub_u32 s{sSpin}, s{sSpin}, 1
        s_cbranch_scc1 L_g2_ready
        s_mov_b64 exec, vcc
        s_sleep {SLP}
L_g2_reload:
        buffer_load_dword v2, v{gFl}, s[20:23], s{sFl} offen sc1
        s_waitcnt vmcnt(0)
        s_branch L_g2_poll
        """)
        pad("g22", inline=False)
        A("L_g2_ready:\ns_mov_b64 exec, -1")
    def mf(k, dd, tt):
        c = "0" if k == 0 else vr(ACC+16*(2*dd+tt), 16)
        A(f"v_mfma_f32_32x32x16_bf16 {vr(ACC+16*(2*dd+tt),16)}, {vr(wreg[k][dd],4)}, {vr(hreg[(k,tt)],4)}, {c}")
    for k in range(24):
        pre = []
        vm.wait({("h", k)})
        if k in (0, 8, 12, 18): stamp({0: 1, 8: 2, 12: 3, 18: 4}[k], 1)
        lg.wait({("w", k)})
        if k >= WLA and wnx[0] < 24:
            kn = wnx[0]; wnx[0] += 1
            vm.wait({("w", kn)})
            wreg[kn] = (free.pop(), free.pop())
            pre = [(("w", kn), x) for x in wd_reads(kn - 12, *wreg[kn])]
        for n, (dd, tt) in enumerate(((0,0),(0,1),(1,0),(1,1))):
            mf(k, dd, tt)
            if n in (0, 2): h_issue(k + 1, 1)
            elif lw: vm.issue(*lw.pop(0))
            if pre: lg.issue(*pre.pop(0))
            if gal: vm.issue("ga", gal.pop(0))
        free += [hreg[(k,0)], hreg[(k,1)], wreg[k][0], wreg[k][1]]
        h_issue(k + 1)
        if k == 8: pad("g21")
        if k == FK: vm.issue("f", f"buffer_load_dword v2, v{gFl}, s[20:23], s{sFl} offen sc1")
        if k == CK:
            stamp(7)
            vm.wait({"f"})
            assert nxt[0] == 56
            fr = sorted(free)
            GA = next(r for r in fr if r + 4 in fr and r >= 96)
            free.remove(GA); free.remove(GA + 4)
            gl = ["buffer_load_dword v4, v14, s[20:23], s5 offen sc1"]
            for m in range(8):
                gl.append(f"buffer_load_dword v{GA+m}, v3, s[20:23], s6 offen sc1" + (f"\ns_add_u32 s6, s6, {8192 if (m & 3) != 3 else 5*8192}" if m < 7 else ""))
            if NBK:
                A(f"""
                v_cmp_eq_u32 vcc, 0, v2
                s_mov_b32 s{sT}, s6
                s_cmp_eq_u64 vcc, 0
                s_cselect_b32 s6, s6, 0x40000000
                s_cselect_b32 s{sWd}, 0, 1
                """)
            else: cpoll(False)
            gal = list(gl)
    assert wnx[0] == 24
    A("v_xor_b32 v8, 0x1000, v15\nv_xor_b32 v9, 0x2000, v15\nv_xor_b32 v10, 0x3000, v15")
    vm.wait({("h", 27)})
    pend = []
    for x in (1, 2, 3, 0):
        for i, k in enumerate(range(24, 28)):
            mf(k, x >> 1, x & 1)
            if gal: vm.issue("ga", gal.pop(0))
            if pend:
                if i == 0: A("s_nop 7")
                elif i == 1: A("s_nop 1"); A(pend[0:2])
                elif i == 2: A(pend[2:4])
        pend = [f"ds_write_b128 v15, {vr(ACC+16*x+4*i,4)} offset:{(x-1)*16384 + 1024*i}" for i in range(4)] if x else []
    assert not gal and not lw
    stamp(8)
    if NBK:
        A(f"s_cmp_eq_u32 s{sWd}, 0\ns_cbranch_scc1 L_g2_have")
        cpoll(True)
        A(f"s_mov_b32 s6, s{sT}"); A(gl)
        A("L_g2_have:")
    A("s_waitcnt vmcnt(0)\nv_lshlrev_b32 v5, 16, v4\nv_and_b32 v4, 0xffff0000, v4")
    for p in range(8):
        A(f"v_lshlrev_b32 v{80+2*p}, 16, v{GA+p}\nv_and_b32 v{81+2*p}, 0xffff0000, v{GA+p}")
    for p in range(8):
        A(f"v_pk_mul_f32 {vr(80+2*p,2)}, {vr(80+2*p,2)}, v[4:5] op_sel:[0,1]")
    A("s_waitcnt lgkmcnt(0)\ns_barrier")
    for x in range(3):
        for i in range(4):
            A(f"ds_read_b128 {vr(32+16*x+4*i,4)}, v{8+x} offset:{x*16384 + 1024*i}")
    for x in range(3):
        A(f"s_waitcnt lgkmcnt({8 - 4*x})")
        for p in range(8):
            A(f"v_pk_add_f32 {vr(ACC+2*p,2)}, {vr(ACC+2*p,2)}, {vr(32+16*x+2*p,2)}")
    for p in range(8):
        A(f"v_pk_fma_f32 {vr(32+2*p,2)}, {vr(ACC+2*p,2)}, v[4:5], {vr(80+2*p,2)} op_sel_hi:[1,0,1]")
    for p in range(8):
        A(f"v_cvt_pk_bf16_f32 v{24+p}, v{32+2*p}, v{33+2*p}")
    if O64:
        A("s_add_u32 s4, s7, 16384\ns_nop 0")
        for i in range(4): A(f"v_permlane16_swap_b32 v{24+i}, v{28+i}")
        A(f"buffer_store_dwordx4 v[24:27], v{gT}, s[12:15], s7 offen {OST}\nbuffer_store_dwordx4 v[28:31], v{gT}, s[12:15], s4 offen {OST}")
    else:
        A(f"buffer_store_dwordx4 v[24:27], v{gT}, s[12:15], s7 offen {OST}\nbuffer_store_dwordx4 v[28:31], v{gT}, s[12:15], s7 offen offset:32 {OST}")
    stamp_flush()
    A("s_endpgm")

def main():
    order = [["rb", "su", "tb0", "rb1"], ["rb2", "g1b", "ea0", "ea1"], ["cv0", "cv1", "g21", "g22"]]
    for r, names in enumerate(order):
        for w, n in enumerate(names): PLAN[n] = (r, 4 + w)
    A('.amdgcn_target "amdgcn-amd-amdhsa--gfx950"\n.text')
    A(f".globl {KNAME}\n.p2align 12\n.type {KNAME},@function\n{KNAME}:")
    if STAMP:
        for i in range(NST): A(f"s_mov_b32 s{80+2*i}, 0")
    stamp(0)
    A("s_cmp_ge_u32 s2, 256\ns_cbranch_scc1 L_exit")
    prologue()
    role_a()
    pad("rb", inline=False)
    role_b()
    mover()
    A("L_exit:\n    s_endpgm")
    assert not STUBS or PADS == set(PLAN), set(PLAN) - PADS
    A(f""".section .rodata,"a"
.p2align 6
.amdhsa_kernel {KNAME}
  .amdhsa_next_free_vgpr 256
  .amdhsa_next_free_sgpr 102
  .amdhsa_accum_offset 256
  .amdhsa_group_segment_fixed_size 0
  .amdhsa_kernarg_size 136
  .amdhsa_user_sgpr_count 2
  .amdhsa_user_sgpr_kernarg_segment_ptr 1
  .amdhsa_system_sgpr_workgroup_id_x 1
.end_amdhsa_kernel""")
    open(sys.argv[1], "w").write(HEADER + "\n".join(L) + "\n")

main()
```

```python
import sys, struct, math

OPTS = dict(a.split("=") for a in sys.argv[2:])
def opt(name, dflt): return int(OPTS.get(name, dflt))
STAMP = opt("stamp", 0); SS = opt("ss", 0)
ENC = opt("enc", -1); ENCWG = opt("encwg", 8); ENCW = opt("encw", 0)
SPIN = opt("spin", 0x40000); STUBS = opt("stubs", 1)
T2 = opt("t2", 1); AGT = opt("agt", 1); MT = opt("mt", 3); MC3 = opt("mc3", 0); MPRE = opt("mpre", 0); TFIRST = opt("tfirst", 0)
UPF = opt("upf", 6); RS = opt("rs", 6); NW = opt("nw", 14); PPRIO = opt("pprio", 0); P1 = opt("p1", 8); P2 = opt("p2", 4); KB = opt("kb", 1); NPRE = opt("npre", 0); O64 = opt("o64", 1); AORD = opt("aord", 2); C3 = opt("c3", 0); JSW = opt("jsw", 1); UP0 = opt("up0", 0); OST = OPTS.get("ost", "").replace("_", " "); NBK = opt("nbk", 0); SLP = opt("slp", 2)
HD = opt("hd", 5); HDMAX = opt("hdmax", 8); WLA = opt("wla", 8); FK = opt("fk", 20); CK = opt("ck", 23); CST = opt("cst", -1); TMJ = opt("tmj", 1)
RLATE = opt("rlate", 12); CPRIO = opt("cprio", 2); GPRIO = opt("gprio", 1)
KNAME = "gated_mix__ssm_conv_s4__geglu_ffn__prompt_kernel"

WS_H, WS_UT, WS_GA, WS_G, WS_FLAG, WS_STAMP = 0x0, 0x700000, 0x900000, 0xB00000, 0xB08000, 0x1400000
WS_FLAG2 = WS_FLAG + 1792*128
WS_FLAG3 = WS_FLAG + 2816*128
WS_BYTES = 0x10000000

XB = 65536
TB = 98304
PITCH = 528
KD = TB + 2*57*PITCH
CH = 12928
UOFF = 8320
RED = TB + 2*CH
CNT = KD + 3072
assert CNT + 8 <= 163840 and RED + 32768 <= KD and RED % 256 == 0
UP = 1056
GWL = 64*UP
L2E = math.log2(math.e)
WSTEP = 32*3584

L = []
def lines(s): return [x.strip() for x in s.strip("\n").split("\n") if x.strip()]
def A(s):
    if isinstance(s, (list, tuple)): s = "\n".join(s)
    for line in lines(s):
        L.append(line if line.endswith(":") or line.startswith(".") else "    " + line)
def fbits(x): return "0x%08x" % struct.unpack("<I", struct.pack("<f", x))[0]
def f32(x): return struct.unpack("<f", struct.pack("<f", x))[0]
def vr(b, n): return f"v[{b}:{b+n-1}]"
def u32(x): return x & 0xffffffff
def slices(lst, n):
    out = []; pos = 0
    for i in range(n):
        end = (i + 1)*len(lst)//n
        while 0 < end < len(lst) and lst[end-1].startswith("s_cmp"): end += 1
        out.append(lst[pos:end]); pos = max(pos, end)
    return out

NST = 9
def stamp(idx, ss=0):
    if ENC >= 0:
        if ss == 0 and idx in (0, ENC): A(f"s_memrealtime s[{80+2*idx}:{81+2*idx}]\ns_waitcnt lgkmcnt(0)")
        return
    hide = {1: (1, 2, 3, 4), 2: (1, 2, 3), 3: (1, 2, 6, 7, 8)}.get(SS, ())
    if STAMP and (ss == SS or (ss == 0 and idx not in hide)):
        A(f"s_memrealtime s[{80+2*idx}:{81+2*idx}]\ns_waitcnt lgkmcnt(0)")
ENCN = [0]
def stamp_flush():
    if ENC >= 0:
        ENCN[0] += 1; n = ENCN[0]
        A(f"""
        s_cmp_eq_u32 s2, {ENCWG}
        s_cbranch_scc0 L_enc_end{n}
        s_cmp_eq_u32 s{sW}, {ENCW}
        s_cbranch_scc0 L_enc_end{n}
        s_waitcnt vmcnt(0) lgkmcnt(0)
        s_memrealtime s[98:99]
        s_waitcnt lgkmcnt(0)
        s_sub_u32 s3, s{80+2*ENC}, s80
        s_and_b32 s3, s3, 0xfff
        s_lshl_b32 s3, s3, 2
        s_add_u32 s3, s3, s80
        s_add_u32 s3, s3, 2000
L_enc_spin{n}:
        s_memrealtime s[4:5]
        s_waitcnt lgkmcnt(0)
        s_sub_u32 s6, s4, s3
        s_cmp_lt_i32 s6, 0
        s_cbranch_scc1 L_enc_spin{n}
L_enc_end{n}:
        """)
        return
    if not STAMP: return
    A(f"""
    s_waitcnt vmcnt(0) lgkmcnt(0)
    s_memrealtime s[{80+2*NST}:{81+2*NST}]
    s_waitcnt lgkmcnt(0)
    s_mov_b64 exec, -1
    v_lshrrev_b32 v1, 6, v0
    s_lshl_b32 s3, s2, 3
    v_add_u32 v1, s3, v1
    v_lshlrev_b32 v1, 6, v1
    v_add_u32 v1, {WS_STAMP}, v1
    """)
    for i in range(12): A(f"v_mov_b32 v{4+i}, s{80+2*min(i, NST)}")
    A(f"""
    v_and_b32 v2, 63, v0
    v_cmp_eq_u32 vcc, 0, v2
    s_and_saveexec_b64 s[4:5], vcc
    buffer_store_dwordx4 v[4:7], v1, s[20:23], 0 offen
    buffer_store_dwordx4 v[8:11], v1, s[20:23], 0 offen offset:16
    buffer_store_dwordx4 v[12:15], v1, s[20:23], 0 offen offset:32
    """)

HEADER = f"""; gated mix of an S4 long convolution and a GeGLU FFN: one launch, one workgroup per CU, two wave programs.
; @launch grid=(256,1,1) block=(512,1,1) lds=163840
"""

PADS = set(); PLAN = {}
def pad(name, inline=True):
    if not STUBS or name not in PLAN: return
    if inline: A(f"s_branch L_skip_{name}")
    A(f"L_pad_{name}:\ns_branch L_warm_ret{PLAN[name][0]}")
    if inline: A(f"L_skip_{name}:")
    PADS.add(name)
def warm(r):
    if not STUBS: return
    for n, (rr, w) in PLAN.items():
        if rr == r: A(f"s_cmp_eq_u32 s{sW}, {w}\ns_cbranch_scc1 L_pad_{n}")
    A(f"L_warm_ret{r}:")

sW, sXoff, sWoff, sM0W, sM0X = 24, 25, 26, 27, 28
sIt, sHfl2, sTB, sFB, sWN, sI, sJ, sMov, sT, sSpin, sHst, sRX, sRW = 30, 31, 32, 33, 36, 38, 39, 40, 41, 42, 43, 44, 45
sDsk, sHfl, sK1, sK2, sRole = 48, 49, 54, 55, 100
sTok, sD, sH0, sH1, sLds, sFl, sWd, sRho, sCu = 50, 51, 52, 53, 64, 65, 66, 67, 29
sCga, sCfl = 50, 51
PAR = 120; vTab = 127
vWr = [72, 73]; vXr = [74, 75]; vJA = 76
ACC1 = 128
if KB:
    cKf0, cKf1, cKd0, cKd1, cKd2, cDk, cCb = 219, 220, 221, 222, 223, 232, 233
    KF = [48 + 4*i for i in range(24)]; KA = 176; KT = 184
else:
    cKf0, cKf1, cKd0, cKd1, cKd2, cDk = 5, 6, 7, 8, 9, 11
    KF = [16 + 4*i for i in range(12)] + [80 + 4*i for i in range(10)] + [64, 68]
    KA = 120; KT = 60
cA = [48, 49, 50, 51]; cB, cRw, cRr, cUr, cS0, cS1, cCnt = range(52, 59)
vG = 232
vXo = [240, 241]; vWo = 242; vDo = [248, 249]; vPoll, vZero, cMv, vOne = 250, 251, 252, 253
XA = 192; GV = 204; cZ0, cZ1, cImg, cUw, cLu0, cLu1 = range(213, 219); vU = 224
gD = [8, 9, 10, 11]; gR = [12, 13]; gFl, gL16, gT = 5, 6, 7

class Cnt:
    def __init__(self, name, cap): self.ops = []; self.name = name; self.cap = cap
    def note(self, tag): self.ops.append(tag)
    def issue(self, tag, text): A(text); self.ops.append(tag)
    def need(self, tags):
        idx = [i for i, t in enumerate(self.ops) if t in tags]
        if not idx: return None
        n = min(len(self.ops) - 1 - max(idx), self.cap)
        self.ops = self.ops[len(self.ops)-n:] if n else []
        return n
    def wait(self, tags):
        n = self.need(tags)
        if n is not None: A(f"s_waitcnt {self.name}({n})")

def x_dma(c):
    o = []
    for part in (1, 0):
        pre = [f"s_add_u32 s46, s{sRX}, {c*128}", "s_and_b32 s46, s46, 1023", f"s_add_u32 s46, s46, s{sXoff}"] if part else []
        o += [pre + [f"s_add_u32 m0, s{sM0X}, {u32((c&1)*16384 - part*8192)}", f"s_add_u32 s{sT}, s46, {u32(-part*65536)}",
                     f"buffer_load_dwordx4 v{vXo[0]}, s[8:11], s{sT} offen lds"],
              [f"buffer_load_dwordx4 v{vXo[1]}, s[8:11], s{sT} offen offset:1024 lds"]]
    return o
def w_dma(s):
    o = []
    for part in (1, 0):
        pre = [f"s_add_u32 s46, s{sRW}, {s}", "s_and_b32 s46, s46, 15", f"s_mul_i32 s46, s46, {WSTEP}", f"s_add_u32 s46, s46, s{sWoff}"] if part else []
        o += [pre + [f"s_add_u32 m0, s{sM0W}, {u32((s&3)*16384 - part*8192)}", f"s_add_u32 s{sT}, s46, {u32(-part*16*3584)}",
                     f"buffer_load_dwordx4 v{vWo}, s[12:15], s{sT} offen lds"],
              [f"buffer_load_dwordx4 v{vWo}, s[16:19], s{sT} offen offset:1024 lds"]]
    return o
def piece_off(kap): return 16384*(kap >> 1) + 2048*(kap & 1) + (RED - 98304 if kap >= 12 else 0)
def d_piece(kap, k):
    off = [f"s_add_u32 s{sT}, s{sWd}, {(k >> 1)*32768 + (k & 1)*8192}"]
    if k >= 4: off = [f"s_cmp_ge_u32 s{sRho}, {28 - k}", f"s_cselect_b32 s47, {28*16384}, 0"] + off + [f"s_sub_u32 s{sT}, s{sT}, s47"]
    return [[f"s_add_u32 m0, s{sLds}, {piece_off(kap)}"] + off + [f"buffer_load_dwordx4 v{vDo[0]}, s[68:71], s{sT} offen lds"],
            [f"buffer_load_dwordx4 v{vDo[1]}, s[68:71], s{sT} offen offset:1024 lds"]]

def prologue():
    A(f"""
    s_load_dwordx16 s[64:79], s[0:1], 8
    s_load_dwordx2 s[8:9], s[0:1], 0
    s_load_dwordx4 s[12:15], s[0:1], 80
    s_load_dwordx8 s[56:63], s[0:1], 96
    s_load_dwordx2 s[20:21], s[0:1], 128
    v_lshrrev_b32 v2, 6, v0
    v_and_b32 v1, 63, v0
    v_mov_b32 v{vZero}, 0
    v_mov_b32 v16, {CNT}
    v_mov_b32 v{vOne}, 1
    ds_write_b32 v16, v{vZero}
    ds_write_b32 v16, v{vZero} offset:4
    v_and_b32 v3, 255, v0
    v_readfirstlane_b32 s{sW}, v2
    s_lshl_b32 s3, s2, 8
    v_add_u32 v3, s3, v3
    v_lshlrev_b32 v3, 1, v3
    v_lshrrev_b32 v4, 7, v3
    v_and_b32 v4, 0xfffffffe, v4
    """)
    if STUBS: A(f"s_cmp_lt_u32 s2, 224\ns_cbranch_scc1 L_warm0\ns_cmp_eq_u32 s{sW}, 4\ns_cbranch_scc1 L_pad_mv\nL_warm0:")
    warm(0)
    A(f"""
    s_and_b32 s{sWN}, s{sW}, 3
    s_and_b32 s3, s2, 7
    s_lshr_b32 s4, s2, 3
    s_lshr_b32 s{sTB}, s3, 1
    s_lshl_b32 s{sTB}, s{sTB}, 2
    s_and_b32 s5, s4, 3
    s_add_u32 s{sTB}, s{sTB}, s5
    s_lshl_b32 s{sI}, s3, 2
    s_add_u32 s{sI}, s{sI}, s5
    s_and_b32 s{sFB}, s3, 1
    s_mul_i32 s{sFB}, s{sFB}, 7
    s_lshr_b32 s{sJ}, s4, 2
    s_add_u32 s{sFB}, s{sFB}, s{sJ}
    s_xor_b32 s{sJ}, s{sJ}, {4 if JSW else 0}
    s_lshl_b32 s{sXoff}, s{sTB}, 17
    s_lshl_b32 s5, s{sW}, 14
    s_add_u32 s{sXoff}, s{sXoff}, s5
    s_mul_i32 s{sWoff}, s{sW}, {4*3584}
    s_lshl_b32 s5, s{sFB}, 8
    s_add_u32 s{sWoff}, s{sWoff}, s5
    s_and_b32 s{sRW}, s3, 6
    s_lshl_b32 s{sRX}, s{sRW}, 7
    s_lshl_b32 s{sRW}, s{sRW}, 1
    s_lshl_b32 s{sM0W}, s{sW}, 11
    s_add_u32 s{sM0X}, s{sM0W}, {XB}
    v_lshrrev_b32 v16, 4, v1
    v_and_b32 v17, 7, v1
    v_xor_b32 v18, v17, v16
    v_lshrrev_b32 v19, 3, v1
    v_lshlrev_b32 v19, 10, v19
    v_lshl_add_u32 v{vXo[0]}, v18, 4, v19
    v_xor_b32 v{vXo[1]}, 64, v{vXo[0]}
    v_add_u32 v{vXo[1]}, 7168, v{vXo[1]}
    v_lshlrev_b32 v17, 2, v16
    v_and_b32 v{vWo}, 15, v1
    v_xor_b32 v{vWo}, v{vWo}, v17
    s_and_b32 s5, s{sW}, 2
    v_xor_b32 v{vWo}, s5, v{vWo}
    v_lshlrev_b32 v{vWo}, 4, v{vWo}
    v_mul_u32_u24 v16, 3584, v16
    v_add_u32 v{vWo}, v{vWo}, v16
    s_mov_b32 s10, 0x200000
    s_mov_b32 s11, 0x00020000
    s_mov_b32 s18, {512*1792*2 + 1024}
    s_mov_b32 s19, 0x00020000
    s_mov_b32 s22, {WS_BYTES}
    s_mov_b32 s23, 0x00020000
    s_waitcnt lgkmcnt(0)
    s_sub_u32 s16, s14, 1024
    s_subb_u32 s17, s15, 0
    s_mov_b32 s14, {512*1792*2}
    s_mov_b32 s15, 0x00020000
    """)
    params(0, 3)
    A(f"s_cmp_ge_u32 s{sW}, 4\ns_cbranch_scc1 L_role_b")
    params(3, 7)

def params(i0, i1):
    for i, p in list(enumerate((76, 64, 66, 68, 70, 72, 74)))[i0:i1]:
        A(f"global_load_ushort v{PAR+i}, v{4 if i == 0 else 3}, s[{p}:{p+1}]")

def common_setup():
    A(f"""
    v_and_b32 v{vTab}, 127, v0
    v_lshlrev_b32 v{vTab}, 2, v{vTab}
    s_lshr_b32 s6, s{sWN}, 1
    s_mul_i32 s4, s6, {57*PITCH}
    s_add_u32 s4, s4, {TB}
    v_add_u32 v{vTab}, s4, v{vTab}
    s_mov_b32 s{sK1}, {fbits(f32(L2E))}
    s_mov_b32 s{sK2}, {fbits(L2E - f32(L2E))}
    s_mov_b32 s68, s56
    s_mov_b32 s69, s57
    s_mov_b32 s70, {1792*1024}
    s_mov_b32 s71, 0x00020000
    s_and_b32 s{sRho}, s2, 7
    s_cmp_eq_u32 s{sRho}, 7
    s_cselect_b32 s{sRho}, 3, s{sRho}
    s_lshl_b32 s{sRho}, s{sRho}, 2
    s_mov_b32 s{sSpin}, {SPIN}
    s_lshl_b32 s3, s2, 2
    s_load_dword s{sDsk}, s[78:79], s3
    """)

def g1_setup():
    A(f"""
    v_lshrrev_b32 v16, 2, v1
    v_and_b32 v16, 3, v16
    v_xor_b32 v17, s{sWN}, v16
    v_lshlrev_b32 v{vWr[0]}, 8, v16
    v_lshl_add_u32 v{vWr[0]}, v17, 6, v{vWr[0]}
    v_lshrrev_b32 v16, 4, v1
    v_lshl_add_u32 v{vWr[0]}, v16, 12, v{vWr[0]}
    v_and_b32 v17, 1, v16
    v_lshl_add_u32 v{vWr[0]}, v17, 5, v{vWr[0]}
    v_and_b32 v17, 3, v1
    v_lshl_add_u32 v{vWr[0]}, v17, 3, v{vWr[0]}
    v_xor_b32 v{vWr[1]}, 32, v{vWr[0]}
    v_lshrrev_b32 v17, 1, v1
    v_and_b32 v17, 7, v17
    v_xor_b32 v17, v17, v16
    v_and_b32 v18, 15, v1
    v_lshlrev_b32 v{vXr[0]}, 7, v18
    v_lshl_add_u32 v{vXr[0]}, v17, 4, v{vXr[0]}
    v_add_u32 v{vXr[0]}, {XB}, v{vXr[0]}
    v_xor_b32 v{vXr[1]}, 64, v{vXr[0]}
    v_lshlrev_b32 v10, 4, v18
    v_lshl_add_u32 v10, v16, 9, v10
    v_mov_b32 v12, {fbits(-2.0 * L2E * math.sqrt(2.0/math.pi))}
    v_mov_b32 v13, v12
    v_mov_b32 v14, 1
    v_mov_b32 v15, 0
    s_mul_i32 s{sHst}, s{sTB}, 448
    s_lshl_b32 s5, s{sFB}, 2
    s_add_u32 s5, s5, s{sWN}
    s_lshl_b32 s4, s5, 1
    s_add_u32 s{sHst}, s{sHst}, s4
    s_lshl_b32 s{sHst}, s{sHst}, 10
    s_mul_i32 s3, s{sTB}, 112
    s_add_u32 s3, s3, s5
    s_lshl_b32 s3, s3, 7
    s_add_u32 s{sHfl}, s3, {WS_FLAG}
    s_add_u32 s{sHfl2}, s{sHfl}, {56*128}
    s_mov_b32 s34, {fbits(-2.0 * L2E * math.sqrt(2.0/math.pi) * 0.044715)}
    s_mov_b32 s35, s34
    s_mov_b32 s{sIt}, 0
    s_lshl_b32 s{sCga}, s2, 13
    s_add_u32 s{sCga}, s{sCga}, {WS_GA}
    s_lshl_b32 s3, s2, 2
    s_add_u32 s3, s3, s{sWN}
    s_lshl_b32 s3, s3, 7
    s_add_u32 s{sCfl}, s3, {WS_FLAG2}
    """)

def k_setup1():
    return lines(f"""
    s_lshr_b32 s6, s{sWN}, 1
    s_and_b32 s7, s{sWN}, 1
    s_mul_i32 s4, s6, {57*PITCH}
    s_add_u32 s4, s4, {TB}
    v_and_b32 v16, 15, v1
    v_lshrrev_b32 v17, 4, v1
    v_mul_u32_u24 v{cKf0}, {PITCH}, v16
    v_lshl_add_u32 v{cKf0}, v17, 4, v{cKf0}
    v_add_u32 v{cKf0}, s4, v{cKf0}
    s_mul_i32 s4, s7, {16*PITCH}
    v_add_u32 v{cKf1}, s4, v{cKf0}
    s_lshl_b32 s3, s6, 1
    s_add_u32 s3, s3, {KD}
    v_lshrrev_b32 v18, 1, v17
    v_and_b32 v19, 1, v17
    v_lshlrev_b32 v24, 7, v18
    v_lshl_add_u32 v24, v19, 2, v24
    v_lshl_add_u32 v24, v16, 3, v24
    v_lshlrev_b32 v25, 6, v17
    v_add_u32 v25, 256, v25
    v_lshl_add_u32 v26, v16, 2, v25
    v_lshl_add_u32 v27, v16, 1, v25
    v_cmp_gt_u32 vcc, 2, v17
    v_mov_b32 v28, 32
    v_lshl_add_u32 v25, v17, 6, v16
    v_cndmask_b32 v26, v27, v26, vcc
    v_cndmask_b32 v28, v28, 2, vcc
    s_cmp_eq_u32 s7, 0
    s_cselect_b64 vcc, -1, 0
    v_lshl_add_u32 v{cKd2}, v25, 2, s3
    v_cndmask_b32 v26, v26, v24, vcc
    v_cndmask_b32 v28, v28, 2, vcc
    v_add_u32 v28, v26, v28
    v_lshl_add_u32 v{cKd0}, v26, 2, s3
    v_lshl_add_u32 v{cKd1}, v28, 2, s3
    """)

def conv_setup():
    A(f"""
    s_lshr_b32 s6, s{sWN}, 1
    s_and_b32 s7, s{sWN}, 1
    s_mul_i32 s5, s6, {CH}
    s_add_u32 s5, s5, {TB}
    v_and_b32 v60, 15, v1
    v_lshrrev_b32 v61, 4, v1
    v_and_b32 v62, 1, v60
    v_xor_b32 v62, 1, v62
    v_mul_u32_u24 v62, 4160, v62
    v_and_b32 v63, 14, v60
    v_lshlrev_b32 v63, 1, v63
    v_sub_u32 v62, v62, v63
    v_lshl_add_u32 v62, v61, 4, v62
    s_lshl_b32 s4, s7, 8
    s_sub_u32 s4, s5, s4
    s_add_u32 s3, s4, {4060 - 512 - 192}
    v_add_u32 v{cA[0]}, s3, v62
    v_subrev_u32 v{cA[1]}, 1024, v{cA[0]}
    v_subrev_u32 v{cA[2]}, 2048, v{cA[0]}
    v_subrev_u32 v{cA[3]}, 3072, v{cA[0]}
    v_lshlrev_b32 v{cB}, 5, v60
    v_lshl_add_u32 v{cB}, v61, 4, v{cB}
    s_add_u32 s3, s4, {UOFF + 480 - 192}
    v_add_u32 v{cB}, s3, v{cB}
    v_lshlrev_b32 v{cRw}, 6, v60
    v_lshl_add_u32 v{cRw}, v61, 4, v{cRw}
    s_lshl_b32 s3, s{sWN}, 13
    s_add_u32 s3, s3, {RED}
    v_add_u32 v{cRw}, s3, v{cRw}
    v_lshlrev_b32 v{cS0}, 4, v0
    v_add_u32 v{cS1}, 4096, v{cS0}
    v_add_u32 v{cRr}, {RED}, v{cS0}
    v_mov_b32 v{cCnt}, {CNT}
    """)

def b_setup1():
    return lines(f"""
    v_lshrrev_b32 v16, 4, v1
    v_and_b32 v16, 1, v16
    v_lshlrev_b32 v16, 2, v16
    v_and_b32 v17, 7, v1
    v_xor_b32 v16, v16, v17
    v_lshrrev_b32 v17, 3, v1
    v_lshlrev_b32 v17, 10, v17
    v_lshl_add_u32 v{vDo[0]}, v16, 4, v17
    v_add_u32 v{vDo[1]}, 15360, v{vDo[0]}
    s_lshl_b32 s{sLds}, s{sWN}, 12
    s_mul_i32 s{sWd}, s{sWN}, 28
    s_add_u32 s{sWd}, s{sWd}, s{sRho}
    s_lshl_b32 s3, s{sWd}, 10
    s_lshl_b32 s{sWd}, s{sWd}, 14
    s_lshl_b32 s4, s{sJ}, 7
    s_add_u32 s{sWd}, s{sWd}, s4
    s_and_b32 s6, s{sWN}, 1
    s_lshr_b32 s7, s{sWN}, 1
    s_lshl_b32 s{sTok}, s{sI}, 1
    s_add_u32 s{sTok}, s{sTok}, s6
    s_lshl_b32 s{sD}, s{sJ}, 1
    s_add_u32 s{sD}, s{sD}, s7
    s_mul_i32 s{sH0}, s{sTok}, {112*1024}
    s_xor_b32 s4, s{sTok}, 1
    s_mul_i32 s{sH1}, s4, {112*1024}
    s_add_u32 s{sH0}, s{sH0}, s3
    s_add_u32 s{sH1}, s{sH1}, s3
    v_and_b32 v17, 16, v1
    v_lshlrev_b32 v18, 1, v17
    v_and_b32 v17, 1, v1
    v_lshl_add_u32 v18, v17, 4, v18
    v_and_b32 v17, 2, v1
    v_lshl_add_u32 v18, v17, 2, v18
    v_lshrrev_b32 v16, 2, v1
    v_and_b32 v16, 3, v16
    v_lshrrev_b32 v17, 5, v1
    v_lshl_add_u32 v19, v17, 2, v16
    v_lshl_add_u32 v{gD[0]}, v19, 7, v18
    v_lshrrev_b32 v16, 1, v16
    v_xor_b32 v16, s7, v16
    v_lshl_add_u32 v{gD[0]}, v16, 6, v{gD[0]}
    v_add_u32 v{gD[0]}, s{sLds}, v{gD[0]}
    v_xor_b32 v{gD[1]}, 64, v{gD[0]}
    v_add_u32 v{gD[2]}, 0x10000, v{gD[0]}
    v_add_u32 v{gD[3]}, 0x10000, v{gD[1]}
    v_add_u32 v{gR[0]}, {RED}, v{gD[0]}
    v_add_u32 v{gR[1]}, {RED}, v{gD[1]}
    v_lshlrev_b32 v{gFl}, 7, v1
    s_lshl_b32 s{sFl}, s{sI}, 2
    s_add_u32 s{sFl}, s{sFl}, s{sWN}
    s_mul_i32 s{sFl}, s{sFl}, {14*128}
    s_add_u32 s{sFl}, s{sFl}, {WS_FLAG}
    v_lshlrev_b32 v{gL16}, 4, v1
    """)
def b_setup2():
    CB = 0x4300 - 128
    o = lines(f"""
    v_and_b32 v32, 255, v0
    v_lshrrev_b32 v33, 3, v32
    v_lshlrev_b32 v{cLu0}, 10, v33
    v_and_b32 v26, 7, v32
    v_lshl_add_u32 v{cLu0}, v26, 4, v{cLu0}
    v_xor_b32 v26, s2, v33
    v_and_b32 v26, 7, v26
    v_lshl_add_u32 v{cLu0}, v26, 7, v{cLu0}
    v_add_u32 v{cLu1}, 32768, v{cLu0}
    s_lshr_b32 s{sCu}, s2, 3
    s_lshl_b32 s{sCu}, s{sCu}, 16
    s_add_u32 s{sCu}, s{sCu}, {WS_UT}
    s_and_b32 s3, s2, 31
    s_lshl_b32 s3, s3, 7
    s_add_u32 s3, s3, {WS_FLAG3}
    v_mov_b32 v{cMv}, s3
    v_lshlrev_b32 v{cUw}, 6, v33
    v_and_b32 v26, 3, v32
    v_lshl_add_u32 v{cUw}, v26, 4, v{cUw}
    v_bfe_u32 v26, v32, 2, 1
    v_mul_u32_u24 v26, {CH}, v26
    v_add_u32 v{cUw}, v{cUw}, v26
    v_add_u32 v{cUw}, {TB + UOFF + 512}, v{cUw}
    s_lshr_b32 s6, s{sWN}, 1
    s_and_b32 s7, s{sWN}, 1
    s_mul_i32 s5, s6, {CH}
    s_add_u32 s5, s5, {TB}
    v_and_b32 v26, 127, v0
    v_lshl_add_u32 v{cZ0}, v26, 2, s5
    v_and_b32 v{cZ1}, 60, v{cZ0}
    s_mul_i32 s3, s7, 4160
    s_add_u32 s3, s3, s5
    v_add_u32 v{cZ1}, s3, v{cZ1}
    v_lshlrev_b32 v{cImg}, 4, v32
    v_add_u32 v{cImg}, {TB}, v{cImg}
    v_lshlrev_b32 v29, 3, v32
    v_sub_u32 v29, 2047, v29
    v_cvt_f32_i32 v30, v29
    v_add_u32 v29, {CB}, v29
    v_mov_b32 v31, {128 + CB}
    s_mov_b32 s3, {KD - 4*CB}
    """)
    for e in range(9):
        r = XA + e
        o += [f"v_subrev_f32 v{r}, {fbits(float(e))}, v30", f"v_cvt_pk_bf16_f32 v{r}, v{r}, 0",
              f"v_subrev_u32 v24, {e}, v29", f"v_med3_i32 v{r}, v{r}, v24, v31", f"v_lshl_add_u32 v{r}, v{r}, 2, s3"]
    return o

def tab_common():
    return lines(f"""
    v_lshlrev_b32 v{PAR}, 16, v{PAR}
    v_lshlrev_b32 v16, 16, v{PAR+1}
    v_lshlrev_b32 v17, 16, v{PAR+2}
    v_mul_f32 v18, s{sK1}, v{PAR}
    v_fma_f32 v19, v{PAR}, s{sK1}, -v18
    v_fma_f32 v19, v{PAR}, s{sK2}, v19
    v_exp_f32 v18, v18
    v_mul_f32 v19, {fbits(math.log(2.0))}, v19
    v_fmac_f32 v18, v18, v19
    v_cvt_pk_bf16_f32 v18, 0, v18
    v_mul_f32 v16, v18, v16
    v_mul_f32 v17, v18, v17
    v_mul_f32 v16, s{sK1}, v16
    v_mul_f32 v17, 0.15915494, v17
    """)
def cexp(e, s, t):
    if s == 1.0: o = [f"v_exp_f32 v{t}, v16", f"v_fract_f32 v{t+1}, v17"]
    else: o = [f"v_mul_f32 v{t}, {fbits(s)}, v16", f"v_mul_f32 v{t+1}, {fbits(s)}, v17", f"v_exp_f32 v{t}, v{t}", f"v_fract_f32 v{t+1}, v{t+1}"]
    return o + [f"v_cos_f32 v{e}, v{t+1}", f"v_sin_f32 v{e+1}, v{t+1}", f"v_mul_f32 v{e}, v{t}, v{e}", f"v_mul_f32 v{e+1}, v{t}, v{e+1}"]
def cmul(d, a, b):
    return [f"v_pk_mul_f32 {vr(d,2)}, {vr(a,2)}, {vr(b,2)} op_sel_hi:[0,1]",
            f"v_pk_fma_f32 {vr(d,2)}, {vr(a,2)}, {vr(b,2)}, {vr(d,2)} op_sel:[1,1,0] op_sel_hi:[1,0,1] neg_lo:[0,1,0]"]
class Putter:
    def __init__(self, base): self.base = base; self.i = 0
    def __call__(self, row, r, ng=False):
        t = self.base + (self.i & 3); self.i += 1
        return [f"v_cvt_pk_bf16_f32 v{t}, v{r}, {'-' if ng else ''}v{r+1}", f"ds_write_b32 v{vTab}, v{t} offset:{row*PITCH}"]
PR = 16
def tables_a():
    put = Putter(108)
    E1, E8, E128, DB, C = 44, 24, 28, 32, 36
    o = tab_common() + cexp(E1, 1.0, 40) + cexp(E128, 128.0, 42)
    o += put(PR + 1, E1) + put(PR + 8, E128) + cexp(E8, 8.0, 40)
    o += lines(f"""
    v_lshlrev_b32 v{DB}, 16, v{PAR+3}
    v_lshlrev_b32 v{DB+1}, 16, v{PAR+4}
    v_lshlrev_b32 v{C}, 16, v{PAR+5}
    v_lshlrev_b32 v{C+1}, 16, v{PAR+6}
    v_mul_f32 v{DB}, v18, v{DB}
    v_mul_f32 v{DB+1}, v18, v{DB+1}
    """)
    q = [20, 22]; jq = list(range(1, 16))
    o += cmul(q[0], C, DB) + put(0, q[0], True)
    def do_q():
        i = jq.pop(0); r = cmul(q[1], q[0], E8); q.reverse(); return r + put(i, q[0], True)
    o += cmul(52, E1, E128) + do_q() + put(PR + 9, 52)
    cur = E1; nx = 48
    for p in range(2, 8):
        o += cmul(nx, cur, E1); cur, nx = nx, (50 if nx == 48 else 48)
        d = 52 + 2*(p & 1)
        o += do_q() + put(PR + p, cur) + cmul(d, cur, E128) + do_q() + put(PR + 8 + p, d)
    while jq: o += do_q()
    return o
def tables_b():
    put = Putter(108)
    E128, F2, F4, F6, E256 = 20, 24, 28, 32, 44
    o = tab_common() + cexp(E128, 128.0, 40) + cexp(F2, 2.0, 42)
    o += ["v_mov_b32 v111, 0x3f80", f"ds_write_b32 v{vTab}, v111 offset:{PR*PITCH}"]
    o += cmul(E256, E128, E128) + cmul(F4, F2, F2) + cmul(38, E256, E128) + cmul(F6, F4, F2)
    ch = {0: [E256, 96, 98], 1: [38, 100, 102]}; pp = 0
    for h in range(2, 17):
        c = ch[h & 1]; cur = c[0]
        if h + 2 <= 16: o += cmul(c[1], cur, E256)
        if h < 4: rows = [(PR + 16 + 4*(h-2) + p, f) for p, f in ((1, F2), (2, F4), (3, F6))]; r0 = PR + 16 + 4*(h-2)
        elif h < 8: rows = [(PR + 24 + 2*(h-4) + 1, F4)]; r0 = PR + 24 + 2*(h-4)
        else: rows = []; r0 = PR + 32 + (h-8)
        o += put(r0, cur)
        for row, f in rows:
            d = 40 + 2*(pp & 1); pp += 1
            o += cmul(d, cur, f) + put(row, d)
        ch[h & 1] = [c[1], c[2], c[1]] if h < 4 else [c[1], c[0], c[1]]
    return o
def k_reads():
    return sum(([f"ds_read_b128 {vr(KF[3*s],4)}, v{cKf0} offset:{64*s}",
                 f"ds_read_b128 {vr(KF[3*s+1],4)}, v{cKf1} offset:{16*PITCH+64*s}",
                 f"ds_read_b128 {vr(KF[3*s+2],4)}, v{cKf0} offset:{48*PITCH+64*s}"] for s in range(8)), [])
def k_mfma(waits):
    for s in range(8):
        if waits: A(f"s_waitcnt lgkmcnt({min(15, 21 - 3*s)})")
        A([f"v_mfma_f32_16x16x32_bf16 {vr(KA,4)}, {vr(KF[3*s+1],4)}, {vr(KF[3*s],4)}, {'0' if s == 0 else vr(KA,4)}",
           f"v_mfma_f32_16x16x32_bf16 {vr(KA+4,4)}, {vr(KF[3*s+2],4)}, {vr(KF[3*s],4)}, {'0' if s == 0 else vr(KA+4,4)}"])
    return lines(f"""
    v_add_f32 v{KA}, v{KA}, v{cDk}
    v_cvt_pk_bf16_f32 v{KT}, v{KA}, v{KA+1}
    v_cvt_pk_bf16_f32 v{KT+1}, v{KA+2}, v{KA+3}
    v_cvt_pk_bf16_f32 v{KT+2}, v{KA+4}, v{KA+5}
    v_cvt_pk_bf16_f32 v{KT+3}, v{KA+6}, v{KA+7}
    ds_write_b16 v{cKd0}, v{KT}
    ds_write_b16_d16_hi v{cKd0}, v{KT} offset:4
    ds_write_b16 v{cKd1}, v{KT+1}
    ds_write_b16_d16_hi v{cKd1}, v{KT+1} offset:4
    ds_write_b16 v{cKd2}, v{KT+2} offset:2048
    ds_write_b16_d16_hi v{cKd2}, v{KT+2} offset:{2048+64}
    ds_write_b16 v{cKd2}, v{KT+3} offset:{2048+128}
    ds_write_b16_d16_hi v{cKd2}, v{KT+3} offset:{2048+192}
    """)
def k_part1():
    A(k_reads()); return k_mfma(True)
def dskip():
    return lines(f"""
    s_lshl_b32 s3, s{sDsk}, 16
    s_and_b32 s4, s{sDsk}, 0xffff0000
    s_cmp_lt_u32 s{sWN}, 2
    s_cselect_b32 s3, s3, s4
    s_and_b32 s4, s{sWN}, 1
    s_cmp_eq_u32 s4, 0
    s_cselect_b32 s3, s3, 0
    v_mov_b32 v{cDk}, 0
    v_writelane_b32 v{cDk}, s3, 0
    """)
def k_gather(): return [f"ds_read_b32 v{GV+e}, v{XA+e}" for e in range(9)]
def k_pack():
    o = ["v_cmp_ne_u32 vcc, 0x1ff, v0", f"ds_write_b32 v{cZ0}, v{vZero} offset:{UOFF}",
         f"ds_write_b32 v{cZ1}, v{vZero} offset:4096", f"v_cndmask_b32 v{GV+8}, 0, v{GV+8}, vcc",
         f"s_mov_b32 s{sK1}, 0x05040100", f"s_mov_b32 s{sK2}, 0x07060302"]
    n = 0
    for c, sel in ((0, sK1), (1, sK2)):
        for k in range(2):
            for i in range(4): o.append(f"v_perm_b32 v{16+4*n+i}, v{GV+2*i+k+1}, v{GV+2*i+k}, s{sel}")
            o.append(f"ds_write_b128 v{cImg}, {vr(16+4*n,4)} offset:{c*CH + k*4160}")
            n += 1
    return o

LD_INIT = f"global_load_dword v{vPoll}, v{vZero}, s[62:63] sc1"
LD_MV = f"buffer_load_dword v{vPoll}, v{cMv}, s[20:23], 0 offen sc1"
def poll(lb, target, ld):
    A(f"""
{lb}:
    v_cmp_gt_u32 vcc, {target}, v{vPoll}
    s_cbranch_vccz {lb}_ok
    s_sub_u32 s{sSpin}, s{sSpin}, 1
    s_cbranch_scc1 {lb}_ok
    s_sleep 8
    {ld}
    s_waitcnt vmcnt(0)
    s_branch {lb}
{lb}_ok:
    """)

def gemm1_a():
    FA = [16, 32]; FB = [80, 96]
    def ra(p):
        f = FA[p & 1]; o = (p & 3)*16384
        return [f"ds_read_b64_tr_b16 {vr(f+8*mat+4*T+2*ih,2)}, v{vWr[T]} offset:{o + 1024*mat + 2048*ih}"
                for mat in range(2) for T in range(2) for ih in range(2)]
    def rb(p, h):
        xo = ((p >> 1) & 1)*16384
        return [f"ds_read_b128 {vr(FB[h]+4*i,4)}, v{vXr[p & 1]} offset:{xo + 2048*(4*h + i)}" for i in range(4)]
    A("s_waitcnt lgkmcnt(0)\ns_barrier")
    tail = [] if KB else k_part1()
    stamp(3)
    A(ra(0) + rb(0, 0)); A(tail)
    A("L_g1_loop:")
    for p in range(4):
        for h in range(2):
            A("s_waitcnt lgkmcnt(0)")
            if h: A("s_barrier")
            r = rb(p, 1) if h == 0 else (ra(p + 1)[:2] + rb(p + 1, 0)[:1] + ra(p + 1)[2:] + rb(p + 1, 0)[1:])
            up = UPF if h else UP0
            A(r[:up]); r = r[up:]
            if AORD == 0: order = [(i, a) for i in range(4) for a in range(4)]
            elif AORD == 1: order = [(i, a) for a in range(4) for i in range(4)]
            elif AORD == 2: order = [(i, a if i % 2 == 0 else 3 - a) for i in range(4) for a in range(4)]
            else: order = [(i if a % 2 == 0 else 3 - i, a) for a in range(4) for i in range(4)]
            for n, (i, a) in enumerate(order):
                tt = 4*h + i; mat, T = a >> 1, a & 1
                d = vr(ACC1 + 32*(tt >> 1) + 16*mat + 8*(tt & 1) + 4*T, 4)
                A(f"v_mfma_f32_16x16x32_bf16 {d}, {vr(FA[p & 1]+8*mat+4*T,4)}, {vr(FB[h]+4*i,4)}, {d}")
                if r: A(r.pop(0))
                if p == 3 and h == 1 and n == 13: A(f"s_add_u32 s{sIt}, s{sIt}, 1\ns_cmp_lt_u32 s{sIt}, 4")
    if STAMP and SS == 3:
        A("s_mov_b32 s92, s94\ns_mov_b32 s94, s96\ns_mov_b32 s96, s98\ns_memrealtime s[98:99]\ns_waitcnt lgkmcnt(0)")
    A("s_cbranch_scc1 L_g1_loop")

def publish(sreg, n):
    A(f"""
    s_mov_b64 exec, 1
    s_waitcnt vmcnt({n})
    buffer_store_dword v14, v15, s[20:23], s{sreg} offen sc1
    s_mov_b64 exec, -1
    """)

def geglu(tt):
    G = ACC1 + 32*tt; U = G + 16
    O = 64 + 0*(tt & 1) if tt == 3 else 96 + 8*(tt & 1); T = 32
    for p in range(8): A(f"v_pk_mul_f32 {vr(T+2*p,2)}, {vr(G+2*p,2)}, {vr(G+2*p,2)}")
    for p in range(8): A(f"v_pk_fma_f32 {vr(T+2*p,2)}, {vr(T+2*p,2)}, s[34:35], v[12:13]")
    for p in range(8): A(f"v_pk_mul_f32 {vr(T+2*p,2)}, {vr(T+2*p,2)}, {vr(G+2*p,2)}")
    for p in range(16): A(f"v_exp_f32 v{T+p}, v{T+p}")
    for p in range(8): A(f"v_pk_mul_f32 {vr(G+2*p,2)}, {vr(G+2*p,2)}, {vr(U+2*p,2)}")
    for p in range(8): A(f"v_pk_add_f32 {vr(T+2*p,2)}, {vr(T+2*p,2)}, 1.0 op_sel_hi:[1,0]")
    for p in range(16): A(f"v_rcp_f32 v{T+p}, v{T+p}")
    for p in range(8): A(f"v_pk_mul_f32 {vr(G+2*p,2)}, {vr(G+2*p,2)}, {vr(T+2*p,2)}")
    for p in range(8): A(f"v_cvt_pk_bf16_f32 v{O+p}, v{G+2*p}, v{G+2*p+1}")
    A(f"buffer_store_dwordx4 {vr(O,4)}, v10, s[20:23], s{sHst} offen sc1")
    A(f"buffer_store_dwordx4 {vr(O+4,4)}, v10, s[20:23], s{sHst} offen offset:256 sc1")
    if tt < 3: A(f"s_add_u32 s{sHst}, s{sHst}, {112*1024}")

def role_a():
    A(f"s_mov_b32 s{sRole}, 0\nv_mov_b64 v[40:41], 0\nv_mov_b64 v[42:43], 0")
    common_setup(); g1_setup(); pad("su")
    if not KB: A(k_setup1())
    A("s_cmp_ge_u32 s2, 224\ns_cbranch_scc1 L_mv_a")
    for i in range(8):
        A(f"v_mfma_f32_32x32x16_bf16 {vr(ACC1+16*i,16)}, v[40:43], v[40:43], 0")
    A("s_waitcnt vmcnt(0)")
    if T2:
        A(f"""
        s_cmp_ge_u32 s{sW}, 2
        s_cbranch_scc1 L_a_tab
        s_lshl_b32 s3, s2, 1
        s_add_u32 s3, s3, s{sW}
        s_mul_i32 s3, s3, {37*128}
        v_min_u32 v112, 36, v1
        v_lshlrev_b32 v112, 7, v112
        buffer_load_dword v{vJA}, v112, s[8:11], s3 offen
        """)
    A("L_a_tab:")
    stamp(1)
    t = tables_a()
    A(t[:50]); pad("tb0"); A(t[50:])
    stamp(2)
    if not KB: A("s_waitcnt lgkmcnt(0)"); A(dskip())
    A("s_cmp_ge_u32 s2, 224\ns_cbranch_scc1 L_mv_a2")
    if AGT:
        A(f"""
        s_lshl_b32 s3, s2, 2
        s_add_u32 s3, s3, s{sW}
        s_lshl_b32 s3, s3, 11
        v_and_b32 v112, 15, v1
        v_lshlrev_b32 v112, 7, v112
        buffer_load_dword v{vJA}, v112, s[68:71], s3 offen
        """)
    if C3:
        A(f"""
        s_lshr_b32 s3, s2, 3
        s_lshl_b32 s3, s3, 14
        s_mul_i32 s4, s{sW}, {448*1024}
        s_add_u32 s3, s3, s4
        v_and_b32 v113, 15, v1
        v_lshlrev_b32 v113, 10, v113
        buffer_load_dword v{vJA}, v113, s[68:71], s3 offen offset:384
        """)
    A("s_setprio 1")
    gemm1_a()
    stamp(4)
    geglu(0); pad("ea0")
    geglu(1)
    geglu(2); pad("ea1")
    publish(sHfl, 2)
    geglu(3)
    stamp(5)
    conv_setup()
    if CST < 0: publish(sHfl2, 0)
    A("L_a_join:")
    conv()

G1 = [0, 1, 8, 9, 2, 3]; G2 = [4, 5, 10, 11, 6, 7]
STG = {k: 48 + 8*i for i, k in enumerate(G1 + G2)}
STG.update({24 + i: 144 + 8*i for i in range(4)})
def wd_reads(kap, d0, d1):
    o = piece_off(kap)
    if kap >= 12: base = gR; o -= RED
    elif o >= 65536: base = gD[2:4]; o -= 65536
    else: base = gD[0:2]
    return [f"ds_read_b64_tr_b16 {vr((d0, d1)[dd]+2*ih,2)}, v{base[dd]} offset:{o + 1024*ih}" for dd in range(2) for ih in range(2)]

def u_loads(vm):
    vm.issue("u", f"buffer_load_dwordx4 {vr(vU,4)}, v{cLu0}, s[20:23], s{sCu} offen sc1")
    vm.issue("u", f"buffer_load_dwordx4 {vr(vU+4,4)}, v{cLu1}, s[20:23], s{sCu} offen sc1")

def b_finish(vm, lb):
    late = []
    if KB:
        tail = k_mfma(False)
        vm.wait({"mv"}); poll(lb, 1, LD_MV)
        u_loads(vm)
        A("s_nop 3"); A(tail)
        A(f"""
        s_mov_b64 exec, 1
        s_waitcnt lgkmcnt(0)
        ds_add_u32 v{cCb}, v{vOne}
        s_mov_b64 exec, -1
        """)
    def stage(ks, refill=True):
        vm.wait({("d", k) for k in ks})
        for k in ks: A(wd_reads(k, STG[k], STG[k] + 4))
        A("s_waitcnt lgkmcnt(0)")
        for k in ks:
            if refill:
                for g in d_piece(k, k + 12): vm.issue(("d", k + 12), g)
            else: late.append(k)
    stage(G1[0:2], RLATE < 12); stage(G1[2:4], RLATE < 10)
    if not KB:
        vm.wait({"mv"}); poll(lb, 1, LD_MV)
        u_loads(vm)
    else:
        A(f"""
        s_mov_b64 exec, 1
{lb}_k:
        ds_read_b32 v2, v{cCb}
        s_waitcnt lgkmcnt(0)
        v_cmp_gt_u32 vcc, 4, v2
        s_cbranch_vccz {lb}_kgo
        s_sub_u32 s{sSpin}, s{sSpin}, 1
        s_cbranch_scc0 {lb}_k
{lb}_kgo:
        s_mov_b64 exec, -1
        """)
        A(k_gather())
    stage(G1[4:6] + G2[0:2], RLATE < 8)
    vm.wait({("d", 24 + i) for i in range(4)})
    for i in range(4): A(wd_reads(12 + i, STG[24 + i], STG[24 + i] + 4))
    A(k_pack())
    stage(G2[2:6], RLATE < 4)
    vm.wait({"u"})
    A(f"ds_write_b128 v{cUw}, {vr(vU,4)}\nds_write_b128 v{cUw}, {vr(vU+4,4)} offset:2048")
    return late

def role_b():
    A(f"L_role_b:\ns_mov_b32 s{sRole}, 1\ns_cmp_ge_u32 s2, 224\ns_cbranch_scc1 L_mv_head")
    vm = Cnt("vmcnt", 63)
    def groups(kind, idx):
        if kind == "W" and idx < 16: return [((kind, idx), g) for g in w_dma(idx)]
        if kind == "X" and idx < 8: return [((kind, idx), g) for g in x_dma(idx)]
        sig = idx - 16 if kind == "W" else idx - 4
        return [(("d", k), g) for k in (2*sig, 2*sig + 1) for g in d_piece(k, k)]
    def dma(kind, idx):
        for tag, g in groups(kind, idx): vm.issue(tag, g)
    def barrier(tags):
        n = vm.need(tags)
        A(f"s_waitcnt {'vmcnt(%d) ' % n if n is not None else ''}lgkmcnt(0)\ns_barrier")
    dma("X", 0); dma("W", 0); dma("W", 1)
    common_setup()
    A("s_waitcnt vmcnt(12)")
    stamp(1)
    t = tables_b()
    A(t[:60]); pad("rb1"); dma("X", 1); A(t[60:])
    stamp(2)
    if KB:
        k1 = k_setup1()
        allw = k1[:11] + k_reads() + k1[11:] + b_setup1() + dskip() + [f"v_mov_b32 v{cCb}, {CNT + 4}"] + b_setup2()
    else: allw = b_setup1() + b_setup2() + k_gather()
    work = slices(allw, NW)
    barrier({("X", 0), ("W", 0)})
    stamp(3)
    dma("W", 2)
    if not KB: dma("W", 3); warm(1)
    carry = groups("W", 3) if KB else []
    for s in range(16):
        barrier({("W", s + 1), ("X", (s + 1)//2)})
        g = carry; carry = []
        if s & 1:
            g += groups("X", (s + 3)//2)
            w4 = groups("W", s + 4)
            if s < 15: g += w4[:2]; carry = w4[2:]
            else: g += w4
        else: g += groups("W", s + 4)
        if (RS <= s < RS + 4) if KB else (RS <= s < RS + 8 and (s - RS) % 2 == 0):
            i = s - RS if KB else (s - RS)//2
            g += [(("d", 24 + i), x) for x in d_piece(12 + i, 24 + i)]
        w = work.pop(0) if work else []
        for (tag, gi), wi in zip(g, slices(w, len(g))):
            vm.issue(tag, gi); A(wi)
        if s == 5: A(f"s_cmp_eq_u32 s{sW}, 4\ns_cbranch_scc0 L_noinit\n{LD_INIT}\nL_noinit:")
        if s == 10:
            A(f"s_cmp_eq_u32 s{sW}, 4\ns_cbranch_scc0 L_pi_ok")
            poll("L_pi", 128, LD_INIT)
        if s == 14: vm.issue("mv", LD_MV)
        if s == 1 and KB: warm(1)
        if s == 3: pad("rb2")
        if s == 8: pad("g1b")
    A(f"s_setprio {PPRIO}")
    stamp(4)
    late = b_finish(vm, "L_pm1")
    A("L_b_join:")
    warm(2)
    stamp(5)
    A("s_waitcnt lgkmcnt(0)\ns_barrier")
    if CST >= 0: A("s_barrier")
    gemm2(sorted(late))

def mover():
    if STUBS: A("L_pad_mv:\ns_branch L_warm_ret0")
    A(f"""
L_mv_head:
    s_sub_u32 s6, s2, 224
    s_lshl_b32 s3, s6, 16
    s_lshl_b32 s4, s{sWN}, 14
    s_add_u32 s3, s3, s4
    s_mul_i32 s4, s{sWN}, {16*UP}
    v_lshlrev_b32 v16, 4, v1
    s_add_u32 s5, s3, 16384
L_mv_ld:
    s_mov_b32 m0, s4
    s_add_u32 s4, s4, {UP}
    buffer_load_dwordx4 v16, s[8:11], s3 offen lds
    s_add_u32 s3, s3, 1024
    s_cmp_lt_u32 s3, s5
    s_cbranch_scc1 L_mv_ld
    global_load_dwordx4 v[128:131], v16, s[58:59]
    v_add_u32 v132, {GWL}, v16
    """)
    common_setup()
    A("s_waitcnt vmcnt(17)"); A(tables_b())
    A(b_setup1()); A(b_setup2())
    if KB: A(k_setup1()); A("s_waitcnt lgkmcnt(0)"); A(dskip()); A(f"v_mov_b32 v{cCb}, {CNT + 4}")
    A("s_waitcnt vmcnt(0)\nds_write_b128 v132, v[128:131]\ns_branch L_mv_common")
    A(f"""
L_mv_a:
    s_sub_u32 s6, s2, 224
    s_lshl_b32 s3, s6, 2
    s_add_u32 s3, s3, s{sW}
    s_mul_i32 s3, s3, 22
    v_add_u32 v16, s3, v1
    s_add_u32 s3, s6, 2816
    v_mov_b32 v17, s3
    v_cmp_gt_u32 vcc, 22, v1
    s_getpc_b64 s[4:5]
L_pc:
    s_sub_u32 s4, s4, L_pc - {KNAME}
    s_subb_u32 s5, s5, 0
    v_cndmask_b32 v16, v17, v16, vcc
    v_lshlrev_b32 v16, 7, v16
    v_add_u32 v16, {WS_FLAG}, v16
    buffer_store_dword v15, v16, s[20:23], 0 offen sc1
    v_lshlrev_b32 v16, 7, v0
    v_min_u32 v16, L_exit - {KNAME}, v16
    global_load_dword v{vJA}, v16, s[4:5]
    s_waitcnt vmcnt(2)
    s_branch L_a_tab
L_mv_a2:
    s_waitcnt vmcnt(0)
    s_mov_b64 exec, 1
    global_atomic_add v15, v14, s[62:63] sc1
    s_mov_b64 exec, -1
L_mv_common:
    s_sub_u32 s{sMov}, s2, 224
    v_and_b32 v2, 15, v1
    v_lshrrev_b32 v3, 4, v1
    v_lshlrev_b32 v16, 4, v3
    v_lshrrev_b32 v17, 2, v1
    v_and_b32 v17, 3, v17
    v_lshl_add_u32 v17, v3, 3, v17
    v_mul_u32_u24 v17, {UP}, v17
    v_and_b32 v18, 3, v1
    v_lshl_add_u32 v17, v18, 3, v17
    s_lshl_b32 s4, s{sW}, 7
    v_add_u32 v17, s4, v17
    s_lshl_b32 s3, s{sW}, 18
    s_lshl_b32 s4, s{sMov}, 11
    s_add_u32 s3, s3, s4
    s_add_u32 s3, s3, {WS_UT}
    v_lshlrev_b32 v18, 6, v2
    v_lshl_add_u32 v18, v3, 4, v18
    s_and_b32 s4, s{sMov}, 3
    s_lshl_b32 s4, s4, 8
    v_xor_b32 v18, s4, v18
    v_xor_b32 v19, 128, v18
    s_waitcnt lgkmcnt(0)
    s_barrier
    """)
    stamp(3)
    for q in range(4):
        b = 160 + 8*q
        A(f"""
        ds_read_b64_tr_b16 {vr(b,2)}, v17 offset:{32*q}
        ds_read_b64_tr_b16 {vr(b+2,2)}, v17 offset:{32*q + 4*UP}
        ds_read_b64_tr_b16 {vr(b+4,2)}, v17 offset:{32*q + 32*UP}
        ds_read_b64_tr_b16 {vr(b+6,2)}, v17 offset:{32*q + 36*UP}
        """)
    for q in range(4):
        b = 160 + 8*q
        A(f"""
        s_waitcnt lgkmcnt({12 - 4*q})
        buffer_store_dwordx4 {vr(b,4)}, v18, s[20:23], s3 offen sc1
        buffer_store_dwordx4 {vr(b+4,4)}, v19, s[20:23], s3 offen offset:1024 sc1
        s_add_u32 s3, s3, 65536
        """)
    A(f"""
    s_cmp_eq_u32 s{sRole}, 0
    s_cbranch_scc1 L_mv_a3
    s_mul_i32 s4, s{sWN}, {16*UP}
    v_mul_u32_u24 v17, {UP}, v2
    v_add_u32 v17, v17, v16
    v_add_u32 v17, s4, v17
    v_add_u32 v4, {GWL}, v16
    """)
    for i in range(16):
        A(f"ds_read_b128 {vr(32+4*i,4)}, v17 offset:{64*i}\nds_read_b128 {vr(96+4*i,4)}, v4 offset:{64*i}")
    A("s_waitcnt lgkmcnt(0)")
    for i in range(16):
        c = "0" if i < 2 else vr(24+4*(i&1), 4)
        A(f"v_mfma_f32_16x16x32_bf16 {vr(24+4*(i&1),4)}, {vr(32+4*i,4)}, {vr(96+4*i,4)}, {c}")
    A(f"""
    s_lshl_b32 s3, s{sMov}, 2
    s_add_u32 s3, s3, s{sWN}
    s_lshl_b32 s3, s3, 6
    s_add_u32 s3, s3, {WS_G}
    s_nop 5
    """)
    for r in range(4): A(f"v_add_f32 v{24+r}, v{24+r}, v{28+r}")
    for r in range(4): A(f"v_cvt_pk_bf16_f32 v{24+r}, 0, v{24+r}")
    for r in range(4): A(f"v_mul_f32 v{24+r}, {fbits(-L2E)}, v{24+r}")
    for r in range(4): A(f"v_exp_f32 v{24+r}, v{24+r}")
    A("s_nop 0")
    for r in range(4): A(f"v_add_f32 v{24+r}, 1.0, v{24+r}")
    for r in range(4): A(f"v_rcp_f32 v{24+r}, v{24+r}")
    A("s_nop 0")
    for r in range(4): A(f"v_cvt_pk_bf16_f32 v{24+r}, 0, v{24+r}")
    for r in range(4): A(f"v_sub_f32 v{28+r}, 1.0, v{24+r}")
    for r in range(4): A(f"v_cvt_pk_bf16_f32 v{24+r}, v{24+r}, v{28+r}")
    A(f"""
    v_cmp_eq_u32 vcc, 0, v2
    s_and_saveexec_b64 s[4:5], vcc
    buffer_store_dwordx4 v[24:27], v16, s[20:23], s3 offen sc1
    s_mov_b64 exec, s[4:5]
    """)
    if KB: A(k_reads())
    A(f"""
    s_waitcnt vmcnt(0) lgkmcnt(0)
    s_barrier
    s_cmp_eq_u32 s{sW}, 4
    s_cbranch_scc0 L_pi2_ok
    s_mov_b64 exec, 1
    global_atomic_add v40, v{vZero}, v{vOne}, s[62:63] offset:128 sc0 sc1
    s_mov_b64 exec, -1
    {LD_INIT}
    s_waitcnt vmcnt(0)
    v_readfirstlane_b32 s3, v40
    v_and_b32 v17, 31, v1
    v_lshlrev_b32 v17, 7, v17
    v_add_u32 v17, {WS_FLAG3}, v17
    s_and_b32 s3, s3, 31
    s_cmp_eq_u32 s3, 31
    s_cbranch_scc0 L_pi2
    buffer_store_dword v{vOne}, v17, s[20:23], 0 offen sc1
    """)
    poll("L_pi2", 128, LD_INIT)
    stamp(4)
    vm = Cnt("vmcnt", 63)
    if not KB: A(k_gather())
    if TFIRST: A("s_barrier")
    for k in G1 + G2:
        for g in d_piece(k, k): vm.issue(("d", k), g)
    for i in range(4):
        for g in d_piece(12 + i, 24 + i): vm.issue(("d", 24 + i), g)
    if not TFIRST: A("s_barrier")
    vm.issue("mv", LD_MV)
    b_finish(vm, "L_pm2")
    A("s_branch L_b_join")
    def mtouch(n):
        for i in range(n):
            A(f"s_cmp_ge_u32 s46, {448*1024}\ns_cselect_b32 s3, {448*1024}, 0\ns_sub_u32 s46, s46, s3\ns_add_u32 s3, s47, s46\nbuffer_load_dword v{vJA}, v77, s[68:71], s3 offen\ns_add_u32 s46, s46, 32768")
    A(f"""
L_mv_a3:
    s_lshr_b32 s47, s{sMov}, 3
    s_mul_i32 s47, s47, {448*1024}
    s_lshl_b32 s4, s{sW}, 13
    s_add_u32 s47, s47, s4
    s_lshl_b32 s46, s{sRho}, 14
    s_add_u32 s46, s46, {192*1024}
    v_lshlrev_b32 v77, 7, v1
    """)
    if not KB:
        tail = k_part1(); A("s_nop 7"); A(tail)
    def mc3():
        A(f"""
        s_lshr_b32 s3, s{sMov}, 3
        s_lshl_b32 s3, s3, 2
        s_add_u32 s3, s3, s{sW}
        s_mul_i32 s3, s3, {112*1024}
        s_lshl_b32 s4, s{sJ}, 7
        s_add_u32 s3, s3, s4
        v_min_u32 v78, 55, v1
        v_lshlrev_b32 v78, 10, v78
        buffer_load_dword v{vJA}, v78, s[68:71], s3 offen
        s_add_u32 s3, s3, {56*1024}
        buffer_load_dword v{vJA}, v78, s[68:71], s3 offen
        """)
    if MC3 == 2: mc3()
    mtouch(MPRE)
    A(f"s_waitcnt vmcnt({MPRE + (2 if MC3 == 2 else 0)}) lgkmcnt(0)\ns_barrier")
    if MC3 == 1: mc3()
    stamp(4)
    A("s_barrier")
    mtouch(MT - MPRE)
    stamp(5)
    conv_setup()
    A(f"s_mov_b32 s{sHfl2}, 0x40000000\ns_branch L_a_join")

def conv():
    FA = [96, 160]; FB = [128, 192]; ACC = 16
    def reads(rr):
        fs = rr & 1; ra = []; rb = []
        for i in range(8):
            o = (512*(1 - (i & 1)) + 64*(3 - rr)) // 4
            rb.append(f"ds_read_b128 {vr(FB[fs]+4*i,4)}, v{cB} offset:{512*i + 64*(3-rr)}")
            ra.append(f"ds_read2_b32 {vr(FA[fs]+4*i,2)}, v{cA[i>>1]} offset0:{o} offset1:{o+1}")
            ra.append(f"ds_read2_b32 {vr(FA[fs]+4*i+2,2)}, v{cA[i>>1]} offset0:{o+2} offset1:{o+3}")
        return ra, rb
    A(f"s_waitcnt lgkmcnt(0)\ns_barrier\ns_setprio {CPRIO}")
    stamp(6)
    ra, rb = reads(0)
    A(ra[0:2] + rb + ra[2:])
    U = 128; D = 136; Y = 96; P = 160
    for rr in range(4):
        fs = rr & 1
        A("s_waitcnt lgkmcnt(14)" if rr == 0 else "s_waitcnt lgkmcnt(0)")
        if rr < 3:
            ra, rb = reads(rr+1); fill = rb + ra
        else: fill = []
        if rr == 3 and TMJ:
            for t in range(8):
                for i in range(t + 1):
                    A(f"v_mfma_f32_16x16x32_bf16 {vr(ACC+4*t,4)}, {vr(FA[fs]+4*i,4)}, {vr(FB[fs]+4*(t-i),4)}, {vr(ACC+4*t,4)}")
                for tw in {3: [0], 4: [1, 2], 5: [3], 6: [4], 7: [5, 6]}.get(t, []):
                    A(f"ds_write_b128 v{cRw}, {vr(ACC+4*tw,4)} offset:{1024*tw}")
        else:
          for i in range(8):
            if rr == 0 and i == CST: publish(sHfl2, 0); A("s_barrier")
            if rr == 0 and i == 1: A("s_waitcnt lgkmcnt(0)")
            for t in range(i, 8):
                c = "0" if (rr == 0 and i == 0) else vr(ACC+4*t, 4)
                A(f"v_mfma_f32_16x16x32_bf16 {vr(ACC+4*t,4)}, {vr(FA[fs]+4*i,4)}, {vr(FB[fs]+4*(t-i),4)}, {c}")
                if fill and not (rr == 0 and i == 0): A(fill.pop(0))
            if rr == 3 and 2 <= i <= 4:
                A(f"ds_write_b128 v{cRw}, {vr(ACC+4*(i-2),4)} offset:{1024*(i-2)}")
        assert not fill
        if rr == 0: pad("cv0")
        if rr == 2: pad("cv1")
    stamp(7)
    A("s_nop 5" if TMJ else "s_nop 3")
    for t in range(7 if TMJ else 3, 8):
        A(f"ds_write_b128 v{cRw}, {vr(ACC+4*t,4)} offset:{1024*t}")
    A(f"""
    s_mov_b64 exec, 1
    s_waitcnt lgkmcnt(0)
    ds_add_u32 v{cCnt}, v14
L_cv_sync:
    ds_read_b32 v2, v{cCnt}
    s_waitcnt lgkmcnt(0)
    v_cmp_gt_u32 vcc, 4, v2
    s_cbranch_vccz L_cv_go
    s_sub_u32 s{sSpin}, s{sSpin}, 1
    s_cbranch_scc0 L_cv_sync
L_cv_go:
    s_mov_b64 exec, -1
    """)
    for hh in range(2):
        for q in range(4):
            A(f"ds_read_b128 {vr(P+16*hh+4*q,4)}, v{cRr} offset:{8192*q + 4096*hh}")
    for hh in range(2):
        b = P + 16*hh
        A(f"s_waitcnt lgkmcnt({4 - 4*hh})")
        for k in range(4): A(f"v_add_f32 v{b+k}, v{b+k}, v{b+4+k}\nv_add_f32 v{b+8+k}, v{b+8+k}, v{b+12+k}")
        for k in range(4): A(f"v_cvt_pk_bf16_f32 v{Y+4*hh+k}, v{b+k}, v{b+8+k}")
    A(f"""
    buffer_store_dwordx4 {vr(Y,4)}, v{cS0}, s[20:23], s{sCga} offen sc1
    buffer_store_dwordx4 {vr(Y+4,4)}, v{cS1}, s[20:23], s{sCga} offen sc1
    s_mov_b64 exec, 1
    """)
    stamp(8)
    A(f"s_waitcnt vmcnt(0)\nbuffer_store_dword v14, v15, s[20:23], s{sCfl} offen sc1")
    stamp_flush()
    A("s_endpgm")

def gemm2(late):
    ACC = 192
    sH = [sH0, sH1]
    vm = Cnt("vmcnt", 63); lg = Cnt("lgkmcnt", 15)
    A(f"s_setprio {GPRIO}\nv_mov_b32 v{gR[0]}, v{vDo[0]}\nv_mov_b32 v{gR[1]}, v{vDo[1]}")
    lw = [(("w", k + 12), [x.replace(f"v{vDo[0]}", f"v{gR[0]}").replace(f"v{vDo[1]}", f"v{gR[1]}").replace("s47", "s3") for x in g])
          for k in late for g in d_piece(k, k + 12)]
    for _ in range(min(2*P1, len(lw))): vm.issue(*lw.pop(0))
    A(f"s_mov_b64 exec, 0x3fff\nbuffer_load_dword v2, v{gFl}, s[20:23], s{sFl} offen sc1\ns_mov_b64 exec, -1")
    vm.ops = []
    n2 = min(2*P2, len(lw))
    for _ in range(n2): vm.issue(*lw.pop(0))
    A(f"""
    s_movk_i32 s46, 4096
    s_mov_b64 exec, 0x3fff
    s_waitcnt vmcnt({n2})
L_g2_hpoll:
    v_cmp_eq_u32 vcc, 0, v2
    s_cbranch_vccz L_g2_hready
    s_mov_b64 exec, vcc
    s_sub_u32 s{sSpin}, s{sSpin}, 1
    s_cbranch_scc1 L_g2_hready
    buffer_load_dword v2, v{gFl}, s[20:23], s{sFl} offen sc1
    s_waitcnt vmcnt(0)
    s_branch L_g2_hpoll
L_g2_hready:
    s_mov_b64 exec, -1
    """)
    stamp(6)
    free = [16 + 4*i for i in range(8)] + [176 + 4*i for i in range(4)]
    hreg = {}; wreg = {k: (STG[k], STG[k] + 4) for k in STG}
    nxt = [0]; wnx = [12]
    def h_issue(kc, n=99):
        while n > 0 and free and nxt[0] < 56 and (nxt[0] >> 1) < kc + min(HDMAX, HD + kc):
            n -= 1
            k, tt = nxt[0] >> 1, nxt[0] & 1
            r = free.pop(0); hreg[(k, tt)] = r
            vm.issue(("h", k), f"buffer_load_dwordx4 {vr(r,4)}, v{gL16}, s[20:23], s{sH[tt]} offen offset:{(k & 3)*1024} sc1")
            if (k & 3) == 3 and k < 27:
                if tt == 0: A(f"s_cmp_eq_u32 s{sRho}, {24 - (k - 3)}\ns_cselect_b32 s47, {u32(4096 - 28672)}, s46")
                A(f"s_add_u32 s{sH[tt]}, s{sH[tt]}, s47")
            nxt[0] += 1
    h_issue(0)
    A(f"""
    v_and_b32 v{gFl}, 15, v1
    v_lshlrev_b32 v{gFl}, 9, v{gFl}
    s_lshl_b32 s{sFl}, s{sD}, 13
    s_lshr_b32 s4, s{sTok}, 3
    s_and_b32 s4, s4, 3
    s_lshl_b32 s4, s4, 7
    s_add_u32 s{sFl}, s{sFl}, s4
    s_add_u32 s{sFl}, s{sFl}, {WS_FLAG2}
    v_and_b32 v{gT}, 31, v1
    v_lshlrev_b32 v14, 2, v{gT}
    s_lshl_b32 s4, s{sTok}, 7
    s_add_u32 s5, s4, {WS_G}
    v_lshrrev_b32 v15, 5, v1
    v_lshl_add_u32 v3, v15, 15, v14
    s_lshl_b32 s6, s{sD}, 17
    s_add_u32 s6, s6, s4
    s_add_u32 s6, s6, {WS_GA}
    """)
    if O64:
        A(f"""
        v_and_b32 v{gT}, 15, v1
        v_lshlrev_b32 v{gT}, 10, v{gT}
        v_lshl_add_u32 v{gT}, v15, 4, v{gT}
        v_and_b32 v15, 16, v1
        v_lshl_add_u32 v{gT}, v15, 1, v{gT}
        """)
    else: A(f"v_lshlrev_b32 v{gT}, 10, v{gT}\nv_lshl_add_u32 v{gT}, v15, 4, v{gT}")
    A(f"""
    s_lshl_b32 s7, s{sTok}, 15
    s_lshl_b32 s4, s{sD}, 6
    s_add_u32 s7, s7, s4
    s_mov_b32 s12, s60
    s_mov_b32 s13, s61
    s_mov_b32 s14, 0x200000
    v_add_u32 v15, s{sLds}, v{gL16}
    """)
    GA = None; gal = []
    def cpoll(first):
        if first: A("s_branch L_g2_reload")
        A(f"""
L_g2_poll:
        v_cmp_eq_u32 vcc, 0, v2
        s_cbranch_vccz L_g2_ready
        s_sub_u32 s{sSpin}, s{sSpin}, 1
        s_cbranch_scc1 L_g2_ready
        s_mov_b64 exec, vcc
        s_sleep {SLP}
L_g2_reload:
        buffer_load_dword v2, v{gFl}, s[20:23], s{sFl} offen sc1
        s_waitcnt vmcnt(0)
        s_branch L_g2_poll
        """)
        pad("g22", inline=False)
        A("L_g2_ready:\ns_mov_b64 exec, -1")
    def mf(k, dd, tt):
        c = "0" if k == 0 else vr(ACC+16*(2*dd+tt), 16)
        A(f"v_mfma_f32_32x32x16_bf16 {vr(ACC+16*(2*dd+tt),16)}, {vr(wreg[k][dd],4)}, {vr(hreg[(k,tt)],4)}, {c}")
    for k in range(24):
        pre = []
        vm.wait({("h", k)})
        if k in (0, 8, 12, 18): stamp({0: 1, 8: 2, 12: 3, 18: 4}[k], 1)
        lg.wait({("w", k)})
        if k >= WLA and wnx[0] < 24:
            kn = wnx[0]; wnx[0] += 1
            vm.wait({("w", kn)})
            wreg[kn] = (free.pop(), free.pop())
            pre = [(("w", kn), x) for x in wd_reads(kn - 12, *wreg[kn])]
        for n, (dd, tt) in enumerate(((0,0),(0,1),(1,0),(1,1))):
            mf(k, dd, tt)
            if n in (0, 2): h_issue(k + 1, 1)
            elif lw: vm.issue(*lw.pop(0))
            if pre: lg.issue(*pre.pop(0))
            if gal: vm.issue("ga", gal.pop(0))
        free += [hreg[(k,0)], hreg[(k,1)], wreg[k][0], wreg[k][1]]
        h_issue(k + 1)
        if k == 8: pad("g21")
        if k == FK: vm.issue("f", f"buffer_load_dword v2, v{gFl}, s[20:23], s{sFl} offen sc1")
        if k == CK:
            stamp(7)
            vm.wait({"f"})
            assert nxt[0] == 56
            fr = sorted(free)
            GA = next(r for r in fr if r + 4 in fr and r >= 96)
            free.remove(GA); free.remove(GA + 4)
            gl = ["buffer_load_dword v4, v14, s[20:23], s5 offen sc1"]
            for m in range(8):
                gl.append(f"buffer_load_dword v{GA+m}, v3, s[20:23], s6 offen sc1" + (f"\ns_add_u32 s6, s6, {8192 if (m & 3) != 3 else 5*8192}" if m < 7 else ""))
            if NBK:
                A(f"""
                v_cmp_eq_u32 vcc, 0, v2
                s_mov_b32 s{sT}, s6
                s_cmp_eq_u64 vcc, 0
                s_cselect_b32 s6, s6, 0x40000000
                s_cselect_b32 s{sWd}, 0, 1
                """)
            else: cpoll(False)
            gal = list(gl)
    assert wnx[0] == 24
    A("v_xor_b32 v8, 0x1000, v15\nv_xor_b32 v9, 0x2000, v15\nv_xor_b32 v10, 0x3000, v15")
    vm.wait({("h", 27)})
    pend = []
    for x in (1, 2, 3, 0):
        for i, k in enumerate(range(24, 28)):
            mf(k, x >> 1, x & 1)
            if gal: vm.issue("ga", gal.pop(0))
            if pend:
                if i == 0: A("s_nop 7")
                elif i == 1: A("s_nop 1"); A(pend[0:2])
                elif i == 2: A(pend[2:4])
        pend = [f"ds_write_b128 v15, {vr(ACC+16*x+4*i,4)} offset:{(x-1)*16384 + 1024*i}" for i in range(4)] if x else []
    assert not gal and not lw
    stamp(8)
    if NBK:
        A(f"s_cmp_eq_u32 s{sWd}, 0\ns_cbranch_scc1 L_g2_have")
        cpoll(True)
        A(f"s_mov_b32 s6, s{sT}"); A(gl)
        A("L_g2_have:")
    A("s_waitcnt vmcnt(0)\nv_lshlrev_b32 v5, 16, v4\nv_and_b32 v4, 0xffff0000, v4")
    for p in range(8):
        A(f"v_lshlrev_b32 v{80+2*p}, 16, v{GA+p}\nv_and_b32 v{81+2*p}, 0xffff0000, v{GA+p}")
    for p in range(8):
        A(f"v_pk_mul_f32 {vr(80+2*p,2)}, {vr(80+2*p,2)}, v[4:5] op_sel:[0,1]")
    A("s_waitcnt lgkmcnt(0)\ns_barrier")
    for x in range(3):
        for i in range(4):
            A(f"ds_read_b128 {vr(32+16*x+4*i,4)}, v{8+x} offset:{x*16384 + 1024*i}")
    for x in range(3):
        A(f"s_waitcnt lgkmcnt({8 - 4*x})")
        for p in range(8):
            A(f"v_pk_add_f32 {vr(ACC+2*p,2)}, {vr(ACC+2*p,2)}, {vr(32+16*x+2*p,2)}")
    for p in range(8):
        A(f"v_pk_fma_f32 {vr(32+2*p,2)}, {vr(ACC+2*p,2)}, v[4:5], {vr(80+2*p,2)} op_sel_hi:[1,0,1]")
    for p in range(8):
        A(f"v_cvt_pk_bf16_f32 v{24+p}, v{32+2*p}, v{33+2*p}")
    if O64:
        A("s_add_u32 s4, s7, 16384\ns_nop 0")
        for i in range(4): A(f"v_permlane16_swap_b32 v{24+i}, v{28+i}")
        A(f"buffer_store_dwordx4 v[24:27], v{gT}, s[12:15], s7 offen {OST}\nbuffer_store_dwordx4 v[28:31], v{gT}, s[12:15], s4 offen {OST}")
    else:
        A(f"buffer_store_dwordx4 v[24:27], v{gT}, s[12:15], s7 offen {OST}\nbuffer_store_dwordx4 v[28:31], v{gT}, s[12:15], s7 offen offset:32 {OST}")
    stamp_flush()
    A("s_endpgm")

def main():
    order = [["rb", "su", "tb0", "rb1"], ["rb2", "g1b", "ea0", "ea1"], ["cv0", "cv1", "g21", "g22"]]
    for r, names in enumerate(order):
        for w, n in enumerate(names): PLAN[n] = (r, 4 + w)
    A('.amdgcn_target "amdgcn-amd-amdhsa--gfx950"\n.text')
    A(f".globl {KNAME}\n.p2align 12\n.type {KNAME},@function\n{KNAME}:")
    if STAMP:
        for i in range(NST): A(f"s_mov_b32 s{80+2*i}, 0")
    stamp(0)
    A("s_cmp_ge_u32 s2, 256\ns_cbranch_scc1 L_exit")
    prologue()
    role_a()
    pad("rb", inline=False)
    role_b()
    mover()
    A("L_exit:\n    s_endpgm")
    assert not STUBS or PADS == set(PLAN), set(PLAN) - PADS
    A(f""".section .rodata,"a"
.p2align 6
.amdhsa_kernel {KNAME}
  .amdhsa_next_free_vgpr 256
  .amdhsa_next_free_sgpr 102
  .amdhsa_accum_offset 256
  .amdhsa_group_segment_fixed_size 0
  .amdhsa_kernarg_size 136
  .amdhsa_user_sgpr_count 2
  .amdhsa_user_sgpr_kernarg_segment_ptr 1
  .amdhsa_system_sgpr_workgroup_id_x 1
.end_amdhsa_kernel""")
    open(sys.argv[1], "w").write(HEADER + "\n".join(L) + "\n")

main()
```

```python
import sys, struct, math

OPTS = dict(a.split("=") for a in sys.argv[2:])
def opt(name, dflt): return int(OPTS.get(name, dflt))
STAMP = opt("stamp", 0); SS = opt("ss", 0)
ENC = opt("enc", -1); ENCWG = opt("encwg", 8); ENCW = opt("encw", 0)
SPIN = opt("spin", 0x40000); STUBS = opt("stubs", 1)
T2 = opt("t2", 1); AGT = opt("agt", 1); MT = opt("mt", 3); MC3 = opt("mc3", 0); MPRE = opt("mpre", 0); TFIRST = opt("tfirst", 0)
UPF = opt("upf", 6); RS = opt("rs", 7); NW = opt("nw", 14); PPRIO = opt("pprio", 0); P1 = opt("p1", 8); P2 = opt("p2", 4); KB = opt("kb", 1); NPRE = opt("npre", 0); O64 = opt("o64", 1); AORD = opt("aord", 2); C3 = opt("c3", 0); JSW = opt("jsw", 1); UP0 = opt("up0", 0); AD = opt("ad", 0); BH = opt("bh", 1); T0 = opt("t0", 0); WA = opt("wa", 1); EPI = opt("epi", 1); EDIST = opt("edist", 4); MID = opt("mid", 9); KIN = opt("kin", 0); UE = opt("ue", 0); SL4 = opt("sl4", 0); RJ = opt("rj", 0); XNR = opt("xnr", 0); XH = opt("xh", 0); XW = opt("xw", 0); RJM = opt("rjm", 1); LST = opt("lst", 0); KRS = opt("krs", 2); OST = OPTS.get("ost", "sc1").replace("_", " "); NBK = opt("nbk", 0); SLP = opt("slp", 2)
HD = opt("hd", 5); HDMAX = opt("hdmax", 8); WLA = opt("wla", 8); FK = opt("fk", 20); CK = opt("ck", 23); CST = opt("cst", -1); TMJ = opt("tmj", 1)
RLATE = opt("rlate", 12); CPRIO = opt("cprio", 2); GPRIO = opt("gprio", 1)
HSRD = "s[68:71]" if XH else "s[20:23]"
KNAME = "gated_mix__ssm_conv_s4__geglu_ffn__prompt_kernel"

WS_H, WS_UT, WS_GA, WS_G, WS_FLAG, WS_STAMP = 0x0, 0x700000, 0x900000, 0xB00000, 0xB08000, 0x1400000
WS_FLAG2 = WS_FLAG + 1792*128
WS_FLAG3 = WS_FLAG + 2816*128
WS_BYTES = 0x10000000

XB = 65536
TB = 98304
PITCH = 528
KD = TB + 2*57*PITCH
CH = 12928
UOFF = 8320
RED = TB + 2*CH
CNT = KD + 3072
assert CNT + 8 <= 163840 and RED + 32768 <= KD and RED % 256 == 0
UP = 1056
GWL = 64*UP
L2E = math.log2(math.e)
WSTEP = 32*3584

L = []
def lines(s): return [x.strip() for x in s.strip("\n").split("\n") if x.strip()]
def A(s):
    if isinstance(s, (list, tuple)): s = "\n".join(s)
    for line in lines(s):
        L.append(line if line.endswith(":") or line.startswith(".") else "    " + line)
def fbits(x): return "0x%08x" % struct.unpack("<I", struct.pack("<f", x))[0]
def f32(x): return struct.unpack("<f", struct.pack("<f", x))[0]
def vr(b, n): return f"v[{b}:{b+n-1}]"
def u32(x): return x & 0xffffffff
def slices(lst, n):
    out = []; pos = 0
    for i in range(n):
        end = (i + 1)*len(lst)//n
        while 0 < end < len(lst) and lst[end-1].startswith("s_cmp"): end += 1
        out.append(lst[pos:end]); pos = max(pos, end)
    return out

NST = 9
def stamp(idx, ss=0):
    if ENC >= 0:
        if ss == 0 and idx in (0, ENC): A(f"s_memrealtime s[{80+2*idx}:{81+2*idx}]\ns_waitcnt lgkmcnt(0)")
        return
    hide = {1: (1, 2, 3, 4), 2: (1, 2, 3), 3: (1, 2, 6, 7, 8), 5: (1,)}.get(SS, ())
    if STAMP and (ss == SS or (ss == 0 and idx not in hide)):
        A(f"s_memrealtime s[{80+2*idx}:{81+2*idx}]\ns_waitcnt lgkmcnt(0)")
ENCN = [0]
def stamp_flush():
    if ENC >= 0:
        ENCN[0] += 1; n = ENCN[0]
        A(f"""
        s_cmp_eq_u32 s2, {ENCWG}
        s_cbranch_scc0 L_enc_end{n}
        s_cmp_eq_u32 s{sW}, {ENCW}
        s_cbranch_scc0 L_enc_end{n}
        s_waitcnt vmcnt(0) lgkmcnt(0)
        s_memrealtime s[98:99]
        s_waitcnt lgkmcnt(0)
        s_sub_u32 s3, s{80+2*ENC}, s80
        s_and_b32 s3, s3, 0xfff
        s_lshl_b32 s3, s3, 2
        s_add_u32 s3, s3, s80
        s_add_u32 s3, s3, 2000
L_enc_spin{n}:
        s_memrealtime s[4:5]
        s_waitcnt lgkmcnt(0)
        s_sub_u32 s6, s4, s3
        s_cmp_lt_i32 s6, 0
        s_cbranch_scc1 L_enc_spin{n}
L_enc_end{n}:
        """)
        return
    if not STAMP: return
    A(f"""
    s_waitcnt vmcnt(0) lgkmcnt(0)
    s_memrealtime s[{80+2*NST}:{81+2*NST}]
    s_waitcnt lgkmcnt(0)
    s_mov_b64 exec, -1
    v_lshrrev_b32 v1, 6, v0
    s_lshl_b32 s3, s2, 3
    v_add_u32 v1, s3, v1
    v_lshlrev_b32 v1, 6, v1
    v_add_u32 v1, {WS_STAMP}, v1
    """)
    for i in range(12): A(f"v_mov_b32 v{4+i}, s{80+2*min(i, NST)}")
    A(f"""
    v_and_b32 v2, 63, v0
    v_cmp_eq_u32 vcc, 0, v2
    s_and_saveexec_b64 s[4:5], vcc
    buffer_store_dwordx4 v[4:7], v1, s[20:23], 0 offen
    buffer_store_dwordx4 v[8:11], v1, s[20:23], 0 offen offset:16
    buffer_store_dwordx4 v[12:15], v1, s[20:23], 0 offen offset:32
    """)

HEADER = f"""; gated mix of an S4 long convolution and a GeGLU FFN: one launch, one workgroup per CU, two wave programs.
; @launch grid=(256,1,1) block=(512,1,1) lds=163840
"""

PADS = set(); PLAN = {}
def pad(name, inline=True):
    if not STUBS or name not in PLAN: return
    if inline: A(f"s_branch L_skip_{name}")
    A(f"L_pad_{name}:\ns_branch L_warm_ret{PLAN[name][0]}")
    if inline: A(f"L_skip_{name}:")
    PADS.add(name)
def warm(r):
    if not STUBS: return
    for n, (rr, w) in PLAN.items():
        if rr == r: A(f"s_cmp_eq_u32 s{sW}, {w}\ns_cbranch_scc1 L_pad_{n}")
    A(f"L_warm_ret{r}:")

sW, sXoff, sWoff, sM0W, sM0X = 24, 25, 26, 27, 28
sIt, sHfl2, sTB, sFB, sWN, sI, sJ, sMov, sT, sSpin, sHst, sRX, sRW = 30, 31, 32, 33, 36, 38, 39, 40, 41, 42, 43, 44, 45
sDsk, sHfl, sK1, sK2, sRole = 48, 49, 54, 55, 100
sTok, sD, sH0, sH1, sLds, sFl, sWd, sRho, sCu = 50, 51, 52, 53, 64, 65, 66, 67, 29
sCga, sCfl = 50, 51
PAR = 120; vTab = 127
vWr = [72, 73]; vXr = [74, 75]; vJA = 76
ACC1 = 128
if KB:
    cKf0, cKf1, cKd0, cKd1, cKd2, cDk, cCb = 219, 220, 221, 222, 223, 232, 233
    KF = [48 + 4*i for i in range(24)]; KA = 176; KT = 184
else:
    cKf0, cKf1, cKd0, cKd1, cKd2, cDk = 5, 6, 7, 8, 9, 11
    KF = [16 + 4*i for i in range(12)] + [80 + 4*i for i in range(10)] + [64, 68]
    KA = 120; KT = 60
cA = [48, 49, 50, 51]; cB, cRw, cRr, cUr, cS0, cS1, cCnt = range(52, 59)
vG = 232
vXo = [240, 241]; vWo = 242; vDo = [248, 249]; vPoll, vZero, cMv, vOne = 250, 251, 252, 253
XA = 192; GV = 204; cZ0, cZ1, cImg, cUw, cLu0, cLu1 = range(213, 219); vU = 224
gD = [8, 9, 10, 11]; gR = [12, 13]; gFl, gL16, gT = 5, 6, 7

class Cnt:
    def __init__(self, name, cap): self.ops = []; self.name = name; self.cap = cap
    def note(self, tag): self.ops.append(tag)
    def issue(self, tag, text): A(text); self.ops.append(tag)
    def need(self, tags):
        idx = [i for i, t in enumerate(self.ops) if t in tags]
        if not idx: return None
        n = min(len(self.ops) - 1 - max(idx), self.cap)
        self.ops = self.ops[len(self.ops)-n:] if n else []
        return n
    def wait(self, tags):
        n = self.need(tags)
        if n is not None: A(f"s_waitcnt {self.name}({n})")

def x_dma(c):
    o = []
    for part in (1, 0):
        pre = [f"s_add_u32 s46, s{sRX}, {c*128}", "s_and_b32 s46, s46, 1023", f"s_add_u32 s46, s46, s{sXoff}"] if part else []
        o += [pre + [f"s_add_u32 m0, s{sM0X}, {u32((c&1)*16384 - part*8192)}", f"s_add_u32 s{sT}, s46, {u32(-part*65536)}",
                     f"buffer_load_dwordx4 v{vXo[0]}, s[8:11], s{sT} offen lds"],
              [f"buffer_load_dwordx4 v{vXo[1]}, s[8:11], s{sT} offen offset:1024 lds"]]
    return o
def w_dma(s):
    o = []
    for part in (1, 0):
        pre = [f"s_add_u32 s46, s{sRW}, {s}", "s_and_b32 s46, s46, 15", f"s_mul_i32 s46, s46, {WSTEP}", f"s_add_u32 s46, s46, s{sWoff}"] if part else []
        o += [pre + [f"s_add_u32 m0, s{sM0W}, {u32((s&3)*16384 - part*8192)}", f"s_add_u32 s{sT}, s46, {u32(-part*16*3584)}",
                     f"buffer_load_dwordx4 v{vWo}, s[12:15], s{sT} offen lds"],
              [f"buffer_load_dwordx4 v{vWo}, s[16:19], s{sT} offen offset:1024 lds"]]
    return o
def piece_off(kap): return 16384*(kap >> 1) + 2048*(kap & 1) + (RED - 98304 if kap >= 12 else 0)
def d_piece(kap, k):
    off = [f"s_add_u32 s{sT}, s{sWd}, {(k >> 1)*32768 + (k & 1)*8192}"]
    if k >= 4: off = [f"s_cmp_ge_u32 s{sRho}, {28 - k}", f"s_cselect_b32 s47, {28*16384}, 0"] + off + [f"s_sub_u32 s{sT}, s{sT}, s47"]
    return [[f"s_add_u32 m0, s{sLds}, {piece_off(kap)}"] + off + [f"buffer_load_dwordx4 v{vDo[0]}, s[68:71], s{sT} offen lds"],
            [f"buffer_load_dwordx4 v{vDo[1]}, s[68:71], s{sT} offen offset:1024 lds"]]

def prologue():
    A(f"""
    s_load_dwordx16 s[64:79], s[0:1], 8
    s_load_dwordx2 s[8:9], s[0:1], 0
    s_load_dwordx4 s[12:15], s[0:1], 80
    s_load_dwordx8 s[56:63], s[0:1], 96
    s_load_dwordx2 s[20:21], s[0:1], 128
    v_lshrrev_b32 v2, 6, v0
    v_and_b32 v1, 63, v0
    v_mov_b32 v{vZero}, 0
    v_mov_b32 v16, {CNT}
    v_mov_b32 v{vOne}, 1
    ds_write_b32 v16, v{vZero}
    ds_write_b32 v16, v{vZero} offset:4
    v_and_b32 v3, 255, v0
    v_readfirstlane_b32 s{sW}, v2
    s_lshl_b32 s3, s2, 8
    v_add_u32 v3, s3, v3
    v_lshlrev_b32 v3, 1, v3
    v_lshrrev_b32 v4, 7, v3
    v_and_b32 v4, 0xfffffffe, v4
    """)
    if STUBS and not BH: A(f"s_cmp_lt_u32 s2, 224\ns_cbranch_scc1 L_warm0\ns_cmp_eq_u32 s{sW}, 4\ns_cbranch_scc1 L_pad_mv\nL_warm0:")
    if not BH: warm(0)
    A(f"""
    s_and_b32 s{sWN}, s{sW}, 3
    s_and_b32 s3, s2, 7
    s_lshr_b32 s4, s2, 3
    s_lshr_b32 s{sTB}, s3, 1
    s_lshl_b32 s{sTB}, s{sTB}, 2
    s_and_b32 s5, s4, 3
    s_add_u32 s{sTB}, s{sTB}, s5
    s_lshl_b32 s{sI}, s3, 2
    s_add_u32 s{sI}, s{sI}, s5
    s_and_b32 s{sFB}, s3, 1
    s_mul_i32 s{sFB}, s{sFB}, 7
    s_lshr_b32 s{sJ}, s4, 2
    s_add_u32 s{sFB}, s{sFB}, s{sJ}
    s_xor_b32 s{sJ}, s{sJ}, {4 if JSW else 0}
    s_lshl_b32 s{sXoff}, s{sTB}, 17
    s_lshl_b32 s5, s{sW}, 14
    s_add_u32 s{sXoff}, s{sXoff}, s5
    s_mul_i32 s{sWoff}, s{sW}, {4*3584}
    s_lshl_b32 s5, s{sFB}, 8
    s_add_u32 s{sWoff}, s{sWoff}, s5
    s_and_b32 s{sRW}, s3, 6
    s_lshl_b32 s{sRX}, s{sRW}, 7
    s_lshl_b32 s{sRW}, s{sRW}, 1
    s_lshl_b32 s{sM0W}, s{sW}, 11
    s_add_u32 s{sM0X}, s{sM0W}, {XB}
    v_lshrrev_b32 v16, 4, v1
    v_and_b32 v17, 7, v1
    v_xor_b32 v18, v17, v16
    v_lshrrev_b32 v19, 3, v1
    v_lshlrev_b32 v19, 10, v19
    v_lshl_add_u32 v{vXo[0]}, v18, 4, v19
    v_xor_b32 v{vXo[1]}, 64, v{vXo[0]}
    v_add_u32 v{vXo[1]}, 7168, v{vXo[1]}
    v_lshlrev_b32 v17, 2, v16
    v_and_b32 v{vWo}, 15, v1
    v_xor_b32 v{vWo}, v{vWo}, v17
    s_and_b32 s5, s{sW}, 2
    v_xor_b32 v{vWo}, s5, v{vWo}
    v_lshlrev_b32 v{vWo}, 4, v{vWo}
    v_mul_u32_u24 v16, 3584, v16
    v_add_u32 v{vWo}, v{vWo}, v16
    s_mov_b32 s10, 0x200000
    s_mov_b32 s11, 0x00020000
    s_mov_b32 s18, {512*1792*2 + 1024}
    s_mov_b32 s19, 0x00020000
    s_mov_b32 s22, {WS_BYTES}
    s_mov_b32 s23, 0x00020000
    s_waitcnt lgkmcnt(0)
    s_sub_u32 s16, s14, 1024
    s_subb_u32 s17, s15, 0
    s_mov_b32 s14, {512*1792*2}
    s_mov_b32 s15, 0x00020000
    """)
    params(0, 3)
    if BH:
        A(f"s_cmp_lt_u32 s{sW}, 4\ns_cbranch_scc1 L_role_a\ns_cmp_ge_u32 s2, 224\ns_cbranch_scc1 L_mv_head")
        A(sum(x_dma(0) + w_dma(0) + w_dma(1), []))
        warm(0)
        A("s_branch L_role_b")
        mv_head()
        A("s_branch L_mv_head2\nL_role_a:")
    else: A(f"s_cmp_ge_u32 s{sW}, 4\ns_cbranch_scc1 L_role_b")
    params(3, 7)

def params(i0, i1):
    for i, p in list(enumerate((76, 64, 66, 68, 70, 72, 74)))[i0:i1]:
        A(f"global_load_ushort v{PAR+i}, v{4 if i == 0 else 3}, s[{p}:{p+1}]")

def common_setup():
    A(f"""
    v_and_b32 v{vTab}, 127, v0
    v_lshlrev_b32 v{vTab}, 2, v{vTab}
    s_lshr_b32 s6, s{sWN}, 1
    s_mul_i32 s4, s6, {57*PITCH}
    s_add_u32 s4, s4, {TB}
    v_add_u32 v{vTab}, s4, v{vTab}
    s_mov_b32 s{sK1}, {fbits(f32(L2E))}
    s_mov_b32 s{sK2}, {fbits(L2E - f32(L2E))}
    s_mov_b32 s68, s56
    s_mov_b32 s69, s57
    s_mov_b32 s70, {1792*1024}
    s_mov_b32 s71, 0x00020000
    s_and_b32 s{sRho}, s2, 7
    s_cmp_eq_u32 s{sRho}, 7
    s_cselect_b32 s{sRho}, 3, s{sRho}
    s_and_b32 s3, s{sJ}, {RJM}
    s_mul_i32 s3, s3, {RJ}
    s_add_u32 s{sRho}, s{sRho}, s3
    s_mul_i32 s3, s{sRho}, 37
    s_lshr_b32 s3, s3, 8
    s_mul_i32 s3, s3, 7
    s_sub_u32 s{sRho}, s{sRho}, s3
    s_lshl_b32 s{sRho}, s{sRho}, 2
    s_mov_b32 s{sSpin}, {SPIN}
    s_lshl_b32 s3, s2, 2
    s_load_dword s{sDsk}, s[78:79], s3
    """)

def g1_setup():
    A(f"""
    v_lshrrev_b32 v16, 2, v1
    v_and_b32 v16, 3, v16
    v_xor_b32 v17, s{sWN}, v16
    v_lshlrev_b32 v{vWr[0]}, 8, v16
    v_lshl_add_u32 v{vWr[0]}, v17, 6, v{vWr[0]}
    v_lshrrev_b32 v16, 4, v1
    v_lshl_add_u32 v{vWr[0]}, v16, 12, v{vWr[0]}
    v_and_b32 v17, 1, v16
    v_lshl_add_u32 v{vWr[0]}, v17, 5, v{vWr[0]}
    v_and_b32 v17, 3, v1
    v_lshl_add_u32 v{vWr[0]}, v17, 3, v{vWr[0]}
    v_xor_b32 v{vWr[1]}, 32, v{vWr[0]}
    v_lshrrev_b32 v17, 1, v1
    v_and_b32 v17, 7, v17
    v_xor_b32 v17, v17, v16
    v_and_b32 v18, 15, v1
    v_lshlrev_b32 v{vXr[0]}, 7, v18
    v_lshl_add_u32 v{vXr[0]}, v17, 4, v{vXr[0]}
    v_add_u32 v{vXr[0]}, {XB}, v{vXr[0]}
    v_xor_b32 v{vXr[1]}, 64, v{vXr[0]}
    v_lshlrev_b32 v10, 4, v18
    v_lshl_add_u32 v10, v16, 9, v10
    v_mov_b32 v12, {fbits(-2.0 * L2E * math.sqrt(2.0/math.pi))}
    v_mov_b32 v13, v12
    v_mov_b32 v14, 1
    v_mov_b32 v15, 0
    s_mul_i32 s{sHst}, s{sTB}, 448
    s_lshl_b32 s5, s{sFB}, 2
    s_add_u32 s5, s5, s{sWN}
    s_lshl_b32 s4, s5, 1
    s_add_u32 s{sHst}, s{sHst}, s4
    s_lshl_b32 s{sHst}, s{sHst}, 10
    s_mul_i32 s3, s{sTB}, 112
    s_add_u32 s3, s3, s5
    s_lshl_b32 s3, s3, 7
    s_add_u32 s{sHfl}, s3, {WS_FLAG}
    s_add_u32 s{sHfl2}, s{sHfl}, {56*128}
    s_mov_b32 s34, {fbits(-2.0 * L2E * math.sqrt(2.0/math.pi) * 0.044715)}
    s_mov_b32 s35, s34
    s_mov_b32 s{sIt}, 0
    s_lshl_b32 s{sCga}, s2, 13
    s_add_u32 s{sCga}, s{sCga}, {WS_GA}
    s_lshl_b32 s3, s2, 2
    s_add_u32 s3, s3, s{sWN}
    s_lshl_b32 s3, s3, 7
    s_add_u32 s{sCfl}, s3, {WS_FLAG2}
    """)

def k_setup1():
    return lines(f"""
    s_lshr_b32 s6, s{sWN}, 1
    s_and_b32 s7, s{sWN}, 1
    s_mul_i32 s4, s6, {57*PITCH}
    s_add_u32 s4, s4, {TB}
    v_and_b32 v16, 15, v1
    v_lshrrev_b32 v17, 4, v1
    v_mul_u32_u24 v{cKf0}, {PITCH}, v16
    v_lshl_add_u32 v{cKf0}, v17, 4, v{cKf0}
    v_add_u32 v{cKf0}, s4, v{cKf0}
    s_mul_i32 s4, s7, {16*PITCH}
    v_add_u32 v{cKf1}, s4, v{cKf0}
    s_lshl_b32 s3, s6, 1
    s_add_u32 s3, s3, {KD}
    v_lshrrev_b32 v18, 1, v17
    v_and_b32 v19, 1, v17
    v_lshlrev_b32 v24, 7, v18
    v_lshl_add_u32 v24, v19, 2, v24
    v_lshl_add_u32 v24, v16, 3, v24
    v_lshlrev_b32 v25, 6, v17
    v_add_u32 v25, 256, v25
    v_lshl_add_u32 v26, v16, 2, v25
    v_lshl_add_u32 v27, v16, 1, v25
    v_cmp_gt_u32 vcc, 2, v17
    v_mov_b32 v28, 32
    v_lshl_add_u32 v25, v17, 6, v16
    v_cndmask_b32 v26, v27, v26, vcc
    v_cndmask_b32 v28, v28, 2, vcc
    s_cmp_eq_u32 s7, 0
    s_cselect_b64 vcc, -1, 0
    v_lshl_add_u32 v{cKd2}, v25, 2, s3
    v_cndmask_b32 v26, v26, v24, vcc
    v_cndmask_b32 v28, v28, 2, vcc
    v_add_u32 v28, v26, v28
    v_lshl_add_u32 v{cKd0}, v26, 2, s3
    v_lshl_add_u32 v{cKd1}, v28, 2, s3
    """)

def conv_setup():
    A(f"""
    s_lshr_b32 s6, s{sWN}, 1
    s_and_b32 s7, s{sWN}, 1
    s_mul_i32 s5, s6, {CH}
    s_add_u32 s5, s5, {TB}
    v_and_b32 v60, 15, v1
    v_lshrrev_b32 v61, 4, v1
    v_and_b32 v62, 1, v60
    v_xor_b32 v62, 1, v62
    v_mul_u32_u24 v62, 4160, v62
    v_and_b32 v63, 14, v60
    v_lshlrev_b32 v63, 1, v63
    v_sub_u32 v62, v62, v63
    v_lshl_add_u32 v62, v61, 4, v62
    s_lshl_b32 s4, s7, 8
    s_sub_u32 s4, s5, s4
    s_add_u32 s3, s4, {4060 - 512 - 192}
    v_add_u32 v{cA[0]}, s3, v62
    v_subrev_u32 v{cA[1]}, 1024, v{cA[0]}
    v_subrev_u32 v{cA[2]}, 2048, v{cA[0]}
    v_subrev_u32 v{cA[3]}, 3072, v{cA[0]}
    v_lshlrev_b32 v{cB}, 5, v60
    v_lshl_add_u32 v{cB}, v61, 4, v{cB}
    s_add_u32 s3, s4, {UOFF + 480 - 192}
    v_add_u32 v{cB}, s3, v{cB}
    v_lshlrev_b32 v{cRw}, 6, v60
    v_lshl_add_u32 v{cRw}, v61, 4, v{cRw}
    s_lshl_b32 s3, s{sWN}, 13
    s_add_u32 s3, s3, {RED}
    v_add_u32 v{cRw}, s3, v{cRw}
    v_lshlrev_b32 v{cS0}, 4, v0
    v_add_u32 v{cS1}, 4096, v{cS0}
    v_add_u32 v{cRr}, {RED}, v{cS0}
    v_mov_b32 v{cCnt}, {CNT}
    """)

def b_setup1():
    return lines(f"""
    v_lshrrev_b32 v16, 4, v1
    v_and_b32 v16, 1, v16
    v_lshlrev_b32 v16, 2, v16
    v_and_b32 v17, 7, v1
    v_xor_b32 v16, v16, v17
    v_lshrrev_b32 v17, 3, v1
    v_lshlrev_b32 v17, 10, v17
    v_lshl_add_u32 v{vDo[0]}, v16, 4, v17
    v_add_u32 v{vDo[1]}, 15360, v{vDo[0]}
    s_lshl_b32 s{sLds}, s{sWN}, 12
    s_mul_i32 s{sWd}, s{sWN}, 28
    s_add_u32 s{sWd}, s{sWd}, s{sRho}
    s_lshl_b32 s3, s{sWd}, 10
    s_lshl_b32 s{sWd}, s{sWd}, 14
    s_lshl_b32 s4, s{sJ}, 7
    s_add_u32 s{sWd}, s{sWd}, s4
    s_and_b32 s6, s{sWN}, 1
    s_lshr_b32 s7, s{sWN}, 1
    s_lshl_b32 s{sTok}, s{sI}, 1
    s_add_u32 s{sTok}, s{sTok}, s6
    s_lshl_b32 s{sD}, s{sJ}, 1
    s_add_u32 s{sD}, s{sD}, s7
    s_mul_i32 s{sH0}, s{sTok}, {112*1024}
    s_xor_b32 s4, s{sTok}, 1
    s_mul_i32 s{sH1}, s4, {112*1024}
    s_add_u32 s{sH0}, s{sH0}, s3
    s_add_u32 s{sH1}, s{sH1}, s3
    v_and_b32 v17, 16, v1
    v_lshlrev_b32 v18, 1, v17
    v_and_b32 v17, 1, v1
    v_lshl_add_u32 v18, v17, 4, v18
    v_and_b32 v17, 2, v1
    v_lshl_add_u32 v18, v17, 2, v18
    v_lshrrev_b32 v16, 2, v1
    v_and_b32 v16, 3, v16
    v_lshrrev_b32 v17, 5, v1
    v_lshl_add_u32 v19, v17, 2, v16
    v_lshl_add_u32 v{gD[0]}, v19, 7, v18
    v_lshrrev_b32 v16, 1, v16
    v_xor_b32 v16, s7, v16
    v_lshl_add_u32 v{gD[0]}, v16, 6, v{gD[0]}
    v_add_u32 v{gD[0]}, s{sLds}, v{gD[0]}
    v_xor_b32 v{gD[1]}, 64, v{gD[0]}
    v_add_u32 v{gD[2]}, 0x10000, v{gD[0]}
    v_add_u32 v{gD[3]}, 0x10000, v{gD[1]}
    v_add_u32 v{gR[0]}, {RED}, v{gD[0]}
    v_add_u32 v{gR[1]}, {RED}, v{gD[1]}
    v_lshlrev_b32 v{gFl}, 7, v1
    s_lshl_b32 s{sFl}, s{sI}, 2
    s_add_u32 s{sFl}, s{sFl}, s{sWN}
    s_mul_i32 s{sFl}, s{sFl}, {14*128}
    s_add_u32 s{sFl}, s{sFl}, {WS_FLAG}
    v_lshlrev_b32 v{gL16}, 4, v1
    """)
def b_setup2():
    CB = 0x4300 - 128
    o = lines(f"""
    v_and_b32 v32, 255, v0
    v_lshrrev_b32 v33, 3, v32
    v_lshlrev_b32 v{cLu0}, 10, v33
    v_and_b32 v26, 7, v32
    v_lshl_add_u32 v{cLu0}, v26, 4, v{cLu0}
    v_xor_b32 v26, s2, v33
    v_and_b32 v26, 7, v26
    v_lshl_add_u32 v{cLu0}, v26, 7, v{cLu0}
    v_add_u32 v{cLu1}, 32768, v{cLu0}
    s_lshr_b32 s{sCu}, s2, 3
    s_lshl_b32 s{sCu}, s{sCu}, 16
    s_add_u32 s{sCu}, s{sCu}, {WS_UT}
    s_and_b32 s3, s2, 31
    s_lshl_b32 s3, s3, 7
    s_add_u32 s3, s3, {WS_FLAG3}
    v_mov_b32 v{cMv}, s3
    v_lshlrev_b32 v{cUw}, 6, v33
    v_and_b32 v26, 3, v32
    v_lshl_add_u32 v{cUw}, v26, 4, v{cUw}
    v_bfe_u32 v26, v32, 2, 1
    v_mul_u32_u24 v26, {CH}, v26
    v_add_u32 v{cUw}, v{cUw}, v26
    v_add_u32 v{cUw}, {TB + UOFF + 512}, v{cUw}
    s_lshr_b32 s6, s{sWN}, 1
    s_and_b32 s7, s{sWN}, 1
    s_mul_i32 s5, s6, {CH}
    s_add_u32 s5, s5, {TB}
    v_and_b32 v26, 127, v0
    v_lshl_add_u32 v{cZ0}, v26, 2, s5
    v_and_b32 v{cZ1}, 60, v{cZ0}
    s_mul_i32 s3, s7, 4160
    s_add_u32 s3, s3, s5
    v_add_u32 v{cZ1}, s3, v{cZ1}
    v_lshlrev_b32 v{cImg}, 4, v32
    v_add_u32 v{cImg}, {TB}, v{cImg}
    v_lshlrev_b32 v29, 3, v32
    v_sub_u32 v29, 2047, v29
    v_cvt_f32_i32 v30, v29
    v_add_u32 v29, {CB}, v29
    v_mov_b32 v31, {128 + CB}
    s_mov_b32 s3, {KD - 4*CB}
    """)
    for e in range(9):
        r = XA + e
        o += [f"v_subrev_f32 v{r}, {fbits(float(e))}, v30", f"v_cvt_pk_bf16_f32 v{r}, v{r}, 0",
              f"v_subrev_u32 v24, {e}, v29", f"v_med3_i32 v{r}, v{r}, v24, v31", f"v_lshl_add_u32 v{r}, v{r}, 2, s3"]
    return o

def tab_common():
    return lines(f"""
    v_lshlrev_b32 v{PAR}, 16, v{PAR}
    v_lshlrev_b32 v16, 16, v{PAR+1}
    v_lshlrev_b32 v17, 16, v{PAR+2}
    v_mul_f32 v18, s{sK1}, v{PAR}
    v_fma_f32 v19, v{PAR}, s{sK1}, -v18
    v_fma_f32 v19, v{PAR}, s{sK2}, v19
    v_exp_f32 v18, v18
    v_mul_f32 v19, {fbits(math.log(2.0))}, v19
    v_fmac_f32 v18, v18, v19
    v_cvt_pk_bf16_f32 v18, 0, v18
    v_mul_f32 v16, v18, v16
    v_mul_f32 v17, v18, v17
    v_mul_f32 v16, s{sK1}, v16
    v_mul_f32 v17, 0.15915494, v17
    """)
def cexp(e, s, t):
    if s == 1.0: o = [f"v_exp_f32 v{t}, v16", f"v_fract_f32 v{t+1}, v17"]
    else: o = [f"v_mul_f32 v{t}, {fbits(s)}, v16", f"v_mul_f32 v{t+1}, {fbits(s)}, v17", f"v_exp_f32 v{t}, v{t}", f"v_fract_f32 v{t+1}, v{t+1}"]
    return o + [f"v_cos_f32 v{e}, v{t+1}", f"v_sin_f32 v{e+1}, v{t+1}", f"v_mul_f32 v{e}, v{t}, v{e}", f"v_mul_f32 v{e+1}, v{t}, v{e+1}"]
def cmul(d, a, b):
    return [f"v_pk_mul_f32 {vr(d,2)}, {vr(a,2)}, {vr(b,2)} op_sel_hi:[0,1]",
            f"v_pk_fma_f32 {vr(d,2)}, {vr(a,2)}, {vr(b,2)}, {vr(d,2)} op_sel:[1,1,0] op_sel_hi:[1,0,1] neg_lo:[0,1,0]"]
class Putter:
    def __init__(self, base): self.base = base; self.i = 0
    def __call__(self, row, r, ng=False):
        t = self.base + (self.i & 3); self.i += 1
        return [f"v_cvt_pk_bf16_f32 v{t}, v{r}, {'-' if ng else ''}v{r+1}", f"ds_write_b32 v{vTab}, v{t} offset:{row*PITCH}"]
PR = 16
def tables_a():
    put = Putter(108)
    E1, E8, E128, DB, C = 44, 24, 28, 32, 36
    o = tab_common() + cexp(E1, 1.0, 40) + cexp(E128, 128.0, 42)
    o += put(PR + 1, E1) + put(PR + 8, E128) + cexp(E8, 8.0, 40)
    o += lines(f"""
    v_lshlrev_b32 v{DB}, 16, v{PAR+3}
    v_lshlrev_b32 v{DB+1}, 16, v{PAR+4}
    v_lshlrev_b32 v{C}, 16, v{PAR+5}
    v_lshlrev_b32 v{C+1}, 16, v{PAR+6}
    v_mul_f32 v{DB}, v18, v{DB}
    v_mul_f32 v{DB+1}, v18, v{DB+1}
    """)
    q = [20, 22]; jq = list(range(1, 16))
    o += cmul(q[0], C, DB) + put(0, q[0], True)
    def do_q():
        i = jq.pop(0); r = cmul(q[1], q[0], E8); q.reverse(); return r + put(i, q[0], True)
    o += cmul(52, E1, E128) + do_q() + put(PR + 9, 52)
    cur = E1; nx = 48
    for p in range(2, 8):
        o += cmul(nx, cur, E1); cur, nx = nx, (50 if nx == 48 else 48)
        d = 52 + 2*(p & 1)
        o += do_q() + put(PR + p, cur) + cmul(d, cur, E128) + do_q() + put(PR + 8 + p, d)
    while jq: o += do_q()
    return o
def tables_b():
    put = Putter(108)
    E128, F2, F4, F6, E256 = 20, 24, 28, 32, 44
    o = tab_common() + cexp(E128, 128.0, 40) + cexp(F2, 2.0, 42)
    o += ["v_mov_b32 v111, 0x3f80", f"ds_write_b32 v{vTab}, v111 offset:{PR*PITCH}"]
    o += cmul(E256, E128, E128) + cmul(F4, F2, F2) + cmul(38, E256, E128) + cmul(F6, F4, F2)
    ch = {0: [E256, 96, 98], 1: [38, 100, 102]}; pp = 0
    for h in range(2, 17):
        c = ch[h & 1]; cur = c[0]
        if h + 2 <= 16: o += cmul(c[1], cur, E256)
        if h < 4: rows = [(PR + 16 + 4*(h-2) + p, f) for p, f in ((1, F2), (2, F4), (3, F6))]; r0 = PR + 16 + 4*(h-2)
        elif h < 8: rows = [(PR + 24 + 2*(h-4) + 1, F4)]; r0 = PR + 24 + 2*(h-4)
        else: rows = []; r0 = PR + 32 + (h-8)
        o += put(r0, cur)
        for row, f in rows:
            d = 40 + 2*(pp & 1); pp += 1
            o += cmul(d, cur, f) + put(row, d)
        ch[h & 1] = [c[1], c[2], c[1]] if h < 4 else [c[1], c[0], c[1]]
    return o
def k_reads():
    return sum(([f"ds_read_b128 {vr(KF[3*s],4)}, v{cKf0} offset:{64*s}",
                 f"ds_read_b128 {vr(KF[3*s+1],4)}, v{cKf1} offset:{16*PITCH+64*s}",
                 f"ds_read_b128 {vr(KF[3*s+2],4)}, v{cKf0} offset:{48*PITCH+64*s}"] for s in range(8)), [])
def k_mfma(waits):
    for s in range(8):
        if waits: A(f"s_waitcnt lgkmcnt({min(15, 21 - 3*s)})")
        A([f"v_mfma_f32_16x16x32_bf16 {vr(KA,4)}, {vr(KF[3*s+1],4)}, {vr(KF[3*s],4)}, {'0' if s == 0 else vr(KA,4)}",
           f"v_mfma_f32_16x16x32_bf16 {vr(KA+4,4)}, {vr(KF[3*s+2],4)}, {vr(KF[3*s],4)}, {'0' if s == 0 else vr(KA+4,4)}"])
    return lines(f"""
    v_add_f32 v{KA}, v{KA}, v{cDk}
    v_cvt_pk_bf16_f32 v{KT}, v{KA}, v{KA+1}
    v_cvt_pk_bf16_f32 v{KT+1}, v{KA+2}, v{KA+3}
    v_cvt_pk_bf16_f32 v{KT+2}, v{KA+4}, v{KA+5}
    v_cvt_pk_bf16_f32 v{KT+3}, v{KA+6}, v{KA+7}
    ds_write_b16 v{cKd0}, v{KT}
    ds_write_b16_d16_hi v{cKd0}, v{KT} offset:4
    ds_write_b16 v{cKd1}, v{KT+1}
    ds_write_b16_d16_hi v{cKd1}, v{KT+1} offset:4
    ds_write_b16 v{cKd2}, v{KT+2} offset:2048
    ds_write_b16_d16_hi v{cKd2}, v{KT+2} offset:{2048+64}
    ds_write_b16 v{cKd2}, v{KT+3} offset:{2048+128}
    ds_write_b16_d16_hi v{cKd2}, v{KT+3} offset:{2048+192}
    """)
def k_part1():
    A(k_reads()); return k_mfma(True)
def dskip():
    return lines(f"""
    s_lshl_b32 s3, s{sDsk}, 16
    s_and_b32 s4, s{sDsk}, 0xffff0000
    s_cmp_lt_u32 s{sWN}, 2
    s_cselect_b32 s3, s3, s4
    s_and_b32 s4, s{sWN}, 1
    s_cmp_eq_u32 s4, 0
    s_cselect_b32 s3, s3, 0
    v_mov_b32 v{cDk}, 0
    v_writelane_b32 v{cDk}, s3, 0
    """)
def k_gather(): return [f"ds_read_b32 v{GV+e}, v{XA+e}" for e in range(9)]
def k_pack():
    o = ["v_cmp_ne_u32 vcc, 0x1ff, v0", f"ds_write_b32 v{cZ0}, v{vZero} offset:{UOFF}",
         f"ds_write_b32 v{cZ1}, v{vZero} offset:4096", f"v_cndmask_b32 v{GV+8}, 0, v{GV+8}, vcc",
         f"s_mov_b32 s{sK1}, 0x05040100", f"s_mov_b32 s{sK2}, 0x07060302"]
    n = 0
    for c, sel in ((0, sK1), (1, sK2)):
        for k in range(2):
            for i in range(4): o.append(f"v_perm_b32 v{16+4*n+i}, v{GV+2*i+k+1}, v{GV+2*i+k}, s{sel}")
            o.append(f"ds_write_b128 v{cImg}, {vr(16+4*n,4)} offset:{c*CH + k*4160}")
            n += 1
    return o

LD_INIT = f"global_load_dword v{vPoll}, v{vZero}, s[62:63] sc1"
LD_MV = f"buffer_load_dword v{vPoll}, v{cMv}, s[20:23], 0 offen sc1"
def poll(lb, target, ld):
    A(f"""
{lb}:
    v_cmp_gt_u32 vcc, {target}, v{vPoll}
    s_cbranch_vccz {lb}_ok
    s_sub_u32 s{sSpin}, s{sSpin}, 1
    s_cbranch_scc1 {lb}_ok
    s_sleep 8
    {ld}
    s_waitcnt vmcnt(0)
    s_branch {lb}
{lb}_ok:
    """)

def gemm1_a():
    FA = [16, 32]; FB = [80, 96]
    def ra(p):
        f = FA[p & 1]; o = (p & 3)*16384
        return [f"ds_read_b64_tr_b16 {vr(f+8*mat+4*T+2*ih,2)}, v{vWr[T]} offset:{o + 1024*mat + 2048*ih}"
                for mat in range(2) for T in range(2) for ih in range(2)]
    def rb(p, h):
        xo = ((p >> 1) & 1)*16384
        return [f"ds_read_b128 {vr(FB[h]+4*i,4)}, v{vXr[p & 1]} offset:{xo + 2048*(4*h + i)}" for i in range(4)]
    A("s_waitcnt lgkmcnt(0)\ns_barrier")
    tail = [] if KB else k_part1()
    stamp(3)
    A(ra(0) + rb(0, 0)); A(tail)
    A("L_g1_loop:")
    for p in range(4):
        for h in range(2):
            wv = {3: {1: AGT}, 4: {1: 4 + AGT, 2: AGT}, 5: {1: 4 + AGT, 2: AGT}}.get(AD, {})
            A(f"s_waitcnt vmcnt({wv[p]}) lgkmcnt(0)" if h and p in wv else "s_waitcnt lgkmcnt(0)")
            if h: A("s_barrier")
            r = rb(p, 1) if h == 0 else (ra(p + 1)[:2] + rb(p + 1, 0)[:1] + ra(p + 1)[2:] + rb(p + 1, 0)[1:])
            up = UPF if h else UP0
            A(r[:up]); r = r[up:]
            if AORD == 0: order = [(i, a) for i in range(4) for a in range(4)]
            elif AORD == 1: order = [(i, a) for a in range(4) for i in range(4)]
            elif AORD == 2: order = [(i, a if i % 2 == 0 else 3 - a) for i in range(4) for a in range(4)]
            else: order = [(i if a % 2 == 0 else 3 - i, a) for a in range(4) for i in range(4)]
            for n, (i, a) in enumerate(order):
                tt = 4*h + i; mat, T = a >> 1, a & 1
                d = vr(ACC1 + 32*(tt >> 1) + 16*mat + 8*(tt & 1) + 4*T, 4)
                A(f"v_mfma_f32_16x16x32_bf16 {d}, {vr(FA[p & 1]+8*mat+4*T,4)}, {vr(FB[h]+4*i,4)}, {d}")
                if r: A(r.pop(0))
                if p == 3 and h == 1 and n == 13: A(f"s_add_u32 s{sIt}, s{sIt}, 1\ns_cmp_lt_u32 s{sIt}, 4")
    if STAMP and SS == 3:
        A("s_mov_b32 s92, s94\ns_mov_b32 s94, s96\ns_mov_b32 s96, s98\ns_memrealtime s[98:99]\ns_waitcnt lgkmcnt(0)")
    A("s_cbranch_scc1 L_g1_loop")

def publish(sreg, n):
    A(f"""
    s_mov_b64 exec, 1
    s_waitcnt vmcnt({n})
    buffer_store_dword v14, v15, s[20:23], s{sreg} offen sc1
    s_mov_b64 exec, -1
    """)

def geglu(tt):
    G = ACC1 + 32*tt; U = G + 16
    O = 64 + 0*(tt & 1) if tt == 3 else 96 + 8*(tt & 1); T = 32
    for p in range(8): A(f"v_pk_mul_f32 {vr(T+2*p,2)}, {vr(G+2*p,2)}, {vr(G+2*p,2)}")
    for p in range(8): A(f"v_pk_fma_f32 {vr(T+2*p,2)}, {vr(T+2*p,2)}, s[34:35], v[12:13]")
    for p in range(8): A(f"v_pk_mul_f32 {vr(T+2*p,2)}, {vr(T+2*p,2)}, {vr(G+2*p,2)}")
    for p in range(16): A(f"v_exp_f32 v{T+p}, v{T+p}")
    for p in range(8): A(f"v_pk_mul_f32 {vr(G+2*p,2)}, {vr(G+2*p,2)}, {vr(U+2*p,2)}")
    for p in range(8): A(f"v_pk_add_f32 {vr(T+2*p,2)}, {vr(T+2*p,2)}, 1.0 op_sel_hi:[1,0]")
    for p in range(16): A(f"v_rcp_f32 v{T+p}, v{T+p}")
    for p in range(8): A(f"v_pk_mul_f32 {vr(G+2*p,2)}, {vr(G+2*p,2)}, {vr(T+2*p,2)}")
    for p in range(8): A(f"v_cvt_pk_bf16_f32 v{O+p}, v{G+2*p}, v{G+2*p+1}")
    A(f"buffer_store_dwordx4 {vr(O,4)}, v10, s[20:23], s{sHst} offen sc1")
    A(f"buffer_store_dwordx4 {vr(O+4,4)}, v10, s[20:23], s{sHst} offen offset:256 sc1")
    if tt < 3: A(f"s_add_u32 s{sHst}, s{sHst}, {112*1024}")

def epilogue():
    ops = []
    for tt in range(4):
        G = ACC1 + 32*tt; U = G + 16; O = 96 + 8*(tt & 1); T = (32, 112)[tt & 1]
        cv = []
        for p in range(8):
            g, u, t = vr(G+2*p, 2), vr(U+2*p, 2), vr(T+2*p, 2)
            b = len(ops)
            prev = [last[(tt - 2, p)]] if tt >= 2 else []
            ops.append(("p", f"v_pk_mul_f32 {t}, {g}, {g}", prev))
            ops.append(("p", f"v_pk_fma_f32 {t}, {t}, s[34:35], v[12:13]", [b]))
            ops.append(("p", f"v_pk_mul_f32 {t}, {t}, {g}", [b+1]))
            ops.append(("t", f"v_exp_f32 v{T+2*p}, v{T+2*p}", [b+2]))
            ops.append(("t", f"v_exp_f32 v{T+2*p+1}, v{T+2*p+1}", [b+2]))
            ops.append(("p", f"v_pk_mul_f32 {g}, {g}, {u}", [b+2]))
            ops.append(("p", f"v_pk_add_f32 {t}, {t}, 1.0 op_sel_hi:[1,0]", [b+3, b+4]))
            ops.append(("t", f"v_rcp_f32 v{T+2*p}, v{T+2*p}", [b+6]))
            ops.append(("t", f"v_rcp_f32 v{T+2*p+1}, v{T+2*p+1}", [b+6]))
            ops.append(("p", f"v_pk_mul_f32 {g}, {g}, {t}", [b+5, b+7, b+8]))
            ops.append(("p", f"v_cvt_pk_bf16_f32 v{O+p}, v{G+2*p}, v{G+2*p+1}", [b+9] + ([stores[2*(tt-2) + p//4]] if tt >= 2 else [])))
            last[(tt, p)] = b + 9; cv.append(b + 10)
            if p in (3, 7):
                st = f"buffer_store_dwordx4 {vr(O+p-3,4)}, v10, s[20:23], s{sHst} offen offset:{256*(p//4)} sc1"
                if p == 7 and tt < 3: st += f"\ns_add_u32 s{sHst}, s{sHst}, {112*1024}"
                ops.append(("s", st, cv[-4:] + stores[-1:])); stores.append(len(ops) - 1)
    done = {}; n = 0; want = ["t", "p", "p", "t", "p", "p", "t", "p", "p", "t", "p"]; nst = 0
    todo = list(range(len(ops)))
    while todo:
        ready = [i for i in todo if all(d in done and n - done[d] >= EDIST for d in ops[i][2])]
        if not ready: ready = [i for i in todo if all(d in done and n - done[d] >= (3 if ops[d][0] == "s" else 2) for d in ops[i][2])]
        if not ready: A("s_nop 0"); n += 1; continue
        if n < LST: ready = [i for i in ready if ops[i][0] != "s"] or ready
        st = [i for i in ready if ops[i][0] == "s"]
        pick = st[0] if st else next((i for i in ready if ops[i][0] == want[n % len(want)]), ready[0])
        A(ops[pick][1]); done[pick] = n; n += 1; todo.remove(pick)
        if ops[pick][0] == "s":
            nst += 1
            if nst == 2: pad("ea0")
            if nst == 5: pad("ea1")
            if nst == MID: publish(sHfl, MID - 4)
last = {}; stores = []

def role_a():
    A(f"s_mov_b32 s{sRole}, 0\nv_mov_b64 v[40:41], 0\nv_mov_b64 v[42:43], 0")
    if T0:
        A(f"""
        s_cmp_ge_u32 s2, 224
        s_cbranch_scc1 L_t0_done
        s_cmp_ge_u32 s{sW}, 2
        s_cbranch_scc1 L_t0_x
        s_lshr_b32 s3, s2, 3
        s_and_b32 s3, s3, 3
        s_add_u32 s3, s3, s{sRW}
        s_mul_i32 s3, s3, {WSTEP}
        s_lshl_b32 s4, s{sFB}, 8
        s_add_u32 s3, s3, s4
        v_lshrrev_b32 v112, 1, v1
        v_mul_u32_u24 v112, 3584, v112
        v_and_b32 v113, 1, v1
        v_lshl_add_u32 v112, v113, 7, v112
        s_cmp_eq_u32 s{sW}, 0
        s_cbranch_scc0 L_t0_u
        buffer_load_dword v{vJA}, v112, s[12:15], s3 offen
        s_branch L_t0_done
L_t0_u:
        buffer_load_dword v{vJA}, v112, s[16:19], s3 offen offset:1024
        s_branch L_t0_done
L_t0_x:
        s_lshr_b32 s3, s2, 5
        s_mul_i32 s3, s3, 19
        v_min_u32 v112, 18, v1
        v_add_u32 v112, s3, v112
        v_min_u32 v112, 127, v112
        v_lshlrev_b32 v112, 10, v112
        s_lshl_b32 s3, s{sTB}, 17
        s_add_u32 s3, s3, s{sRX}
        s_and_b32 s4, s{sW}, 1
        s_lshl_b32 s4, s4, 7
        s_add_u32 s3, s3, s4
        buffer_load_dword v{vJA}, v112, s[8:11], s3 offen
L_t0_done:
        """)
    ALIST = {3: [("X", 1), ("W", 2)], 4: [("W", 2), ("W", 3)], 5: [("W", 2), ("W", 3)]}.get(AD, [])
    def a_dma():
        o = sum(sum((x_dma(i) if k == "X" else w_dma(i) for k, i in ALIST), []), [])
        A([x.replace(f"v{vWo}", "v116").replace(f"v{vXo[0]}", "v117").replace(f"v{vXo[1]}", "v118") for x in o])
    if AD:
        A(f"""
        s_add_u32 s{sM0W}, s{sM0W}, 8192
        s_add_u32 s{sM0X}, s{sM0X}, 8192
        s_add_u32 s{sWoff}, s{sWoff}, {16*3584}
        s_add_u32 s{sXoff}, s{sXoff}, 65536
        v_mov_b32 v116, v{vWo}
        v_mov_b32 v117, v{vXo[0]}
        v_mov_b32 v118, v{vXo[1]}
        """)
    common_setup(); g1_setup(); pad("su")
    if not KB: A(k_setup1())
    A("s_cmp_ge_u32 s2, 224\ns_cbranch_scc1 L_mv_a")
    for i in range(8):
        A(f"v_mfma_f32_32x32x16_bf16 {vr(ACC1+16*i,16)}, v[40:43], v[40:43], 0")
    if AD in (3, 5): a_dma()
    A(f"s_waitcnt vmcnt({(8 if AD in (3, 5) else 0) + T0})")
    if T2:
        A(f"""
        s_cmp_ge_u32 s{sW}, 2
        s_cbranch_scc1 L_a_tab
        s_lshl_b32 s3, s2, 1
        s_add_u32 s3, s3, s{sW}
        s_mul_i32 s3, s3, {37*128}
        v_min_u32 v112, 36, v1
        v_lshlrev_b32 v112, 7, v112
        buffer_load_dword v{vJA}, v112, s[8:11], s3 offen
        """)
    A("L_a_tab:")
    stamp(1)
    t = tables_a()
    A(t[:50]); pad("tb0"); A(t[50:])
    stamp(2)
    if not KB: A("s_waitcnt lgkmcnt(0)"); A(dskip())
    A("s_cmp_ge_u32 s2, 224\ns_cbranch_scc1 L_mv_a2")
    if AD == 4: a_dma()
    if AGT:
        A(f"""
        s_lshl_b32 s3, s2, 2
        s_add_u32 s3, s3, s{sW}
        s_lshl_b32 s3, s3, 11
        v_and_b32 v112, 15, v1
        v_lshlrev_b32 v112, 7, v112
        buffer_load_dword v{vJA}, v112, s[68:71], s3 offen
        """)
    if C3:
        A(f"""
        s_lshr_b32 s3, s2, 3
        s_lshl_b32 s3, s3, 14
        s_mul_i32 s4, s{sW}, {448*1024}
        s_add_u32 s3, s3, s4
        v_and_b32 v113, 15, v1
        v_lshlrev_b32 v113, 10, v113
        buffer_load_dword v{vJA}, v113, s[68:71], s3 offen offset:384
        """)
    if WA: warm(1)
    A("s_setprio 1")
    gemm1_a()
    stamp(4)
    if STAMP and SS == 5: A("s_memtime s[72:73]\ns_waitcnt lgkmcnt(0)")
    if EPI:
        epilogue()
        if STAMP and SS == 5: A("s_memtime s[74:75]\ns_waitcnt lgkmcnt(0)\ns_sub_u32 s82, s74, s72")
    else:
        geglu(0); pad("ea0")
        geglu(1)
        geglu(2); pad("ea1")
        publish(sHfl, 2)
        geglu(3)
    stamp(5)
    conv_setup()
    if CST < 0: publish(sHfl2, 0)
    if MID > 8: publish(sHfl, 1)
    A("L_a_join:")
    conv()

G1 = [0, 1, 8, 9, 2, 3]; G2 = [4, 5, 10, 11, 6, 7]
STG = {k: 48 + 8*i for i, k in enumerate(G1 + G2)}
STG.update({24 + i: 144 + 8*i for i in range(4)})
def wd_reads(kap, d0, d1):
    o = piece_off(kap)
    if kap >= 12: base = gR; o -= RED
    elif o >= 65536: base = gD[2:4]; o -= 65536
    else: base = gD[0:2]
    return [f"ds_read_b64_tr_b16 {vr((d0, d1)[dd]+2*ih,2)}, v{base[dd]} offset:{o + 1024*ih}" for dd in range(2) for ih in range(2)]

def u_loads(vm):
    vm.issue("u", f"buffer_load_dwordx4 {vr(vU,4)}, v{cLu0}, s[20:23], s{sCu} offen sc1")
    vm.issue("u", f"buffer_load_dwordx4 {vr(vU+4,4)}, v{cLu1}, s[20:23], s{sCu} offen sc1")

def b_finish(vm, lb, kin=False, early=False):
    late = []
    if kin:
        vm.wait({"mv"}); poll(lb, 1, LD_MV)
        u_loads(vm)
    elif KB:
        tail = k_mfma(False)
        if not early:
            vm.wait({"mv"}); poll(lb, 1, LD_MV)
            u_loads(vm)
        A("s_nop 7"); A(tail)
        A(f"""
        s_mov_b64 exec, 1
        s_waitcnt lgkmcnt(0)
        ds_add_u32 v{cCb}, v{vOne}
        s_mov_b64 exec, -1
        """)
    def stage(ks, refill=True):
        vm.wait({("d", k) for k in ks})
        for k in ks: A(wd_reads(k, STG[k], STG[k] + 4))
        A("s_waitcnt lgkmcnt(0)")
        for k in ks:
            if refill:
                for g in d_piece(k, k + 12): vm.issue(("d", k + 12), g)
            else: late.append(k)
    stage(G1[0:2], RLATE < 12); stage(G1[2:4], RLATE < 10)
    if not KB:
        vm.wait({"mv"}); poll(lb, 1, LD_MV)
        u_loads(vm)
    elif not kin:
        A(f"""
        s_mov_b64 exec, 1
{lb}_k:
        ds_read_b32 v2, v{cCb}
        s_waitcnt lgkmcnt(0)
        v_cmp_gt_u32 vcc, 4, v2
        s_cbranch_vccz {lb}_kgo
        s_sub_u32 s{sSpin}, s{sSpin}, 1
        s_cbranch_scc0 {lb}_k
{lb}_kgo:
        s_mov_b64 exec, -1
        """)
        A(k_gather())
    stage(G1[4:6] + G2[0:2], RLATE < 8)
    if not kin:
        vm.wait({("d", 24 + i) for i in range(4)})
        for i in range(4): A(wd_reads(12 + i, STG[24 + i], STG[24 + i] + 4))
    A(k_pack())
    if not SL4: stage(G2[2:6], RLATE < 4)
    vm.wait({"u"})
    A(f"ds_write_b128 v{cUw}, {vr(vU,4)}\nds_write_b128 v{cUw}, {vr(vU+4,4)} offset:2048")
    return late

def role_b():
    A(f"L_role_b:\ns_mov_b32 s{sRole}, 1")
    if not BH: A("s_cmp_ge_u32 s2, 224\ns_cbranch_scc1 L_mv_head")
    vm = Cnt("vmcnt", 63)
    def groups(kind, idx):
        if kind == "W" and idx < 16: return [((kind, idx), g) for g in w_dma(idx)]
        if kind == "X" and idx < 8: return [((kind, idx), g) for g in x_dma(idx)]
        sig = idx - 16 if kind == "W" else idx - 4
        return [(("d", k), g) for k in (2*sig, 2*sig + 1) for g in d_piece(k, k)]
    def dma(kind, idx):
        for tag, g in groups(kind, idx): vm.issue(tag, g)
    def barrier(tags):
        n = vm.need(tags)
        A(f"s_waitcnt {'vmcnt(%d) ' % n if n is not None else ''}lgkmcnt(0)\ns_barrier")
    if BH:
        for t in (("X", 0), ("W", 0), ("W", 1)):
            for _ in range(4): vm.note(t)
    else:
        dma("X", 0); dma("W", 0); dma("W", 1)
    common_setup()
    A("s_waitcnt vmcnt(12)")
    stamp(1)
    t = tables_b()
    A(t[:60]); pad("rb1")
    if AD == 3: dma("W", 3)
    else: dma("X", 1)
    A(t[60:])
    stamp(2)
    if KB:
        k1 = k_setup1()
        rest = k1[11:] + b_setup1(); kr = k_reads(); mix = []
        if KRS:
            while kr or rest:
                if kr: mix.append(kr.pop(0))
                n = KRS
                while rest and (n > 0 or mix[-1].startswith("s_cmp")): mix.append(rest.pop(0)); n -= 1
        else: mix = kr + rest
        allw = k1[:11] + mix + dskip() + [f"v_mov_b32 v{cCb}, {CNT + 4}"] + b_setup2()
    else: allw = b_setup1() + b_setup2() + k_gather()
    if KIN:
        global L
        keep = L; L = []; tail = k_mfma(False); km = [x.strip() for x in L]; L = keep
        rr = sum((wd_reads(12 + i, STG[24 + i], STG[24 + i] + 4) for i in range(4)), [])
        cut = len(allw) - 45
        w1 = slices(allw[:cut], 9); w2 = slices(allw[cut:], 4); m4 = slices(km, 4)
        work = w1 + [sum(([x] + w2[i][3*j:3*j+3] for j, x in enumerate(m4[i])), []) + w2[i][12:] for i in range(4)] + [tail, k_gather() + rr[:4], rr[4:]]
    else: work = slices(allw, NW)
    barrier({("X", 0), ("W", 0)})
    stamp(3)
    if not AD: dma("W", 2)
    carry = [] if AD else groups("W", 3)
    for s in range(16):
        barrier({("W", s + 1), ("X", (s + 1)//2)} | ({("d", 24 + i) for i in range(4)} if s == 14 else set()))
        if UE and s == 15:
            vm.wait({"mv"}); poll("L_pm1", 1, LD_MV); u_loads(vm)
        g = carry; carry = []
        if s & 1:
            g += groups("X", (s + 3)//2)
            w4 = groups("W", s + 4)
            if s < 15: g += w4[:2]; carry = w4[2:]
            else: g += w4
        else: g += groups("W", s + 4)
        if (RS <= s < RS + 4) if KB else (RS <= s < RS + 8 and (s - RS) % 2 == 0):
            i = s - RS if KB else (s - RS)//2
            g += [(("d", 24 + i), x) for x in d_piece(12 + i, 24 + i)]
        w = work.pop(0) if work else []
        for (tag, gi), wi in zip(g, slices(w, len(g))):
            vm.issue(tag, gi); A(wi)
        if s == 5: A(f"s_cmp_eq_u32 s{sW}, 4\ns_cbranch_scc0 L_noinit\n{LD_INIT}\nL_noinit:")
        if s == 10:
            A(f"s_cmp_eq_u32 s{sW}, 4\ns_cbranch_scc0 L_pi_ok")
            poll("L_pi", 128, LD_INIT)
        if s == (13 if UE else 14): vm.issue("mv", LD_MV)
        if s == 1 and not WA: warm(1)
        if s == 3: pad("rb2")
        if s == 8: pad("g1b")
    A(f"s_setprio {PPRIO}")
    stamp(4)
    late = b_finish(vm, "L_pm1", KIN, UE)
    A("L_b_join:")
    warm(2)
    stamp(5)
    A("s_waitcnt lgkmcnt(0)\ns_barrier")
    if CST >= 0: A("s_barrier")
    gemm2(late if SL4 else sorted(late))

def mv_head():
    A(f"""
L_mv_head:
    s_sub_u32 s6, s2, 224
    s_lshl_b32 s3, s6, 16
    s_lshl_b32 s4, s{sWN}, 14
    s_add_u32 s3, s3, s4
    s_mul_i32 s4, s{sWN}, {16*UP}
    v_lshlrev_b32 v16, 4, v1
    s_add_u32 s5, s3, 16384
L_mv_ld:
    s_mov_b32 m0, s4
    s_add_u32 s4, s4, {UP}
    buffer_load_dwordx4 v16, s[8:11], s3 offen lds
    s_add_u32 s3, s3, 1024
    s_cmp_lt_u32 s3, s5
    s_cbranch_scc1 L_mv_ld
    global_load_dwordx4 v[128:131], v16, s[58:59]
    v_add_u32 v132, {GWL}, v16
    """)

def mover():
    if BH: A(f"L_mv_head2:\ns_mov_b32 s{sRole}, 1")
    else:
        if STUBS: A("L_pad_mv:\ns_branch L_warm_ret0")
        mv_head()
    common_setup()
    A("s_waitcnt vmcnt(17)"); A(tables_b())
    A(b_setup1()); A(b_setup2())
    if KB: A(k_setup1()); A("s_waitcnt lgkmcnt(0)"); A(dskip()); A(f"v_mov_b32 v{cCb}, {CNT + 4}")
    A("s_waitcnt vmcnt(0)\nds_write_b128 v132, v[128:131]\ns_branch L_mv_common")
    A(f"""
L_mv_a:
    s_sub_u32 s6, s2, 224
    s_lshl_b32 s3, s6, 2
    s_add_u32 s3, s3, s{sW}
    s_mul_i32 s3, s3, 22
    v_add_u32 v16, s3, v1
    s_add_u32 s3, s6, 2816
    v_mov_b32 v17, s3
    v_cmp_gt_u32 vcc, 22, v1
    s_getpc_b64 s[4:5]
L_pc:
    s_sub_u32 s4, s4, L_pc - {KNAME}
    s_subb_u32 s5, s5, 0
    v_cndmask_b32 v16, v17, v16, vcc
    v_lshlrev_b32 v16, 7, v16
    v_add_u32 v16, {WS_FLAG}, v16
    buffer_store_dword v15, v16, s[20:23], 0 offen sc1
    v_lshlrev_b32 v16, 7, v0
    v_min_u32 v16, L_exit - {KNAME}, v16
    global_load_dword v{vJA}, v16, s[4:5]
    s_waitcnt vmcnt(2)
    s_branch L_a_tab
L_mv_a2:
    s_waitcnt vmcnt(0)
    s_mov_b64 exec, 1
    global_atomic_add v15, v14, s[62:63] sc1
    s_mov_b64 exec, -1
L_mv_common:
    s_sub_u32 s{sMov}, s2, 224
    v_and_b32 v2, 15, v1
    v_lshrrev_b32 v3, 4, v1
    v_lshlrev_b32 v16, 4, v3
    v_lshrrev_b32 v17, 2, v1
    v_and_b32 v17, 3, v17
    v_lshl_add_u32 v17, v3, 3, v17
    v_mul_u32_u24 v17, {UP}, v17
    v_and_b32 v18, 3, v1
    v_lshl_add_u32 v17, v18, 3, v17
    s_lshl_b32 s4, s{sW}, 7
    v_add_u32 v17, s4, v17
    s_lshl_b32 s3, s{sW}, 18
    s_lshl_b32 s4, s{sMov}, 11
    s_add_u32 s3, s3, s4
    s_add_u32 s3, s3, {WS_UT}
    v_lshlrev_b32 v18, 6, v2
    v_lshl_add_u32 v18, v3, 4, v18
    s_and_b32 s4, s{sMov}, 3
    s_lshl_b32 s4, s4, 8
    v_xor_b32 v18, s4, v18
    v_xor_b32 v19, 128, v18
    s_waitcnt lgkmcnt(0)
    s_barrier
    """)
    stamp(3)
    for q in range(4):
        b = 160 + 8*q
        A(f"""
        ds_read_b64_tr_b16 {vr(b,2)}, v17 offset:{32*q}
        ds_read_b64_tr_b16 {vr(b+2,2)}, v17 offset:{32*q + 4*UP}
        ds_read_b64_tr_b16 {vr(b+4,2)}, v17 offset:{32*q + 32*UP}
        ds_read_b64_tr_b16 {vr(b+6,2)}, v17 offset:{32*q + 36*UP}
        """)
    for q in range(4):
        b = 160 + 8*q
        A(f"""
        s_waitcnt lgkmcnt({12 - 4*q})
        buffer_store_dwordx4 {vr(b,4)}, v18, s[20:23], s3 offen sc1
        buffer_store_dwordx4 {vr(b+4,4)}, v19, s[20:23], s3 offen offset:1024 sc1
        s_add_u32 s3, s3, 65536
        """)
    A(f"""
    s_cmp_eq_u32 s{sRole}, 0
    s_cbranch_scc1 L_mv_a3
    s_mul_i32 s4, s{sWN}, {16*UP}
    v_mul_u32_u24 v17, {UP}, v2
    v_add_u32 v17, v17, v16
    v_add_u32 v17, s4, v17
    v_add_u32 v4, {GWL}, v16
    """)
    for i in range(16):
        A(f"ds_read_b128 {vr(32+4*i,4)}, v17 offset:{64*i}\nds_read_b128 {vr(96+4*i,4)}, v4 offset:{64*i}")
    A("s_waitcnt lgkmcnt(0)")
    for i in range(16):
        c = "0" if i < 2 else vr(24+4*(i&1), 4)
        A(f"v_mfma_f32_16x16x32_bf16 {vr(24+4*(i&1),4)}, {vr(32+4*i,4)}, {vr(96+4*i,4)}, {c}")
    A(f"""
    s_lshl_b32 s3, s{sMov}, 2
    s_add_u32 s3, s3, s{sWN}
    s_lshl_b32 s3, s3, 6
    s_add_u32 s3, s3, {WS_G}
    s_nop 5
    """)
    for r in range(4): A(f"v_add_f32 v{24+r}, v{24+r}, v{28+r}")
    for r in range(4): A(f"v_cvt_pk_bf16_f32 v{24+r}, 0, v{24+r}")
    for r in range(4): A(f"v_mul_f32 v{24+r}, {fbits(-L2E)}, v{24+r}")
    for r in range(4): A(f"v_exp_f32 v{24+r}, v{24+r}")
    A("s_nop 0")
    for r in range(4): A(f"v_add_f32 v{24+r}, 1.0, v{24+r}")
    for r in range(4): A(f"v_rcp_f32 v{24+r}, v{24+r}")
    A("s_nop 0")
    for r in range(4): A(f"v_cvt_pk_bf16_f32 v{24+r}, 0, v{24+r}")
    for r in range(4): A(f"v_sub_f32 v{28+r}, 1.0, v{24+r}")
    for r in range(4): A(f"v_cvt_pk_bf16_f32 v{24+r}, v{24+r}, v{28+r}")
    A(f"""
    v_cmp_eq_u32 vcc, 0, v2
    s_and_saveexec_b64 s[4:5], vcc
    buffer_store_dwordx4 v[24:27], v16, s[20:23], s3 offen sc1
    s_mov_b64 exec, s[4:5]
    """)
    if KB: A(k_reads())
    A(f"""
    s_waitcnt vmcnt(0) lgkmcnt(0)
    s_barrier
    s_cmp_eq_u32 s{sW}, 4
    s_cbranch_scc0 L_pi2_ok
    s_mov_b64 exec, 1
    global_atomic_add v40, v{vZero}, v{vOne}, s[62:63] offset:128 sc0 sc1
    s_mov_b64 exec, -1
    {LD_INIT}
    s_waitcnt vmcnt(0)
    v_readfirstlane_b32 s3, v40
    v_and_b32 v17, 31, v1
    v_lshlrev_b32 v17, 7, v17
    v_add_u32 v17, {WS_FLAG3}, v17
    s_and_b32 s3, s3, 31
    s_cmp_eq_u32 s3, 31
    s_cbranch_scc0 L_pi2
    buffer_store_dword v{vOne}, v17, s[20:23], 0 offen sc1
    """)
    poll("L_pi2", 128, LD_INIT)
    stamp(4)
    vm = Cnt("vmcnt", 63)
    if not KB: A(k_gather())
    if TFIRST: A("s_barrier")
    for k in G1 + G2:
        for g in d_piece(k, k): vm.issue(("d", k), g)
    for i in range(4):
        for g in d_piece(12 + i, 24 + i): vm.issue(("d", 24 + i), g)
    if not TFIRST: A("s_barrier")
    vm.issue("mv", LD_MV)
    b_finish(vm, "L_pm2")
    A("s_branch L_b_join")
    def mtouch(n):
        for i in range(n):
            A(f"s_cmp_ge_u32 s46, {448*1024}\ns_cselect_b32 s3, {448*1024}, 0\ns_sub_u32 s46, s46, s3\ns_add_u32 s3, s47, s46\nbuffer_load_dword v{vJA}, v77, s[68:71], s3 offen\ns_add_u32 s46, s46, 32768")
    A(f"""
L_mv_a3:
    s_lshr_b32 s47, s{sMov}, 3
    s_mul_i32 s47, s47, {448*1024}
    s_lshl_b32 s4, s{sW}, 13
    s_add_u32 s47, s47, s4
    s_lshl_b32 s46, s{sRho}, 14
    s_add_u32 s46, s46, {192*1024}
    v_lshlrev_b32 v77, 7, v1
    """)
    if not KB:
        tail = k_part1(); A("s_nop 7"); A(tail)
    def mc3():
        A(f"""
        s_lshr_b32 s3, s{sMov}, 3
        s_lshl_b32 s3, s3, 2
        s_add_u32 s3, s3, s{sW}
        s_mul_i32 s3, s3, {112*1024}
        s_lshl_b32 s4, s{sJ}, 7
        s_add_u32 s3, s3, s4
        v_min_u32 v78, 55, v1
        v_lshlrev_b32 v78, 10, v78
        buffer_load_dword v{vJA}, v78, s[68:71], s3 offen
        s_add_u32 s3, s3, {56*1024}
        buffer_load_dword v{vJA}, v78, s[68:71], s3 offen
        """)
    if MC3 == 2: mc3()
    mtouch(MPRE)
    A(f"s_waitcnt vmcnt({MPRE + (2 if MC3 == 2 else 0)}) lgkmcnt(0)\ns_barrier")
    if MC3 == 1: mc3()
    stamp(4)
    A("s_barrier")
    mtouch(MT - MPRE)
    stamp(5)
    conv_setup()
    A(f"s_mov_b32 s{sHfl2}, 0x40000000\ns_branch L_a_join")

def conv():
    FA = [96, 160]; FB = [128, 192]; ACC = 16
    def reads(rr):
        fs = rr & 1; ra = []; rb = []
        for i in range(8):
            o = (512*(1 - (i & 1)) + 64*(3 - rr)) // 4
            rb.append(f"ds_read_b128 {vr(FB[fs]+4*i,4)}, v{cB} offset:{512*i + 64*(3-rr)}")
            ra.append(f"ds_read2_b32 {vr(FA[fs]+4*i,2)}, v{cA[i>>1]} offset0:{o} offset1:{o+1}")
            ra.append(f"ds_read2_b32 {vr(FA[fs]+4*i+2,2)}, v{cA[i>>1]} offset0:{o+2} offset1:{o+3}")
        return ra, rb
    A(f"s_waitcnt lgkmcnt(0)\ns_barrier\ns_setprio {CPRIO}")
    stamp(6)
    ra, rb = reads(0)
    A(ra[0:2] + rb + ra[2:])
    U = 128; D = 136; Y = 96; P = 160
    for rr in range(4):
        fs = rr & 1
        A("s_waitcnt lgkmcnt(14)" if rr == 0 else "s_waitcnt lgkmcnt(0)")
        if rr < 3:
            ra, rb = reads(rr+1); fill = rb + ra
        else: fill = []
        if rr == 3 and TMJ:
            for t in range(8):
                for i in range(t + 1):
                    A(f"v_mfma_f32_16x16x32_bf16 {vr(ACC+4*t,4)}, {vr(FA[fs]+4*i,4)}, {vr(FB[fs]+4*(t-i),4)}, {vr(ACC+4*t,4)}")
                for tw in {3: [0], 4: [1, 2], 5: [3], 6: [4], 7: [5, 6]}.get(t, []):
                    A(f"ds_write_b128 v{cRw}, {vr(ACC+4*tw,4)} offset:{1024*tw}")
        else:
          for i in range(8):
            if rr == 0 and i == CST: publish(sHfl2, 0); A("s_barrier")
            if rr == 0 and i == 1: A("s_waitcnt lgkmcnt(0)")
            for t in range(i, 8):
                c = "0" if (rr == 0 and i == 0) else vr(ACC+4*t, 4)
                A(f"v_mfma_f32_16x16x32_bf16 {vr(ACC+4*t,4)}, {vr(FA[fs]+4*i,4)}, {vr(FB[fs]+4*(t-i),4)}, {c}")
                if fill and not (rr == 0 and i == 0): A(fill.pop(0))
            if rr == 3 and 2 <= i <= 4:
                A(f"ds_write_b128 v{cRw}, {vr(ACC+4*(i-2),4)} offset:{1024*(i-2)}")
        assert not fill
        if rr == 0: pad("cv0")
        if rr == 2: pad("cv1")
    stamp(7)
    A("s_nop 5" if TMJ else "s_nop 3")
    for t in range(7 if TMJ else 3, 8):
        A(f"ds_write_b128 v{cRw}, {vr(ACC+4*t,4)} offset:{1024*t}")
    A(f"""
    s_mov_b64 exec, 1
    s_waitcnt lgkmcnt(0)
    ds_add_u32 v{cCnt}, v14
L_cv_sync:
    ds_read_b32 v2, v{cCnt}
    s_waitcnt lgkmcnt(0)
    v_cmp_gt_u32 vcc, 4, v2
    s_cbranch_vccz L_cv_go
    s_sub_u32 s{sSpin}, s{sSpin}, 1
    s_cbranch_scc0 L_cv_sync
L_cv_go:
    s_mov_b64 exec, -1
    """)
    for hh in range(2):
        for q in range(4):
            A(f"ds_read_b128 {vr(P+16*hh+4*q,4)}, v{cRr} offset:{8192*q + 4096*hh}")
    for hh in range(2):
        b = P + 16*hh
        A(f"s_waitcnt lgkmcnt({4 - 4*hh})")
        for k in range(4): A(f"v_add_f32 v{b+k}, v{b+k}, v{b+4+k}\nv_add_f32 v{b+8+k}, v{b+8+k}, v{b+12+k}")
        for k in range(4): A(f"v_cvt_pk_bf16_f32 v{Y+4*hh+k}, v{b+k}, v{b+8+k}")
    A(f"""
    buffer_store_dwordx4 {vr(Y,4)}, v{cS0}, s[20:23], s{sCga} offen sc1
    buffer_store_dwordx4 {vr(Y+4,4)}, v{cS1}, s[20:23], s{sCga} offen sc1
    s_mov_b64 exec, 1
    """)
    stamp(8)
    A(f"s_waitcnt vmcnt(0)\nbuffer_store_dword v14, v15, s[20:23], s{sCfl} offen sc1")
    stamp_flush()
    A("s_endpgm")

def gemm2(late):
    ACC = 192
    sH = [sH0, sH1]
    vm = Cnt("vmcnt", 63); lg = Cnt("lgkmcnt", 15)
    A(f"s_setprio {GPRIO}\nv_mov_b32 v{gR[0]}, v{vDo[0]}\nv_mov_b32 v{gR[1]}, v{vDo[1]}")
    def pieces(ks):
        return [(("w", k + 12), [x.replace(f"v{vDo[0]}", f"v{gR[0]}").replace(f"v{vDo[1]}", f"v{gR[1]}").replace("s47", "s3") for x in g])
                for k in ks for g in d_piece(k, k + 12)]
    lw = pieces(late)
    if SL4:
        for _ in range(8): vm.issue(*lw.pop(0))
        A("s_waitcnt vmcnt(8)")
        for k in G2[2:6]: A(wd_reads(k, STG[k], STG[k] + 4))
        for _ in range(8): vm.issue(*lw.pop(0))
        lw = pieces(G2[2:6])
        A("s_waitcnt lgkmcnt(0)")
    else:
        for _ in range(min(2*P1, len(lw))): vm.issue(*lw.pop(0))
    A(f"s_mov_b64 exec, 0x3fff\nbuffer_load_dword v2, v{gFl}, s[20:23], s{sFl} offen sc1\ns_mov_b64 exec, -1")
    vm.ops = []
    n2 = min(2*P2, len(lw))
    for _ in range(n2): vm.issue(*lw.pop(0))
    A(f"""
    s_movk_i32 s46, 4096
    s_mov_b64 exec, 0x3fff
    s_waitcnt vmcnt({n2})
L_g2_hpoll:
    v_cmp_eq_u32 vcc, 0, v2
    s_cbranch_vccz L_g2_hready
    s_mov_b64 exec, vcc
    s_sub_u32 s{sSpin}, s{sSpin}, 1
    s_cbranch_scc1 L_g2_hready
    buffer_load_dword v2, v{gFl}, s[20:23], s{sFl} offen sc1
    s_waitcnt vmcnt(0)
    s_branch L_g2_hpoll
L_g2_hready:
    s_mov_b64 exec, -1
    """)
    if XW: A(f"s_sleep {XW}")
    if XH:
        A(f"s_and_b32 s{sH0}, s{sH0}, 0xfffff\ns_and_b32 s{sH1}, s{sH1}, 0xfffff\ns_add_u32 s{sH0}, s{sH0}, 0x8000\ns_add_u32 s{sH1}, s{sH1}, 0x8000")
    stamp(6)
    free = [16 + 4*i for i in range(8)] + [176 + 4*i for i in range(4)]
    hreg = {}; wreg = {k: (STG[k], STG[k] + 4) for k in STG}
    nxt = [0]; wnx = [12]
    def h_issue(kc, n=99):
        while n > 0 and free and nxt[0] < 56 and (nxt[0] >> 1) < kc + min(HDMAX, HD + kc):
            n -= 1
            k, tt = nxt[0] >> 1, nxt[0] & 1
            r = free.pop(0); hreg[(k, tt)] = r
            vm.issue(("h", k), f"buffer_load_dwordx4 {vr(r,4)}, v{gL16}, {HSRD}, s{sH[tt]} offen offset:{(k & 3)*1024} sc1")
            if (k & 3) == 3 and k < 27:
                if tt == 0: A(f"s_cmp_eq_u32 s{sRho}, {24 - (k - 3)}\ns_cselect_b32 s47, {u32(4096 - 28672)}, s46")
                A(f"s_add_u32 s{sH[tt]}, s{sH[tt]}, s47")
            nxt[0] += 1
    h_issue(0)
    A(f"""
    v_and_b32 v{gFl}, 15, v1
    v_lshlrev_b32 v{gFl}, 9, v{gFl}
    s_lshl_b32 s{sFl}, s{sD}, 13
    s_lshr_b32 s4, s{sTok}, 3
    s_and_b32 s4, s4, 3
    s_lshl_b32 s4, s4, 7
    s_add_u32 s{sFl}, s{sFl}, s4
    s_add_u32 s{sFl}, s{sFl}, {WS_FLAG2}
    v_and_b32 v{gT}, 31, v1
    v_lshlrev_b32 v14, 2, v{gT}
    s_lshl_b32 s4, s{sTok}, 7
    s_add_u32 s5, s4, {WS_G}
    v_lshrrev_b32 v15, 5, v1
    v_lshl_add_u32 v3, v15, 15, v14
    s_lshl_b32 s6, s{sD}, 17
    s_add_u32 s6, s6, s4
    s_add_u32 s6, s6, {WS_GA}
    """)
    if O64:
        A(f"""
        v_and_b32 v{gT}, 15, v1
        v_lshlrev_b32 v{gT}, 10, v{gT}
        v_lshl_add_u32 v{gT}, v15, 4, v{gT}
        v_and_b32 v15, 16, v1
        v_lshl_add_u32 v{gT}, v15, 1, v{gT}
        """)
    else: A(f"v_lshlrev_b32 v{gT}, 10, v{gT}\nv_lshl_add_u32 v{gT}, v15, 4, v{gT}")
    A(f"""
    s_lshl_b32 s7, s{sTok}, 15
    s_lshl_b32 s4, s{sD}, 6
    s_add_u32 s7, s7, s4
    s_mov_b32 s12, s60
    s_mov_b32 s13, s61
    s_mov_b32 s14, 0x200000
    v_add_u32 v15, s{sLds}, v{gL16}
    """)
    GA = None; gal = []
    def cpoll(first):
        if first: A("s_branch L_g2_reload")
        A(f"""
L_g2_poll:
        v_cmp_eq_u32 vcc, 0, v2
        s_cbranch_vccz L_g2_ready
        s_sub_u32 s{sSpin}, s{sSpin}, 1
        s_cbranch_scc1 L_g2_ready
        s_mov_b64 exec, vcc
        s_sleep {SLP}
L_g2_reload:
        buffer_load_dword v2, v{gFl}, s[20:23], s{sFl} offen sc1
        s_waitcnt vmcnt(0)
        s_branch L_g2_poll
        """)
        pad("g22", inline=False)
        A("L_g2_ready:\ns_mov_b64 exec, -1")
    def mf(k, dd, tt):
        c = "0" if k == 0 else vr(ACC+16*(2*dd+tt), 16)
        A(f"v_mfma_f32_32x32x16_bf16 {vr(ACC+16*(2*dd+tt),16)}, {vr(wreg[k][dd],4)}, {vr(hreg[(k,tt)],4)}, {c}")
    for k in range(24):
        pre = []
        vm.wait({("h", k)})
        if k in (0, 8, 12, 18): stamp({0: 1, 8: 2, 12: 3, 18: 4}[k], 1)
        lg.wait({("w", k)})
        if k >= WLA and wnx[0] < 24:
            kn = wnx[0]; wnx[0] += 1
            vm.wait({("w", kn)})
            wreg[kn] = (free.pop(), free.pop())
            pre = [] if XNR else [(("w", kn), x) for x in wd_reads(kn - 12, *wreg[kn])]
        for n, (dd, tt) in enumerate(((0,0),(0,1),(1,0),(1,1))):
            mf(k, dd, tt)
            if n in (0, 2): h_issue(k + 1, 1)
            elif lw: vm.issue(*lw.pop(0))
            if pre: lg.issue(*pre.pop(0))
            if gal: vm.issue("ga", gal.pop(0))
        free += [hreg[(k,0)], hreg[(k,1)], wreg[k][0], wreg[k][1]]
        h_issue(k + 1)
        if k == 8: pad("g21")
        if k == FK: vm.issue("f", f"buffer_load_dword v2, v{gFl}, s[20:23], s{sFl} offen sc1")
        if k == CK:
            stamp(7)
            vm.wait({"f"})
            assert nxt[0] == 56
            fr = sorted(free)
            GA = next(r for r in fr if r + 4 in fr and r >= 96)
            free.remove(GA); free.remove(GA + 4)
            gl = ["buffer_load_dword v4, v14, s[20:23], s5 offen sc1"]
            for m in range(8):
                gl.append(f"buffer_load_dword v{GA+m}, v3, s[20:23], s6 offen sc1" + (f"\ns_add_u32 s6, s6, {8192 if (m & 3) != 3 else 5*8192}" if m < 7 else ""))
            if NBK:
                A(f"""
                v_cmp_eq_u32 vcc, 0, v2
                s_mov_b32 s{sT}, s6
                s_cmp_eq_u64 vcc, 0
                s_cselect_b32 s6, s6, 0x40000000
                s_cselect_b32 s{sWd}, 0, 1
                """)
            else: cpoll(False)
            gal = list(gl)
    assert wnx[0] == 24
    A("v_xor_b32 v8, 0x1000, v15\nv_xor_b32 v9, 0x2000, v15\nv_xor_b32 v10, 0x3000, v15")
    vm.wait({("h", 27)})
    pend = []
    for x in (1, 2, 3, 0):
        for i, k in enumerate(range(24, 28)):
            mf(k, x >> 1, x & 1)
            if gal: vm.issue("ga", gal.pop(0))
            if pend:
                if i == 0: A("s_nop 7")
                elif i == 1: A("s_nop 1"); A(pend[0:2])
                elif i == 2: A(pend[2:4])
        pend = [f"ds_write_b128 v15, {vr(ACC+16*x+4*i,4)} offset:{(x-1)*16384 + 1024*i}" for i in range(4)] if x else []
    assert not gal and not lw
    stamp(8)
    if NBK:
        A(f"s_cmp_eq_u32 s{sWd}, 0\ns_cbranch_scc1 L_g2_have")
        cpoll(True)
        A(f"s_mov_b32 s6, s{sT}"); A(gl)
        A("L_g2_have:")
    A("s_waitcnt vmcnt(0)\nv_lshlrev_b32 v5, 16, v4\nv_and_b32 v4, 0xffff0000, v4")
    for p in range(8):
        A(f"v_lshlrev_b32 v{80+2*p}, 16, v{GA+p}\nv_and_b32 v{81+2*p}, 0xffff0000, v{GA+p}")
    for p in range(8):
        A(f"v_pk_mul_f32 {vr(80+2*p,2)}, {vr(80+2*p,2)}, v[4:5] op_sel:[0,1]")
    A("s_waitcnt lgkmcnt(0)\ns_barrier")
    for x in range(3):
        for i in range(4):
            A(f"ds_read_b128 {vr(32+16*x+4*i,4)}, v{8+x} offset:{x*16384 + 1024*i}")
    for x in range(3):
        A(f"s_waitcnt lgkmcnt({8 - 4*x})")
        for p in range(8):
            A(f"v_pk_add_f32 {vr(ACC+2*p,2)}, {vr(ACC+2*p,2)}, {vr(32+16*x+2*p,2)}")
    for p in range(8):
        A(f"v_pk_fma_f32 {vr(32+2*p,2)}, {vr(ACC+2*p,2)}, v[4:5], {vr(80+2*p,2)} op_sel_hi:[1,0,1]")
    for p in range(8):
        A(f"v_cvt_pk_bf16_f32 v{24+p}, v{32+2*p}, v{33+2*p}")
    if O64:
        A("s_add_u32 s4, s7, 16384\ns_nop 0")
        for i in range(4): A(f"v_permlane16_swap_b32 v{24+i}, v{28+i}")
        A(f"buffer_store_dwordx4 v[24:27], v{gT}, s[12:15], s7 offen {OST}\nbuffer_store_dwordx4 v[28:31], v{gT}, s[12:15], s4 offen {OST}")
    else:
        A(f"buffer_store_dwordx4 v[24:27], v{gT}, s[12:15], s7 offen {OST}\nbuffer_store_dwordx4 v[28:31], v{gT}, s[12:15], s7 offen offset:32 {OST}")
    stamp_flush()
    A("s_endpgm")

def main():
    order = [["rb", "su", "tb0", "rb1"], ["rb2", "g1b", "ea0", "ea1"], ["cv0", "cv1", "g21", "g22"]]
    for r, names in enumerate(order):
        for w, n in enumerate(names): PLAN[n] = (r, w if (r == 1 and WA) else 4 + w)
    A('.amdgcn_target "amdgcn-amd-amdhsa--gfx950"\n.text')
    A(f".globl {KNAME}\n.p2align 12\n.type {KNAME},@function\n{KNAME}:")
    if STAMP:
        for i in range(NST): A(f"s_mov_b32 s{80+2*i}, 0")
    stamp(0)
    A("s_cmp_ge_u32 s2, 256\ns_cbranch_scc1 L_exit")
    prologue()
    role_a()
    pad("rb", inline=False)
    role_b()
    mover()
    A("L_exit:\n    s_endpgm")
    assert not STUBS or PADS == set(PLAN), set(PLAN) - PADS
    A(f""".section .rodata,"a"
.p2align 6
.amdhsa_kernel {KNAME}
  .amdhsa_next_free_vgpr 256
  .amdhsa_next_free_sgpr 102
  .amdhsa_accum_offset 256
  .amdhsa_group_segment_fixed_size 0
  .amdhsa_kernarg_size 136
  .amdhsa_user_sgpr_count 2
  .amdhsa_user_sgpr_kernarg_segment_ptr 1
  .amdhsa_system_sgpr_workgroup_id_x 1
.end_amdhsa_kernel""")
    open(sys.argv[1], "w").write(HEADER + "\n".join(L) + "\n")

main()
```

```python
import sys, struct, math

OPTS = dict(a.split("=") for a in sys.argv[2:])
def opt(name, dflt): return int(OPTS.get(name, dflt))
STAMP = opt("stamp", 0); SS = opt("ss", 0)
ENC = opt("enc", -1); ENCWG = opt("encwg", 8); ENCW = opt("encw", 0)
SPIN = opt("spin", 0x400000); STUBS = opt("stubs", 1)
T2 = opt("t2", 1); AGT = opt("agt", 1); MT = opt("mt", 3); MC3 = opt("mc3", 0); MPRE = opt("mpre", 0); TFIRST = opt("tfirst", 0)
UPF = opt("upf", 6); RS = opt("rs", 7); NW = opt("nw", 14); PPRIO = opt("pprio", 0); P1 = opt("p1", 8); P2 = opt("p2", 4); KB = opt("kb", 1); NPRE = opt("npre", 0); O64 = opt("o64", 1); AORD = opt("aord", 2); C3 = opt("c3", 0); JSW = opt("jsw", 1); UP0 = opt("up0", 0); AD = opt("ad", 0); BH = opt("bh", 1); T0 = opt("t0", 0); WA = opt("wa", 1); EPI = opt("epi", 1); EDIST = opt("edist", 4); MID = opt("mid", 9); KIN = opt("kin", 0); UE = opt("ue", 0); SL4 = opt("sl4", 0); RJ = opt("rj", 0); XNR = opt("xnr", 0); XH = opt("xh", 0); XW = opt("xw", 0); RJM = opt("rjm", 1); LST = opt("lst", 0); KRS = opt("krs", 2); OST = OPTS.get("ost", "sc1").replace("_", " "); NBK = opt("nbk", 0); SLP = opt("slp", 2)
HD = opt("hd", 5); HDMAX = opt("hdmax", 8); WLA = opt("wla", 8); FK = opt("fk", 20); CK = opt("ck", 23); CST = opt("cst", -1); TMJ = opt("tmj", 1)
RLATE = opt("rlate", 12); CPRIO = opt("cprio", 2); GPRIO = opt("gprio", 1)
HSRD = "s[68:71]" if XH else "s[20:23]"
KNAME = "gated_mix__ssm_conv_s4__geglu_ffn__prompt_kernel"

WS_H, WS_UT, WS_GA, WS_G, WS_FLAG, WS_STAMP = 0x0, 0x700000, 0x900000, 0xB00000, 0xB08000, 0x1400000
WS_FLAG2 = WS_FLAG + 1792*128
WS_FLAG3 = WS_FLAG + 2816*128
WS_BYTES = 0x10000000

XB = 65536
TB = 98304
PITCH = 528
KD = TB + 2*57*PITCH
CH = 12928
UOFF = 8320
RED = TB + 2*CH
CNT = KD + 3072
assert CNT + 8 <= 163840 and RED + 32768 <= KD and RED % 256 == 0
UP = 1056
GWL = 64*UP
L2E = math.log2(math.e)
WSTEP = 32*3584

L = []
def lines(s): return [x.strip() for x in s.strip("\n").split("\n") if x.strip()]
def A(s):
    if isinstance(s, (list, tuple)): s = "\n".join(s)
    for line in lines(s):
        L.append(line if line.endswith(":") or line.startswith(".") else "    " + line)
def fbits(x): return "0x%08x" % struct.unpack("<I", struct.pack("<f", x))[0]
def f32(x): return struct.unpack("<f", struct.pack("<f", x))[0]
def vr(b, n): return f"v[{b}:{b+n-1}]"
def u32(x): return x & 0xffffffff
def slices(lst, n):
    out = []; pos = 0
    for i in range(n):
        end = (i + 1)*len(lst)//n
        while 0 < end < len(lst) and lst[end-1].startswith("s_cmp"): end += 1
        out.append(lst[pos:end]); pos = max(pos, end)
    return out

NST = 9
def stamp(idx, ss=0):
    if ENC >= 0:
        if ss == 0 and idx in (0, ENC) and not (SS == 3 and idx == 8): A(f"s_memrealtime s[{80+2*idx}:{81+2*idx}]\ns_waitcnt lgkmcnt(0)")
        return
    hide = {1: (1, 2, 3, 4), 2: (1, 2, 3), 3: (1, 2, 6, 7, 8), 5: (1,)}.get(SS, ())
    if STAMP and (ss == SS or (ss == 0 and idx not in hide)):
        A(f"s_memrealtime s[{80+2*idx}:{81+2*idx}]\ns_waitcnt lgkmcnt(0)")
ENCN = [0]
def stamp_flush():
    if ENC >= 0:
        ENCN[0] += 1; n = ENCN[0]
        A(f"""
        s_cmp_eq_u32 s2, {ENCWG}
        s_cbranch_scc0 L_enc_end{n}
        s_cmp_eq_u32 s{sW}, {ENCW}
        s_cbranch_scc0 L_enc_end{n}
        s_waitcnt vmcnt(0) lgkmcnt(0)
        s_memrealtime s[98:99]
        s_waitcnt lgkmcnt(0)
        s_sub_u32 s3, s{80+2*ENC}, s80
        s_and_b32 s3, s3, 0xfff
        s_lshl_b32 s3, s3, 2
        s_add_u32 s3, s3, s80
        s_add_u32 s3, s3, 2000
L_enc_spin{n}:
        s_memrealtime s[4:5]
        s_waitcnt lgkmcnt(0)
        s_sub_u32 s6, s4, s3
        s_cmp_lt_i32 s6, 0
        s_cbranch_scc1 L_enc_spin{n}
L_enc_end{n}:
        """)
        return
    if not STAMP: return
    A(f"""
    s_waitcnt vmcnt(0) lgkmcnt(0)
    s_memrealtime s[{80+2*NST}:{81+2*NST}]
    s_waitcnt lgkmcnt(0)
    s_mov_b64 exec, -1
    v_lshrrev_b32 v1, 6, v0
    s_lshl_b32 s3, s2, 3
    v_add_u32 v1, s3, v1
    v_lshlrev_b32 v1, 6, v1
    v_add_u32 v1, {WS_STAMP}, v1
    """)
    for i in range(12): A(f"v_mov_b32 v{4+i}, s{80+2*min(i, NST)}")
    A(f"""
    v_and_b32 v2, 63, v0
    v_cmp_eq_u32 vcc, 0, v2
    s_and_saveexec_b64 s[4:5], vcc
    buffer_store_dwordx4 v[4:7], v1, s[20:23], 0 offen
    buffer_store_dwordx4 v[8:11], v1, s[20:23], 0 offen offset:16
    buffer_store_dwordx4 v[12:15], v1, s[20:23], 0 offen offset:32
    """)

HEADER = f"""; gated mix of an S4 long convolution and a GeGLU FFN: one launch, one workgroup per CU, two wave programs.
; @launch grid=(256,1,1) block=(512,1,1) lds=163840
"""

PADS = set(); PLAN = {}
def pad(name, inline=True):
    if not STUBS or name not in PLAN: return
    if inline: A(f"s_branch L_skip_{name}")
    A(f"L_pad_{name}:\ns_branch L_warm_ret{PLAN[name][0]}")
    if inline: A(f"L_skip_{name}:")
    PADS.add(name)
def warm(r):
    if not STUBS: return
    for n, (rr, w) in PLAN.items():
        if rr == r: A(f"s_cmp_eq_u32 s{sW}, {w}\ns_cbranch_scc1 L_pad_{n}")
    A(f"L_warm_ret{r}:")

sW, sXoff, sWoff, sM0W, sM0X = 24, 25, 26, 27, 28
sIt, sHfl2, sTB, sFB, sWN, sI, sJ, sMov, sT, sSpin, sHst, sRX, sRW = 30, 31, 32, 33, 36, 38, 39, 40, 41, 42, 43, 44, 45
sDsk, sHfl, sK1, sK2, sRole = 48, 49, 54, 55, 100
sTok, sD, sH0, sH1, sLds, sFl, sWd, sRho, sCu = 50, 51, 52, 53, 64, 65, 66, 67, 29
sCga, sCfl = 50, 51
PAR = 120; vTab = 127
vWr = [72, 73]; vXr = [74, 75]; vJA = 76
ACC1 = 128
if KB:
    cKf0, cKf1, cKd0, cKd1, cKd2, cDk, cCb = 219, 220, 221, 222, 223, 232, 233
    KF = [48 + 4*i for i in range(24)]; KA = 176; KT = 184
else:
    cKf0, cKf1, cKd0, cKd1, cKd2, cDk = 5, 6, 7, 8, 9, 11
    KF = [16 + 4*i for i in range(12)] + [80 + 4*i for i in range(10)] + [64, 68]
    KA = 120; KT = 60
cA = [48, 49, 50, 51]; cB, cRw, cRr, cUr, cS0, cS1, cCnt = range(52, 59)
vG = 232
vXo = [240, 241]; vWo = 242; vDo = [248, 249]; vPoll, vZero, cMv, vOne = 250, 251, 252, 253
XA = 192; GV = 204; cZ0, cZ1, cImg, cUw, cLu0, cLu1 = range(213, 219); vU = 224
gD = [8, 9, 10, 11]; gR = [12, 13]; gFl, gL16, gT = 5, 6, 7

class Cnt:
    def __init__(self, name, cap): self.ops = []; self.name = name; self.cap = cap
    def note(self, tag): self.ops.append(tag)
    def issue(self, tag, text): A(text); self.ops.append(tag)
    def need(self, tags):
        idx = [i for i, t in enumerate(self.ops) if t in tags]
        if not idx: return None
        n = min(len(self.ops) - 1 - max(idx), self.cap)
        self.ops = self.ops[len(self.ops)-n:] if n else []
        return n
    def wait(self, tags):
        n = self.need(tags)
        if n is not None: A(f"s_waitcnt {self.name}({n})")

def x_dma(c):
    o = []
    for part in (1, 0):
        pre = [f"s_add_u32 s46, s{sRX}, {c*128}", "s_and_b32 s46, s46, 1023", f"s_add_u32 s46, s46, s{sXoff}"] if part else []
        o += [pre + [f"s_add_u32 m0, s{sM0X}, {u32((c&1)*16384 - part*8192)}", f"s_add_u32 s{sT}, s46, {u32(-part*65536)}",
                     f"buffer_load_dwordx4 v{vXo[0]}, s[8:11], s{sT} offen lds"],
              [f"buffer_load_dwordx4 v{vXo[1]}, s[8:11], s{sT} offen offset:1024 lds"]]
    return o
def w_dma(s):
    o = []
    for part in (1, 0):
        pre = [f"s_add_u32 s46, s{sRW}, {s}", "s_and_b32 s46, s46, 15", f"s_mul_i32 s46, s46, {WSTEP}", f"s_add_u32 s46, s46, s{sWoff}"] if part else []
        o += [pre + [f"s_add_u32 m0, s{sM0W}, {u32((s&3)*16384 - part*8192)}", f"s_add_u32 s{sT}, s46, {u32(-part*16*3584)}",
                     f"buffer_load_dwordx4 v{vWo}, s[12:15], s{sT} offen lds"],
              [f"buffer_load_dwordx4 v{vWo}, s[16:19], s{sT} offen offset:1024 lds"]]
    return o
def piece_off(kap): return 16384*(kap >> 1) + 2048*(kap & 1) + (RED - 98304 if kap >= 12 else 0)
def d_piece(kap, k):
    off = [f"s_add_u32 s{sT}, s{sWd}, {(k >> 1)*32768 + (k & 1)*8192}"]
    if k >= 4: off = [f"s_cmp_ge_u32 s{sRho}, {28 - k}", f"s_cselect_b32 s47, {28*16384}, 0"] + off + [f"s_sub_u32 s{sT}, s{sT}, s47"]
    return [[f"s_add_u32 m0, s{sLds}, {piece_off(kap)}"] + off + [f"buffer_load_dwordx4 v{vDo[0]}, s[68:71], s{sT} offen lds"],
            [f"buffer_load_dwordx4 v{vDo[1]}, s[68:71], s{sT} offen offset:1024 lds"]]

def prologue():
    A(f"""
    s_load_dwordx16 s[64:79], s[0:1], 8
    s_load_dwordx2 s[8:9], s[0:1], 0
    s_load_dwordx4 s[12:15], s[0:1], 80
    s_load_dwordx8 s[56:63], s[0:1], 96
    s_load_dwordx2 s[20:21], s[0:1], 128
    v_lshrrev_b32 v2, 6, v0
    v_and_b32 v1, 63, v0
    v_mov_b32 v{vZero}, 0
    v_mov_b32 v16, {CNT}
    v_mov_b32 v{vOne}, 1
    ds_write_b32 v16, v{vZero}
    ds_write_b32 v16, v{vZero} offset:4
    v_and_b32 v3, 255, v0
    v_readfirstlane_b32 s{sW}, v2
    s_lshl_b32 s3, s2, 8
    v_add_u32 v3, s3, v3
    v_lshlrev_b32 v3, 1, v3
    v_lshrrev_b32 v4, 7, v3
    v_and_b32 v4, 0xfffffffe, v4
    """)
    if STUBS and not BH: A(f"s_cmp_lt_u32 s2, 224\ns_cbranch_scc1 L_warm0\ns_cmp_eq_u32 s{sW}, 4\ns_cbranch_scc1 L_pad_mv\nL_warm0:")
    if not BH: warm(0)
    A(f"""
    s_and_b32 s{sWN}, s{sW}, 3
    s_and_b32 s3, s2, 7
    s_lshr_b32 s4, s2, 3
    s_lshr_b32 s{sTB}, s3, 1
    s_lshl_b32 s{sTB}, s{sTB}, 2
    s_and_b32 s5, s4, 3
    s_add_u32 s{sTB}, s{sTB}, s5
    s_lshl_b32 s{sI}, s3, 2
    s_add_u32 s{sI}, s{sI}, s5
    s_and_b32 s{sFB}, s3, 1
    s_mul_i32 s{sFB}, s{sFB}, 7
    s_lshr_b32 s{sJ}, s4, 2
    s_add_u32 s{sFB}, s{sFB}, s{sJ}
    s_xor_b32 s{sJ}, s{sJ}, {4 if JSW else 0}
    s_lshl_b32 s{sXoff}, s{sTB}, 17
    s_lshl_b32 s5, s{sW}, 14
    s_add_u32 s{sXoff}, s{sXoff}, s5
    s_mul_i32 s{sWoff}, s{sW}, {4*3584}
    s_lshl_b32 s5, s{sFB}, 8
    s_add_u32 s{sWoff}, s{sWoff}, s5
    s_and_b32 s{sRW}, s3, 6
    s_lshl_b32 s{sRX}, s{sRW}, 7
    s_lshl_b32 s{sRW}, s{sRW}, 1
    s_lshl_b32 s{sM0W}, s{sW}, 11
    s_add_u32 s{sM0X}, s{sM0W}, {XB}
    v_lshrrev_b32 v16, 4, v1
    v_and_b32 v17, 7, v1
    v_xor_b32 v18, v17, v16
    v_lshrrev_b32 v19, 3, v1
    v_lshlrev_b32 v19, 10, v19
    v_lshl_add_u32 v{vXo[0]}, v18, 4, v19
    v_xor_b32 v{vXo[1]}, 64, v{vXo[0]}
    v_add_u32 v{vXo[1]}, 7168, v{vXo[1]}
    v_lshlrev_b32 v17, 2, v16
    v_and_b32 v{vWo}, 15, v1
    v_xor_b32 v{vWo}, v{vWo}, v17
    s_and_b32 s5, s{sW}, 2
    v_xor_b32 v{vWo}, s5, v{vWo}
    v_lshlrev_b32 v{vWo}, 4, v{vWo}
    v_mul_u32_u24 v16, 3584, v16
    v_add_u32 v{vWo}, v{vWo}, v16
    s_mov_b32 s10, 0x200000
    s_mov_b32 s11, 0x00020000
    s_mov_b32 s18, {512*1792*2 + 1024}
    s_mov_b32 s19, 0x00020000
    s_mov_b32 s22, {WS_BYTES}
    s_mov_b32 s23, 0x00020000
    s_waitcnt lgkmcnt(0)
    s_sub_u32 s16, s14, 1024
    s_subb_u32 s17, s15, 0
    s_mov_b32 s14, {512*1792*2}
    s_mov_b32 s15, 0x00020000
    """)
    params(0, 3)
    if BH:
        A(f"s_cmp_lt_u32 s{sW}, 4\ns_cbranch_scc1 L_role_a\ns_cmp_ge_u32 s2, 224\ns_cbranch_scc1 L_mv_head")
        A(sum(x_dma(0) + w_dma(0) + w_dma(1), []))
        warm(0)
        A("s_branch L_role_b")
        mv_head()
        A("s_branch L_mv_head2\nL_role_a:")
    else: A(f"s_cmp_ge_u32 s{sW}, 4\ns_cbranch_scc1 L_role_b")
    params(3, 7)

def params(i0, i1):
    for i, p in list(enumerate((76, 64, 66, 68, 70, 72, 74)))[i0:i1]:
        A(f"global_load_ushort v{PAR+i}, v{4 if i == 0 else 3}, s[{p}:{p+1}]")

def common_setup():
    A(f"""
    v_and_b32 v{vTab}, 127, v0
    v_lshlrev_b32 v{vTab}, 2, v{vTab}
    s_lshr_b32 s6, s{sWN}, 1
    s_mul_i32 s4, s6, {57*PITCH}
    s_add_u32 s4, s4, {TB}
    v_add_u32 v{vTab}, s4, v{vTab}
    s_mov_b32 s{sK1}, {fbits(f32(L2E))}
    s_mov_b32 s{sK2}, {fbits(L2E - f32(L2E))}
    s_mov_b32 s68, s56
    s_mov_b32 s69, s57
    s_mov_b32 s70, {1792*1024}
    s_mov_b32 s71, 0x00020000
    s_and_b32 s{sRho}, s2, 7
    s_cmp_eq_u32 s{sRho}, 7
    s_cselect_b32 s{sRho}, 3, s{sRho}
    s_and_b32 s3, s{sJ}, {RJM}
    s_mul_i32 s3, s3, {RJ}
    s_add_u32 s{sRho}, s{sRho}, s3
    s_mul_i32 s3, s{sRho}, 37
    s_lshr_b32 s3, s3, 8
    s_mul_i32 s3, s3, 7
    s_sub_u32 s{sRho}, s{sRho}, s3
    s_lshl_b32 s{sRho}, s{sRho}, 2
    s_mov_b32 s{sSpin}, {SPIN}
    s_lshl_b32 s3, s2, 2
    s_load_dword s{sDsk}, s[78:79], s3
    """)

def g1_setup():
    A(f"""
    v_lshrrev_b32 v16, 2, v1
    v_and_b32 v16, 3, v16
    v_xor_b32 v17, s{sWN}, v16
    v_lshlrev_b32 v{vWr[0]}, 8, v16
    v_lshl_add_u32 v{vWr[0]}, v17, 6, v{vWr[0]}
    v_lshrrev_b32 v16, 4, v1
    v_lshl_add_u32 v{vWr[0]}, v16, 12, v{vWr[0]}
    v_and_b32 v17, 1, v16
    v_lshl_add_u32 v{vWr[0]}, v17, 5, v{vWr[0]}
    v_and_b32 v17, 3, v1
    v_lshl_add_u32 v{vWr[0]}, v17, 3, v{vWr[0]}
    v_xor_b32 v{vWr[1]}, 32, v{vWr[0]}
    v_lshrrev_b32 v17, 1, v1
    v_and_b32 v17, 7, v17
    v_xor_b32 v17, v17, v16
    v_and_b32 v18, 15, v1
    v_lshlrev_b32 v{vXr[0]}, 7, v18
    v_lshl_add_u32 v{vXr[0]}, v17, 4, v{vXr[0]}
    v_add_u32 v{vXr[0]}, {XB}, v{vXr[0]}
    v_xor_b32 v{vXr[1]}, 64, v{vXr[0]}
    v_lshlrev_b32 v10, 4, v18
    v_lshl_add_u32 v10, v16, 9, v10
    v_mov_b32 v12, {fbits(-2.0 * L2E * math.sqrt(2.0/math.pi))}
    v_mov_b32 v13, v12
    v_mov_b32 v14, 1
    v_mul_u32_u24 v15, {56*128}, v1
    s_mul_i32 s{sHst}, s{sTB}, 448
    s_lshl_b32 s5, s{sFB}, 2
    s_add_u32 s5, s5, s{sWN}
    s_lshl_b32 s4, s5, 1
    s_add_u32 s{sHst}, s{sHst}, s4
    s_lshl_b32 s{sHst}, s{sHst}, 10
    s_mul_i32 s3, s{sTB}, 112
    s_add_u32 s3, s3, s5
    s_lshl_b32 s3, s3, 7
    s_add_u32 s{sHfl}, s3, {WS_FLAG}
    s_add_u32 s{sHfl2}, s{sHfl}, {56*128}
    s_mov_b32 s34, {fbits(-2.0 * L2E * math.sqrt(2.0/math.pi) * 0.044715)}
    s_mov_b32 s35, s34
    s_mov_b32 s{sIt}, 0
    s_lshl_b32 s{sCga}, s2, 13
    s_add_u32 s{sCga}, s{sCga}, {WS_GA}
    s_lshl_b32 s3, s2, 2
    s_add_u32 s3, s3, s{sWN}
    s_lshl_b32 s3, s3, 7
    s_add_u32 s{sCfl}, s3, {WS_FLAG2}
    """)

def k_setup1():
    return lines(f"""
    s_lshr_b32 s6, s{sWN}, 1
    s_and_b32 s7, s{sWN}, 1
    s_mul_i32 s4, s6, {57*PITCH}
    s_add_u32 s4, s4, {TB}
    v_and_b32 v16, 15, v1
    v_lshrrev_b32 v17, 4, v1
    v_mul_u32_u24 v{cKf0}, {PITCH}, v16
    v_lshl_add_u32 v{cKf0}, v17, 4, v{cKf0}
    v_add_u32 v{cKf0}, s4, v{cKf0}
    s_mul_i32 s4, s7, {16*PITCH}
    v_add_u32 v{cKf1}, s4, v{cKf0}
    s_lshl_b32 s3, s6, 1
    s_add_u32 s3, s3, {KD}
    v_lshrrev_b32 v18, 1, v17
    v_and_b32 v19, 1, v17
    v_lshlrev_b32 v24, 7, v18
    v_lshl_add_u32 v24, v19, 2, v24
    v_lshl_add_u32 v24, v16, 3, v24
    v_lshlrev_b32 v25, 6, v17
    v_add_u32 v25, 256, v25
    v_lshl_add_u32 v26, v16, 2, v25
    v_lshl_add_u32 v27, v16, 1, v25
    v_cmp_gt_u32 vcc, 2, v17
    v_mov_b32 v28, 32
    v_lshl_add_u32 v25, v17, 6, v16
    v_cndmask_b32 v26, v27, v26, vcc
    v_cndmask_b32 v28, v28, 2, vcc
    s_cmp_eq_u32 s7, 0
    s_cselect_b64 vcc, -1, 0
    v_lshl_add_u32 v{cKd2}, v25, 2, s3
    v_cndmask_b32 v26, v26, v24, vcc
    v_cndmask_b32 v28, v28, 2, vcc
    v_add_u32 v28, v26, v28
    v_lshl_add_u32 v{cKd0}, v26, 2, s3
    v_lshl_add_u32 v{cKd1}, v28, 2, s3
    """)

def conv_setup():
    A(f"""
    s_lshr_b32 s6, s{sWN}, 1
    s_and_b32 s7, s{sWN}, 1
    s_mul_i32 s5, s6, {CH}
    s_add_u32 s5, s5, {TB}
    v_and_b32 v60, 15, v1
    v_lshrrev_b32 v61, 4, v1
    v_and_b32 v62, 1, v60
    v_xor_b32 v62, 1, v62
    v_mul_u32_u24 v62, 4160, v62
    v_and_b32 v63, 14, v60
    v_lshlrev_b32 v63, 1, v63
    v_sub_u32 v62, v62, v63
    v_lshl_add_u32 v62, v61, 4, v62
    s_lshl_b32 s4, s7, 8
    s_sub_u32 s4, s5, s4
    s_add_u32 s3, s4, {4060 - 512 - 192}
    v_add_u32 v{cA[0]}, s3, v62
    v_subrev_u32 v{cA[1]}, 1024, v{cA[0]}
    v_subrev_u32 v{cA[2]}, 2048, v{cA[0]}
    v_subrev_u32 v{cA[3]}, 3072, v{cA[0]}
    v_lshlrev_b32 v{cB}, 5, v60
    v_lshl_add_u32 v{cB}, v61, 4, v{cB}
    s_add_u32 s3, s4, {UOFF + 480 - 192}
    v_add_u32 v{cB}, s3, v{cB}
    v_lshlrev_b32 v{cRw}, 6, v60
    v_lshl_add_u32 v{cRw}, v61, 4, v{cRw}
    s_lshl_b32 s3, s{sWN}, 13
    s_add_u32 s3, s3, {RED}
    v_add_u32 v{cRw}, s3, v{cRw}
    v_lshlrev_b32 v{cS0}, 4, v0
    v_add_u32 v{cS1}, 4096, v{cS0}
    v_add_u32 v{cRr}, {RED}, v{cS0}
    v_mov_b32 v{cCnt}, {CNT}
    """)

def b_setup1():
    return lines(f"""
    v_lshrrev_b32 v16, 4, v1
    v_and_b32 v16, 1, v16
    v_lshlrev_b32 v16, 2, v16
    v_and_b32 v17, 7, v1
    v_xor_b32 v16, v16, v17
    v_lshrrev_b32 v17, 3, v1
    v_lshlrev_b32 v17, 10, v17
    v_lshl_add_u32 v{vDo[0]}, v16, 4, v17
    v_add_u32 v{vDo[1]}, 15360, v{vDo[0]}
    s_lshl_b32 s{sLds}, s{sWN}, 12
    s_mul_i32 s{sWd}, s{sWN}, 28
    s_add_u32 s{sWd}, s{sWd}, s{sRho}
    s_lshl_b32 s3, s{sWd}, 10
    s_lshl_b32 s{sWd}, s{sWd}, 14
    s_lshl_b32 s4, s{sJ}, 7
    s_add_u32 s{sWd}, s{sWd}, s4
    s_and_b32 s6, s{sWN}, 1
    s_lshr_b32 s7, s{sWN}, 1
    s_lshl_b32 s{sTok}, s{sI}, 1
    s_add_u32 s{sTok}, s{sTok}, s6
    s_lshl_b32 s{sD}, s{sJ}, 1
    s_add_u32 s{sD}, s{sD}, s7
    s_mul_i32 s{sH0}, s{sTok}, {112*1024}
    s_xor_b32 s4, s{sTok}, 1
    s_mul_i32 s{sH1}, s4, {112*1024}
    s_add_u32 s{sH0}, s{sH0}, s3
    s_add_u32 s{sH1}, s{sH1}, s3
    v_and_b32 v17, 16, v1
    v_lshlrev_b32 v18, 1, v17
    v_and_b32 v17, 1, v1
    v_lshl_add_u32 v18, v17, 4, v18
    v_and_b32 v17, 2, v1
    v_lshl_add_u32 v18, v17, 2, v18
    v_lshrrev_b32 v16, 2, v1
    v_and_b32 v16, 3, v16
    v_lshrrev_b32 v17, 5, v1
    v_lshl_add_u32 v19, v17, 2, v16
    v_lshl_add_u32 v{gD[0]}, v19, 7, v18
    v_lshrrev_b32 v16, 1, v16
    v_xor_b32 v16, s7, v16
    v_lshl_add_u32 v{gD[0]}, v16, 6, v{gD[0]}
    v_add_u32 v{gD[0]}, s{sLds}, v{gD[0]}
    v_xor_b32 v{gD[1]}, 64, v{gD[0]}
    v_add_u32 v{gD[2]}, 0x10000, v{gD[0]}
    v_add_u32 v{gD[3]}, 0x10000, v{gD[1]}
    v_add_u32 v{gR[0]}, {RED}, v{gD[0]}
    v_add_u32 v{gR[1]}, {RED}, v{gD[1]}
    v_lshlrev_b32 v{gFl}, 7, v1
    s_lshl_b32 s{sFl}, s{sI}, 2
    s_add_u32 s{sFl}, s{sFl}, s{sWN}
    s_mul_i32 s{sFl}, s{sFl}, {14*128}
    s_add_u32 s{sFl}, s{sFl}, {WS_FLAG}
    v_lshlrev_b32 v{gL16}, 4, v1
    """)
def b_setup2():
    CB = 0x4300 - 128
    o = lines(f"""
    v_and_b32 v32, 255, v0
    v_lshrrev_b32 v33, 3, v32
    v_lshlrev_b32 v{cLu0}, 10, v33
    v_and_b32 v26, 7, v32
    v_lshl_add_u32 v{cLu0}, v26, 4, v{cLu0}
    v_xor_b32 v26, s2, v33
    v_and_b32 v26, 7, v26
    v_lshl_add_u32 v{cLu0}, v26, 7, v{cLu0}
    v_add_u32 v{cLu1}, 32768, v{cLu0}
    s_lshr_b32 s{sCu}, s2, 3
    s_lshl_b32 s{sCu}, s{sCu}, 16
    s_add_u32 s{sCu}, s{sCu}, {WS_UT}
    s_and_b32 s3, s2, 31
    s_lshl_b32 s3, s3, 7
    s_add_u32 s3, s3, {WS_FLAG3}
    v_mov_b32 v{cMv}, s3
    v_lshlrev_b32 v{cUw}, 6, v33
    v_and_b32 v26, 3, v32
    v_lshl_add_u32 v{cUw}, v26, 4, v{cUw}
    v_bfe_u32 v26, v32, 2, 1
    v_mul_u32_u24 v26, {CH}, v26
    v_add_u32 v{cUw}, v{cUw}, v26
    v_add_u32 v{cUw}, {TB + UOFF + 512}, v{cUw}
    s_lshr_b32 s6, s{sWN}, 1
    s_and_b32 s7, s{sWN}, 1
    s_mul_i32 s5, s6, {CH}
    s_add_u32 s5, s5, {TB}
    v_and_b32 v26, 127, v0
    v_lshl_add_u32 v{cZ0}, v26, 2, s5
    v_and_b32 v{cZ1}, 60, v{cZ0}
    s_mul_i32 s3, s7, 4160
    s_add_u32 s3, s3, s5
    v_add_u32 v{cZ1}, s3, v{cZ1}
    v_lshlrev_b32 v{cImg}, 4, v32
    v_add_u32 v{cImg}, {TB}, v{cImg}
    v_lshlrev_b32 v29, 3, v32
    v_sub_u32 v29, 2047, v29
    v_cvt_f32_i32 v30, v29
    v_add_u32 v29, {CB}, v29
    v_mov_b32 v31, {128 + CB}
    s_mov_b32 s3, {KD - 4*CB}
    """)
    for e in range(9):
        r = XA + e
        o += [f"v_subrev_f32 v{r}, {fbits(float(e))}, v30", f"v_cvt_pk_bf16_f32 v{r}, v{r}, 0",
              f"v_subrev_u32 v24, {e}, v29", f"v_med3_i32 v{r}, v{r}, v24, v31", f"v_lshl_add_u32 v{r}, v{r}, 2, s3"]
    return o

def tab_common():
    return lines(f"""
    v_lshlrev_b32 v{PAR}, 16, v{PAR}
    v_lshlrev_b32 v16, 16, v{PAR+1}
    v_lshlrev_b32 v17, 16, v{PAR+2}
    v_mul_f32 v18, s{sK1}, v{PAR}
    v_fma_f32 v19, v{PAR}, s{sK1}, -v18
    v_fma_f32 v19, v{PAR}, s{sK2}, v19
    v_exp_f32 v18, v18
    v_mul_f32 v19, {fbits(math.log(2.0))}, v19
    v_fmac_f32 v18, v18, v19
    v_cvt_pk_bf16_f32 v18, 0, v18
    v_mul_f32 v16, v18, v16
    v_mul_f32 v17, v18, v17
    v_mul_f32 v16, s{sK1}, v16
    v_mul_f32 v17, 0.15915494, v17
    """)
def cexp(e, s, t):
    if s == 1.0: o = [f"v_exp_f32 v{t}, v16", f"v_fract_f32 v{t+1}, v17"]
    else: o = [f"v_mul_f32 v{t}, {fbits(s)}, v16", f"v_mul_f32 v{t+1}, {fbits(s)}, v17", f"v_exp_f32 v{t}, v{t}", f"v_fract_f32 v{t+1}, v{t+1}"]
    return o + [f"v_cos_f32 v{e}, v{t+1}", f"v_sin_f32 v{e+1}, v{t+1}", f"v_mul_f32 v{e}, v{t}, v{e}", f"v_mul_f32 v{e+1}, v{t}, v{e+1}"]
def cmul(d, a, b):
    return [f"v_pk_mul_f32 {vr(d,2)}, {vr(a,2)}, {vr(b,2)} op_sel_hi:[0,1]",
            f"v_pk_fma_f32 {vr(d,2)}, {vr(a,2)}, {vr(b,2)}, {vr(d,2)} op_sel:[1,1,0] op_sel_hi:[1,0,1] neg_lo:[0,1,0]"]
class Putter:
    def __init__(self, base): self.base = base; self.i = 0
    def __call__(self, row, r, ng=False):
        t = self.base + (self.i & 3); self.i += 1
        return [f"v_cvt_pk_bf16_f32 v{t}, v{r}, {'-' if ng else ''}v{r+1}", f"ds_write_b32 v{vTab}, v{t} offset:{row*PITCH}"]
PR = 16
def tables_a():
    put = Putter(108)
    E1, E8, E128, DB, C = 44, 24, 28, 32, 36
    o = tab_common() + cexp(E1, 1.0, 40) + cexp(E128, 128.0, 42)
    o += put(PR + 1, E1) + put(PR + 8, E128) + cexp(E8, 8.0, 40)
    o += lines(f"""
    v_lshlrev_b32 v{DB}, 16, v{PAR+3}
    v_lshlrev_b32 v{DB+1}, 16, v{PAR+4}
    v_lshlrev_b32 v{C}, 16, v{PAR+5}
    v_lshlrev_b32 v{C+1}, 16, v{PAR+6}
    v_mul_f32 v{DB}, v18, v{DB}
    v_mul_f32 v{DB+1}, v18, v{DB+1}
    """)
    q = [20, 22]; jq = list(range(1, 16))
    o += cmul(q[0], C, DB) + put(0, q[0], True)
    def do_q():
        i = jq.pop(0); r = cmul(q[1], q[0], E8); q.reverse(); return r + put(i, q[0], True)
    o += cmul(52, E1, E128) + do_q() + put(PR + 9, 52)
    cur = E1; nx = 48
    for p in range(2, 8):
        o += cmul(nx, cur, E1); cur, nx = nx, (50 if nx == 48 else 48)
        d = 52 + 2*(p & 1)
        o += do_q() + put(PR + p, cur) + cmul(d, cur, E128) + do_q() + put(PR + 8 + p, d)
    while jq: o += do_q()
    return o
def tables_b():
    put = Putter(108)
    E128, F2, F4, F6, E256 = 20, 24, 28, 32, 44
    o = tab_common() + cexp(E128, 128.0, 40) + cexp(F2, 2.0, 42)
    o += ["v_mov_b32 v111, 0x3f80", f"ds_write_b32 v{vTab}, v111 offset:{PR*PITCH}"]
    o += cmul(E256, E128, E128) + cmul(F4, F2, F2) + cmul(38, E256, E128) + cmul(F6, F4, F2)
    ch = {0: [E256, 96, 98], 1: [38, 100, 102]}; pp = 0
    for h in range(2, 17):
        c = ch[h & 1]; cur = c[0]
        if h + 2 <= 16: o += cmul(c[1], cur, E256)
        if h < 4: rows = [(PR + 16 + 4*(h-2) + p, f) for p, f in ((1, F2), (2, F4), (3, F6))]; r0 = PR + 16 + 4*(h-2)
        elif h < 8: rows = [(PR + 24 + 2*(h-4) + 1, F4)]; r0 = PR + 24 + 2*(h-4)
        else: rows = []; r0 = PR + 32 + (h-8)
        o += put(r0, cur)
        for row, f in rows:
            d = 40 + 2*(pp & 1); pp += 1
            o += cmul(d, cur, f) + put(row, d)
        ch[h & 1] = [c[1], c[2], c[1]] if h < 4 else [c[1], c[0], c[1]]
    return o
def k_reads():
    return sum(([f"ds_read_b128 {vr(KF[3*s],4)}, v{cKf0} offset:{64*s}",
                 f"ds_read_b128 {vr(KF[3*s+1],4)}, v{cKf1} offset:{16*PITCH+64*s}",
                 f"ds_read_b128 {vr(KF[3*s+2],4)}, v{cKf0} offset:{48*PITCH+64*s}"] for s in range(8)), [])
def k_mfma(waits):
    for s in range(8):
        if waits: A(f"s_waitcnt lgkmcnt({min(15, 21 - 3*s)})")
        A([f"v_mfma_f32_16x16x32_bf16 {vr(KA,4)}, {vr(KF[3*s+1],4)}, {vr(KF[3*s],4)}, {'0' if s == 0 else vr(KA,4)}",
           f"v_mfma_f32_16x16x32_bf16 {vr(KA+4,4)}, {vr(KF[3*s+2],4)}, {vr(KF[3*s],4)}, {'0' if s == 0 else vr(KA+4,4)}"])
    return lines(f"""
    v_add_f32 v{KA}, v{KA}, v{cDk}
    v_cvt_pk_bf16_f32 v{KT}, v{KA}, v{KA+1}
    v_cvt_pk_bf16_f32 v{KT+1}, v{KA+2}, v{KA+3}
    v_cvt_pk_bf16_f32 v{KT+2}, v{KA+4}, v{KA+5}
    v_cvt_pk_bf16_f32 v{KT+3}, v{KA+6}, v{KA+7}
    ds_write_b16 v{cKd0}, v{KT}
    ds_write_b16_d16_hi v{cKd0}, v{KT} offset:4
    ds_write_b16 v{cKd1}, v{KT+1}
    ds_write_b16_d16_hi v{cKd1}, v{KT+1} offset:4
    ds_write_b16 v{cKd2}, v{KT+2} offset:2048
    ds_write_b16_d16_hi v{cKd2}, v{KT+2} offset:{2048+64}
    ds_write_b16 v{cKd2}, v{KT+3} offset:{2048+128}
    ds_write_b16_d16_hi v{cKd2}, v{KT+3} offset:{2048+192}
    """)
def k_part1():
    A(k_reads()); return k_mfma(True)
def dskip():
    return lines(f"""
    s_lshl_b32 s3, s{sDsk}, 16
    s_and_b32 s4, s{sDsk}, 0xffff0000
    s_cmp_lt_u32 s{sWN}, 2
    s_cselect_b32 s3, s3, s4
    s_and_b32 s4, s{sWN}, 1
    s_cmp_eq_u32 s4, 0
    s_cselect_b32 s3, s3, 0
    v_mov_b32 v{cDk}, 0
    v_writelane_b32 v{cDk}, s3, 0
    """)
def k_gather(): return [f"ds_read_b32 v{GV+e}, v{XA+e}" for e in range(9)]
def k_pack():
    o = ["v_cmp_ne_u32 vcc, 0x1ff, v0", f"ds_write_b32 v{cZ0}, v{vZero} offset:{UOFF}",
         f"ds_write_b32 v{cZ1}, v{vZero} offset:4096", f"v_cndmask_b32 v{GV+8}, 0, v{GV+8}, vcc",
         f"s_mov_b32 s{sK1}, 0x05040100", f"s_mov_b32 s{sK2}, 0x07060302"]
    n = 0
    for c, sel in ((0, sK1), (1, sK2)):
        for k in range(2):
            for i in range(4): o.append(f"v_perm_b32 v{16+4*n+i}, v{GV+2*i+k+1}, v{GV+2*i+k}, s{sel}")
            o.append(f"ds_write_b128 v{cImg}, {vr(16+4*n,4)} offset:{c*CH + k*4160}")
            n += 1
    return o

LD_INIT = f"global_load_dword v{vPoll}, v{vZero}, s[62:63] sc1"
LD_MV = f"buffer_load_dword v{vPoll}, v{cMv}, s[20:23], 0 offen sc1"
def poll(lb, target, ld):
    A(f"""
{lb}:
    v_cmp_gt_u32 vcc, {target}, v{vPoll}
    s_cbranch_vccz {lb}_ok
    s_sub_u32 s{sSpin}, s{sSpin}, 1
    s_cmp_lt_i32 s{sSpin}, 0
    s_cbranch_scc1 {lb}_ok
    s_sleep 8
    {ld}
    s_waitcnt vmcnt(0)
    s_branch {lb}
{lb}_ok:
    """)

def gemm1_a():
    FA = [16, 32]; FB = [80, 96]
    def ra(p):
        f = FA[p & 1]; o = (p & 3)*16384
        return [f"ds_read_b64_tr_b16 {vr(f+8*mat+4*T+2*ih,2)}, v{vWr[T]} offset:{o + 1024*mat + 2048*ih}"
                for mat in range(2) for T in range(2) for ih in range(2)]
    def rb(p, h):
        xo = ((p >> 1) & 1)*16384
        return [f"ds_read_b128 {vr(FB[h]+4*i,4)}, v{vXr[p & 1]} offset:{xo + 2048*(4*h + i)}" for i in range(4)]
    A("s_waitcnt lgkmcnt(0)\ns_barrier")
    tail = [] if KB else k_part1()
    stamp(3)
    A(ra(0) + rb(0, 0)); A(tail)
    A("L_g1_loop:")
    for p in range(4):
        for h in range(2):
            wv = {3: {1: AGT}, 4: {1: 4 + AGT, 2: AGT}, 5: {1: 4 + AGT, 2: AGT}}.get(AD, {})
            A(f"s_waitcnt vmcnt({wv[p]}) lgkmcnt(0)" if h and p in wv else "s_waitcnt lgkmcnt(0)")
            if h: A("s_barrier")
            r = rb(p, 1) if h == 0 else (ra(p + 1)[:2] + rb(p + 1, 0)[:1] + ra(p + 1)[2:] + rb(p + 1, 0)[1:])
            up = UPF if h else UP0
            A(r[:up]); r = r[up:]
            if AORD == 0: order = [(i, a) for i in range(4) for a in range(4)]
            elif AORD == 1: order = [(i, a) for a in range(4) for i in range(4)]
            elif AORD == 2: order = [(i, a if i % 2 == 0 else 3 - a) for i in range(4) for a in range(4)]
            else: order = [(i if a % 2 == 0 else 3 - i, a) for a in range(4) for i in range(4)]
            for n, (i, a) in enumerate(order):
                tt = 4*h + i; mat, T = a >> 1, a & 1
                d = vr(ACC1 + 32*(tt >> 1) + 16*mat + 8*(tt & 1) + 4*T, 4)
                A(f"v_mfma_f32_16x16x32_bf16 {d}, {vr(FA[p & 1]+8*mat+4*T,4)}, {vr(FB[h]+4*i,4)}, {d}")
                if r: A(r.pop(0))
                if p == 3 and h == 1 and n == 13: A(f"s_add_u32 s{sIt}, s{sIt}, 1\ns_cmp_lt_u32 s{sIt}, 4")
    if ENC == 8 and SS == 3:
        A(f"s_cselect_b32 s76, 1, 0\ns_cmp_eq_u32 s{sIt}, 1\ns_cbranch_scc0 L_enc_nb\ns_memrealtime s[96:97]\ns_waitcnt lgkmcnt(0)\nL_enc_nb:\ns_cmp_eq_u32 s76, 1")
    if STAMP and SS == 3:
        A("s_mov_b32 s92, s94\ns_mov_b32 s94, s96\ns_mov_b32 s96, s98\ns_memrealtime s[98:99]\ns_waitcnt lgkmcnt(0)")
    A("s_cbranch_scc1 L_g1_loop")

def publish(sreg, n, lanes=1):
    A(f"""
    s_mov_b64 exec, {lanes}
    s_waitcnt vmcnt({n})
    buffer_store_dword v14, v15, s[20:23], s{sreg} offen sc1
    s_mov_b64 exec, -1
    """)

def geglu(tt):
    G = ACC1 + 32*tt; U = G + 16
    O = 64 + 0*(tt & 1) if tt == 3 else 96 + 8*(tt & 1); T = 32
    for p in range(8): A(f"v_pk_mul_f32 {vr(T+2*p,2)}, {vr(G+2*p,2)}, {vr(G+2*p,2)}")
    for p in range(8): A(f"v_pk_fma_f32 {vr(T+2*p,2)}, {vr(T+2*p,2)}, s[34:35], v[12:13]")
    for p in range(8): A(f"v_pk_mul_f32 {vr(T+2*p,2)}, {vr(T+2*p,2)}, {vr(G+2*p,2)}")
    for p in range(16): A(f"v_exp_f32 v{T+p}, v{T+p}")
    for p in range(8): A(f"v_pk_mul_f32 {vr(G+2*p,2)}, {vr(G+2*p,2)}, {vr(U+2*p,2)}")
    for p in range(8): A(f"v_pk_add_f32 {vr(T+2*p,2)}, {vr(T+2*p,2)}, 1.0 op_sel_hi:[1,0]")
    for p in range(16): A(f"v_rcp_f32 v{T+p}, v{T+p}")
    for p in range(8): A(f"v_pk_mul_f32 {vr(G+2*p,2)}, {vr(G+2*p,2)}, {vr(T+2*p,2)}")
    for p in range(8): A(f"v_cvt_pk_bf16_f32 v{O+p}, v{G+2*p}, v{G+2*p+1}")
    A(f"buffer_store_dwordx4 {vr(O,4)}, v10, s[20:23], s{sHst} offen sc1")
    A(f"buffer_store_dwordx4 {vr(O+4,4)}, v10, s[20:23], s{sHst} offen offset:256 sc1")
    if tt < 3: A(f"s_add_u32 s{sHst}, s{sHst}, {112*1024}")

def epilogue():
    ops = []
    for tt in range(4):
        G = ACC1 + 32*tt; U = G + 16; O = 96 + 8*(tt & 1); T = (32, 112)[tt & 1]
        cv = []
        for p in range(8):
            g, u, t = vr(G+2*p, 2), vr(U+2*p, 2), vr(T+2*p, 2)
            b = len(ops)
            prev = [last[(tt - 2, p)]] if tt >= 2 else []
            ops.append(("p", f"v_pk_mul_f32 {t}, {g}, {g}", prev))
            ops.append(("p", f"v_pk_fma_f32 {t}, {t}, s[34:35], v[12:13]", [b]))
            ops.append(("p", f"v_pk_mul_f32 {t}, {t}, {g}", [b+1]))
            ops.append(("t", f"v_exp_f32 v{T+2*p}, v{T+2*p}", [b+2]))
            ops.append(("t", f"v_exp_f32 v{T+2*p+1}, v{T+2*p+1}", [b+2]))
            ops.append(("p", f"v_pk_mul_f32 {g}, {g}, {u}", [b+2]))
            ops.append(("p", f"v_pk_add_f32 {t}, {t}, 1.0 op_sel_hi:[1,0]", [b+3, b+4]))
            ops.append(("t", f"v_rcp_f32 v{T+2*p}, v{T+2*p}", [b+6]))
            ops.append(("t", f"v_rcp_f32 v{T+2*p+1}, v{T+2*p+1}", [b+6]))
            ops.append(("p", f"v_pk_mul_f32 {g}, {g}, {t}", [b+5, b+7, b+8]))
            ops.append(("p", f"v_cvt_pk_bf16_f32 v{O+p}, v{G+2*p}, v{G+2*p+1}", [b+9] + ([stores[2*(tt-2) + p//4]] if tt >= 2 else [])))
            last[(tt, p)] = b + 9; cv.append(b + 10)
            if p in (3, 7):
                st = f"buffer_store_dwordx4 {vr(O+p-3,4)}, v10, s[20:23], s{sHst} offen offset:{256*(p//4)} sc1"
                if p == 7 and tt < 3: st += f"\ns_add_u32 s{sHst}, s{sHst}, {112*1024}"
                ops.append(("s", st, cv[-4:] + stores[-1:])); stores.append(len(ops) - 1)
    done = {}; n = 0; want = ["t", "p", "p", "t", "p", "p", "t", "p", "p", "t", "p"]; nst = 0
    todo = list(range(len(ops)))
    while todo:
        ready = [i for i in todo if all(d in done and n - done[d] >= EDIST for d in ops[i][2])]
        if not ready: ready = [i for i in todo if all(d in done and n - done[d] >= (3 if ops[d][0] == "s" else 2) for d in ops[i][2])]
        if not ready: A("s_nop 0"); n += 1; continue
        if n < LST: ready = [i for i in ready if ops[i][0] != "s"] or ready
        st = [i for i in ready if ops[i][0] == "s"]
        pick = st[0] if st else next((i for i in ready if ops[i][0] == want[n % len(want)]), ready[0])
        A(ops[pick][1]); done[pick] = n; n += 1; todo.remove(pick)
        if ops[pick][0] == "s":
            nst += 1
            if nst == 2: pad("ea0")
            if nst == 5: pad("ea1")
            if nst == MID: publish(sHfl, MID - 4)
last = {}; stores = []

def role_a():
    A(f"s_mov_b32 s{sRole}, 0\nv_mov_b64 v[40:41], 0\nv_mov_b64 v[42:43], 0")
    if T0:
        A(f"""
        s_cmp_ge_u32 s2, 224
        s_cbranch_scc1 L_t0_done
        s_cmp_ge_u32 s{sW}, 2
        s_cbranch_scc1 L_t0_x
        s_lshr_b32 s3, s2, 3
        s_and_b32 s3, s3, 3
        s_add_u32 s3, s3, s{sRW}
        s_mul_i32 s3, s3, {WSTEP}
        s_lshl_b32 s4, s{sFB}, 8
        s_add_u32 s3, s3, s4
        v_lshrrev_b32 v112, 1, v1
        v_mul_u32_u24 v112, 3584, v112
        v_and_b32 v113, 1, v1
        v_lshl_add_u32 v112, v113, 7, v112
        s_cmp_eq_u32 s{sW}, 0
        s_cbranch_scc0 L_t0_u
        buffer_load_dword v{vJA}, v112, s[12:15], s3 offen
        s_branch L_t0_done
L_t0_u:
        buffer_load_dword v{vJA}, v112, s[16:19], s3 offen offset:1024
        s_branch L_t0_done
L_t0_x:
        s_lshr_b32 s3, s2, 5
        s_mul_i32 s3, s3, 19
        v_min_u32 v112, 18, v1
        v_add_u32 v112, s3, v112
        v_min_u32 v112, 127, v112
        v_lshlrev_b32 v112, 10, v112
        s_lshl_b32 s3, s{sTB}, 17
        s_add_u32 s3, s3, s{sRX}
        s_and_b32 s4, s{sW}, 1
        s_lshl_b32 s4, s4, 7
        s_add_u32 s3, s3, s4
        buffer_load_dword v{vJA}, v112, s[8:11], s3 offen
L_t0_done:
        """)
    ALIST = {3: [("X", 1), ("W", 2)], 4: [("W", 2), ("W", 3)], 5: [("W", 2), ("W", 3)]}.get(AD, [])
    def a_dma():
        o = sum(sum((x_dma(i) if k == "X" else w_dma(i) for k, i in ALIST), []), [])
        A([x.replace(f"v{vWo}", "v116").replace(f"v{vXo[0]}", "v117").replace(f"v{vXo[1]}", "v118") for x in o])
    if AD:
        A(f"""
        s_add_u32 s{sM0W}, s{sM0W}, 8192
        s_add_u32 s{sM0X}, s{sM0X}, 8192
        s_add_u32 s{sWoff}, s{sWoff}, {16*3584}
        s_add_u32 s{sXoff}, s{sXoff}, 65536
        v_mov_b32 v116, v{vWo}
        v_mov_b32 v117, v{vXo[0]}
        v_mov_b32 v118, v{vXo[1]}
        """)
    common_setup(); g1_setup(); pad("su")
    if not KB: A(k_setup1())
    A("s_cmp_ge_u32 s2, 224\ns_cbranch_scc1 L_mv_a")
    for i in range(8):
        A(f"v_mfma_f32_32x32x16_bf16 {vr(ACC1+16*i,16)}, v[40:43], v[40:43], 0")
    if AD in (3, 5): a_dma()
    A(f"s_waitcnt vmcnt({(8 if AD in (3, 5) else 0) + T0})")
    if T2:
        A(f"""
        s_cmp_ge_u32 s{sW}, 2
        s_cbranch_scc1 L_a_tab
        s_lshl_b32 s3, s2, 1
        s_add_u32 s3, s3, s{sW}
        s_mul_i32 s3, s3, {37*128}
        v_min_u32 v112, 36, v1
        v_lshlrev_b32 v112, 7, v112
        buffer_load_dword v{vJA}, v112, s[8:11], s3 offen
        """)
    A("L_a_tab:")
    stamp(1)
    t = tables_a()
    A(t[:50]); pad("tb0"); A(t[50:])
    stamp(2)
    if not KB: A("s_waitcnt lgkmcnt(0)"); A(dskip())
    A("s_cmp_ge_u32 s2, 224\ns_cbranch_scc1 L_mv_a2")
    if AD == 4: a_dma()
    if AGT:
        A(f"""
        s_lshl_b32 s3, s2, 2
        s_add_u32 s3, s3, s{sW}
        s_lshl_b32 s3, s3, 11
        v_and_b32 v112, 15, v1
        v_lshlrev_b32 v112, 7, v112
        buffer_load_dword v{vJA}, v112, s[68:71], s3 offen
        """)
    if C3:
        A(f"""
        s_lshr_b32 s3, s2, 3
        s_lshl_b32 s3, s3, 14
        s_mul_i32 s4, s{sW}, {448*1024}
        s_add_u32 s3, s3, s4
        v_and_b32 v113, 15, v1
        v_lshlrev_b32 v113, 10, v113
        buffer_load_dword v{vJA}, v113, s[68:71], s3 offen offset:384
        """)
    if WA: warm(1)
    A("s_setprio 1")
    gemm1_a()
    stamp(4)
    if STAMP and SS == 5: A("s_memtime s[72:73]\ns_waitcnt lgkmcnt(0)")
    if EPI:
        epilogue()
        if STAMP and SS == 5: A("s_memtime s[74:75]\ns_waitcnt lgkmcnt(0)\ns_sub_u32 s82, s74, s72")
    else:
        geglu(0); pad("ea0")
        geglu(1)
        geglu(2); pad("ea1")
        publish(sHfl, 2)
        geglu(3)
    stamp(5)
    conv_setup()
    if MID > 8: publish(sHfl, 0, 3)
    else: publish(sHfl2, 0)
    A("L_a_join:")
    conv()

G1 = [0, 1, 8, 9, 2, 3]; G2 = [4, 5, 10, 11, 6, 7]
STG = {k: 48 + 8*i for i, k in enumerate(G1 + G2)}
STG.update({24 + i: 144 + 8*i for i in range(4)})
def wd_reads(kap, d0, d1):
    o = piece_off(kap)
    if kap >= 12: base = gR; o -= RED
    elif o >= 65536: base = gD[2:4]; o -= 65536
    else: base = gD[0:2]
    return [f"ds_read_b64_tr_b16 {vr((d0, d1)[dd]+2*ih,2)}, v{base[dd]} offset:{o + 1024*ih}" for dd in range(2) for ih in range(2)]

def u_loads(vm):
    vm.issue("u", f"buffer_load_dwordx4 {vr(vU,4)}, v{cLu0}, s[20:23], s{sCu} offen sc1")
    vm.issue("u", f"buffer_load_dwordx4 {vr(vU+4,4)}, v{cLu1}, s[20:23], s{sCu} offen sc1")

def b_finish(vm, lb, kin=False, early=False):
    late = []
    if kin:
        vm.wait({"mv"}); poll(lb, 1, LD_MV)
        u_loads(vm)
    elif KB:
        tail = k_mfma(False)
        if not early:
            vm.wait({"mv"}); poll(lb, 1, LD_MV)
            u_loads(vm)
        A("s_nop 7"); A(tail)
        A(f"""
        s_mov_b64 exec, 1
        s_waitcnt lgkmcnt(0)
        ds_add_u32 v{cCb}, v{vOne}
        s_mov_b64 exec, -1
        """)
    def stage(ks, refill=True):
        vm.wait({("d", k) for k in ks})
        for k in ks: A(wd_reads(k, STG[k], STG[k] + 4))
        A("s_waitcnt lgkmcnt(0)")
        for k in ks:
            if refill:
                for g in d_piece(k, k + 12): vm.issue(("d", k + 12), g)
            else: late.append(k)
    stage(G1[0:2], RLATE < 12); stage(G1[2:4], RLATE < 10)
    if not KB:
        vm.wait({"mv"}); poll(lb, 1, LD_MV)
        u_loads(vm)
    elif not kin:
        A(f"""
        s_mov_b64 exec, 1
{lb}_k:
        ds_read_b32 v2, v{cCb}
        s_waitcnt lgkmcnt(0)
        v_cmp_gt_u32 vcc, 4, v2
        s_cbranch_vccz {lb}_kgo
        s_sub_u32 s{sSpin}, s{sSpin}, 1
        s_cmp_lt_i32 s{sSpin}, 0
        s_cbranch_scc0 {lb}_k
{lb}_kgo:
        s_mov_b64 exec, -1
        """)
        A(k_gather())
    stage(G1[4:6] + G2[0:2], RLATE < 8)
    if not kin:
        vm.wait({("d", 24 + i) for i in range(4)})
        for i in range(4): A(wd_reads(12 + i, STG[24 + i], STG[24 + i] + 4))
    A(k_pack())
    if not SL4: stage(G2[2:6], RLATE < 4)
    vm.wait({"u"})
    A(f"ds_write_b128 v{cUw}, {vr(vU,4)}\nds_write_b128 v{cUw}, {vr(vU+4,4)} offset:2048")
    return late

def role_b():
    A(f"L_role_b:\ns_mov_b32 s{sRole}, 1")
    if not BH: A("s_cmp_ge_u32 s2, 224\ns_cbranch_scc1 L_mv_head")
    vm = Cnt("vmcnt", 63)
    def groups(kind, idx):
        if kind == "W" and idx < 16: return [((kind, idx), g) for g in w_dma(idx)]
        if kind == "X" and idx < 8: return [((kind, idx), g) for g in x_dma(idx)]
        sig = idx - 16 if kind == "W" else idx - 4
        return [(("d", k), g) for k in (2*sig, 2*sig + 1) for g in d_piece(k, k)]
    def dma(kind, idx):
        for tag, g in groups(kind, idx): vm.issue(tag, g)
    def barrier(tags):
        n = vm.need(tags)
        A(f"s_waitcnt {'vmcnt(%d) ' % n if n is not None else ''}lgkmcnt(0)\ns_barrier")
    if BH:
        for t in (("X", 0), ("W", 0), ("W", 1)):
            for _ in range(4): vm.note(t)
    else:
        dma("X", 0); dma("W", 0); dma("W", 1)
    common_setup()
    A("s_waitcnt vmcnt(12)")
    stamp(1)
    t = tables_b()
    A(t[:60]); pad("rb1")
    if AD == 3: dma("W", 3)
    else: dma("X", 1)
    A(t[60:])
    stamp(2)
    if KB:
        k1 = k_setup1()
        rest = k1[11:] + b_setup1(); kr = k_reads(); mix = []
        if KRS:
            while kr or rest:
                if kr: mix.append(kr.pop(0))
                n = KRS
                while rest and (n > 0 or mix[-1].startswith("s_cmp")): mix.append(rest.pop(0)); n -= 1
        else: mix = kr + rest
        allw = k1[:11] + mix + dskip() + [f"v_mov_b32 v{cCb}, {CNT + 4}"] + b_setup2()
    else: allw = b_setup1() + b_setup2() + k_gather()
    if KIN:
        global L
        keep = L; L = []; tail = k_mfma(False); km = [x.strip() for x in L]; L = keep
        rr = sum((wd_reads(12 + i, STG[24 + i], STG[24 + i] + 4) for i in range(4)), [])
        cut = len(allw) - 45
        w1 = slices(allw[:cut], 9); w2 = slices(allw[cut:], 4); m4 = slices(km, 4)
        work = w1 + [sum(([x] + w2[i][3*j:3*j+3] for j, x in enumerate(m4[i])), []) + w2[i][12:] for i in range(4)] + [tail, k_gather() + rr[:4], rr[4:]]
    else: work = slices(allw, NW)
    barrier({("X", 0), ("W", 0)})
    stamp(3)
    if not AD: dma("W", 2)
    carry = [] if AD else groups("W", 3)
    for s in range(16):
        barrier({("W", s + 1), ("X", (s + 1)//2)} | ({("d", 24 + i) for i in range(4)} if s == 14 else set()))
        if UE and s == 15:
            vm.wait({"mv"}); poll("L_pm1", 1, LD_MV); u_loads(vm)
        g = carry; carry = []
        if s & 1:
            g += groups("X", (s + 3)//2)
            w4 = groups("W", s + 4)
            if s < 15: g += w4[:2]; carry = w4[2:]
            else: g += w4
        else: g += groups("W", s + 4)
        if (RS <= s < RS + 4) if KB else (RS <= s < RS + 8 and (s - RS) % 2 == 0):
            i = s - RS if KB else (s - RS)//2
            g += [(("d", 24 + i), x) for x in d_piece(12 + i, 24 + i)]
        w = work.pop(0) if work else []
        for (tag, gi), wi in zip(g, slices(w, len(g))):
            vm.issue(tag, gi); A(wi)
        if s == 5: A(f"s_cmp_eq_u32 s{sW}, 4\ns_cbranch_scc0 L_noinit\n{LD_INIT}\nL_noinit:")
        if s == 10:
            A(f"s_cmp_eq_u32 s{sW}, 4\ns_cbranch_scc0 L_pi_ok")
            poll("L_pi", 128, LD_INIT)
        if s == (13 if UE else 14): vm.issue("mv", LD_MV)
        if s == 1 and not WA: warm(1)
        if s == 3: pad("rb2")
        if s == 8: pad("g1b")
    A(f"s_setprio {PPRIO}")
    stamp(4)
    late = b_finish(vm, "L_pm1", KIN, UE)
    A("L_b_join:")
    warm(2)
    stamp(5)
    A("s_waitcnt lgkmcnt(0)\ns_barrier")
    if CST >= 0: A("s_barrier")
    gemm2(late if SL4 else sorted(late))

def mv_head():
    A(f"""
L_mv_head:
    s_sub_u32 s6, s2, 224
    s_lshl_b32 s3, s6, 16
    s_lshl_b32 s4, s{sWN}, 14
    s_add_u32 s3, s3, s4
    s_mul_i32 s4, s{sWN}, {16*UP}
    v_lshlrev_b32 v16, 4, v1
    s_add_u32 s5, s3, 16384
L_mv_ld:
    s_mov_b32 m0, s4
    s_add_u32 s4, s4, {UP}
    buffer_load_dwordx4 v16, s[8:11], s3 offen lds
    s_add_u32 s3, s3, 1024
    s_cmp_lt_u32 s3, s5
    s_cbranch_scc1 L_mv_ld
    global_load_dwordx4 v[128:131], v16, s[58:59]
    v_add_u32 v132, {GWL}, v16
    """)

def mover():
    if BH: A(f"L_mv_head2:\ns_mov_b32 s{sRole}, 1")
    else:
        if STUBS: A("L_pad_mv:\ns_branch L_warm_ret0")
        mv_head()
    common_setup()
    A("s_waitcnt vmcnt(17)"); A(tables_b())
    A(b_setup1()); A(b_setup2())
    if KB: A(k_setup1()); A("s_waitcnt lgkmcnt(0)"); A(dskip()); A(f"v_mov_b32 v{cCb}, {CNT + 4}")
    A("s_waitcnt vmcnt(0)\nds_write_b128 v132, v[128:131]\ns_branch L_mv_common")
    A(f"""
L_mv_a:
    s_sub_u32 s6, s2, 224
    s_lshl_b32 s3, s6, 2
    s_add_u32 s3, s3, s{sW}
    s_mul_i32 s3, s3, 22
    v_add_u32 v16, s3, v1
    s_add_u32 s3, s6, 2816
    v_mov_b32 v17, s3
    v_cmp_gt_u32 vcc, 22, v1
    s_getpc_b64 s[4:5]
L_pc:
    s_sub_u32 s4, s4, L_pc - {KNAME}
    s_subb_u32 s5, s5, 0
    v_cndmask_b32 v16, v17, v16, vcc
    v_lshlrev_b32 v16, 7, v16
    v_add_u32 v16, {WS_FLAG}, v16
    buffer_store_dword v{vZero}, v16, s[20:23], 0 offen sc1
    v_lshlrev_b32 v16, 7, v0
    v_min_u32 v16, L_exit - {KNAME}, v16
    global_load_dword v{vJA}, v16, s[4:5]
    s_waitcnt vmcnt(2)
    s_branch L_a_tab
L_mv_a2:
    s_waitcnt vmcnt(0)
    s_mov_b64 exec, 1
    global_atomic_add v15, v14, s[62:63] sc1
    s_mov_b64 exec, -1
L_mv_common:
    s_sub_u32 s{sMov}, s2, 224
    v_and_b32 v2, 15, v1
    v_lshrrev_b32 v3, 4, v1
    v_lshlrev_b32 v16, 4, v3
    v_lshrrev_b32 v17, 2, v1
    v_and_b32 v17, 3, v17
    v_lshl_add_u32 v17, v3, 3, v17
    v_mul_u32_u24 v17, {UP}, v17
    v_and_b32 v18, 3, v1
    v_lshl_add_u32 v17, v18, 3, v17
    s_lshl_b32 s4, s{sW}, 7
    v_add_u32 v17, s4, v17
    s_lshl_b32 s3, s{sW}, 18
    s_lshl_b32 s4, s{sMov}, 11
    s_add_u32 s3, s3, s4
    s_add_u32 s3, s3, {WS_UT}
    v_lshlrev_b32 v18, 6, v2
    v_lshl_add_u32 v18, v3, 4, v18
    s_and_b32 s4, s{sMov}, 3
    s_lshl_b32 s4, s4, 8
    v_xor_b32 v18, s4, v18
    v_xor_b32 v19, 128, v18
    s_waitcnt lgkmcnt(0)
    s_barrier
    """)
    stamp(3)
    for q in range(4):
        b = 160 + 8*q
        A(f"""
        ds_read_b64_tr_b16 {vr(b,2)}, v17 offset:{32*q}
        ds_read_b64_tr_b16 {vr(b+2,2)}, v17 offset:{32*q + 4*UP}
        ds_read_b64_tr_b16 {vr(b+4,2)}, v17 offset:{32*q + 32*UP}
        ds_read_b64_tr_b16 {vr(b+6,2)}, v17 offset:{32*q + 36*UP}
        """)
    for q in range(4):
        b = 160 + 8*q
        A(f"""
        s_waitcnt lgkmcnt({12 - 4*q})
        buffer_store_dwordx4 {vr(b,4)}, v18, s[20:23], s3 offen sc1
        buffer_store_dwordx4 {vr(b+4,4)}, v19, s[20:23], s3 offen offset:1024 sc1
        s_add_u32 s3, s3, 65536
        """)
    A(f"""
    s_cmp_eq_u32 s{sRole}, 0
    s_cbranch_scc1 L_mv_a3
    s_mul_i32 s4, s{sWN}, {16*UP}
    v_mul_u32_u24 v17, {UP}, v2
    v_add_u32 v17, v17, v16
    v_add_u32 v17, s4, v17
    v_add_u32 v4, {GWL}, v16
    """)
    for i in range(16):
        A(f"ds_read_b128 {vr(32+4*i,4)}, v17 offset:{64*i}\nds_read_b128 {vr(96+4*i,4)}, v4 offset:{64*i}")
    A("s_waitcnt lgkmcnt(0)")
    for i in range(16):
        c = "0" if i < 2 else vr(24+4*(i&1), 4)
        A(f"v_mfma_f32_16x16x32_bf16 {vr(24+4*(i&1),4)}, {vr(32+4*i,4)}, {vr(96+4*i,4)}, {c}")
    A(f"""
    s_lshl_b32 s3, s{sMov}, 2
    s_add_u32 s3, s3, s{sWN}
    s_lshl_b32 s3, s3, 6
    s_add_u32 s3, s3, {WS_G}
    s_nop 5
    """)
    for r in range(4): A(f"v_add_f32 v{24+r}, v{24+r}, v{28+r}")
    for r in range(4): A(f"v_cvt_pk_bf16_f32 v{24+r}, 0, v{24+r}")
    for r in range(4): A(f"v_mul_f32 v{24+r}, {fbits(-L2E)}, v{24+r}")
    for r in range(4): A(f"v_exp_f32 v{24+r}, v{24+r}")
    A("s_nop 0")
    for r in range(4): A(f"v_add_f32 v{24+r}, 1.0, v{24+r}")
    for r in range(4): A(f"v_rcp_f32 v{24+r}, v{24+r}")
    A("s_nop 0")
    for r in range(4): A(f"v_cvt_pk_bf16_f32 v{24+r}, 0, v{24+r}")
    for r in range(4): A(f"v_sub_f32 v{28+r}, 1.0, v{24+r}")
    for r in range(4): A(f"v_cvt_pk_bf16_f32 v{24+r}, v{24+r}, v{28+r}")
    A(f"""
    v_cmp_eq_u32 vcc, 0, v2
    s_and_saveexec_b64 s[4:5], vcc
    buffer_store_dwordx4 v[24:27], v16, s[20:23], s3 offen sc1
    s_mov_b64 exec, s[4:5]
    """)
    if KB: A(k_reads())
    A(f"""
    s_waitcnt vmcnt(0) lgkmcnt(0)
    s_barrier
    s_cmp_eq_u32 s{sW}, 4
    s_cbranch_scc0 L_pi2_ok
    s_mov_b64 exec, 1
    global_atomic_add v40, v{vZero}, v{vOne}, s[62:63] offset:128 sc0 sc1
    s_mov_b64 exec, -1
    {LD_INIT}
    s_waitcnt vmcnt(0)
    v_readfirstlane_b32 s3, v40
    v_and_b32 v17, 31, v1
    v_lshlrev_b32 v17, 7, v17
    v_add_u32 v17, {WS_FLAG3}, v17
    s_and_b32 s3, s3, 31
    s_cmp_eq_u32 s3, 31
    s_cbranch_scc0 L_pi2
    buffer_store_dword v{vOne}, v17, s[20:23], 0 offen sc1
    """)
    poll("L_pi2", 128, LD_INIT)
    stamp(4)
    vm = Cnt("vmcnt", 63)
    if not KB: A(k_gather())
    if TFIRST: A("s_barrier")
    for k in G1 + G2:
        for g in d_piece(k, k): vm.issue(("d", k), g)
    for i in range(4):
        for g in d_piece(12 + i, 24 + i): vm.issue(("d", 24 + i), g)
    if not TFIRST: A("s_barrier")
    vm.issue("mv", LD_MV)
    b_finish(vm, "L_pm2")
    A("s_branch L_b_join")
    def mtouch(n):
        for i in range(n):
            A(f"s_cmp_ge_u32 s46, {448*1024}\ns_cselect_b32 s3, {448*1024}, 0\ns_sub_u32 s46, s46, s3\ns_add_u32 s3, s47, s46\nbuffer_load_dword v{vJA}, v77, s[68:71], s3 offen\ns_add_u32 s46, s46, 32768")
    A(f"""
L_mv_a3:
    s_lshr_b32 s47, s{sMov}, 3
    s_mul_i32 s47, s47, {448*1024}
    s_lshl_b32 s4, s{sW}, 13
    s_add_u32 s47, s47, s4
    s_lshl_b32 s46, s{sRho}, 14
    s_add_u32 s46, s46, {192*1024}
    v_lshlrev_b32 v77, 7, v1
    """)
    if not KB:
        tail = k_part1(); A("s_nop 7"); A(tail)
    def mc3():
        A(f"""
        s_lshr_b32 s3, s{sMov}, 3
        s_lshl_b32 s3, s3, 2
        s_add_u32 s3, s3, s{sW}
        s_mul_i32 s3, s3, {112*1024}
        s_lshl_b32 s4, s{sJ}, 7
        s_add_u32 s3, s3, s4
        v_min_u32 v78, 55, v1
        v_lshlrev_b32 v78, 10, v78
        buffer_load_dword v{vJA}, v78, s[68:71], s3 offen
        s_add_u32 s3, s3, {56*1024}
        buffer_load_dword v{vJA}, v78, s[68:71], s3 offen
        """)
    if MC3 == 2: mc3()
    mtouch(MPRE)
    A(f"s_waitcnt vmcnt({MPRE + (2 if MC3 == 2 else 0)}) lgkmcnt(0)\ns_barrier")
    if MC3 == 1: mc3()
    stamp(4)
    A("s_barrier")
    mtouch(MT - MPRE)
    stamp(5)
    conv_setup()
    A(f"s_mov_b32 s{sHfl2}, 0x40000000\ns_branch L_a_join")

def conv():
    FA = [96, 160]; FB = [128, 192]; ACC = 16
    def reads(rr):
        fs = rr & 1; ra = []; rb = []
        for i in range(8):
            o = (512*(1 - (i & 1)) + 64*(3 - rr)) // 4
            rb.append(f"ds_read_b128 {vr(FB[fs]+4*i,4)}, v{cB} offset:{512*i + 64*(3-rr)}")
            ra.append(f"ds_read2_b32 {vr(FA[fs]+4*i,2)}, v{cA[i>>1]} offset0:{o} offset1:{o+1}")
            ra.append(f"ds_read2_b32 {vr(FA[fs]+4*i+2,2)}, v{cA[i>>1]} offset0:{o+2} offset1:{o+3}")
        return ra, rb
    A(f"s_waitcnt lgkmcnt(0)\ns_barrier\ns_setprio {CPRIO}")
    stamp(6)
    ra, rb = reads(0)
    A(ra[0:2] + rb + ra[2:])
    U = 128; D = 136; Y = 96; P = 160
    for rr in range(4):
        fs = rr & 1
        A("s_waitcnt lgkmcnt(14)" if rr == 0 else "s_waitcnt lgkmcnt(0)")
        if rr < 3:
            ra, rb = reads(rr+1); fill = rb + ra
        else: fill = []
        if rr == 3 and TMJ:
            for t in range(8):
                for i in range(t + 1):
                    A(f"v_mfma_f32_16x16x32_bf16 {vr(ACC+4*t,4)}, {vr(FA[fs]+4*i,4)}, {vr(FB[fs]+4*(t-i),4)}, {vr(ACC+4*t,4)}")
                for tw in {3: [0], 4: [1, 2], 5: [3], 6: [4], 7: [5, 6]}.get(t, []):
                    A(f"ds_write_b128 v{cRw}, {vr(ACC+4*tw,4)} offset:{1024*tw}")
        else:
          for i in range(8):
            if rr == 0 and i == CST: publish(sHfl2, 0); A("s_barrier")
            if rr == 0 and i == 1: A("s_waitcnt lgkmcnt(0)")
            for t in range(i, 8):
                c = "0" if (rr == 0 and i == 0) else vr(ACC+4*t, 4)
                A(f"v_mfma_f32_16x16x32_bf16 {vr(ACC+4*t,4)}, {vr(FA[fs]+4*i,4)}, {vr(FB[fs]+4*(t-i),4)}, {c}")
                if fill and not (rr == 0 and i == 0): A(fill.pop(0))
            if rr == 3 and 2 <= i <= 4:
                A(f"ds_write_b128 v{cRw}, {vr(ACC+4*(i-2),4)} offset:{1024*(i-2)}")
        assert not fill
        if rr == 0: pad("cv0")
        if rr == 2: pad("cv1")
    stamp(7)
    A("s_nop 5" if TMJ else "s_nop 3")
    for t in range(7 if TMJ else 3, 8):
        A(f"ds_write_b128 v{cRw}, {vr(ACC+4*t,4)} offset:{1024*t}")
    A(f"""
    s_mov_b64 exec, 1
    s_waitcnt lgkmcnt(0)
    ds_add_u32 v{cCnt}, v14
L_cv_sync:
    ds_read_b32 v2, v{cCnt}
    s_waitcnt lgkmcnt(0)
    v_cmp_gt_u32 vcc, 4, v2
    s_cbranch_vccz L_cv_go
    s_sub_u32 s{sSpin}, s{sSpin}, 1
    s_cmp_lt_i32 s{sSpin}, 0
    s_cbranch_scc0 L_cv_sync
L_cv_go:
    s_mov_b64 exec, -1
    """)
    for hh in range(2):
        for q in range(4):
            A(f"ds_read_b128 {vr(P+16*hh+4*q,4)}, v{cRr} offset:{8192*q + 4096*hh}")
    for hh in range(2):
        b = P + 16*hh
        A(f"s_waitcnt lgkmcnt({4 - 4*hh})")
        for k in range(4): A(f"v_add_f32 v{b+k}, v{b+k}, v{b+4+k}\nv_add_f32 v{b+8+k}, v{b+8+k}, v{b+12+k}")
        for k in range(4): A(f"v_cvt_pk_bf16_f32 v{Y+4*hh+k}, v{b+k}, v{b+8+k}")
    A(f"""
    buffer_store_dwordx4 {vr(Y,4)}, v{cS0}, s[20:23], s{sCga} offen sc1
    buffer_store_dwordx4 {vr(Y+4,4)}, v{cS1}, s[20:23], s{sCga} offen sc1
    s_mov_b64 exec, 1
    """)
    stamp(8)
    A(f"s_waitcnt vmcnt(0)\nbuffer_store_dword v14, v15, s[20:23], s{sCfl} offen sc1")
    stamp_flush()
    A("s_endpgm")

def gemm2(late):
    ACC = 192
    sH = [sH0, sH1]
    vm = Cnt("vmcnt", 63); lg = Cnt("lgkmcnt", 15)
    A(f"s_setprio {GPRIO}\nv_mov_b32 v{gR[0]}, v{vDo[0]}\nv_mov_b32 v{gR[1]}, v{vDo[1]}")
    def pieces(ks):
        return [(("w", k + 12), [x.replace(f"v{vDo[0]}", f"v{gR[0]}").replace(f"v{vDo[1]}", f"v{gR[1]}").replace("s47", "s3") for x in g])
                for k in ks for g in d_piece(k, k + 12)]
    lw = pieces(late)
    if SL4:
        for _ in range(8): vm.issue(*lw.pop(0))
        A("s_waitcnt vmcnt(8)")
        for k in G2[2:6]: A(wd_reads(k, STG[k], STG[k] + 4))
        for _ in range(8): vm.issue(*lw.pop(0))
        lw = pieces(G2[2:6])
        A("s_waitcnt lgkmcnt(0)")
    else:
        for _ in range(min(2*P1, len(lw))): vm.issue(*lw.pop(0))
    A(f"s_mov_b64 exec, 0x3fff\nbuffer_load_dword v2, v{gFl}, s[20:23], s{sFl} offen sc1\ns_mov_b64 exec, -1")
    vm.ops = []
    n2 = min(2*P2, len(lw))
    for _ in range(n2): vm.issue(*lw.pop(0))
    A(f"""
    s_movk_i32 s46, 4096
    s_mov_b64 exec, 0x3fff
    s_waitcnt vmcnt({n2})
L_g2_hpoll:
    v_cmp_eq_u32 vcc, 0, v2
    s_cbranch_vccz L_g2_hready
    s_mov_b64 exec, vcc
    s_sub_u32 s{sSpin}, s{sSpin}, 1
    s_cmp_lt_i32 s{sSpin}, 0
    s_cbranch_scc1 L_g2_hready
    buffer_load_dword v2, v{gFl}, s[20:23], s{sFl} offen sc1
    s_waitcnt vmcnt(0)
    s_branch L_g2_hpoll
L_g2_hready:
    s_mov_b64 exec, -1
    """)
    if XW: A(f"s_sleep {XW}")
    if XH:
        A(f"s_and_b32 s{sH0}, s{sH0}, 0xfffff\ns_and_b32 s{sH1}, s{sH1}, 0xfffff\ns_add_u32 s{sH0}, s{sH0}, 0x8000\ns_add_u32 s{sH1}, s{sH1}, 0x8000")
    stamp(6)
    free = [16 + 4*i for i in range(8)] + [176 + 4*i for i in range(4)]
    hreg = {}; wreg = {k: (STG[k], STG[k] + 4) for k in STG}
    nxt = [0]; wnx = [12]
    def h_issue(kc, n=99):
        while n > 0 and free and nxt[0] < 56 and (nxt[0] >> 1) < kc + min(HDMAX, HD + kc):
            n -= 1
            k, tt = nxt[0] >> 1, nxt[0] & 1
            r = free.pop(0); hreg[(k, tt)] = r
            vm.issue(("h", k), f"buffer_load_dwordx4 {vr(r,4)}, v{gL16}, {HSRD}, s{sH[tt]} offen offset:{(k & 3)*1024} sc1")
            if (k & 3) == 3 and k < 27:
                if tt == 0: A(f"s_cmp_eq_u32 s{sRho}, {24 - (k - 3)}\ns_cselect_b32 s47, {u32(4096 - 28672)}, s46")
                A(f"s_add_u32 s{sH[tt]}, s{sH[tt]}, s47")
            nxt[0] += 1
    h_issue(0)
    A(f"""
    v_and_b32 v{gFl}, 15, v1
    v_lshlrev_b32 v{gFl}, 9, v{gFl}
    s_lshl_b32 s{sFl}, s{sD}, 13
    s_lshr_b32 s4, s{sTok}, 3
    s_and_b32 s4, s4, 3
    s_lshl_b32 s4, s4, 7
    s_add_u32 s{sFl}, s{sFl}, s4
    s_add_u32 s{sFl}, s{sFl}, {WS_FLAG2}
    v_and_b32 v{gT}, 31, v1
    v_lshlrev_b32 v14, 2, v{gT}
    s_lshl_b32 s4, s{sTok}, 7
    s_add_u32 s5, s4, {WS_G}
    v_lshrrev_b32 v15, 5, v1
    v_lshl_add_u32 v3, v15, 15, v14
    s_lshl_b32 s6, s{sD}, 17
    s_add_u32 s6, s6, s4
    s_add_u32 s6, s6, {WS_GA}
    """)
    if O64:
        A(f"""
        v_and_b32 v{gT}, 15, v1
        v_lshlrev_b32 v{gT}, 10, v{gT}
        v_lshl_add_u32 v{gT}, v15, 4, v{gT}
        v_and_b32 v15, 16, v1
        v_lshl_add_u32 v{gT}, v15, 1, v{gT}
        """)
    else: A(f"v_lshlrev_b32 v{gT}, 10, v{gT}\nv_lshl_add_u32 v{gT}, v15, 4, v{gT}")
    A(f"""
    s_lshl_b32 s7, s{sTok}, 15
    s_lshl_b32 s4, s{sD}, 6
    s_add_u32 s7, s7, s4
    s_mov_b32 s12, s60
    s_mov_b32 s13, s61
    s_mov_b32 s14, 0x200000
    v_add_u32 v15, s{sLds}, v{gL16}
    """)
    GA = None; gal = []
    def cpoll(first):
        if first: A("s_branch L_g2_reload")
        A(f"""
L_g2_poll:
        v_cmp_eq_u32 vcc, 0, v2
        s_cbranch_vccz L_g2_ready
        s_sub_u32 s{sSpin}, s{sSpin}, 1
        s_cmp_lt_i32 s{sSpin}, 0
        s_cbranch_scc1 L_g2_ready
        s_mov_b64 exec, vcc
        s_sleep {SLP}
L_g2_reload:
        buffer_load_dword v2, v{gFl}, s[20:23], s{sFl} offen sc1
        s_waitcnt vmcnt(0)
        s_branch L_g2_poll
        """)
        pad("g22", inline=False)
        A("L_g2_ready:\ns_mov_b64 exec, -1")
    def mf(k, dd, tt):
        c = "0" if k == 0 else vr(ACC+16*(2*dd+tt), 16)
        A(f"v_mfma_f32_32x32x16_bf16 {vr(ACC+16*(2*dd+tt),16)}, {vr(wreg[k][dd],4)}, {vr(hreg[(k,tt)],4)}, {c}")
    for k in range(24):
        pre = []
        vm.wait({("h", k)})
        if k in (0, 8, 12, 18): stamp({0: 1, 8: 2, 12: 3, 18: 4}[k], 1)
        lg.wait({("w", k)})
        if k >= WLA and wnx[0] < 24:
            kn = wnx[0]; wnx[0] += 1
            vm.wait({("w", kn)})
            wreg[kn] = (free.pop(), free.pop())
            pre = [] if XNR else [(("w", kn), x) for x in wd_reads(kn - 12, *wreg[kn])]
        for n, (dd, tt) in enumerate(((0,0),(0,1),(1,0),(1,1))):
            mf(k, dd, tt)
            if n in (0, 2): h_issue(k + 1, 1)
            elif lw: vm.issue(*lw.pop(0))
            if pre: lg.issue(*pre.pop(0))
            if gal: vm.issue("ga", gal.pop(0))
        free += [hreg[(k,0)], hreg[(k,1)], wreg[k][0], wreg[k][1]]
        h_issue(k + 1)
        if k == 8: pad("g21")
        if k == FK: vm.issue("f", f"buffer_load_dword v2, v{gFl}, s[20:23], s{sFl} offen sc1")
        if k == CK:
            stamp(7)
            vm.wait({"f"})
            assert nxt[0] == 56
            fr = sorted(free)
            GA = next(r for r in fr if r + 4 in fr and r >= 96)
            free.remove(GA); free.remove(GA + 4)
            gl = ["buffer_load_dword v4, v14, s[20:23], s5 offen sc1"]
            for m in range(8):
                gl.append(f"buffer_load_dword v{GA+m}, v3, s[20:23], s6 offen sc1" + (f"\ns_add_u32 s6, s6, {8192 if (m & 3) != 3 else 5*8192}" if m < 7 else ""))
            if NBK:
                A(f"""
                v_cmp_eq_u32 vcc, 0, v2
                s_mov_b32 s{sT}, s6
                s_cmp_eq_u64 vcc, 0
                s_cselect_b32 s6, s6, 0x40000000
                s_cselect_b32 s{sWd}, 0, 1
                """)
            else: cpoll(False)
            gal = list(gl)
    assert wnx[0] == 24
    A("v_xor_b32 v8, 0x1000, v15\nv_xor_b32 v9, 0x2000, v15\nv_xor_b32 v10, 0x3000, v15")
    vm.wait({("h", 27)})
    pend = []
    for x in (1, 2, 3, 0):
        for i, k in enumerate(range(24, 28)):
            mf(k, x >> 1, x & 1)
            if gal: vm.issue("ga", gal.pop(0))
            if pend:
                if i == 0: A("s_nop 7")
                elif i == 1: A("s_nop 1"); A(pend[0:2])
                elif i == 2: A(pend[2:4])
        pend = [f"ds_write_b128 v15, {vr(ACC+16*x+4*i,4)} offset:{(x-1)*16384 + 1024*i}" for i in range(4)] if x else []
    assert not gal and not lw
    stamp(8)
    if NBK:
        A(f"s_cmp_eq_u32 s{sWd}, 0\ns_cbranch_scc1 L_g2_have")
        cpoll(True)
        A(f"s_mov_b32 s6, s{sT}"); A(gl)
        A("L_g2_have:")
    A("s_waitcnt vmcnt(0)\nv_lshlrev_b32 v5, 16, v4\nv_and_b32 v4, 0xffff0000, v4")
    for p in range(8):
        A(f"v_lshlrev_b32 v{80+2*p}, 16, v{GA+p}\nv_and_b32 v{81+2*p}, 0xffff0000, v{GA+p}")
    for p in range(8):
        A(f"v_pk_mul_f32 {vr(80+2*p,2)}, {vr(80+2*p,2)}, v[4:5] op_sel:[0,1]")
    A("s_waitcnt lgkmcnt(0)\ns_barrier")
    for x in range(3):
        for i in range(4):
            A(f"ds_read_b128 {vr(32+16*x+4*i,4)}, v{8+x} offset:{x*16384 + 1024*i}")
    for x in range(3):
        A(f"s_waitcnt lgkmcnt({8 - 4*x})")
        for p in range(8):
            A(f"v_pk_add_f32 {vr(ACC+2*p,2)}, {vr(ACC+2*p,2)}, {vr(32+16*x+2*p,2)}")
    for p in range(8):
        A(f"v_pk_fma_f32 {vr(32+2*p,2)}, {vr(ACC+2*p,2)}, v[4:5], {vr(80+2*p,2)} op_sel_hi:[1,0,1]")
    for p in range(8):
        A(f"v_cvt_pk_bf16_f32 v{24+p}, v{32+2*p}, v{33+2*p}")
    if O64:
        A("s_add_u32 s4, s7, 16384\ns_nop 0")
        for i in range(4): A(f"v_permlane16_swap_b32 v{24+i}, v{28+i}")
        A(f"buffer_store_dwordx4 v[24:27], v{gT}, s[12:15], s7 offen {OST}\nbuffer_store_dwordx4 v[28:31], v{gT}, s[12:15], s4 offen {OST}")
    else:
        A(f"buffer_store_dwordx4 v[24:27], v{gT}, s[12:15], s7 offen {OST}\nbuffer_store_dwordx4 v[28:31], v{gT}, s[12:15], s7 offen offset:32 {OST}")
    stamp_flush()
    A("s_endpgm")

def main():
    order = [["rb", "su", "tb0", "rb1"], ["rb2", "g1b", "ea0", "ea1"], ["cv0", "cv1", "g21", "g22"]]
    for r, names in enumerate(order):
        for w, n in enumerate(names): PLAN[n] = (r, w if (r == 1 and WA) else 4 + w)
    A('.amdgcn_target "amdgcn-amd-amdhsa--gfx950"\n.text')
    A(f".globl {KNAME}\n.p2align 12\n.type {KNAME},@function\n{KNAME}:")
    if STAMP:
        for i in range(NST): A(f"s_mov_b32 s{80+2*i}, 0")
    stamp(0)
    A("s_cmp_ge_u32 s2, 256\ns_cbranch_scc1 L_exit")
    prologue()
    role_a()
    pad("rb", inline=False)
    role_b()
    mover()
    A("L_exit:\n    s_endpgm")
    assert not STUBS or PADS == set(PLAN), set(PLAN) - PADS
    A(f""".section .rodata,"a"
.p2align 6
.amdhsa_kernel {KNAME}
  .amdhsa_next_free_vgpr 256
  .amdhsa_next_free_sgpr 102
  .amdhsa_accum_offset 256
  .amdhsa_group_segment_fixed_size 0
  .amdhsa_kernarg_size 136
  .amdhsa_user_sgpr_count 2
  .amdhsa_user_sgpr_kernarg_segment_ptr 1
  .amdhsa_system_sgpr_workgroup_id_x 1
.end_amdhsa_kernel""")
    open(sys.argv[1], "w").write(HEADER + "\n".join(L) + "\n")

main()
```

```python
import sys, struct, math

OPTS = dict(a.split("=") for a in sys.argv[2:])
def opt(name, dflt): return int(OPTS.get(name, dflt))
STAMP = opt("stamp", 0); SS = opt("ss", 0)
ENC = opt("enc", -1); ENCWG = opt("encwg", 8); ENCW = opt("encw", 0)
SPIN = opt("spin", 0x400000); STUBS = opt("stubs", 1)
T2 = opt("t2", 1); AGT = opt("agt", 1); MT = opt("mt", 3); MC3 = opt("mc3", 0); MPRE = opt("mpre", 0); TFIRST = opt("tfirst", 0)
UPF = opt("upf", 6); RS = opt("rs", 7); NW = opt("nw", 14); PPRIO = opt("pprio", 0); P1 = opt("p1", 8); P2 = opt("p2", 4); KB = opt("kb", 1); NPRE = opt("npre", 0); O64 = opt("o64", 1); AORD = opt("aord", 2); C3 = opt("c3", 0); JSW = opt("jsw", 1); UP0 = opt("up0", 0); AD = opt("ad", 0); BH = opt("bh", 1); T0 = opt("t0", 0); WA = opt("wa", 1); EPI = opt("epi", 1); EDIST = opt("edist", 4); MID = opt("mid", 9); KIN = opt("kin", 0); UE = opt("ue", 0); SL4 = opt("sl4", 0); RJ = opt("rj", 0); XNR = opt("xnr", 0); TRO = opt("tro", 1); RSW = opt("rsw", 1); BX = opt("bx", 0); XH = opt("xh", 0); XW = opt("xw", 0); RJM = opt("rjm", 1); LST = opt("lst", 0); KRS = opt("krs", 2); OST = OPTS.get("ost", "sc1").replace("_", " "); NBK = opt("nbk", 0); SLP = opt("slp", 2)
HD = opt("hd", 5); HDMAX = opt("hdmax", 8); WLA = opt("wla", 8); FK = opt("fk", 20); CK = opt("ck", 23); CST = opt("cst", -1); TMJ = opt("tmj", 1)
RLATE = opt("rlate", 12); CPRIO = opt("cprio", 2); GPRIO = opt("gprio", 1)
HSRD = "s[68:71]" if XH else "s[20:23]"
KNAME = "gated_mix__ssm_conv_s4__geglu_ffn__prompt_kernel"

WS_H, WS_UT, WS_GA, WS_G, WS_FLAG, WS_STAMP = 0x0, 0x700000, 0x900000, 0xB00000, 0xB08000, 0x1400000
WS_FLAG2 = WS_FLAG + 1792*128
WS_FLAG3 = WS_FLAG + 2816*128
WS_BYTES = 0x10000000

XB = 65536
TB = 98304
PITCH = 528
KD = TB + 2*57*PITCH
CH = 12928
UOFF = 8320
RED = TB + 2*CH
CNT = KD + 3072
assert CNT + 8 <= 163840 and RED + 32768 <= KD and RED % 256 == 0
UP = 1056
GWL = 64*UP
L2E = math.log2(math.e)
WSTEP = 32*3584

L = []
def lines(s): return [x.strip() for x in s.strip("\n").split("\n") if x.strip()]
def A(s):
    if isinstance(s, (list, tuple)): s = "\n".join(s)
    for line in lines(s):
        L.append(line if line.endswith(":") or line.startswith(".") else "    " + line)
def fbits(x): return "0x%08x" % struct.unpack("<I", struct.pack("<f", x))[0]
def f32(x): return struct.unpack("<f", struct.pack("<f", x))[0]
def vr(b, n): return f"v[{b}:{b+n-1}]"
def u32(x): return x & 0xffffffff
def slices(lst, n):
    out = []; pos = 0
    for i in range(n):
        end = (i + 1)*len(lst)//n
        while 0 < end < len(lst) and lst[end-1].startswith("s_cmp"): end += 1
        out.append(lst[pos:end]); pos = max(pos, end)
    return out

NST = 9
def stamp(idx, ss=0):
    if ENC >= 0:
        if ss == 0 and idx in (0, ENC) and not (SS == 3 and idx == 8): A(f"s_memrealtime s[{80+2*idx}:{81+2*idx}]\ns_waitcnt lgkmcnt(0)")
        return
    hide = {1: (1, 2, 3, 4), 2: (1, 2, 3), 3: (1, 2, 6, 7, 8), 5: (1,)}.get(SS, ())
    if STAMP and (ss == SS or (ss == 0 and idx not in hide)):
        A(f"s_memrealtime s[{80+2*idx}:{81+2*idx}]\ns_waitcnt lgkmcnt(0)")
ENCN = [0]
def stamp_flush():
    if ENC >= 0:
        ENCN[0] += 1; n = ENCN[0]
        A(f"""
        s_cmp_eq_u32 s2, {ENCWG}
        s_cbranch_scc0 L_enc_end{n}
        s_cmp_eq_u32 s{sW}, {ENCW}
        s_cbranch_scc0 L_enc_end{n}
        s_waitcnt vmcnt(0) lgkmcnt(0)
        s_memrealtime s[98:99]
        s_waitcnt lgkmcnt(0)
        s_sub_u32 s3, s{80+2*ENC}, s80
        s_and_b32 s3, s3, 0xfff
        s_lshl_b32 s3, s3, 2
        s_add_u32 s3, s3, s80
        s_add_u32 s3, s3, 2000
L_enc_spin{n}:
        s_memrealtime s[4:5]
        s_waitcnt lgkmcnt(0)
        s_sub_u32 s6, s4, s3
        s_cmp_lt_i32 s6, 0
        s_cbranch_scc1 L_enc_spin{n}
L_enc_end{n}:
        """)
        return
    if not STAMP: return
    A(f"""
    s_waitcnt vmcnt(0) lgkmcnt(0)
    s_memrealtime s[{80+2*NST}:{81+2*NST}]
    s_waitcnt lgkmcnt(0)
    s_mov_b64 exec, -1
    v_lshrrev_b32 v1, 6, v0
    s_lshl_b32 s3, s2, 3
    v_add_u32 v1, s3, v1
    v_lshlrev_b32 v1, 6, v1
    v_add_u32 v1, {WS_STAMP}, v1
    """)
    for i in range(12): A(f"v_mov_b32 v{4+i}, s{80+2*min(i, NST)}")
    A(f"""
    v_and_b32 v2, 63, v0
    v_cmp_eq_u32 vcc, 0, v2
    s_and_saveexec_b64 s[4:5], vcc
    buffer_store_dwordx4 v[4:7], v1, s[20:23], 0 offen
    buffer_store_dwordx4 v[8:11], v1, s[20:23], 0 offen offset:16
    buffer_store_dwordx4 v[12:15], v1, s[20:23], 0 offen offset:32
    """)

HEADER = f"""; gated mix of an S4 long convolution and a GeGLU FFN: one launch, one workgroup per CU, two wave programs.
; @launch grid=(256,1,1) block=(512,1,1) lds=163840
"""

PADS = set(); PLAN = {}
def pad(name, inline=True):
    if not STUBS or name not in PLAN: return
    if inline: A(f"s_branch L_skip_{name}")
    A(f"L_pad_{name}:\ns_branch L_warm_ret{PLAN[name][0]}")
    if inline: A(f"L_skip_{name}:")
    PADS.add(name)
def warm(r):
    if not STUBS: return
    for n, (rr, w) in PLAN.items():
        if rr == r: A(f"s_cmp_eq_u32 s{sW}, {w}\ns_cbranch_scc1 L_pad_{n}")
    A(f"L_warm_ret{r}:")

sW, sXoff, sWoff, sM0W, sM0X = 24, 25, 26, 27, 28
sIt, sHfl2, sTB, sFB, sWN, sI, sJ, sMov, sT, sSpin, sHst, sRX, sRW = 30, 31, 32, 33, 36, 38, 39, 40, 41, 42, 43, 44, 45
sDsk, sHfl, sK1, sK2, sRole = 48, 49, 54, 55, 100
sTok, sD, sH0, sH1, sLds, sFl, sWd, sRho, sCu = 50, 51, 52, 53, 64, 65, 66, 67, 29
sCga, sCfl = 50, 51
PAR = 120; vTab = 127
vWr = [72, 73]; vXr = [74, 75]; vJA = 76
ACC1 = 128
if KB:
    cKf0, cKf1, cKd0, cKd1, cKd2, cDk, cCb = 219, 220, 221, 222, 223, 232, 233
    KF = [48 + 4*i for i in range(24)]; KA = 176; KT = 184
else:
    cKf0, cKf1, cKd0, cKd1, cKd2, cDk = 5, 6, 7, 8, 9, 11
    KF = [16 + 4*i for i in range(12)] + [80 + 4*i for i in range(10)] + [64, 68]
    KA = 120; KT = 60
cA = [48, 49, 50, 51]; cB, cRw, cRr, cUr, cS0, cS1, cCnt = range(52, 59)
vG = 232
vXo = [240, 241]; vWo = 242; vDo = [248, 249]; vPoll, vZero, cMv, vOne = 250, 251, 252, 253
XA = 192; GV = 204; cZ0, cZ1, cImg, cUw, cLu0, cLu1 = range(213, 219); vU = 224
gD = [8, 9, 10, 11]; gR = [12, 13]; gFl, gL16, gT = 5, 6, 7

class Cnt:
    def __init__(self, name, cap): self.ops = []; self.name = name; self.cap = cap
    def note(self, tag): self.ops.append(tag)
    def issue(self, tag, text): A(text); self.ops.append(tag)
    def need(self, tags):
        idx = [i for i, t in enumerate(self.ops) if t in tags]
        if not idx: return None
        n = min(len(self.ops) - 1 - max(idx), self.cap)
        self.ops = self.ops[len(self.ops)-n:] if n else []
        return n
    def wait(self, tags):
        n = self.need(tags)
        if n is not None: A(f"s_waitcnt {self.name}({n})")

def x_dma(c):
    o = []
    for part in (1, 0):
        pre = [f"s_add_u32 s46, s{sRX}, {c*128}", "s_and_b32 s46, s46, 1023", f"s_add_u32 s46, s46, s{sXoff}"] if part else []
        o += [pre + [f"s_add_u32 m0, s{sM0X}, {u32((c&1)*16384 - part*8192)}", f"s_add_u32 s{sT}, s46, {u32(-part*65536)}",
                     f"buffer_load_dwordx4 v{vXo[0]}, s[8:11], s{sT} offen lds"],
              [f"buffer_load_dwordx4 v{vXo[1]}, s[8:11], s{sT} offen offset:1024 lds"]]
    return o
def w_dma(s):
    o = []
    for part in (1, 0):
        pre = [f"s_add_u32 s46, s{sRW}, {s}", "s_and_b32 s46, s46, 15", f"s_mul_i32 s46, s46, {WSTEP}", f"s_add_u32 s46, s46, s{sWoff}"] if part else []
        o += [pre + [f"s_add_u32 m0, s{sM0W}, {u32((s&3)*16384 - part*8192)}", f"s_add_u32 s{sT}, s46, {u32(-part*16*3584)}",
                     f"buffer_load_dwordx4 v{vWo}, s[12:15], s{sT} offen lds"],
              [f"buffer_load_dwordx4 v{vWo}, s[16:19], s{sT} offen offset:1024 lds"]]
    return o
def piece_off(kap): return 16384*(kap >> 1) + 2048*(kap & 1) + (RED - 98304 if kap >= 12 else 0)
def d_piece(kap, k):
    off = [f"s_add_u32 s{sT}, s{sWd}, {(k >> 1)*32768 + (k & 1)*8192}"]
    if k >= 4: off = [f"s_cmp_ge_u32 s{sRho}, {28 - k}", f"s_cselect_b32 s47, {28*16384}, 0"] + off + [f"s_sub_u32 s{sT}, s{sT}, s47"]
    return [[f"s_add_u32 m0, s{sLds}, {piece_off(kap)}"] + off + [f"buffer_load_dwordx4 v{vDo[0]}, s[68:71], s{sT} offen lds"],
            [f"buffer_load_dwordx4 v{vDo[1]}, s[68:71], s{sT} offen offset:1024 lds"]]

def prologue():
    A(f"""
    s_load_dwordx16 s[64:79], s[0:1], 8
    s_load_dwordx2 s[8:9], s[0:1], 0
    s_load_dwordx4 s[12:15], s[0:1], 80
    s_load_dwordx8 s[56:63], s[0:1], 96
    s_load_dwordx2 s[20:21], s[0:1], 128
    v_lshrrev_b32 v2, 6, v0
    v_and_b32 v1, 63, v0
    v_mov_b32 v{vZero}, 0
    v_mov_b32 v16, {CNT}
    v_mov_b32 v{vOne}, 1
    ds_write_b32 v16, v{vZero}
    ds_write_b32 v16, v{vZero} offset:4
    v_and_b32 v3, 255, v0
    v_readfirstlane_b32 s{sW}, v2
    s_lshl_b32 s3, s2, 8
    v_add_u32 v3, s3, v3
    v_lshlrev_b32 v3, 1, v3
    v_lshrrev_b32 v4, 7, v3
    v_and_b32 v4, 0xfffffffe, v4
    """)
    if STUBS and not BH: A(f"s_cmp_lt_u32 s2, 224\ns_cbranch_scc1 L_warm0\ns_cmp_eq_u32 s{sW}, 4\ns_cbranch_scc1 L_pad_mv\nL_warm0:")
    if not BH: warm(0)
    A(f"""
    s_and_b32 s{sWN}, s{sW}, 3
    s_and_b32 s3, s2, 7
    s_lshr_b32 s4, s2, 3
    s_lshr_b32 s{sTB}, s3, 1
    s_lshl_b32 s{sTB}, s{sTB}, 2
    s_and_b32 s5, s4, 3
    s_add_u32 s{sTB}, s{sTB}, s5
    s_lshl_b32 s{sI}, s3, 2
    s_add_u32 s{sI}, s{sI}, s5
    s_and_b32 s{sFB}, s3, 1
    s_mul_i32 s{sFB}, s{sFB}, 7
    s_lshr_b32 s{sJ}, s4, 2
    s_add_u32 s{sFB}, s{sFB}, s{sJ}
    s_xor_b32 s{sJ}, s{sJ}, {4 if JSW else 0}
    s_lshl_b32 s{sXoff}, s{sTB}, 17
    s_lshl_b32 s5, s{sW}, 14
    s_add_u32 s{sXoff}, s{sXoff}, s5
    s_mul_i32 s{sWoff}, s{sW}, {4*3584}
    s_lshl_b32 s5, s{sFB}, 8
    s_add_u32 s{sWoff}, s{sWoff}, s5
    s_and_b32 s{sRW}, s3, 6
    s_lshl_b32 s{sRX}, s{sRW}, 7
    s_lshl_b32 s{sRW}, s{sRW}, 1
    s_lshl_b32 s{sM0W}, s{sW}, 11
    s_add_u32 s{sM0X}, s{sM0W}, {XB}
    v_lshrrev_b32 v16, 4, v1
    v_and_b32 v17, 7, v1
    v_xor_b32 v18, v17, v16
    v_lshrrev_b32 v19, 3, v1
    v_lshlrev_b32 v19, 10, v19
    v_lshl_add_u32 v{vXo[0]}, v18, 4, v19
    v_xor_b32 v{vXo[1]}, 64, v{vXo[0]}
    v_add_u32 v{vXo[1]}, 7168, v{vXo[1]}
    v_lshlrev_b32 v17, 2, v16
    v_and_b32 v{vWo}, 15, v1
    v_xor_b32 v{vWo}, v{vWo}, v17
    s_and_b32 s5, s{sW}, 2
    v_xor_b32 v{vWo}, s5, v{vWo}
    v_lshlrev_b32 v{vWo}, 4, v{vWo}
    v_mul_u32_u24 v16, 3584, v16
    v_add_u32 v{vWo}, v{vWo}, v16
    s_mov_b32 s10, 0x200000
    s_mov_b32 s11, 0x00020000
    s_mov_b32 s18, {512*1792*2 + 1024}
    s_mov_b32 s19, 0x00020000
    s_mov_b32 s22, {WS_BYTES}
    s_mov_b32 s23, 0x00020000
    s_waitcnt lgkmcnt(0)
    s_sub_u32 s16, s14, 1024
    s_subb_u32 s17, s15, 0
    s_mov_b32 s14, {512*1792*2}
    s_mov_b32 s15, 0x00020000
    """)
    params(0, 3)
    if BH:
        A(f"s_cmp_lt_u32 s{sW}, 4\ns_cbranch_scc1 L_role_a\ns_cmp_ge_u32 s2, 224\ns_cbranch_scc1 L_mv_head")
        A(sum(x_dma(0) + w_dma(0) + w_dma(1), []))
        warm(0)
        A("s_branch L_role_b")
        mv_head()
        A("s_branch L_mv_head2\nL_role_a:")
    else: A(f"s_cmp_ge_u32 s{sW}, 4\ns_cbranch_scc1 L_role_b")
    params(3, 7)

def params(i0, i1):
    for i, p in list(enumerate((76, 64, 66, 68, 70, 72, 74)))[i0:i1]:
        A(f"global_load_ushort v{PAR+i}, v{4 if i == 0 else 3}, s[{p}:{p+1}]")

def common_setup():
    A(f"""
    v_and_b32 v{vTab}, 127, v0
    v_lshlrev_b32 v{vTab}, 2, v{vTab}
    s_lshr_b32 s6, s{sWN}, 1
    s_mul_i32 s4, s6, {57*PITCH}
    s_add_u32 s4, s4, {TB}
    v_add_u32 v{vTab}, s4, v{vTab}
    s_mov_b32 s{sK1}, {fbits(f32(L2E))}
    s_mov_b32 s{sK2}, {fbits(L2E - f32(L2E))}
    s_mov_b32 s68, s56
    s_mov_b32 s69, s57
    s_mov_b32 s70, {1792*1024}
    s_mov_b32 s71, 0x00020000
    s_and_b32 s{sRho}, s2, 7
    s_cmp_eq_u32 s{sRho}, 7
    s_cselect_b32 s{sRho}, 3, s{sRho}
    s_and_b32 s3, s{sJ}, {RJM}
    s_mul_i32 s3, s3, {RJ}
    s_add_u32 s{sRho}, s{sRho}, s3
    s_mul_i32 s3, s{sRho}, 37
    s_lshr_b32 s3, s3, 8
    s_mul_i32 s3, s3, 7
    s_sub_u32 s{sRho}, s{sRho}, s3
    s_lshl_b32 s{sRho}, s{sRho}, 2
    s_mov_b32 s{sSpin}, {SPIN}
    s_lshl_b32 s3, s2, 2
    s_load_dword s{sDsk}, s[78:79], s3
    """)

def g1_setup():
    A(f"""
    v_lshrrev_b32 v16, 2, v1
    v_and_b32 v16, 3, v16
    v_xor_b32 v17, s{sWN}, v16
    v_lshlrev_b32 v{vWr[0]}, 8, v16
    v_lshl_add_u32 v{vWr[0]}, v17, 6, v{vWr[0]}
    v_lshrrev_b32 v16, 4, v1
    v_lshl_add_u32 v{vWr[0]}, v16, 12, v{vWr[0]}
    v_and_b32 v17, 1, v16
    v_lshl_add_u32 v{vWr[0]}, v17, 5, v{vWr[0]}
    v_and_b32 v17, 3, v1
    v_lshl_add_u32 v{vWr[0]}, v17, 3, v{vWr[0]}
    v_xor_b32 v{vWr[1]}, 32, v{vWr[0]}
    v_lshrrev_b32 v17, 1, v1
    v_and_b32 v17, 7, v17
    v_xor_b32 v17, v17, v16
    v_and_b32 v18, 15, v1
    v_lshlrev_b32 v{vXr[0]}, 7, v18
    v_lshl_add_u32 v{vXr[0]}, v17, 4, v{vXr[0]}
    v_add_u32 v{vXr[0]}, {XB}, v{vXr[0]}
    v_xor_b32 v{vXr[1]}, 64, v{vXr[0]}
    v_lshlrev_b32 v10, 4, v18
    v_lshl_add_u32 v10, v16, 9, v10
    v_mov_b32 v12, {fbits(-2.0 * L2E * math.sqrt(2.0/math.pi))}
    v_mov_b32 v13, v12
    v_mov_b32 v14, 1
    v_mul_u32_u24 v15, {56*128}, v1
    s_mul_i32 s{sHst}, s{sTB}, 448
    s_lshl_b32 s5, s{sFB}, 2
    s_add_u32 s5, s5, s{sWN}
    s_lshl_b32 s4, s5, 1
    s_add_u32 s{sHst}, s{sHst}, s4
    s_lshl_b32 s{sHst}, s{sHst}, 10
    s_mul_i32 s3, s{sTB}, 112
    s_add_u32 s3, s3, s5
    s_lshl_b32 s3, s3, 7
    s_add_u32 s{sHfl}, s3, {WS_FLAG}
    s_add_u32 s{sHfl2}, s{sHfl}, {56*128}
    s_mov_b32 s34, {fbits(-2.0 * L2E * math.sqrt(2.0/math.pi) * 0.044715)}
    s_mov_b32 s35, s34
    s_mov_b32 s{sIt}, 0
    s_lshl_b32 s{sCga}, s2, 13
    s_add_u32 s{sCga}, s{sCga}, {WS_GA}
    s_lshl_b32 s3, s2, 2
    s_add_u32 s3, s3, s{sWN}
    s_lshl_b32 s3, s3, 7
    s_add_u32 s{sCfl}, s3, {WS_FLAG2}
    """)

def k_setup1():
    return lines(f"""
    s_lshr_b32 s6, s{sWN}, 1
    s_and_b32 s7, s{sWN}, 1
    s_mul_i32 s4, s6, {57*PITCH}
    s_add_u32 s4, s4, {TB}
    v_and_b32 v16, 15, v1
    v_lshrrev_b32 v17, 4, v1
    v_mul_u32_u24 v{cKf0}, {PITCH}, v16
    v_lshl_add_u32 v{cKf0}, v17, 4, v{cKf0}
    v_add_u32 v{cKf0}, s4, v{cKf0}
    s_mul_i32 s4, s7, {16*PITCH}
    v_add_u32 v{cKf1}, s4, v{cKf0}
    s_lshl_b32 s3, s6, 1
    s_add_u32 s3, s3, {KD}
    v_lshrrev_b32 v18, 1, v17
    v_and_b32 v19, 1, v17
    v_lshlrev_b32 v24, 7, v18
    v_lshl_add_u32 v24, v19, 2, v24
    v_lshl_add_u32 v24, v16, 3, v24
    v_lshlrev_b32 v25, 6, v17
    v_add_u32 v25, 256, v25
    v_lshl_add_u32 v26, v16, 2, v25
    v_lshl_add_u32 v27, v16, 1, v25
    v_cmp_gt_u32 vcc, 2, v17
    v_mov_b32 v28, 32
    v_lshl_add_u32 v25, v17, 6, v16
    v_cndmask_b32 v26, v27, v26, vcc
    v_cndmask_b32 v28, v28, 2, vcc
    s_cmp_eq_u32 s7, 0
    s_cselect_b64 vcc, -1, 0
    v_lshl_add_u32 v{cKd2}, v25, 2, s3
    v_cndmask_b32 v26, v26, v24, vcc
    v_cndmask_b32 v28, v28, 2, vcc
    v_add_u32 v28, v26, v28
    v_lshl_add_u32 v{cKd0}, v26, 2, s3
    v_lshl_add_u32 v{cKd1}, v28, 2, s3
    """)

def conv_setup():
    A(f"""
    s_lshr_b32 s6, s{sWN}, 1
    s_and_b32 s7, s{sWN}, 1
    s_mul_i32 s5, s6, {CH}
    s_add_u32 s5, s5, {TB}
    v_and_b32 v60, 15, v1
    v_lshrrev_b32 v61, 4, v1
    v_and_b32 v62, 1, v60
    v_xor_b32 v62, 1, v62
    v_mul_u32_u24 v62, 4160, v62
    v_and_b32 v63, 14, v60
    v_lshlrev_b32 v63, 1, v63
    v_sub_u32 v62, v62, v63
    v_lshl_add_u32 v62, v61, 4, v62
    s_lshl_b32 s4, s7, 8
    s_sub_u32 s4, s5, s4
    s_add_u32 s3, s4, {4060 - 512 - 192}
    v_add_u32 v{cA[0]}, s3, v62
    v_subrev_u32 v{cA[1]}, 1024, v{cA[0]}
    v_subrev_u32 v{cA[2]}, 2048, v{cA[0]}
    v_subrev_u32 v{cA[3]}, 3072, v{cA[0]}
    v_lshlrev_b32 v{cB}, 5, v60
    v_lshl_add_u32 v{cB}, v61, 4, v{cB}
    s_add_u32 s3, s4, {UOFF + 480 - 192}
    v_add_u32 v{cB}, s3, v{cB}
    v_lshlrev_b32 v{cRw}, 6, v60
    v_lshl_add_u32 v{cRw}, v61, 4, v{cRw}
    s_lshl_b32 s3, s{sWN}, 13
    s_add_u32 s3, s3, {RED}
    v_add_u32 v{cRw}, s3, v{cRw}
    v_lshlrev_b32 v{cS0}, 4, v0
    v_add_u32 v{cS1}, 4096, v{cS0}
    v_add_u32 v{cRr}, {RED}, v{cS0}
    v_mov_b32 v{cCnt}, {CNT}
    """)
    if RSW:
        A(f"""
        v_and_b32 v62, 2, v61
        v_and_b32 v63, 1, v61
        v_lshl_or_b32 v62, v62, 2, v63
        v_xor_b32 v62, v62, v1
        v_lshl_add_u32 v{cRw}, v62, 4, s3
        v_and_b32 v62, 2, v1
        v_and_b32 v63, 1, v1
        v_lshl_or_b32 v62, v62, 2, v63
        v_lshrrev_b32 v63, 2, v1
        v_xor_b32 v62, v62, v63
        v_and_b32 v63, 3, v1
        v_lshl_add_u32 v62, v63, 4, v62
        s_lshl_b32 s3, s{sWN}, 10
        s_add_u32 s3, s3, {RED}
        v_lshl_add_u32 v{cRr}, v62, 4, s3
        """)

def b_setup1():
    return lines(f"""
    v_lshrrev_b32 v16, 4, v1
    v_and_b32 v16, 1, v16
    v_lshlrev_b32 v16, 2, v16
    v_and_b32 v17, 7, v1
    v_xor_b32 v16, v16, v17
    v_lshrrev_b32 v17, 3, v1
    v_lshlrev_b32 v17, 10, v17
    v_lshl_add_u32 v{vDo[0]}, v16, 4, v17
    v_add_u32 v{vDo[1]}, 15360, v{vDo[0]}
    s_lshl_b32 s{sLds}, s{sWN}, 12
    s_mul_i32 s{sWd}, s{sWN}, 28
    s_add_u32 s{sWd}, s{sWd}, s{sRho}
    s_lshl_b32 s3, s{sWd}, 10
    s_lshl_b32 s{sWd}, s{sWd}, 14
    s_lshl_b32 s4, s{sJ}, 7
    s_add_u32 s{sWd}, s{sWd}, s4
    s_and_b32 s6, s{sWN}, 1
    s_lshr_b32 s7, s{sWN}, 1
    s_lshl_b32 s{sTok}, s{sI}, 1
    s_add_u32 s{sTok}, s{sTok}, s6
    s_lshl_b32 s{sD}, s{sJ}, 1
    s_add_u32 s{sD}, s{sD}, s7
    s_mul_i32 s{sH0}, s{sTok}, {112*1024}
    s_xor_b32 s4, s{sTok}, 1
    s_mul_i32 s{sH1}, s4, {112*1024}
    s_add_u32 s{sH0}, s{sH0}, s3
    s_add_u32 s{sH1}, s{sH1}, s3
    v_and_b32 v17, 16, v1
    v_lshlrev_b32 v18, 1, v17
    v_and_b32 v17, 1, v1
    v_lshl_add_u32 v18, v17, 4, v18
    v_and_b32 v17, 2, v1
    v_lshl_add_u32 v18, v17, 2, v18
    v_lshrrev_b32 v16, 2, v1
    v_and_b32 v16, 3, v16
    v_lshrrev_b32 v17, 5, v1
    v_lshl_add_u32 v19, v17, 2, v16
    v_lshl_add_u32 v{gD[0]}, v19, 7, v18
    v_lshrrev_b32 v16, 1, v16
    v_xor_b32 v16, s7, v16
    v_lshl_add_u32 v{gD[0]}, v16, 6, v{gD[0]}
    v_add_u32 v{gD[0]}, s{sLds}, v{gD[0]}
    v_xor_b32 v{gD[1]}, 64, v{gD[0]}
    v_add_u32 v{gD[2]}, 0x10000, v{gD[0]}
    v_add_u32 v{gD[3]}, 0x10000, v{gD[1]}
    v_add_u32 v{gR[0]}, {RED}, v{gD[0]}
    v_add_u32 v{gR[1]}, {RED}, v{gD[1]}
    v_lshlrev_b32 v{gFl}, 7, v1
    s_lshl_b32 s{sFl}, s{sI}, 2
    s_add_u32 s{sFl}, s{sFl}, s{sWN}
    s_mul_i32 s{sFl}, s{sFl}, {14*128}
    s_add_u32 s{sFl}, s{sFl}, {WS_FLAG}
    v_lshlrev_b32 v{gL16}, 4, v1
    """)
def b_setup2():
    CB = 0x4300 - 128
    o = lines(f"""
    v_and_b32 v32, 255, v0
    v_lshrrev_b32 v33, 3, v32
    v_lshlrev_b32 v{cLu0}, 10, v33
    v_and_b32 v26, 7, v32
    v_lshl_add_u32 v{cLu0}, v26, 4, v{cLu0}
    v_xor_b32 v26, s2, v33
    v_and_b32 v26, 7, v26
    v_lshl_add_u32 v{cLu0}, v26, 7, v{cLu0}
    v_add_u32 v{cLu1}, 32768, v{cLu0}
    s_lshr_b32 s{sCu}, s2, 3
    s_lshl_b32 s{sCu}, s{sCu}, 16
    s_add_u32 s{sCu}, s{sCu}, {WS_UT}
    s_and_b32 s3, s2, 31
    s_lshl_b32 s3, s3, 7
    s_add_u32 s3, s3, {WS_FLAG3}
    v_mov_b32 v{cMv}, s3
    v_lshlrev_b32 v{cUw}, 6, v33
    v_and_b32 v26, 3, v32
    v_lshl_add_u32 v{cUw}, v26, 4, v{cUw}
    v_bfe_u32 v26, v32, 2, 1
    v_mul_u32_u24 v26, {CH}, v26
    v_add_u32 v{cUw}, v{cUw}, v26
    v_add_u32 v{cUw}, {TB + UOFF + 512}, v{cUw}
    s_lshr_b32 s6, s{sWN}, 1
    s_and_b32 s7, s{sWN}, 1
    s_mul_i32 s5, s6, {CH}
    s_add_u32 s5, s5, {TB}
    v_and_b32 v26, 127, v0
    v_lshl_add_u32 v{cZ0}, v26, 2, s5
    v_and_b32 v{cZ1}, 60, v{cZ0}
    s_mul_i32 s3, s7, 4160
    s_add_u32 s3, s3, s5
    v_add_u32 v{cZ1}, s3, v{cZ1}
    v_lshlrev_b32 v{cImg}, 4, v32
    v_add_u32 v{cImg}, {TB}, v{cImg}
    v_lshlrev_b32 v29, 3, v32
    v_sub_u32 v29, 2047, v29
    v_cvt_f32_i32 v30, v29
    v_add_u32 v29, {CB}, v29
    v_mov_b32 v31, {128 + CB}
    s_mov_b32 s3, {KD - 4*CB}
    """)
    for e in range(9):
        r = XA + e
        o += [f"v_subrev_f32 v{r}, {fbits(float(e))}, v30", f"v_cvt_pk_bf16_f32 v{r}, v{r}, 0",
              f"v_subrev_u32 v24, {e}, v29", f"v_med3_i32 v{r}, v{r}, v24, v31", f"v_lshl_add_u32 v{r}, v{r}, 2, s3"]
    return o

def tab_common():
    return lines(f"""
    v_lshlrev_b32 v{PAR}, 16, v{PAR}
    v_lshlrev_b32 v16, 16, v{PAR+1}
    v_lshlrev_b32 v17, 16, v{PAR+2}
    v_mul_f32 v18, s{sK1}, v{PAR}
    v_fma_f32 v19, v{PAR}, s{sK1}, -v18
    v_fma_f32 v19, v{PAR}, s{sK2}, v19
    v_exp_f32 v18, v18
    v_mul_f32 v19, {fbits(math.log(2.0))}, v19
    v_fmac_f32 v18, v18, v19
    v_cvt_pk_bf16_f32 v18, 0, v18
    v_mul_f32 v16, v18, v16
    v_mul_f32 v17, v18, v17
    v_mul_f32 v16, s{sK1}, v16
    v_mul_f32 v17, 0.15915494, v17
    """)
def cexp(e, s, t):
    if s == 1.0: o = [f"v_exp_f32 v{t}, v16", f"v_fract_f32 v{t+1}, v17"]
    else: o = [f"v_mul_f32 v{t}, {fbits(s)}, v16", f"v_mul_f32 v{t+1}, {fbits(s)}, v17", f"v_exp_f32 v{t}, v{t}", f"v_fract_f32 v{t+1}, v{t+1}"]
    return o + [f"v_cos_f32 v{e}, v{t+1}", f"v_sin_f32 v{e+1}, v{t+1}", f"v_mul_f32 v{e}, v{t}, v{e}", f"v_mul_f32 v{e+1}, v{t}, v{e+1}"]
def cmul(d, a, b):
    return [f"v_pk_mul_f32 {vr(d,2)}, {vr(a,2)}, {vr(b,2)} op_sel_hi:[0,1]",
            f"v_pk_fma_f32 {vr(d,2)}, {vr(a,2)}, {vr(b,2)}, {vr(d,2)} op_sel:[1,1,0] op_sel_hi:[1,0,1] neg_lo:[0,1,0]"]
class Putter:
    def __init__(self, base): self.base = base; self.i = 0
    def __call__(self, row, r, ng=False):
        t = self.base + (self.i & 3); self.i += 1
        return [f"v_cvt_pk_bf16_f32 v{t}, v{r}, {'-' if ng else ''}v{r+1}", f"ds_write_b32 v{vTab}, v{t} offset:{row*PITCH}"]
PR = 16
def tables_a():
    put = Putter(108)
    E1, E8, E128, DB, C = 44, 24, 28, 32, 36
    o = tab_common() + cexp(E1, 1.0, 40) + cexp(E128, 128.0, 42)
    o += put(PR + 1, E1) + put(PR + 8, E128) + cexp(E8, 8.0, 40)
    o += lines(f"""
    v_lshlrev_b32 v{DB}, 16, v{PAR+3}
    v_lshlrev_b32 v{DB+1}, 16, v{PAR+4}
    v_lshlrev_b32 v{C}, 16, v{PAR+5}
    v_lshlrev_b32 v{C+1}, 16, v{PAR+6}
    v_mul_f32 v{DB}, v18, v{DB}
    v_mul_f32 v{DB+1}, v18, v{DB+1}
    """)
    q = [20, 22]; jq = list(range(1, 16))
    o += cmul(q[0], C, DB) + put(0, q[0], True)
    def do_q():
        i = jq.pop(0); r = cmul(q[1], q[0], E8); q.reverse(); return r + put(i, q[0], True)
    o += cmul(52, E1, E128) + do_q() + put(PR + 9, 52)
    cur = E1; nx = 48
    for p in range(2, 8):
        o += cmul(nx, cur, E1); cur, nx = nx, (50 if nx == 48 else 48)
        d = 52 + 2*(p & 1)
        o += do_q() + put(PR + p, cur) + cmul(d, cur, E128) + do_q() + put(PR + 8 + p, d)
    while jq: o += do_q()
    return o
def tables_b():
    put = Putter(108)
    E128, F2, F4, F6, E256 = 20, 24, 28, 32, 44
    o = tab_common() + cexp(E128, 128.0, 40) + cexp(F2, 2.0, 42)
    o += ["v_mov_b32 v111, 0x3f80", f"ds_write_b32 v{vTab}, v111 offset:{PR*PITCH}"]
    o += cmul(E256, E128, E128) + cmul(F4, F2, F2) + cmul(38, E256, E128) + cmul(F6, F4, F2)
    ch = {0: [E256, 96, 98], 1: [38, 100, 102]}; pp = 0
    for h in range(2, 17):
        c = ch[h & 1]; cur = c[0]
        if h + 2 <= 16: o += cmul(c[1], cur, E256)
        if h < 4: rows = [(PR + 16 + 4*(h-2) + p, f) for p, f in ((1, F2), (2, F4), (3, F6))]; r0 = PR + 16 + 4*(h-2)
        elif h < 8: rows = [(PR + 24 + 2*(h-4) + 1, F4)]; r0 = PR + 24 + 2*(h-4)
        else: rows = []; r0 = PR + 32 + (h-8)
        o += put(r0, cur)
        for row, f in rows:
            d = 40 + 2*(pp & 1); pp += 1
            o += cmul(d, cur, f) + put(row, d)
        ch[h & 1] = [c[1], c[2], c[1]] if h < 4 else [c[1], c[0], c[1]]
    return o
def k_reads():
    return sum(([f"ds_read_b128 {vr(KF[3*s],4)}, v{cKf0} offset:{64*s}",
                 f"ds_read_b128 {vr(KF[3*s+1],4)}, v{cKf1} offset:{16*PITCH+64*s}",
                 f"ds_read_b128 {vr(KF[3*s+2],4)}, v{cKf0} offset:{48*PITCH+64*s}"] for s in range(8)), [])
def k_mfma(waits):
    for s in range(8):
        if waits: A(f"s_waitcnt lgkmcnt({min(15, 21 - 3*s)})")
        A([f"v_mfma_f32_16x16x32_bf16 {vr(KA,4)}, {vr(KF[3*s+1],4)}, {vr(KF[3*s],4)}, {'0' if s == 0 else vr(KA,4)}",
           f"v_mfma_f32_16x16x32_bf16 {vr(KA+4,4)}, {vr(KF[3*s+2],4)}, {vr(KF[3*s],4)}, {'0' if s == 0 else vr(KA+4,4)}"])
    return lines(f"""
    v_add_f32 v{KA}, v{KA}, v{cDk}
    v_cvt_pk_bf16_f32 v{KT}, v{KA}, v{KA+1}
    v_cvt_pk_bf16_f32 v{KT+1}, v{KA+2}, v{KA+3}
    v_cvt_pk_bf16_f32 v{KT+2}, v{KA+4}, v{KA+5}
    v_cvt_pk_bf16_f32 v{KT+3}, v{KA+6}, v{KA+7}
    ds_write_b16 v{cKd0}, v{KT}
    ds_write_b16_d16_hi v{cKd0}, v{KT} offset:4
    ds_write_b16 v{cKd1}, v{KT+1}
    ds_write_b16_d16_hi v{cKd1}, v{KT+1} offset:4
    ds_write_b16 v{cKd2}, v{KT+2} offset:2048
    ds_write_b16_d16_hi v{cKd2}, v{KT+2} offset:{2048+64}
    ds_write_b16 v{cKd2}, v{KT+3} offset:{2048+128}
    ds_write_b16_d16_hi v{cKd2}, v{KT+3} offset:{2048+192}
    """)
def k_part1():
    A(k_reads()); return k_mfma(True)
def dskip():
    return lines(f"""
    s_lshl_b32 s3, s{sDsk}, 16
    s_and_b32 s4, s{sDsk}, 0xffff0000
    s_cmp_lt_u32 s{sWN}, 2
    s_cselect_b32 s3, s3, s4
    s_and_b32 s4, s{sWN}, 1
    s_cmp_eq_u32 s4, 0
    s_cselect_b32 s3, s3, 0
    v_mov_b32 v{cDk}, 0
    v_writelane_b32 v{cDk}, s3, 0
    """)
def k_gather(): return [f"ds_read_b32 v{GV+e}, v{XA+e}" for e in range(9)]
def k_pack():
    o = ["v_cmp_ne_u32 vcc, 0x1ff, v0", f"ds_write_b32 v{cZ0}, v{vZero} offset:{UOFF}",
         f"ds_write_b32 v{cZ1}, v{vZero} offset:4096", f"v_cndmask_b32 v{GV+8}, 0, v{GV+8}, vcc",
         f"s_mov_b32 s{sK1}, 0x05040100", f"s_mov_b32 s{sK2}, 0x07060302"]
    n = 0
    for c, sel in ((0, sK1), (1, sK2)):
        for k in range(2):
            for i in range(4): o.append(f"v_perm_b32 v{16+4*n+i}, v{GV+2*i+k+1}, v{GV+2*i+k}, s{sel}")
            o.append(f"ds_write_b128 v{cImg}, {vr(16+4*n,4)} offset:{c*CH + k*4160}")
            n += 1
    return o

LD_INIT = f"global_load_dword v{vPoll}, v{vZero}, s[62:63] sc1"
LD_MV = f"buffer_load_dword v{vPoll}, v{cMv}, s[20:23], 0 offen sc1"
def poll(lb, target, ld):
    A(f"""
{lb}:
    v_cmp_gt_u32 vcc, {target}, v{vPoll}
    s_cbranch_vccz {lb}_ok
    s_sub_u32 s{sSpin}, s{sSpin}, 1
    s_cmp_lt_i32 s{sSpin}, 0
    s_cbranch_scc1 {lb}_ok
    s_sleep 8
    {ld}
    s_waitcnt vmcnt(0)
    s_branch {lb}
{lb}_ok:
    """)

def gemm1_a():
    FA = [16, 32]; FB = [80, 96]
    def ra(p):
        f = FA[p & 1]; o = (p & 3)*16384
        return [f"ds_read_b64_tr_b16 {vr(f+8*mat+4*T+2*ih,2)}, v{vWr[T]} offset:{o + 1024*mat + 2048*ih}"
                for mat in range(2) for T in range(2) for ih in range(2)]
    def rb(p, h):
        xo = ((p >> 1) & 1)*16384
        return [f"ds_read_b128 {vr(FB[h]+4*i,4)}, v{vXr[p & 1]} offset:{xo + 2048*(4*h + i)}" for i in range(4)]
    A("s_waitcnt lgkmcnt(0)\ns_barrier")
    tail = [] if KB else k_part1()
    stamp(3)
    A(ra(0) + rb(0, 0)); A(tail)
    A("L_g1_loop:")
    for p in range(4):
        for h in range(2):
            wv = {3: {1: AGT}, 4: {1: 4 + AGT, 2: AGT}, 5: {1: 4 + AGT, 2: AGT}}.get(AD, {})
            A(f"s_waitcnt vmcnt({wv[p]}) lgkmcnt(0)" if h and p in wv else "s_waitcnt lgkmcnt(0)")
            if h: A("s_barrier")
            r = rb(p, 1) if h == 0 else (ra(p + 1)[:2] + rb(p + 1, 0)[:1] + ra(p + 1)[2:] + rb(p + 1, 0)[1:])
            up = UPF if h else UP0
            A(r[:up]); r = r[up:]
            if AORD == 0: order = [(i, a) for i in range(4) for a in range(4)]
            elif AORD == 1: order = [(i, a) for a in range(4) for i in range(4)]
            elif AORD == 2: order = [(i, a if i % 2 == 0 else 3 - a) for i in range(4) for a in range(4)]
            else: order = [(i if a % 2 == 0 else 3 - i, a) for a in range(4) for i in range(4)]
            for n, (i, a) in enumerate(order):
                tt = 4*h + i; mat, T = a >> 1, a & 1
                d = vr(ACC1 + 32*(tt >> 1) + 16*mat + 8*(tt & 1) + 4*T, 4)
                A(f"v_mfma_f32_16x16x32_bf16 {d}, {vr(FA[p & 1]+8*mat+4*T,4)}, {vr(FB[h]+4*i,4)}, {d}")
                if r: A(r.pop(0))
                if p == 3 and h == 1 and n == 13: A(f"s_add_u32 s{sIt}, s{sIt}, 1\ns_cmp_lt_u32 s{sIt}, 4")
    if ENC == 8 and SS == 3:
        A(f"s_cselect_b32 s76, 1, 0\ns_cmp_eq_u32 s{sIt}, 1\ns_cbranch_scc0 L_enc_nb\ns_memrealtime s[96:97]\ns_waitcnt lgkmcnt(0)\nL_enc_nb:\ns_cmp_eq_u32 s76, 1")
    if STAMP and SS == 3:
        A("s_mov_b32 s92, s94\ns_mov_b32 s94, s96\ns_mov_b32 s96, s98\ns_memrealtime s[98:99]\ns_waitcnt lgkmcnt(0)")
    A("s_cbranch_scc1 L_g1_loop")

def publish(sreg, n, lanes=1):
    A(f"""
    s_mov_b64 exec, {lanes}
    s_waitcnt vmcnt({n})
    buffer_store_dword v14, v15, s[20:23], s{sreg} offen sc1
    s_mov_b64 exec, -1
    """)

def geglu(tt):
    G = ACC1 + 32*tt; U = G + 16
    O = 64 + 0*(tt & 1) if tt == 3 else 96 + 8*(tt & 1); T = 32
    for p in range(8): A(f"v_pk_mul_f32 {vr(T+2*p,2)}, {vr(G+2*p,2)}, {vr(G+2*p,2)}")
    for p in range(8): A(f"v_pk_fma_f32 {vr(T+2*p,2)}, {vr(T+2*p,2)}, s[34:35], v[12:13]")
    for p in range(8): A(f"v_pk_mul_f32 {vr(T+2*p,2)}, {vr(T+2*p,2)}, {vr(G+2*p,2)}")
    for p in range(16): A(f"v_exp_f32 v{T+p}, v{T+p}")
    for p in range(8): A(f"v_pk_mul_f32 {vr(G+2*p,2)}, {vr(G+2*p,2)}, {vr(U+2*p,2)}")
    for p in range(8): A(f"v_pk_add_f32 {vr(T+2*p,2)}, {vr(T+2*p,2)}, 1.0 op_sel_hi:[1,0]")
    for p in range(16): A(f"v_rcp_f32 v{T+p}, v{T+p}")
    for p in range(8): A(f"v_pk_mul_f32 {vr(G+2*p,2)}, {vr(G+2*p,2)}, {vr(T+2*p,2)}")
    for p in range(8): A(f"v_cvt_pk_bf16_f32 v{O+p}, v{G+2*p}, v{G+2*p+1}")
    A(f"buffer_store_dwordx4 {vr(O,4)}, v10, s[20:23], s{sHst} offen sc1")
    A(f"buffer_store_dwordx4 {vr(O+4,4)}, v10, s[20:23], s{sHst} offen offset:256 sc1")
    if tt < 3: A(f"s_add_u32 s{sHst}, s{sHst}, {112*1024}")

def epilogue():
    ops = []
    for tt in range(4):
        G = ACC1 + 32*tt; U = G + 16; O = 96 + 8*(tt & 1); T = (32, 112)[tt & 1]
        cv = []
        for p in range(8):
            g, u, t = vr(G+2*p, 2), vr(U+2*p, 2), vr(T+2*p, 2)
            b = len(ops)
            prev = [last[(tt - 2, p)]] if tt >= 2 else []
            ops.append(("p", f"v_pk_mul_f32 {t}, {g}, {g}", prev))
            ops.append(("p", f"v_pk_fma_f32 {t}, {t}, s[34:35], v[12:13]", [b]))
            ops.append(("p", f"v_pk_mul_f32 {t}, {t}, {g}", [b+1]))
            ops.append(("t", f"v_exp_f32 v{T+2*p}, v{T+2*p}", [b+2]))
            ops.append(("t", f"v_exp_f32 v{T+2*p+1}, v{T+2*p+1}", [b+2]))
            ops.append(("p", f"v_pk_mul_f32 {g}, {g}, {u}", [b+2]))
            ops.append(("p", f"v_pk_add_f32 {t}, {t}, 1.0 op_sel_hi:[1,0]", [b+3, b+4]))
            ops.append(("t", f"v_rcp_f32 v{T+2*p}, v{T+2*p}", [b+6]))
            ops.append(("t", f"v_rcp_f32 v{T+2*p+1}, v{T+2*p+1}", [b+6]))
            ops.append(("p", f"v_pk_mul_f32 {g}, {g}, {t}", [b+5, b+7, b+8]))
            ops.append(("p", f"v_cvt_pk_bf16_f32 v{O+p}, v{G+2*p}, v{G+2*p+1}", [b+9] + ([stores[2*(tt-2) + p//4]] if tt >= 2 else [])))
            last[(tt, p)] = b + 9; cv.append(b + 10)
            if p in (3, 7):
                st = f"buffer_store_dwordx4 {vr(O+p-3,4)}, v10, s[20:23], s{sHst} offen offset:{256*(p//4)} sc1"
                if p == 7 and tt < 3: st += f"\ns_add_u32 s{sHst}, s{sHst}, {112*1024}"
                ops.append(("s", st, cv[-4:] + stores[-1:])); stores.append(len(ops) - 1)
    done = {}; n = 0; want = ["t", "p", "p", "t", "p", "p", "t", "p", "p", "t", "p"]; nst = 0
    todo = list(range(len(ops)))
    while todo:
        ready = [i for i in todo if all(d in done and n - done[d] >= EDIST for d in ops[i][2])]
        if not ready: ready = [i for i in todo if all(d in done and n - done[d] >= (3 if ops[d][0] == "s" else 2) for d in ops[i][2])]
        if not ready: A("s_nop 0"); n += 1; continue
        if n < LST: ready = [i for i in ready if ops[i][0] != "s"] or ready
        st = [i for i in ready if ops[i][0] == "s"]
        pick = st[0] if st else next((i for i in ready if ops[i][0] == want[n % len(want)]), ready[0])
        A(ops[pick][1]); done[pick] = n; n += 1; todo.remove(pick)
        if ops[pick][0] == "s":
            nst += 1
            if nst == 2: pad("ea0")
            if nst == 5: pad("ea1")
            if nst == MID: publish(sHfl, MID - 4)
last = {}; stores = []

def role_a():
    A(f"s_mov_b32 s{sRole}, 0\nv_mov_b64 v[40:41], 0\nv_mov_b64 v[42:43], 0")
    if T0:
        A(f"""
        s_cmp_ge_u32 s2, 224
        s_cbranch_scc1 L_t0_done
        s_cmp_ge_u32 s{sW}, 2
        s_cbranch_scc1 L_t0_x
        s_lshr_b32 s3, s2, 3
        s_and_b32 s3, s3, 3
        s_add_u32 s3, s3, s{sRW}
        s_mul_i32 s3, s3, {WSTEP}
        s_lshl_b32 s4, s{sFB}, 8
        s_add_u32 s3, s3, s4
        v_lshrrev_b32 v112, 1, v1
        v_mul_u32_u24 v112, 3584, v112
        v_and_b32 v113, 1, v1
        v_lshl_add_u32 v112, v113, 7, v112
        s_cmp_eq_u32 s{sW}, 0
        s_cbranch_scc0 L_t0_u
        buffer_load_dword v{vJA}, v112, s[12:15], s3 offen
        s_branch L_t0_done
L_t0_u:
        buffer_load_dword v{vJA}, v112, s[16:19], s3 offen offset:1024
        s_branch L_t0_done
L_t0_x:
        s_lshr_b32 s3, s2, 5
        s_mul_i32 s3, s3, 19
        v_min_u32 v112, 18, v1
        v_add_u32 v112, s3, v112
        v_min_u32 v112, 127, v112
        v_lshlrev_b32 v112, 10, v112
        s_lshl_b32 s3, s{sTB}, 17
        s_add_u32 s3, s3, s{sRX}
        s_and_b32 s4, s{sW}, 1
        s_lshl_b32 s4, s4, 7
        s_add_u32 s3, s3, s4
        buffer_load_dword v{vJA}, v112, s[8:11], s3 offen
L_t0_done:
        """)
    ALIST = {3: [("X", 1), ("W", 2)], 4: [("W", 2), ("W", 3)], 5: [("W", 2), ("W", 3)]}.get(AD, [])
    def a_dma():
        o = sum(sum((x_dma(i) if k == "X" else w_dma(i) for k, i in ALIST), []), [])
        A([x.replace(f"v{vWo}", "v116").replace(f"v{vXo[0]}", "v117").replace(f"v{vXo[1]}", "v118") for x in o])
    if AD:
        A(f"""
        s_add_u32 s{sM0W}, s{sM0W}, 8192
        s_add_u32 s{sM0X}, s{sM0X}, 8192
        s_add_u32 s{sWoff}, s{sWoff}, {16*3584}
        s_add_u32 s{sXoff}, s{sXoff}, 65536
        v_mov_b32 v116, v{vWo}
        v_mov_b32 v117, v{vXo[0]}
        v_mov_b32 v118, v{vXo[1]}
        """)
    common_setup(); g1_setup(); pad("su")
    if not KB: A(k_setup1())
    A("s_cmp_ge_u32 s2, 224\ns_cbranch_scc1 L_mv_a")
    for i in range(8):
        A(f"v_mfma_f32_32x32x16_bf16 {vr(ACC1+16*i,16)}, v[40:43], v[40:43], 0")
    if AD in (3, 5): a_dma()
    A(f"s_waitcnt vmcnt({(8 if AD in (3, 5) else 0) + T0})")
    if T2:
        A(f"""
        s_cmp_ge_u32 s{sW}, 2
        s_cbranch_scc1 L_a_tab
        s_lshl_b32 s3, s2, 1
        s_add_u32 s3, s3, s{sW}
        s_mul_i32 s3, s3, {37*128}
        v_min_u32 v112, 36, v1
        v_lshlrev_b32 v112, 7, v112
        buffer_load_dword v{vJA}, v112, s[8:11], s3 offen
        """)
    A("L_a_tab:")
    stamp(1)
    t = tables_a()
    A(t[:50]); pad("tb0"); A(t[50:])
    stamp(2)
    if not KB: A("s_waitcnt lgkmcnt(0)"); A(dskip())
    A("s_cmp_ge_u32 s2, 224\ns_cbranch_scc1 L_mv_a2")
    if AD == 4: a_dma()
    if AGT:
        A(f"""
        s_lshl_b32 s3, s2, 2
        s_add_u32 s3, s3, s{sW}
        s_lshl_b32 s3, s3, 11
        v_and_b32 v112, 15, v1
        v_lshlrev_b32 v112, 7, v112
        buffer_load_dword v{vJA}, v112, s[68:71], s3 offen
        """)
    if C3:
        A(f"""
        s_lshr_b32 s3, s2, 3
        s_lshl_b32 s3, s3, 14
        s_mul_i32 s4, s{sW}, {448*1024}
        s_add_u32 s3, s3, s4
        v_and_b32 v113, 15, v1
        v_lshlrev_b32 v113, 10, v113
        buffer_load_dword v{vJA}, v113, s[68:71], s3 offen offset:384
        """)
    if WA: warm(1)
    A("s_setprio 1")
    gemm1_a()
    stamp(4)
    if STAMP and SS == 5: A("s_memtime s[72:73]\ns_waitcnt lgkmcnt(0)")
    if EPI:
        epilogue()
        if STAMP and SS == 5: A("s_memtime s[74:75]\ns_waitcnt lgkmcnt(0)\ns_sub_u32 s82, s74, s72")
    else:
        geglu(0); pad("ea0")
        geglu(1)
        geglu(2); pad("ea1")
        publish(sHfl, 2)
        geglu(3)
    stamp(5)
    if BX: A("s_barrier")
    conv_setup()
    if MID > 8: publish(sHfl, 0, 3)
    else: publish(sHfl2, 0)
    A("L_a_join:")
    conv()

G1 = [0, 1, 8, 9, 2, 3]; G2 = [4, 5, 10, 11, 6, 7]
STG = {k: 48 + 8*i for i, k in enumerate(G1 + G2)}
STG.update({24 + i: 144 + 8*i for i in range(4)})
def wd_reads(kap, d0, d1):
    o = piece_off(kap)
    if kap >= 12: base = gR; o -= RED
    elif o >= 65536: base = gD[2:4]; o -= 65536
    else: base = gD[0:2]
    return [f"ds_read_b64_tr_b16 {vr((d0, d1)[dd]+2*ih,2)}, v{base[dd]} offset:{o + 1024*ih}" for dd in range(2) for ih in range(2)]

def u_loads(vm):
    vm.issue("u", f"buffer_load_dwordx4 {vr(vU,4)}, v{cLu0}, s[20:23], s{sCu} offen sc1")
    vm.issue("u", f"buffer_load_dwordx4 {vr(vU+4,4)}, v{cLu1}, s[20:23], s{sCu} offen sc1")

def b_finish(vm, lb, kin=False, early=False):
    late = []
    if kin:
        vm.wait({"mv"}); poll(lb, 1, LD_MV)
        u_loads(vm)
    elif KB:
        tail = k_mfma(False)
        if not early:
            vm.wait({"mv"}); poll(lb, 1, LD_MV)
            u_loads(vm)
        A("s_nop 7"); A(tail)
        A(f"""
        s_mov_b64 exec, 1
        s_waitcnt lgkmcnt(0)
        ds_add_u32 v{cCb}, v{vOne}
        s_mov_b64 exec, -1
        """)
    def stage(ks, refill=True):
        vm.wait({("d", k) for k in ks})
        for k in ks: A(wd_reads(k, STG[k], STG[k] + 4))
        A("s_waitcnt lgkmcnt(0)")
        for k in ks:
            if refill:
                for g in d_piece(k, k + 12): vm.issue(("d", k + 12), g)
            else: late.append(k)
    if BX:
        A(f"""
        s_mov_b64 exec, 1
{lb}_k:
        s_sleep 1
        ds_read_b32 v2, v{cCb}
        s_waitcnt lgkmcnt(0)
        v_cmp_gt_u32 vcc, 4, v2
        s_cbranch_vccz {lb}_kgo
        s_sub_u32 s{sSpin}, s{sSpin}, 1
        s_cmp_lt_i32 s{sSpin}, 0
        s_cbranch_scc0 {lb}_k
{lb}_kgo:
        s_mov_b64 exec, -1
        """)
        A(k_gather()); A("s_waitcnt lgkmcnt(0)"); A(k_pack())
        vm.wait({"u"})
        A(f"ds_write_b128 v{cUw}, {vr(vU,4)}\nds_write_b128 v{cUw}, {vr(vU+4,4)} offset:2048")
        return G1 + G2
    stage(G1[0:2], RLATE < 12); stage(G1[2:4], RLATE < 10)
    if not KB:
        vm.wait({"mv"}); poll(lb, 1, LD_MV)
        u_loads(vm)
    elif not kin:
        A(f"""
        s_mov_b64 exec, 1
{lb}_k:
        ds_read_b32 v2, v{cCb}
        s_waitcnt lgkmcnt(0)
        v_cmp_gt_u32 vcc, 4, v2
        s_cbranch_vccz {lb}_kgo
        s_sub_u32 s{sSpin}, s{sSpin}, 1
        s_cmp_lt_i32 s{sSpin}, 0
        s_cbranch_scc0 {lb}_k
{lb}_kgo:
        s_mov_b64 exec, -1
        """)
        A(k_gather())
    stage(G1[4:6] + G2[0:2], RLATE < 8)
    if not kin:
        vm.wait({("d", 24 + i) for i in range(4)})
        for i in range(4): A(wd_reads(12 + i, STG[24 + i], STG[24 + i] + 4))
    A(k_pack())
    if not SL4: stage(G2[2:6], RLATE < 4)
    vm.wait({"u"})
    A(f"ds_write_b128 v{cUw}, {vr(vU,4)}\nds_write_b128 v{cUw}, {vr(vU+4,4)} offset:2048")
    return late

def role_b():
    A(f"L_role_b:\ns_mov_b32 s{sRole}, 1")
    if not BH: A("s_cmp_ge_u32 s2, 224\ns_cbranch_scc1 L_mv_head")
    vm = Cnt("vmcnt", 63)
    def groups(kind, idx):
        if kind == "W" and idx < 16: return [((kind, idx), g) for g in w_dma(idx)]
        if kind == "X" and idx < 8: return [((kind, idx), g) for g in x_dma(idx)]
        sig = idx - 16 if kind == "W" else idx - 4
        return [(("d", k), g) for k in (2*sig, 2*sig + 1) for g in d_piece(k, k)]
    def dma(kind, idx):
        for tag, g in groups(kind, idx): vm.issue(tag, g)
    def barrier(tags):
        n = vm.need(tags)
        A(f"s_waitcnt {'vmcnt(%d) ' % n if n is not None else ''}lgkmcnt(0)\ns_barrier")
    if BH:
        for t in (("X", 0), ("W", 0), ("W", 1)):
            for _ in range(4): vm.note(t)
    else:
        dma("X", 0); dma("W", 0); dma("W", 1)
    common_setup()
    A("s_waitcnt vmcnt(12)")
    stamp(1)
    t = tables_b()
    A(t[:60]); pad("rb1")
    if AD == 3: dma("W", 3)
    else: dma("X", 1)
    A(t[60:])
    stamp(2)
    if KB:
        k1 = k_setup1()
        rest = k1[11:] + b_setup1(); kr = k_reads(); mix = []
        if KRS:
            while kr or rest:
                if kr: mix.append(kr.pop(0))
                n = KRS
                while rest and (n > 0 or mix[-1].startswith("s_cmp")): mix.append(rest.pop(0)); n -= 1
        else: mix = kr + rest
        allw = k1[:11] + mix + dskip() + [f"v_mov_b32 v{cCb}, {CNT + 4}"] + b_setup2()
    else: allw = b_setup1() + b_setup2() + k_gather()
    if KIN:
        global L
        keep = L; L = []; tail = k_mfma(False); km = [x.strip() for x in L]; L = keep
        rr = sum((wd_reads(12 + i, STG[24 + i], STG[24 + i] + 4) for i in range(4)), [])
        cut = len(allw) - 45
        w1 = slices(allw[:cut], 9); w2 = slices(allw[cut:], 4); m4 = slices(km, 4)
        work = w1 + [sum(([x] + w2[i][3*j:3*j+3] for j, x in enumerate(m4[i])), []) + w2[i][12:] for i in range(4)] + [tail, k_gather() + rr[:4], rr[4:]]
    else: work = slices(allw, NW)
    barrier({("X", 0), ("W", 0)})
    stamp(3)
    if not AD: dma("W", 2)
    carry = [] if AD else groups("W", 3)
    for s in range(16):
        barrier({("W", s + 1), ("X", (s + 1)//2)} | ({("d", 24 + i) for i in range(4)} if s == 14 else set()))
        if UE and s == 15:
            vm.wait({"mv"}); poll("L_pm1", 1, LD_MV); u_loads(vm)
        g = carry; carry = []
        if s & 1:
            g += groups("X", (s + 3)//2)
            w4 = groups("W", s + 4)
            if s < 15: g += w4[:2]; carry = w4[2:]
            else: g += w4
        else: g += groups("W", s + 4)
        if (RS <= s < RS + 4) if KB else (RS <= s < RS + 8 and (s - RS) % 2 == 0):
            i = s - RS if KB else (s - RS)//2
            g += [(("d", 24 + i), x) for x in d_piece(12 + i, 24 + i)]
        w = work.pop(0) if work else []
        for (tag, gi), wi in zip(g, slices(w, len(g))):
            vm.issue(tag, gi); A(wi)
        if s == 5: A(f"s_cmp_eq_u32 s{sW}, 4\ns_cbranch_scc0 L_noinit\n{LD_INIT}\nL_noinit:")
        if s == 10:
            A(f"s_cmp_eq_u32 s{sW}, 4\ns_cbranch_scc0 L_pi_ok")
            poll("L_pi", 128, LD_INIT)
        if s == (13 if UE else 14): vm.issue("mv", LD_MV)
        if s == 1 and not WA: warm(1)
        if s == 3: pad("rb2")
        if s == 8: pad("g1b")
    A(f"s_setprio {PPRIO}")
    stamp(4)
    late = b_finish(vm, "L_pm1", KIN, UE)
    A("L_b_join:")
    warm(2)
    if BX:
        A("s_barrier")
        for k in G1 + G2: A(wd_reads(k, STG[k], STG[k] + 4))
        for i in range(4): A(wd_reads(12 + i, STG[24 + i], STG[24 + i] + 4))
    stamp(5)
    A("s_waitcnt lgkmcnt(0)\ns_barrier")
    if CST >= 0: A("s_barrier")
    gemm2(late if SL4 else sorted(late))

def mv_head():
    A(f"""
L_mv_head:
    s_sub_u32 s6, s2, 224
    s_lshl_b32 s3, s6, 16
    s_lshl_b32 s4, s{sWN}, 14
    s_add_u32 s3, s3, s4
    s_mul_i32 s4, s{sWN}, {16*UP}
    v_lshlrev_b32 v16, 4, v1
    s_add_u32 s5, s3, 16384
L_mv_ld:
    s_mov_b32 m0, s4
    s_add_u32 s4, s4, {UP}
    buffer_load_dwordx4 v16, s[8:11], s3 offen lds
    s_add_u32 s3, s3, 1024
    s_cmp_lt_u32 s3, s5
    s_cbranch_scc1 L_mv_ld
    global_load_dwordx4 v[128:131], v16, s[58:59]
    v_add_u32 v132, {GWL}, v16
    """)

def mover():
    if BH: A(f"L_mv_head2:\ns_mov_b32 s{sRole}, 1")
    else:
        if STUBS: A("L_pad_mv:\ns_branch L_warm_ret0")
        mv_head()
    common_setup()
    A("s_waitcnt vmcnt(17)"); A(tables_b())
    A(b_setup1()); A(b_setup2())
    if KB: A(k_setup1()); A("s_waitcnt lgkmcnt(0)"); A(dskip()); A(f"v_mov_b32 v{cCb}, {CNT + 4}")
    A("s_waitcnt vmcnt(0)\nds_write_b128 v132, v[128:131]\ns_branch L_mv_common")
    A(f"""
L_mv_a:
    s_sub_u32 s6, s2, 224
    s_lshl_b32 s3, s6, 2
    s_add_u32 s3, s3, s{sW}
    s_mul_i32 s3, s3, 22
    v_add_u32 v16, s3, v1
    s_add_u32 s3, s6, 2816
    v_mov_b32 v17, s3
    v_cmp_gt_u32 vcc, 22, v1
    s_getpc_b64 s[4:5]
L_pc:
    s_sub_u32 s4, s4, L_pc - {KNAME}
    s_subb_u32 s5, s5, 0
    v_cndmask_b32 v16, v17, v16, vcc
    v_lshlrev_b32 v16, 7, v16
    v_add_u32 v16, {WS_FLAG}, v16
    buffer_store_dword v{vZero}, v16, s[20:23], 0 offen sc1
    v_lshlrev_b32 v16, 7, v0
    v_min_u32 v16, L_exit - {KNAME}, v16
    global_load_dword v{vJA}, v16, s[4:5]
    s_waitcnt vmcnt(2)
    s_branch L_a_tab
L_mv_a2:
    s_waitcnt vmcnt(0)
    s_mov_b64 exec, 1
    global_atomic_add v15, v14, s[62:63] sc1
    s_mov_b64 exec, -1
L_mv_common:
    s_sub_u32 s{sMov}, s2, 224
    v_and_b32 v2, 15, v1
    v_lshrrev_b32 v3, 4, v1
    v_lshlrev_b32 v16, 4, v3
    v_lshrrev_b32 v17, 2, v1
    v_and_b32 v17, 3, v17
    v_lshl_add_u32 v17, v3, 3, v17
    v_mul_u32_u24 v17, {UP}, v17
    v_and_b32 v18, 3, v1
    v_lshl_add_u32 v17, v18, 3, v17
    s_lshl_b32 s4, s{sW}, 7
    v_add_u32 v17, s4, v17
    s_lshl_b32 s3, s{sW}, 18
    s_lshl_b32 s4, s{sMov}, 11
    s_add_u32 s3, s3, s4
    s_add_u32 s3, s3, {WS_UT}
    v_lshlrev_b32 v18, 6, v2
    v_lshl_add_u32 v18, v3, 4, v18
    s_and_b32 s4, s{sMov}, 3
    s_lshl_b32 s4, s4, 8
    v_xor_b32 v18, s4, v18
    v_xor_b32 v19, 128, v18
    s_waitcnt lgkmcnt(0)
    s_barrier
    """)
    stamp(3)
    for q in range(4):
        b = 160 + 8*q
        A(f"""
        ds_read_b64_tr_b16 {vr(b,2)}, v17 offset:{32*q}
        ds_read_b64_tr_b16 {vr(b+2,2)}, v17 offset:{32*q + 4*UP}
        ds_read_b64_tr_b16 {vr(b+4,2)}, v17 offset:{32*q + 32*UP}
        ds_read_b64_tr_b16 {vr(b+6,2)}, v17 offset:{32*q + 36*UP}
        """)
    for q in range(4):
        b = 160 + 8*q
        A(f"""
        s_waitcnt lgkmcnt({12 - 4*q})
        buffer_store_dwordx4 {vr(b,4)}, v18, s[20:23], s3 offen sc1
        buffer_store_dwordx4 {vr(b+4,4)}, v19, s[20:23], s3 offen offset:1024 sc1
        s_add_u32 s3, s3, 65536
        """)
    A(f"""
    s_cmp_eq_u32 s{sRole}, 0
    s_cbranch_scc1 L_mv_a3
    s_mul_i32 s4, s{sWN}, {16*UP}
    v_mul_u32_u24 v17, {UP}, v2
    v_add_u32 v17, v17, v16
    v_add_u32 v17, s4, v17
    v_add_u32 v4, {GWL}, v16
    """)
    for i in range(16):
        A(f"ds_read_b128 {vr(32+4*i,4)}, v17 offset:{64*i}\nds_read_b128 {vr(96+4*i,4)}, v4 offset:{64*i}")
    A("s_waitcnt lgkmcnt(0)")
    for i in range(16):
        c = "0" if i < 2 else vr(24+4*(i&1), 4)
        A(f"v_mfma_f32_16x16x32_bf16 {vr(24+4*(i&1),4)}, {vr(32+4*i,4)}, {vr(96+4*i,4)}, {c}")
    A(f"""
    s_lshl_b32 s3, s{sMov}, 2
    s_add_u32 s3, s3, s{sWN}
    s_lshl_b32 s3, s3, 6
    s_add_u32 s3, s3, {WS_G}
    s_nop 5
    """)
    for r in range(4): A(f"v_add_f32 v{24+r}, v{24+r}, v{28+r}")
    for r in range(4): A(f"v_cvt_pk_bf16_f32 v{24+r}, 0, v{24+r}")
    for r in range(4): A(f"v_mul_f32 v{24+r}, {fbits(-L2E)}, v{24+r}")
    for r in range(4): A(f"v_exp_f32 v{24+r}, v{24+r}")
    A("s_nop 0")
    for r in range(4): A(f"v_add_f32 v{24+r}, 1.0, v{24+r}")
    for r in range(4): A(f"v_rcp_f32 v{24+r}, v{24+r}")
    A("s_nop 0")
    for r in range(4): A(f"v_cvt_pk_bf16_f32 v{24+r}, 0, v{24+r}")
    for r in range(4): A(f"v_sub_f32 v{28+r}, 1.0, v{24+r}")
    for r in range(4): A(f"v_cvt_pk_bf16_f32 v{24+r}, v{24+r}, v{28+r}")
    A(f"""
    v_cmp_eq_u32 vcc, 0, v2
    s_and_saveexec_b64 s[4:5], vcc
    buffer_store_dwordx4 v[24:27], v16, s[20:23], s3 offen sc1
    s_mov_b64 exec, s[4:5]
    """)
    if KB: A(k_reads())
    A(f"""
    s_waitcnt vmcnt(0) lgkmcnt(0)
    s_barrier
    s_cmp_eq_u32 s{sW}, 4
    s_cbranch_scc0 L_pi2_ok
    s_mov_b64 exec, 1
    global_atomic_add v40, v{vZero}, v{vOne}, s[62:63] offset:128 sc0 sc1
    s_mov_b64 exec, -1
    {LD_INIT}
    s_waitcnt vmcnt(0)
    v_readfirstlane_b32 s3, v40
    v_and_b32 v17, 31, v1
    v_lshlrev_b32 v17, 7, v17
    v_add_u32 v17, {WS_FLAG3}, v17
    s_and_b32 s3, s3, 31
    s_cmp_eq_u32 s3, 31
    s_cbranch_scc0 L_pi2
    buffer_store_dword v{vOne}, v17, s[20:23], 0 offen sc1
    """)
    poll("L_pi2", 128, LD_INIT)
    stamp(4)
    vm = Cnt("vmcnt", 63)
    if not KB: A(k_gather())
    if TFIRST: A("s_barrier")
    for k in G1 + G2:
        for g in d_piece(k, k): vm.issue(("d", k), g)
    for i in range(4):
        for g in d_piece(12 + i, 24 + i): vm.issue(("d", 24 + i), g)
    if not TFIRST: A("s_barrier")
    vm.issue("mv", LD_MV)
    b_finish(vm, "L_pm2")
    A("s_branch L_b_join")
    def mtouch(n):
        for i in range(n):
            A(f"s_cmp_ge_u32 s46, {448*1024}\ns_cselect_b32 s3, {448*1024}, 0\ns_sub_u32 s46, s46, s3\ns_add_u32 s3, s47, s46\nbuffer_load_dword v{vJA}, v77, s[68:71], s3 offen\ns_add_u32 s46, s46, 32768")
    A(f"""
L_mv_a3:
    s_lshr_b32 s47, s{sMov}, 3
    s_mul_i32 s47, s47, {448*1024}
    s_lshl_b32 s4, s{sW}, 13
    s_add_u32 s47, s47, s4
    s_lshl_b32 s46, s{sRho}, 14
    s_add_u32 s46, s46, {192*1024}
    v_lshlrev_b32 v77, 7, v1
    """)
    if not KB:
        tail = k_part1(); A("s_nop 7"); A(tail)
    def mc3():
        A(f"""
        s_lshr_b32 s3, s{sMov}, 3
        s_lshl_b32 s3, s3, 2
        s_add_u32 s3, s3, s{sW}
        s_mul_i32 s3, s3, {112*1024}
        s_lshl_b32 s4, s{sJ}, 7
        s_add_u32 s3, s3, s4
        v_min_u32 v78, 55, v1
        v_lshlrev_b32 v78, 10, v78
        buffer_load_dword v{vJA}, v78, s[68:71], s3 offen
        s_add_u32 s3, s3, {56*1024}
        buffer_load_dword v{vJA}, v78, s[68:71], s3 offen
        """)
    if MC3 == 2: mc3()
    mtouch(MPRE)
    A(f"s_waitcnt vmcnt({MPRE + (2 if MC3 == 2 else 0)}) lgkmcnt(0)\ns_barrier")
    if MC3 == 1: mc3()
    stamp(4)
    A("s_barrier")
    mtouch(MT - MPRE)
    stamp(5)
    if BX: A("s_barrier")
    conv_setup()
    A(f"s_mov_b32 s{sHfl2}, 0x40000000\ns_branch L_a_join")

def conv():
    FA = [96, 160]; FB = [128, 192]; ACC = 16
    def reads(rr):
        fs = rr & 1; ra = []; rb = []
        for i in range(8):
            o = (512*(1 - (i & 1)) + 64*(3 - rr)) // 4
            rb.append(f"ds_read_b128 {vr(FB[fs]+4*i,4)}, v{cB} offset:{512*i + 64*(3-rr)}")
            ra.append(f"ds_read2_b32 {vr(FA[fs]+4*i,2)}, v{cA[i>>1]} offset0:{o} offset1:{o+1}")
            ra.append(f"ds_read2_b32 {vr(FA[fs]+4*i+2,2)}, v{cA[i>>1]} offset0:{o+2} offset1:{o+3}")
        return ra, rb
    A(f"s_waitcnt lgkmcnt(0)\ns_barrier\ns_setprio {CPRIO}")
    stamp(6)
    ra, rb = reads(0)
    A(ra[0:2] + rb + ra[2:])
    U = 128; D = 136; Y = 96; P = 160
    for rr in range(4):
        fs = rr & 1
        A("s_waitcnt lgkmcnt(14)" if rr == 0 else "s_waitcnt lgkmcnt(0)")
        if rr < 3:
            ra, rb = reads(rr+1); fill = rb + ra
        else: fill = []
        if rr == 3 and TMJ:
            for t in range(8):
                for i in range(t + 1):
                    A(f"v_mfma_f32_16x16x32_bf16 {vr(ACC+4*t,4)}, {vr(FA[fs]+4*i,4)}, {vr(FB[fs]+4*(t-i),4)}, {vr(ACC+4*t,4)}")
                for tw in {3: [0], 4: [1, 2], 5: [3], 6: [4], 7: [5, 6]}.get(t, []):
                    A(f"ds_write_b128 v{cRw}, {vr(ACC+4*tw,4)} offset:{1024*tw}")
        else:
          for i in range(8):
            if rr == 0 and i == CST: publish(sHfl2, 0); A("s_barrier")
            if rr == 0 and i == 1: A("s_waitcnt lgkmcnt(0)")
            for t in range(i, 8):
                c = "0" if (rr == 0 and i == 0) else vr(ACC+4*t, 4)
                A(f"v_mfma_f32_16x16x32_bf16 {vr(ACC+4*t,4)}, {vr(FA[fs]+4*i,4)}, {vr(FB[fs]+4*(t-i),4)}, {c}")
                if fill and not (rr == 0 and i == 0): A(fill.pop(0))
            if rr == 3 and 2 <= i <= 4:
                A(f"ds_write_b128 v{cRw}, {vr(ACC+4*(i-2),4)} offset:{1024*(i-2)}")
        assert not fill
        if rr == 0: pad("cv0")
        if rr == 2: pad("cv1")
    stamp(7)
    A("s_nop 5" if TMJ else "s_nop 3")
    for t in range(7 if TMJ else 3, 8):
        A(f"ds_write_b128 v{cRw}, {vr(ACC+4*t,4)} offset:{1024*t}")
    A(f"""
    s_mov_b64 exec, 1
    s_waitcnt lgkmcnt(0)
    ds_add_u32 v{cCnt}, v14
L_cv_sync:
    ds_read_b32 v2, v{cCnt}
    s_waitcnt lgkmcnt(0)
    v_cmp_gt_u32 vcc, 4, v2
    s_cbranch_vccz L_cv_go
    s_sub_u32 s{sSpin}, s{sSpin}, 1
    s_cmp_lt_i32 s{sSpin}, 0
    s_cbranch_scc0 L_cv_sync
L_cv_go:
    s_mov_b64 exec, -1
    """)
    for hh in range(2):
        for q in range(4):
            A(f"ds_read_b128 {vr(P+16*hh+4*q,4)}, v{cRr} offset:{8192*q + 4096*hh}")
    for hh in range(2):
        b = P + 16*hh
        A(f"s_waitcnt lgkmcnt({4 - 4*hh})")
        for k in range(4): A(f"v_add_f32 v{b+k}, v{b+k}, v{b+4+k}\nv_add_f32 v{b+8+k}, v{b+8+k}, v{b+12+k}")
        for k in range(4): A(f"v_cvt_pk_bf16_f32 v{Y+4*hh+k}, v{b+k}, v{b+8+k}")
    A(f"""
    buffer_store_dwordx4 {vr(Y,4)}, v{cS0}, s[20:23], s{sCga} offen sc1
    buffer_store_dwordx4 {vr(Y+4,4)}, v{cS1}, s[20:23], s{sCga} offen sc1
    s_mov_b64 exec, 1
    """)
    stamp(8)
    A(f"s_waitcnt vmcnt(0)\nbuffer_store_dword v14, v15, s[20:23], s{sCfl} offen sc1")
    stamp_flush()
    A("s_endpgm")

def gemm2(late):
    ACC = 192
    sH = [sH0, sH1]
    vm = Cnt("vmcnt", 63); lg = Cnt("lgkmcnt", 15)
    A(f"s_setprio {GPRIO}\nv_mov_b32 v{gR[0]}, v{vDo[0]}\nv_mov_b32 v{gR[1]}, v{vDo[1]}")
    def pieces(ks):
        return [(("w", k + 12), [x.replace(f"v{vDo[0]}", f"v{gR[0]}").replace(f"v{vDo[1]}", f"v{gR[1]}").replace("s47", "s3") for x in g])
                for k in ks for g in d_piece(k, k + 12)]
    lw = pieces(late)
    if SL4:
        for _ in range(8): vm.issue(*lw.pop(0))
        A("s_waitcnt vmcnt(8)")
        for k in G2[2:6]: A(wd_reads(k, STG[k], STG[k] + 4))
        for _ in range(8): vm.issue(*lw.pop(0))
        lw = pieces(G2[2:6])
        A("s_waitcnt lgkmcnt(0)")
    else:
        for _ in range(min(2*P1, len(lw))): vm.issue(*lw.pop(0))
    A(f"s_mov_b64 exec, 0x3fff\nbuffer_load_dword v2, v{gFl}, s[20:23], s{sFl} offen sc1\ns_mov_b64 exec, -1")
    vm.ops = []
    n2 = min(2*P2, len(lw))
    for _ in range(n2): vm.issue(*lw.pop(0))
    A(f"""
    s_movk_i32 s46, 4096
    s_mov_b64 exec, 0x3fff
    s_waitcnt vmcnt({n2})
L_g2_hpoll:
    v_cmp_eq_u32 vcc, 0, v2
    s_cbranch_vccz L_g2_hready
    s_mov_b64 exec, vcc
    s_sub_u32 s{sSpin}, s{sSpin}, 1
    s_cmp_lt_i32 s{sSpin}, 0
    s_cbranch_scc1 L_g2_hready
    buffer_load_dword v2, v{gFl}, s[20:23], s{sFl} offen sc1
    s_waitcnt vmcnt(0)
    s_branch L_g2_hpoll
L_g2_hready:
    s_mov_b64 exec, -1
    """)
    if XW: A(f"s_sleep {XW}")
    if XH:
        A(f"s_and_b32 s{sH0}, s{sH0}, 0xfffff\ns_and_b32 s{sH1}, s{sH1}, 0xfffff\ns_add_u32 s{sH0}, s{sH0}, 0x8000\ns_add_u32 s{sH1}, s{sH1}, 0x8000")
    stamp(6)
    free = [16 + 4*i for i in range(8)] + [176 + 4*i for i in range(4)]
    hreg = {}; wreg = {k: (STG[k], STG[k] + 4) for k in STG}
    nxt = [0]; wnx = [12]
    def h_issue(kc, n=99):
        while n > 0 and free and nxt[0] < 56 and (nxt[0] >> 1) < kc + min(HDMAX, HD + kc):
            n -= 1
            k, tt = nxt[0] >> 1, nxt[0] & 1
            r = free.pop(0); hreg[(k, tt)] = r
            vm.issue(("h", k), f"buffer_load_dwordx4 {vr(r,4)}, v{gL16}, {HSRD}, s{sH[tt]} offen offset:{(k & 3)*1024} sc1")
            if (k & 3) == 3 and k < 27:
                if tt == 0: A(f"s_cmp_eq_u32 s{sRho}, {24 - (k - 3)}\ns_cselect_b32 s47, {u32(4096 - 28672)}, s46")
                A(f"s_add_u32 s{sH[tt]}, s{sH[tt]}, s47")
            nxt[0] += 1
    h_issue(0)
    A(f"""
    v_and_b32 v{gFl}, 15, v1
    v_lshlrev_b32 v{gFl}, 9, v{gFl}
    s_lshl_b32 s{sFl}, s{sD}, 13
    s_lshr_b32 s4, s{sTok}, 3
    s_and_b32 s4, s4, 3
    s_lshl_b32 s4, s4, 7
    s_add_u32 s{sFl}, s{sFl}, s4
    s_add_u32 s{sFl}, s{sFl}, {WS_FLAG2}
    v_and_b32 v{gT}, 31, v1
    v_lshlrev_b32 v14, 2, v{gT}
    s_lshl_b32 s4, s{sTok}, 7
    s_add_u32 s5, s4, {WS_G}
    v_lshrrev_b32 v15, 5, v1
    v_lshl_add_u32 v3, v15, 15, v14
    s_lshl_b32 s6, s{sD}, 17
    s_add_u32 s6, s6, s4
    s_add_u32 s6, s6, {WS_GA}
    """)
    if O64:
        A(f"""
        v_and_b32 v{gT}, 15, v1
        v_lshlrev_b32 v{gT}, 10, v{gT}
        v_lshl_add_u32 v{gT}, v15, 4, v{gT}
        v_and_b32 v15, 16, v1
        v_lshl_add_u32 v{gT}, v15, 1, v{gT}
        """)
    else: A(f"v_lshlrev_b32 v{gT}, 10, v{gT}\nv_lshl_add_u32 v{gT}, v15, 4, v{gT}")
    A(f"""
    s_lshl_b32 s7, s{sTok}, 15
    s_lshl_b32 s4, s{sD}, 6
    s_add_u32 s7, s7, s4
    s_mov_b32 s12, s60
    s_mov_b32 s13, s61
    s_mov_b32 s14, 0x200000
    v_add_u32 v15, s{sLds}, v{gL16}
    """)
    GA = None; gal = []
    def cpoll(first):
        if first: A("s_branch L_g2_reload")
        A(f"""
L_g2_poll:
        v_cmp_eq_u32 vcc, 0, v2
        s_cbranch_vccz L_g2_ready
        s_sub_u32 s{sSpin}, s{sSpin}, 1
        s_cmp_lt_i32 s{sSpin}, 0
        s_cbranch_scc1 L_g2_ready
        s_mov_b64 exec, vcc
        s_sleep {SLP}
L_g2_reload:
        buffer_load_dword v2, v{gFl}, s[20:23], s{sFl} offen sc1
        s_waitcnt vmcnt(0)
        s_branch L_g2_poll
        """)
        pad("g22", inline=False)
        A("L_g2_ready:\ns_mov_b64 exec, -1")
    def mf(k, dd, tt):
        c = "0" if k == 0 else vr(ACC+16*(2*dd+tt), 16)
        A(f"v_mfma_f32_32x32x16_bf16 {vr(ACC+16*(2*dd+tt),16)}, {vr(wreg[k][dd],4)}, {vr(hreg[(k,tt)],4)}, {c}")
    for k in range(24):
        pre = []
        vm.wait({("h", k)})
        if k in (0, 8, 12, 18): stamp({0: 1, 8: 2, 12: 3, 18: 4}[k], 1)
        lg.wait({("w", k)})
        if k >= WLA and wnx[0] < 24:
            kn = wnx[0]; wnx[0] += 1
            vm.wait({("w", kn)})
            wreg[kn] = (free.pop(), free.pop())
            pre = [] if XNR else [(("w", kn), x) for x in wd_reads(kn - 12, *wreg[kn])]
        for n, (dd, tt) in enumerate(((0,0),(0,1),(1,0),(1,1))):
            mf(k, dd, tt)
            if n in (0, 2): h_issue(k + 1, 1)
            elif lw: vm.issue(*lw.pop(0))
            if pre: lg.issue(*pre.pop(0))
            if gal: vm.issue("ga", gal.pop(0))
        free += [hreg[(k,0)], hreg[(k,1)], wreg[k][0], wreg[k][1]]
        h_issue(k + 1)
        if k == 8: pad("g21")
        if k == FK: vm.issue("f", f"buffer_load_dword v2, v{gFl}, s[20:23], s{sFl} offen sc1")
        if k == CK:
            stamp(7)
            vm.wait({"f"})
            assert nxt[0] == 56
            fr = sorted(free)
            GA = next(r for r in fr if r + 4 in fr and r >= 96)
            free.remove(GA); free.remove(GA + 4)
            gl = ["buffer_load_dword v4, v14, s[20:23], s5 offen sc1"]
            for m in range(8):
                gl.append(f"buffer_load_dword v{GA+m}, v3, s[20:23], s6 offen sc1" + (f"\ns_add_u32 s6, s6, {8192 if (m & 3) != 3 else 5*8192}" if m < 7 else ""))
            if NBK:
                A(f"""
                v_cmp_eq_u32 vcc, 0, v2
                s_mov_b32 s{sT}, s6
                s_cmp_eq_u64 vcc, 0
                s_cselect_b32 s6, s6, 0x40000000
                s_cselect_b32 s{sWd}, 0, 1
                """)
            else: cpoll(False)
            gal = list(gl)
    assert wnx[0] == 24
    A("v_xor_b32 v8, 0x1000, v15\nv_xor_b32 v9, 0x2000, v15\nv_xor_b32 v10, 0x3000, v15")
    vm.wait({("h", 27)})
    pend = []
    for x in (1, 2, 3, 0):
        for i, k in enumerate(range(24, 28)):
            mf(k, x >> 1, x & 1)
            if gal: vm.issue("ga", gal.pop(0))
            if pend:
                if i == 0: A("s_nop 7")
                elif i == 1: A("s_nop 1"); A(pend[0:2])
                elif i == 2: A(pend[2:4])
        pend = [f"ds_write_b128 v15, {vr(ACC+16*x+4*i,4)} offset:{(x-1)*16384 + 1024*i}" for i in range(4)] if x else []
    assert not gal and not lw
    stamp(8)
    if NBK:
        A(f"s_cmp_eq_u32 s{sWd}, 0\ns_cbranch_scc1 L_g2_have")
        cpoll(True)
        A(f"s_mov_b32 s6, s{sT}"); A(gl)
        A("L_g2_have:")
    def unpack():
        A("s_waitcnt vmcnt(0)\nv_lshlrev_b32 v5, 16, v4\nv_and_b32 v4, 0xffff0000, v4")
        for p in range(8):
            A(f"v_lshlrev_b32 v{80+2*p}, 16, v{GA+p}\nv_and_b32 v{81+2*p}, 0xffff0000, v{GA+p}")
        for p in range(8):
            A(f"v_pk_mul_f32 {vr(80+2*p,2)}, {vr(80+2*p,2)}, v[4:5] op_sel:[0,1]")
    if TRO == 0: unpack()
    A("s_waitcnt lgkmcnt(0)\ns_barrier")
    for x in range(3):
        for i in range(4):
            A(f"ds_read_b128 {vr(32+16*x+4*i,4)}, v{8+x} offset:{x*16384 + 1024*i}")
    if TRO == 1: unpack()
    for x in range(3):
        A(f"s_waitcnt lgkmcnt({8 - 4*x})")
        for p in range(8):
            A(f"v_pk_add_f32 {vr(ACC+2*p,2)}, {vr(ACC+2*p,2)}, {vr(32+16*x+2*p,2)}")
    if TRO == 2: unpack()
    for p in range(8):
        A(f"v_pk_fma_f32 {vr(32+2*p,2)}, {vr(ACC+2*p,2)}, v[4:5], {vr(80+2*p,2)} op_sel_hi:[1,0,1]")
    for p in range(8):
        A(f"v_cvt_pk_bf16_f32 v{24+p}, v{32+2*p}, v{33+2*p}")
    if O64:
        A("s_add_u32 s4, s7, 16384\ns_nop 0")
        for i in range(4): A(f"v_permlane16_swap_b32 v{24+i}, v{28+i}")
        A(f"buffer_store_dwordx4 v[24:27], v{gT}, s[12:15], s7 offen {OST}\nbuffer_store_dwordx4 v[28:31], v{gT}, s[12:15], s4 offen {OST}")
    else:
        A(f"buffer_store_dwordx4 v[24:27], v{gT}, s[12:15], s7 offen {OST}\nbuffer_store_dwordx4 v[28:31], v{gT}, s[12:15], s7 offen offset:32 {OST}")
    stamp_flush()
    A("s_endpgm")

def main():
    order = [["rb", "su", "tb0", "rb1"], ["rb2", "g1b", "ea0", "ea1"], ["cv0", "cv1", "g21", "g22"]]
    for r, names in enumerate(order):
        for w, n in enumerate(names): PLAN[n] = (r, w if (r == 1 and WA) else 4 + w)
    A('.amdgcn_target "amdgcn-amd-amdhsa--gfx950"\n.text')
    A(f".globl {KNAME}\n.p2align 12\n.type {KNAME},@function\n{KNAME}:")
    if STAMP:
        for i in range(NST): A(f"s_mov_b32 s{80+2*i}, 0")
    stamp(0)
    A("s_cmp_ge_u32 s2, 256\ns_cbranch_scc1 L_exit")
    prologue()
    role_a()
    pad("rb", inline=False)
    role_b()
    mover()
    A("L_exit:\n    s_endpgm")
    assert not STUBS or PADS == set(PLAN), set(PLAN) - PADS
    A(f""".section .rodata,"a"
.p2align 6
.amdhsa_kernel {KNAME}
  .amdhsa_next_free_vgpr 256
  .amdhsa_next_free_sgpr 102
  .amdhsa_accum_offset 256
  .amdhsa_group_segment_fixed_size 0
  .amdhsa_kernarg_size 136
  .amdhsa_user_sgpr_count 2
  .amdhsa_user_sgpr_kernarg_segment_ptr 1
  .amdhsa_system_sgpr_workgroup_id_x 1
.end_amdhsa_kernel""")
    open(sys.argv[1], "w").write(HEADER + "\n".join(L) + "\n")

main()
```
